```python
import torch

def _softmax(x, axis=-1):
    return torch.softmax(x, dim=axis)
def _gelu(x):
    return torch.nn.functional.gelu(x, approximate="tanh")
def _silu(x):
    return torch.nn.functional.silu(x)
def _sigmoid(x):
    return torch.sigmoid(x)
def _layernorm(x, axis=-1, eps=1e-5):
    m = x.mean(dim=axis, keepdim=True)
    v = x.var(dim=axis, keepdim=True, unbiased=False)
    return (x - m) / torch.sqrt(v + eps)
def _scatter_add(tgt, idx, src, axis=0):
    return tgt.clone().index_add_(axis, idx, src)
def _segment_sum(src, seg, n):
    out = torch.zeros((n,) + src.shape[1:], dtype=src.dtype)
    return out.index_add_(0, seg, src)
def _pad(x, pw):
    flat = tuple(v for pair in reversed(pw) for v in pair)
    return torch.nn.functional.pad(x, flat)

kernel_name = 'sequential_preLN__gqa_block_cached__glu_gated_bilinear__decode'

def setup_inputs():

    _w = (lambda a: (lambda t: t.to(torch.bfloat16) if t.is_floating_point() else t)(torch.as_tensor(a)))
    def _A_setup():
        B, Sq, D = 1, 1, 512
        Hq, Hkv, Sk, Dh = 32, 8, 65536, 128
        assert Hq % Hkv == 0, (Hq, Hkv)
        return {
            "x": _w((lambda *s: torch.randn(*s, dtype=torch.bfloat16) * 0.05)(B, Sq, D)),
            "k_cache": _w((lambda *s: torch.randn(*s, dtype=torch.bfloat16) * 3.2)(B, Hkv, Sk, Dh)),
            "v_cache": _w((lambda *s: torch.randn(*s, dtype=torch.bfloat16) * 1.6)(B, Hkv, Sk, Dh)),
            "wq": _w((lambda *s: torch.randn(*s, dtype=torch.bfloat16) * 3.2)(D, Hq * Dh) * (D ** -0.5)),
            "wo": _w((lambda *s: torch.randn(*s, dtype=torch.bfloat16) * 1.6)(Hq * Dh, D) * ((Hq * Dh) ** -0.5)),
        }
    _A_in = _A_setup()

    def _B_setup():
        B, S, D, F = 1, 1, 512, 1792
        return {
            "x": _w((lambda *s: torch.randn(*s, dtype=torch.bfloat16) * 0.05)(B, S, D)),
            "w_gate": _w((lambda *s: torch.randn(*s, dtype=torch.bfloat16) * 1.6)(D, F) * (D ** -0.5)),
            "w_up": _w((lambda *s: torch.randn(*s, dtype=torch.bfloat16) * 1.6)(D, F) * (D ** -0.5)),
            "w_down": _w((lambda *s: torch.randn(*s, dtype=torch.bfloat16) * 1.6)(F, D) * (F ** -0.5)),
        }
    _B_in = _B_setup()

    return {
        "A_x": _A_in["x"],
        "A_k_cache": _A_in["k_cache"],
        "A_v_cache": _A_in["v_cache"],
        "A_wq": _A_in["wq"],
        "A_wo": _A_in["wo"],
        "B_x": _B_in["x"],
        "B_w_gate": _B_in["w_gate"],
        "B_w_up": _B_in["w_up"],
        "B_w_down": _B_in["w_down"],
    }

def reference(A_x, A_k_cache, A_v_cache, A_wq, A_wo, B_x, B_w_gate, B_w_up, B_w_down):
    def _A_ref(x, k_cache, v_cache, wq, wo):
        B, Sq, D = x.shape
        Hq, Dh = 32, 128
        Hkv = k_cache.shape[1]
        rep = Hq // Hkv
        q = (lambda x, *d: x.permute(*d))((x @ wq).reshape(B, Sq, Hq, Dh), 0, 2, 1, 3)
        k = (lambda x, n, axis: torch.repeat_interleave(x, n, dim=axis))(k_cache, rep, axis=1)
        v = (lambda x, n, axis: torch.repeat_interleave(x, n, dim=axis))(v_cache, rep, axis=1)
        scores = torch.einsum("bhqd,bhkd->bhqk", q, k) * (Dh ** -0.5)
        p = _softmax(scores, axis=-1)
        o = torch.einsum("bhqk,bhkd->bhqd", p, v)
        return (lambda x, *d: x.permute(*d))(o, 0, 2, 1, 3).reshape(B, Sq, Hq * Dh) @ wo

    def _B_ref(x, w_gate, w_up, w_down):
        g = torch.einsum("bsd,df->bsf", x, w_gate)
        u = torch.einsum("bsd,df->bsf", x, w_up)
        h = g * u
        return torch.einsum("bsf,fd->bsd", h, w_down)

    x = A_x
    h = x + _A_ref(_layernorm(x, axis=-1), A_k_cache, A_v_cache, A_wq, A_wo)
    h2 = h + _B_ref(_layernorm(h, axis=-1), B_w_gate, B_w_up, B_w_down)
    return h2
```

```python
import re

def _regs(tok):
    tok = tok.strip()
    neg = tok.lstrip('-')
    if neg.startswith('abs(') or neg.startswith('|'):
        neg = neg.strip('|')
        neg = neg.replace('abs(', '').rstrip(')')
    m = re.fullmatch(r'([vsa])(\d+)', neg)
    if m: return {(m.group(1), int(m.group(2)))}
    m = re.fullmatch(r'([vsa])\[(\d+):(\d+)\]', neg)
    if m: return {(m.group(1), i) for i in range(int(m.group(2)), int(m.group(3)) + 1)}
    if neg == 'vcc': return {('s', 'vcc')}
    if neg == 'exec': return {('s', 'exec')}
    if neg == 'm0': return {('s', 'm0')}
    return set()

TRANS = ('v_exp_f32', 'v_log_f32', 'v_rcp_f32', 'v_rsq_f32', 'v_sqrt_f32', 'v_sin_f32', 'v_cos_f32')

class Ins:
    def __init__(self, text):
        self.text = text
        t = text.split(';')[0].strip()
        parts = t.split(None, 1)
        self.mn = parts[0]
        rest = parts[1] if len(parts) > 1 else ''
        ops = []; cur = ''; depth = 0
        for ch in rest:
            if ch in '[(': depth += 1
            if ch in '])': depth -= 1
            if ch == ',' and depth == 0: ops.append(cur.strip()); cur = ''
            else: cur += ch
        if cur.strip(): ops.append(cur.strip())
        mods = ''
        if ops:
            sp = ops[-1].split(None, 1)
            ops[-1] = sp[0]
            mods = sp[1] if len(sp) > 1 else ''
        self.ops = ops; self.mods = mods
        mn = self.mn
        self.is_mfma = mn.startswith('v_mfma')
        self.is_valu = mn.startswith('v_') and not self.is_mfma
        self.is_dpp = '_dpp' in mn
        self.is_perml = mn.startswith('v_permlane')
        self.is_trans = any(mn.startswith(x) for x in TRANS)
        self.is_dot = mn.startswith('v_dot')
        self.is_rdlane = mn.startswith('v_readfirstlane') or mn.startswith('v_readlane')
        self.is_vmem = mn.startswith(('buffer_', 'global_', 'flat_'))
        self.is_ds = mn.startswith('ds_')
        self.is_salu = mn.startswith('s_')
        self.is_ldsdma = self.is_vmem and ('_lds_' in mn or ' lds' in (' ' + mods))
        R = [_regs(o) for o in ops]
        W = set(); Rd = set()
        self.srcC = set(); self.srcAB = set()
        if self.is_mfma:
            W = R[0]; self.srcAB = R[1] | R[2]; self.srcC = R[3]; Rd = self.srcAB | self.srcC
        elif self.is_valu:
            if self.is_perml:
                W = R[0] | R[1]; Rd = set(W)
            elif mn.startswith(('v_add_co', 'v_sub_co', 'v_addc_co', 'v_subb_co')):
                W = R[0] | R[1]; Rd = set().union(*R[2:])
            else:
                W = R[0]; Rd = set().union(*R[1:]) if len(R) > 1 else set()
                if mn.startswith(('v_fmac', 'v_dot2c')): Rd |= R[0]
                if mn.startswith('v_cndmask') and len(ops) == 3: Rd |= {('s', 'vcc')}
        elif self.is_vmem:
            if 'store' in mn or self.is_ldsdma or ('atomic' in mn and 'sc0' not in mods):
                Rd = set().union(*R)
            else:
                W = R[0]; Rd = set().union(*R[1:])
        elif self.is_ds:
            if 'write' in mn: Rd = set().union(*R)
            else: W = R[0]; Rd = set().union(*R[1:])
        elif self.is_salu:
            if mn.startswith(('s_cmp', 's_cbranch', 's_branch', 's_waitcnt', 's_nop', 's_barrier', 's_sleep', 's_setprio', 's_endpgm', 's_bitcmp')):
                Rd = set().union(*R) if R else set()
            else:
                W = R[0] if R else set(); Rd = set().union(*R[1:]) if len(R) > 1 else set()
                if 'saveexec' in mn: W = W | {('s', 'exec')}
        self.W = W; self.R = Rd
        self.wide_store = self.is_vmem and 'store' in mn and ('x4' in mn or 'x3' in mn)
        self.store_data = set()
        if self.wide_store:
            self.store_data = R[0] if mn.startswith('buffer') else R[1]
        self.states = 1
        if mn == 's_nop': self.states = int(ops[0], 0) + 1
        self.passes = 4
        if self.is_mfma and '32x32' in mn: self.passes = 8

def need(p, c):
    n = 0
    pv = {r for r in p.W if r[0] in 'va'}
    ps = {r for r in p.W if r[0] == 's'}
    if p.is_valu:
        if pv & c.R:
            if c.is_dpp or c.is_perml or c.is_mfma: n = max(n, 2)
            if c.is_rdlane: n = max(n, 1)
            if p.is_trans and c.is_valu and not c.is_trans: n = max(n, 1)
            if p.is_trans and (c.is_valu or c.is_mfma): n = max(n, 1)
        if p.is_dot and (pv & (c.R | c.W)) and not (c.mn == p.mn):
            n = max(n, 3)
        if p.is_dot and c.mn == p.mn and (pv & (c.R - c.W)): n = max(n, 3)
        if ps & c.R:
            if c.is_valu or c.is_mfma: n = max(n, 2)
            if c.is_rdlane: n = max(n, 4)
            if c.is_vmem: n = max(n, 5)
            if c.is_salu: n = max(n, 1)
    if p.is_mfma:
        big = {4: 8, 8: 12}[p.passes]
        if c.is_mfma:
            if pv & c.srcAB: n = max(n, big)
            if pv & c.srcC and c.srcC != p.W: n = max(n, big - 2)
            if pv & c.W and not (c.srcC == p.W): n = max(n, big - 2) if (pv & c.srcC) else n
        else:
            if pv & (c.R | c.W): n = max(n, big)
        if c.is_valu and (p.srcC & c.W): n = max(n, {4: 3, 8: 7}[p.passes])
    if p.is_salu and ('s', 'm0') in p.W and c.is_ldsdma: n = max(n, 1)
    if p.wide_store and (p.store_data & c.W): n = max(n, 2)
    return n

class Asm:
    def __init__(self):
        self.lines = []
        self.hist = []
        self.nops = 0
    def raw(self, s): self.lines.append(s)
    def label(self, s):
        self.lines.append(s + ':')
    def fence(self, n=12):
        self.hist = []
    def __call__(self, text):
        for t in text.split('\n'):
            t = t.strip()
            if not t: continue
            if t.startswith(';') or t.startswith('.') or t.endswith(':'):
                self.lines.append(t); continue
            c = Ins(t)
            dist = 0; pad = 0
            for p in reversed(self.hist):
                k = need(p, c)
                if k > dist: pad = max(pad, k - dist)
                dist += p.states
                if dist >= 20: break
            if pad:
                nop = Ins(f's_nop {pad-1}')
                self.lines.append('    ' + nop.text); self.hist.append(nop); self.nops += 1
            self.lines.append('    ' + t); self.hist.append(c)
            if len(self.hist) > 40: self.hist = self.hist[-40:]
            if c.mn in ('s_branch', 's_endpgm'): self.hist = []
    def opt(self, text):
        self(text)
        self.hist[-1].states = 0
    def text(self): return '\n'.join(self.lines) + '\n'
```

```python
import sys
sys.path.insert(0, "work")
from asmlib import Asm

NAME = "sequential_preLN__gqa_block_cached__glu_gated_bilinear__decode_kernel"

WS_EPOCH = 0
WS_Q = 0x1000
WS_PART = 0x10000
PREC = 2176
WS_A1 = 0xA0000
WS_D2 = 0xB0000
WS_STAMP = 0x800000
L_WTS = 0
WPW = 12 * 1024
L_Q = 8 * WPW
L_ACC = L_Q + 1024
L_MS = L_ACC + 16384
L_RED = L_MS + 256
L_STAT = L_RED + 4096
L_TOTAL = L_STAT + 256

KV_BYTES = 128 << 20

def gen(debug=False, nitems=8, opts=None):
    opts = opts or {}
    A = Asm(); e = A
    stamps = []
    def stamp(i):
        if debug:
            e(f"s_memrealtime s[{80+2*i}:{81+2*i}]")
    sX, sK, sV, sWQ, sWO, sWG, sWU, sWD, sOUT, sDBG, sWS = 8, 10, 12, 14, 16, 20, 22, 24, 26, 28, 30
    def sp(n): return f"s[{n}:{n+1}]"
    sW = "s3"; sG = "s4"; sC = "s5"
    srdK = "s[32:35]"; srdV = "s[36:39]"; srdW = "s[40:43]"
    sScale, sL2E, sSelLo, sSelHi = "s44", "s45", "s46", "s47"
    sO = ["s48", "s49", "s50", "s51"]
    sT = ["s52", "s53", "s54", "s55", "s56", "s57", "s58", "s59"]
    sTag = "s60"; sRole = "s61"; sIdx = "s62"; sCnt = "s63"; sTO = "s64"
    sEx = "s[66:67]"
    vLane = "v1"; vKo = "v2"; vVo = "v3"
    ACC = 4; PV_ = 12; BQ = 28; T = 44; M = 76
    vX0, vX1, vY0, vY1, vS0, vS1, vML, vL, va, vb, vc, vd, vMSa, vf = [f"v{M+i}" for i in range(14)]
    vKo2 = "v90"; vVo2 = "v91"
    RB = [128, 160, 192, 224]
    def vr(a, n=4): return f"v[{a}:{a+n-1}]"
    DPPF = "row_mask:0xf bank_mask:0xf"

    A.raw(f"; @launch grid=(256,1,1) block=(512,1,1) lds={L_TOTAL}")
    A.raw('.amdgcn_target "amdgcn-amd-amdhsa--gfx950"')
    A.raw(".text"); A.raw(f".globl {NAME}"); A.raw(".p2align 8"); A.raw(f".type {NAME},@function"); A.label(NAME)
    e("s_cmp_ge_u32 s2, 256"); e("s_cbranch_scc1 L_end")
    e("s_load_dwordx16 s[8:23], s[0:1], 0")
    e("s_load_dwordx8 s[24:31], s[0:1], 64")
    stamp(0)
    e(f"v_lshrrev_b32 v2, 6, v0"); e(f"v_and_b32 {vLane}, 63, v0")
    e(f"v_readfirstlane_b32 {sW}, v2")
    e(f"s_lshr_b32 {sG}, s2, 5"); e(f"s_and_b32 {sC}, s2, 31")
    e(f"s_mov_b32 {sSelLo}, 0x05040100"); e(f"s_mov_b32 {sSelHi}, 0x07060302")
    e(f"s_mov_b32 {sTO}, 0x400000")
    e(f"s_mov_b32 {sRole}, 0"); e(f"s_mov_b32 {sIdx}, 0")
    e(f"s_lshl_b32 {sT[0]}, {sG}, 1"); e(f"s_add_u32 {sT[0]}, {sT[0]}, {sC}"); e(f"s_sub_u32 {sT[0]}, {sT[0]}, 15")
    e(f"s_cmp_lt_u32 {sC}, 17"); e(f"s_cselect_b32 {sRole}, 3, {sRole}"); e(f"s_cselect_b32 {sIdx}, {sT[0]}, {sIdx}")
    e(f"s_mul_i32 {sT[0]}, {sG}, 7"); e(f"s_add_u32 {sT[0]}, {sT[0]}, {sC}"); e(f"s_sub_u32 {sT[0]}, {sT[0]}, 8")
    e(f"s_cmp_lt_u32 {sC}, 15"); e(f"s_cselect_b32 {sRole}, 2, {sRole}"); e(f"s_cselect_b32 {sIdx}, {sT[0]}, {sIdx}")
    e(f"s_cmp_lt_u32 {sC}, 8"); e(f"s_cselect_b32 {sRole}, 1, {sRole}"); e(f"s_cselect_b32 {sIdx}, {sC}, {sIdx}")
    e(f"s_cmp_eq_u32 {sW}, 0"); e("s_cbranch_scc1 L_qwave")

    A.label("L_fill")
    e(f"v_lshlrev_b32 {vVo}, 4, {vLane}")
    e(f"v_lshrrev_b32 v5, 4, {vLane}"); e("v_lshlrev_b32 v5, 6, v5")
    e(f"v_bfe_u32 v6, {vLane}, 2, 2"); e("v_lshlrev_b32 v6, 8, v6")
    e(f"v_and_b32 v7, 3, {vLane}"); e("v_lshlrev_b32 v7, 4, v7")
    e(f"v_add3_u32 {vKo}, v5, v6, v7")
    e(f"v_add_u32 {vKo2}, 0x1000, {vKo}"); e(f"v_add_u32 {vVo2}, 0x1000, {vVo}")
    e(f"s_lshl_b32 {sO[0]}, {sG}, 24"); e(f"s_lshl_b32 {sT[0]}, {sC}, 19"); e(f"s_add_u32 {sO[0]}, {sO[0]}, {sT[0]}")
    e(f"s_lshl_b32 {sT[0]}, {sW}, 13"); e(f"s_add_u32 {sO[0]}, {sO[0]}, {sT[0]}")
    e(f"s_add_u32 {sO[1]}, {sO[0]}, 0x10000"); e(f"s_add_u32 {sO[2]}, {sO[0]}, 0x20000"); e(f"s_add_u32 {sO[3]}, {sO[0]}, 0x30000")
    e(f"s_mov_b32 s34, {KV_BYTES}"); e("s_mov_b32 s35, 0x20000"); e(f"s_mov_b32 s38, {KV_BYTES}"); e("s_mov_b32 s39, 0x20000")
    e("s_waitcnt lgkmcnt(0)")
    e(f"s_mov_b32 s32, s{sK}"); e(f"s_mov_b32 s33, s{sK+1}"); e(f"s_mov_b32 s36, s{sV}"); e(f"s_mov_b32 s37, s{sV+1}")
    def ldK(bank, n, so):
        e(f"buffer_load_dwordx4 {vr(RB[bank]+4*n)}, {vKo if n < 4 else vKo2}, {srdK}, {so} offen offset:{(n%4)*1024} nt")
    def ldV(bank, n, so):
        e(f"buffer_load_dwordx4 {vr(RB[bank]+4*n)}, {vVo if n < 4 else vVo2}, {srdV}, {so} offen offset:{(n%4)*1024} nt")
    for n in range(8): ldK(0, n, sO[0])
    for n in range(8): ldK(1, n, sO[1])
    for n in range(8): ldV(2, n, sO[0])
    for n in range(8): ldK(3, n, sO[2])
    stamp(1)
    e(f"s_mul_i32 {sT[1]}, {sW}, {WPW}")
    e(f"s_cmp_eq_u32 {sRole}, 1"); e("s_cbranch_scc0 L_now1")
    e(f"s_mov_b32 s40, s{sWO}"); e(f"s_mov_b32 s41, s{sWO+1}"); e(f"s_mov_b32 s42, {4096*1024}"); e("s_mov_b32 s43, 0x20000")
    e(f"v_bfe_u32 v5, {vLane}, 4, 1"); e("v_lshlrev_b32 v5, 18, v5")
    e(f"v_lshrrev_b32 v6, 5, {vLane}"); e("v_lshlrev_b32 v6, 10, v6")
    e(f"v_and_b32 v7, 15, {vLane}"); e("v_lshlrev_b32 v7, 4, v7")
    e("v_add3_u32 v5, v5, v6, v7")
    e(f"s_lshl_b32 {sT[2]}, {sG}, 9")
    e(f"s_lshr_b32 {sT[3]}, {sW}, 1"); e(f"s_lshl_b32 {sT[3]}, {sT[3]}, 5"); e(f"s_add_u32 {sT[2]}, {sT[2]}, {sT[3]}")
    e(f"s_and_b32 {sT[3]}, {sIdx}, 4"); e(f"s_add_u32 {sT[2]}, {sT[2]}, {sT[3]}")
    e(f"s_and_b32 {sT[3]}, {sW}, 1"); e(f"s_lshl_b32 {sT[3]}, {sT[3]}, 1"); e(f"s_add_u32 {sT[2]}, {sT[2]}, {sT[3]}")
    e(f"s_lshl_b32 {sT[2]}, {sT[2]}, 10")
    e(f"s_and_b32 {sT[3]}, {sIdx}, 3"); e(f"s_lshl_b32 {sT[3]}, {sT[3]}, 8"); e(f"s_add_u32 {sT[2]}, {sT[2]}, {sT[3]}")
    for ep in range(8):
        e(f"s_add_u32 {sT[3]}, {sT[2]}, {(128*(ep>>2) + 8*(ep&3))*1024}")
        e(f"s_add_u32 m0, {sT[1]}, {ep*1024}")
        e(f"buffer_load_dwordx4 v5, {srdW}, {sT[3]} offen nt lds")
    e("s_branch L_wdone")
    A.label("L_now1")
    e(f"s_cmp_eq_u32 {sRole}, 2"); e("s_cbranch_scc0 L_wdone")
    e(f"v_lshrrev_b32 v5, 4, {vLane}"); e("v_lshlrev_b32 v5, 4, v5")
    e(f"v_and_b32 v6, 8, {vLane}"); e("v_add_u32 v5, v5, v6")
    e(f"s_lshl_b32 {sT[2]}, {sW}, 6"); e(f"v_add_u32 v5, {sT[2]}, v5")
    e("v_mul_u32_u24 v5, 3584, v5")
    e(f"v_and_b32 v6, 3, {vLane}"); e("v_lshlrev_b32 v6, 4, v6")
    e(f"s_lshl_b32 {sT[2]}, {sIdx}, 6"); e(f"v_add3_u32 v5, v5, v6, {sT[2]}")
    e(f"v_and_b32 v6, 4, {vLane}"); e("v_cmp_eq_u32 vcc, 0, v6")
    e(f"v_mov_b32 v6, s{sWU}"); e(f"v_mov_b32 v8, s{sWG}"); e("v_cndmask_b32 v6, v6, v8, vcc")
    e(f"v_mov_b32 v7, s{sWU+1}"); e(f"v_mov_b32 v8, s{sWG+1}"); e("v_cndmask_b32 v7, v7, v8, vcc")
    e("v_add_co_u32 v6, vcc, v6, v5"); e("v_addc_co_u32 v7, vcc, 0, v7, vcc")
    for ep in range(8):
        e(f"s_add_u32 m0, {sT[1]}, {ep*1024}")
        e(f"global_load_lds_dwordx4 v[6:7], off nt")
        if ep < 7:
            e("v_add_co_u32 v6, vcc, 3584, v6"); e("v_addc_co_u32 v7, vcc, 0, v7, vcc")
    e(f"s_mov_b32 s40, s{sWD}"); e(f"s_mov_b32 s41, s{sWD+1}"); e(f"s_mov_b32 s42, {1792*1024}"); e("s_mov_b32 s43, 0x20000")
    e(f"v_lshrrev_b32 v5, 4, {vLane}"); e("v_lshlrev_b32 v5, 13, v5")
    e(f"v_and_b32 v6, 8, {vLane}"); e("v_lshlrev_b32 v6, 9, v6")
    e(f"v_and_b32 v7, 7, {vLane}"); e("v_lshlrev_b32 v7, 4, v7")
    e("v_add3_u32 v5, v5, v6, v7")
    e(f"s_lshl_b32 {sT[2]}, {sIdx}, 15"); e(f"s_lshl_b32 {sT[3]}, {sW}, 7"); e(f"s_add_u32 {sT[2]}, {sT[2]}, {sT[3]}")
    e(f"s_add_u32 m0, {sT[1]}, {8*1024}")
    for ep in range(4):
        e(f"buffer_load_dwordx4 v5, {srdW}, {sT[2]} offen offset:{ep*1024} nt lds")
    A.label("L_wdone")
    e(f"s_mov_b32 {sScale}, 0x3db504f3")
    e(f"s_mov_b32 {sL2E}, 0x3fb8aa3b")
    for i in range(8): e(f"v_mov_b32 v{ACC+i}, 0")
    for i in range(16): e(f"v_mov_b32 v{PV_+i}, 0")
    e(f"v_mov_b32 {vML}, 0xff800000"); e(f"v_mov_b32 {vL}, 0")
    e(f"v_and_b32 {vMSa}, 3, {vLane}"); e(f"v_lshlrev_b32 {vMSa}, 5, {vMSa}")
    e(f"s_lshl_b32 {sT[0]}, {sW}, 2"); e(f"s_add_u32 {sT[0]}, {sT[0]}, {L_MS}"); e(f"v_add_u32 {vMSa}, {sT[0]}, {vMSa}")
    e(f"v_and_b32 {va}, 3, {vLane}"); e(f"v_lshlrev_b32 {va}, 8, {va}")
    e(f"v_lshrrev_b32 {vb}, 4, {vLane}"); e(f"v_lshlrev_b32 {vb}, 6, {vb}")
    e(f"s_mov_b32 {sT[0]}, {L_Q}")
    e(f"v_add3_u32 {va}, {va}, {vb}, {sT[0]}")
    e(f"v_bfe_u32 {vb}, {vLane}, 2, 2")
    for m in range(4):
        e(f"v_subrev_u32 {vc}, {m}, {vb}"); e(f"v_and_b32 {vc}, 3, {vc}")
        e(f"v_lshl_add_u32 v{T+m}, {vc}, 4, {va}")
    e(f"s_mov_b32 {sCnt}, {nitems}")
    e(f"s_cmp_eq_u32 {sW}, 0"); e("s_cbranch_scc1 L_nobar")
    e("s_barrier")
    A.label("L_nobar")
    for m in range(4): e(f"ds_read_b128 {vr(BQ+4*m)}, v{T+m}")
    stamp(2)
    e("s_waitcnt lgkmcnt(0)")

    def QK(bank, refill):
        for n in range(8):
            e("s_waitcnt vmcnt(31)")
            e(f"v_mfma_f32_16x16x32_bf16 {vr(T+4*n)}, {vr(RB[bank]+4*n)}, {vr(BQ+4*(n&3))}, 0")
            refill(n)
        for n in range(8):
            t, m = n >> 2, n & 3
            X = (vX0, vX1)[t]; Y = (vY0, vY1)[t]; D = T + 4 * n
            e(f"v_add_f32_dpp {Y}, v{D+3}, v{D+1} row_ror:8 row_mask:0xf bank_mask:{1 << ((m+1)&3):#x}")
            e(f"v_add_f32_dpp {X}, v{D+2}, v{D} row_ror:8 row_mask:0xf bank_mask:{1 << m:#x}")
        e(f"v_add_f32_dpp {vX0}, {vY0}, {vX0} row_ror:12 {DPPF}")
        e(f"v_add_f32_dpp {vX1}, {vY1}, {vX1} row_ror:12 {DPPF}")
        e(f"v_cvt_pk_bf16_f32 {vY0}, {vX0}, {vX1}")
        e(f"v_lshlrev_b32 {vX0}, 16, {vY0}"); e(f"v_and_b32 {vX1}, 0xffff0000, {vY0}")
        e(f"v_mul_f32 {vX0}, {sScale}, {vX0}"); e(f"v_mul_f32 {vX1}, {sScale}, {vX1}")
        e(f"v_cvt_pk_bf16_f32 {vY0}, {vX0}, {vX1}")
        e(f"v_lshlrev_b32 {vS0}, 16, {vY0}"); e(f"v_and_b32 {vS1}, 0xffff0000, {vY0}")
    def xlane(op, r, tmp):
        e(f"v_{op}_f32_dpp {r}, {r}, {r} row_ror:8 {DPPF}")
        e(f"v_{op}_f32_dpp {r}, {r}, {r} row_ror:4 {DPPF}")
        e(f"v_mov_b32 {tmp}, {r}"); e(f"v_permlane16_swap_b32 {tmp}, {r}"); e(f"v_{op}_f32 {r}, {tmp}, {r}")
        e(f"v_mov_b32 {tmp}, {r}"); e(f"v_permlane32_swap_b32 {tmp}, {r}"); e(f"v_{op}_f32 {r}, {tmp}, {r}")
    def SM():
        e(f"v_max_f32 {va}, {vS0}, {vS1}")
        xlane("max", va, vb)
        e(f"v_mul_f32 {va}, {sL2E}, {va}")
        e(f"v_max_f32 {va}, {va}, {vML}")
        e(f"v_sub_f32 {vf}, {vML}, {va}")
        e(f"v_fma_f32 {vc}, {vS0}, {sL2E}, -{va}")
        e(f"v_fma_f32 {vd}, {vS1}, {sL2E}, -{va}")
        e(f"v_exp_f32 {vf}, {vf}"); e(f"v_exp_f32 {vc}, {vc}"); e(f"v_exp_f32 {vd}, {vd}")
        e(f"v_mov_b32 {vML}, {va}")
        for i in range(8): e(f"v_mul_f32 v{ACC+i}, {vf}, v{ACC+i}")
        e(f"v_add_f32 {va}, {vc}, {vd}")
        e(f"v_mov_b32_dpp {vX0}, {vc} row_ror:12 {DPPF}")
        e(f"v_mov_b32_dpp {vX1}, {vd} row_ror:12 {DPPF}")
        e(f"v_cvt_pk_bf16_f32 {vX0}, {vc}, {vX0}")
        e(f"v_cvt_pk_bf16_f32 {vX1}, {vd}, {vX1}")
        e(f"v_add_f32_dpp {va}, {va}, {va} row_ror:8 {DPPF}")
        k = 0
        seq = []
        for rho in range(4):
            bm = f"row_mask:0xf bank_mask:{1 << rho:#x}"
            seq.append(f"v_mov_b32_dpp v{PV_+4*rho+0}, {vX0} quad_perm:[0,1,2,3] {bm}")
            seq.append(f"v_mov_b32_dpp v{PV_+4*rho+1}, {vX0} row_ror:8 {bm}")
            seq.append(f"v_mov_b32_dpp v{PV_+4*rho+2}, {vX1} quad_perm:[0,1,2,3] {bm}")
            seq.append(f"v_mov_b32_dpp v{PV_+4*rho+3}, {vX1} row_ror:8 {bm}")
        for s in seq[0:2]: e(s)
        e(f"v_add_f32_dpp {va}, {va}, {va} row_ror:4 {DPPF}")
        e(f"v_mov_b32 {vb}, {va}")
        for s in seq[2:4]: e(s)
        e(f"v_permlane16_swap_b32 {vb}, {va}"); e(f"v_add_f32 {va}, {vb}, {va}")
        e(f"v_mov_b32 {vb}, {va}")
        for s in seq[4:6]: e(s)
        e(f"v_permlane32_swap_b32 {vb}, {va}"); e(f"v_add_f32 {va}, {vb}, {va}")
        e(f"v_fma_f32 {vL}, {vL}, {vf}, {va}")
        for s in seq[6:]: e(s)
        e(f"ds_write2_b32 {vMSa}, {vML}, {vL} offset0:0 offset1:32")
    def PV(bank, refill):
        B = RB[bank]
        def perm(ee, k):
            rho = ee & 3; t = k >> 1
            n0 = 4 * t + ((rho + 2 * (k & 1)) & 3); n1 = 4 * t + ((rho + 2 * (k & 1) + 1) & 3)
            e(f"v_perm_b32 v{T+4*ee+k}, v{B+4*n1+(ee>>1)}, v{B+4*n0+(ee>>1)}, {sSelHi if ee & 1 else sSelLo}")
        e("s_waitcnt vmcnt(28)")
        for ee in range(8):
            perm(ee, 0); perm(ee, 1)
        for n in range(4): refill(n)
        e("s_waitcnt vmcnt(28)")
        order = [0, 4, 1, 5, 2, 6, 3, 7]
        def mf(ee):
            ac = vr(ACC + 4 * (ee >> 2))
            e(f"v_mfma_f32_16x16x32_bf16 {ac}, {vr(T+4*ee)}, {vr(PV_+4*(ee&3))}, {ac}")
        for idx, ee in enumerate(order):
            perm(ee, 2); perm(ee, 3)
            if idx >= 1: mf(order[idx - 1])
        for n in range(4, 8): refill(n)
        mf(order[7])
    def next_item(dst, src):
        e(f"s_add_u32 {dst}, {src}, 0x10000")
        e(f"s_sub_u32 {sCnt}, {sCnt}, 1")
        e(f"s_cmp_gt_i32 {sCnt}, 3")
        e(f"s_cselect_b32 {dst}, {dst}, {KV_BYTES}")

    QK(0, lambda n: ldV(0, n, sO[1]))
    SM()
    A.label("L_loop")
    QK(1, lambda n: ldK(1, n, sO[3]))
    PV(2, lambda n: ldV(2, n, sO[2]))
    e(f"s_cmp_eq_u32 {sO[1]}, {KV_BYTES}"); e("s_cbranch_scc1 L_done")
    next_item(sO[0], sO[3])
    SM()
    QK(3, lambda n: ldK(3, n, sO[0]))
    PV(0, lambda n: ldV(0, n, sO[3]))
    e(f"s_cmp_eq_u32 {sO[2]}, {KV_BYTES}"); e("s_cbranch_scc1 L_done")
    e(f"s_mov_b32 {sO[1]}, {sO[3]}"); e(f"s_mov_b32 {sO[2]}, {sO[0]}")
    next_item(sO[3], sO[0])
    SM()
    e("s_branch L_loop")

    A.label("L_done")
    stamp(3)
    e(f"s_lshl_b32 {sT[0]}, {sW}, 11"); e(f"s_add_u32 {sT[0]}, {sT[0]}, {L_ACC}")
    e(f"v_add_u32 {va}, {sT[0]}, {vVo}")
    e("s_nop 5")
    e(f"ds_write_b128 {va}, {vr(ACC)}"); e(f"ds_write_b128 {va}, {vr(ACC+4)} offset:1024")
    e("s_waitcnt lgkmcnt(0)")
    e("s_barrier")
    stamp(4)
    e(f"s_cmp_gt_u32 {sW}, 2"); e("s_cbranch_scc1 L_pubdone")
    e(f"v_and_b32 {vb}, 3, {vLane}"); e(f"v_lshlrev_b32 {vb}, 5, {vb}"); e(f"v_add_u32 {vb}, {L_MS}, {vb}")
    e(f"ds_read_b128 {vr(12)}, {vb}"); e(f"ds_read_b128 {vr(16)}, {vb} offset:16")
    e(f"s_mul_i32 {sT[1]}, s2, {PREC}"); e(f"s_add_u32 {sT[1]}, {sT[1]}, {WS_PART}")
    e(f"s_cmp_eq_u32 {sW}, 2"); e("s_cbranch_scc1 L_pubstat")
    e(f"s_lshl_b32 {sT[0]}, {sW}, 10"); e(f"s_add_u32 {sT[1]}, {sT[1]}, {sT[0]}"); e(f"s_add_u32 {sT[0]}, {sT[0]}, {L_ACC}")
    e(f"v_add_u32 {va}, {sT[0]}, {vVo}")
    for w in range(8): e(f"ds_read_b128 {vr(T+4*w)}, {va} offset:{2048*w}")
    e(f"v_add_u32 {vc}, {sT[1]}, {vVo}")
    def wts():
        e("v_max3_f32 v20, v12, v13, v14"); e("v_max3_f32 v21, v15, v16, v17"); e("v_max3_f32 v20, v20, v18, v19"); e("v_max_f32 v20, v20, v21")
        for w in range(8): e(f"v_sub_f32 v{12+w}, v{12+w}, v20")
        for w in range(8): e(f"v_exp_f32 v{12+w}, v{12+w}")
    e("s_waitcnt lgkmcnt(8)")
    wts()
    e("s_waitcnt lgkmcnt(6)")
    for w in range(8):
        if w in (2, 4, 6): e(f"s_waitcnt lgkmcnt({6-w})")
        for r in range(4):
            if w == 0: e(f"v_mul_f32 v{24+r}, v12, v{T+r}")
            else: e(f"v_fmac_f32 v{24+r}, v{12+w}, v{T+4*w+r}")
    for r in range(4): e(f"v_min_u32 v{24+r}, -2, v{24+r}")
    e("s_waitcnt vmcnt(0)")
    e(f"global_store_dwordx4 {vc}, v[24:27], {sp(sWS)} sc1")
    e("s_branch L_pubdone2")
    A.label("L_pubstat")
    e(f"ds_read_b128 {vr(T)}, {vb} offset:128"); e(f"ds_read_b128 {vr(T+4)}, {vb} offset:144")
    e(f"v_lshlrev_b32 {vc}, 3, {vLane}"); e(f"v_add_u32 {vc}, {sT[1]}, {vc}")
    e("s_waitcnt lgkmcnt(2)")
    wts()
    e("s_waitcnt lgkmcnt(0)")
    e(f"v_mul_f32 v21, v12, v{T}")
    for w in range(1, 8): e(f"v_fmac_f32 v21, v{12+w}, v{T+w}")
    e("v_min_u32 v20, -2, v20"); e("v_min_u32 v21, -2, v21")
    e("s_waitcnt vmcnt(0)")
    e("s_mov_b64 exec, 0xf")
    e(f"global_store_dwordx2 {vc}, v[20:21], {sp(sWS)} offset:2048 sc1")
    e("s_mov_b64 exec, -1")
    e("s_branch L_pubdone2")
    A.label("L_pubdone")
    e("s_waitcnt vmcnt(0)")
    A.label("L_pubdone2")
    stamp(5)
    e(f"s_cmp_eq_u32 {sRole}, 1"); e("s_cbranch_scc1 L_st1")
    e(f"s_cmp_eq_u32 {sRole}, 2"); e("s_cbranch_scc1 L_st2")
    e(f"s_cmp_eq_u32 {sRole}, 3"); e("s_cbranch_scc1 L_st3")
    e("s_branch L_fin")

    def poll(lbl, loads, regs):
        A.label(lbl)
        e(f"s_sub_u32 {sTO}, {sTO}, 1"); e("s_cbranch_scc1 L_end")
        for l in loads: e(l)
        e("s_waitcnt vmcnt(0)")
        regs = list(regs)
        acc = va
        e(f"v_max3_u32 {va}, v{regs[0]}, v{regs[1]}, v{regs[2]}")
        rest = regs[3:]
        if len(rest) >= 3:
            e(f"v_max3_u32 {vb}, v{rest[0]}, v{rest[1]}, v{rest[2]}"); rest = rest[3:]
            tog = 0
            while len(rest) >= 2:
                d = (va, vb)[tog]; tog ^= 1
                e(f"v_max3_u32 {d}, {d}, v{rest[0]}, v{rest[1]}"); rest = rest[2:]
            if rest: e(f"v_max3_u32 {va}, {va}, {vb}, v{rest[0]}")
            else: e(f"v_max_u32 {va}, {va}, {vb}")
        else:
            for r in rest: e(f"v_max_u32 {va}, {va}, v{r}")
        e(f"v_cmp_eq_u32 vcc, -1, {va}")
        e(f"s_cbranch_vccnz {lbl}")
    def wfrag(dst, raw, nload, ldsoff):
        e(f"s_mul_i32 {sT[0]}, {sW}, {WPW}"); e(f"v_add_u32 {va}, {sT[0]}, {vVo}")
        for n in range(nload): e(f"ds_read_b128 {vr(raw+4*n)}, {va} offset:{ldsoff + 1024*n}")
        e("s_waitcnt lgkmcnt(0)")
        h = nload // 2
        for ee in range(8):
            for k in range(h):
                e(f"v_perm_b32 v{dst+h*ee+k}, v{raw+4*(2*k+1)+(ee>>1)}, v{raw+4*(2*k)+(ee>>1)}, {sSelHi if ee & 1 else sSelLo}")
    F1 = 128; RAW = 192; G = 12; DD = 160; F2 = 224

    A.label("L_st1")
    wfrag(F1, RAW, 8, 0)
    e(f"v_bfe_u32 {vc}, {vLane}, 1, 3"); e(f"v_mul_u32_u24 {vc}, {PREC}, {vc}")
    e(f"s_mul_i32 {sT[0]}, {sG}, {32*PREC}"); e(f"s_add_u32 {sT[0]}, {sT[0]}, {WS_PART}"); e(f"v_add_u32 {vc}, {sT[0]}, {vc}")
    e(f"v_lshrrev_b32 {vd}, 4, {vLane}"); e(f"v_lshlrev_b32 {vd}, 1, {vd}"); e(f"v_and_b32 {vf}, 1, {vLane}"); e(f"v_add_u32 {vd}, {vd}, {vf}")
    e(f"v_and_b32 {vf}, 3, {vd}"); e(f"v_lshl_add_u32 v40, {vf}, 3, {vc}")
    e(f"s_lshr_b32 {sT[0]}, {sIdx}, 2"); e(f"s_lshl_b32 {sT[0]}, {sT[0]}, 10"); e(f"s_lshl_b32 {sT[1]}, {sW}, 7"); e(f"s_add_u32 {sT[0]}, {sT[0]}, {sT[1]}")
    e(f"v_lshl_add_u32 v36, {vd}, 4, {vc}"); e(f"v_add_u32 v36, {sT[0]}, v36")
    for it in range(1, 4):
        e(f"v_add_u32 v{36+it}, {8*PREC*it}, v36"); e(f"v_add_u32 v{40+it}, {8*PREC*it}, v40")
    e(f"s_lshl_b32 {sT[0]}, {sW}, 9"); e(f"s_add_u32 {sT[0]}, {sT[0]}, {L_RED}")
    e(f"v_lshlrev_b32 {vY0}, 5, {vLane}"); e(f"v_add_u32 {vY0}, {sT[0]}, {vY0}")
    e(f"v_add_u32 {vY1}, {L_RED}, {vVo}")
    e(f"s_lshl_b32 {sT[0]}, {sG}, 12"); e(f"s_lshl_b32 {sT[1]}, {sIdx}, 9"); e(f"s_add_u32 {sT[0]}, {sT[0]}, {sT[1]}"); e(f"s_add_u32 {sT[0]}, {sT[0]}, {WS_A1}")
    e(f"v_add_u32 {vS0}, {sT[0]}, {vVo}")
    loads = [f"global_load_dwordx2 v[{28+2*it}:{29+2*it}], v{40+it}, {sp(sWS)} offset:2048 sc1" for it in range(4)]
    loads += [f"global_load_dwordx4 {vr(G+4*it)}, v{36+it}, {sp(sWS)} sc1" for it in range(4)]
    poll("L_poll1", loads, range(12, 36))
    stamp(6)
    e(f"v_max3_f32 {va}, v28, v30, v32"); e(f"v_max_f32 {va}, {va}, v34")
    for s in (8, 4, 2): e(f"v_max_f32_dpp {va}, {va}, {va} row_ror:{s} {DPPF}")
    for it in range(4): e(f"v_sub_f32 v{28+2*it}, v{28+2*it}, {va}")
    for it in range(4): e(f"v_exp_f32 v{28+2*it}, v{28+2*it}")
    e(f"v_mul_f32 v48, v28, v29")
    for r in range(4): e(f"v_mul_f32 v{44+r}, v28, v{G+r}")
    for it in range(1, 4):
        e(f"v_fmac_f32 v48, v{28+2*it}, v{29+2*it}")
        for r in range(4): e(f"v_fmac_f32 v{44+r}, v{28+2*it}, v{G+4*it+r}")
    for s in (8, 4, 2):
        for r in (4, 0, 1, 2, 3): e(f"v_add_f32_dpp v{44+r}, v{44+r}, v{44+r} row_ror:{s} {DPPF}")
    e("v_rcp_f32 v48, v48")
    for r in range(4): e(f"v_mul_f32 v{44+r}, v48, v{44+r}")
    e("v_cvt_pk_bf16_f32 v52, v44, v45"); e("v_cvt_pk_bf16_f32 v53, v46, v47")
    e(f"v_mov_b32_dpp v54, v52 quad_perm:[1,0,3,2] {DPPF}"); e(f"v_mov_b32_dpp v55, v53 quad_perm:[1,0,3,2] {DPPF}")
    for ee in range(8): e(f"v_mfma_f32_16x16x32_bf16 {vr(DD+4*ee)}, v[52:55], {vr(F1+4*ee)}, 0")
    e("s_mov_b64 exec, 0xffff")
    for ee in range(0, 8, 2): e(f"ds_write2_b32 {vY0}, v{DD+4*ee}, v{DD+4*ee+4} offset0:{ee} offset1:{ee+1}")
    e("s_mov_b64 exec, -1")
    e("s_waitcnt lgkmcnt(0)")
    e("s_barrier")
    e(f"s_cmp_eq_u32 {sW}, 0"); e("s_cbranch_scc0 L_fin")
    e("s_mov_b64 exec, 0xffffffff")
    for w in range(8): e(f"ds_read_b128 {vr(12+4*w)}, {vY1} offset:{512*w}")
    for w in range(0, 8, 2):
        e(f"s_waitcnt lgkmcnt({6-w})")
        for r in (0, 2): e(f"v_pk_add_f32 v[{12+4*w+r}:{13+4*w+r}], v[{12+4*w+r}:{13+4*w+r}], v[{16+4*w+r}:{17+4*w+r}]")
        if w in (2, 6):
            b = 12 + 4 * (w - 2)
            for r in (0, 2): e(f"v_pk_add_f32 v[{b+r}:{b+r+1}], v[{b+r}:{b+r+1}], v[{b+8+r}:{b+9+r}]")
    for r in (0, 2): e(f"v_pk_add_f32 v[{12+r}:{13+r}], v[{12+r}:{13+r}], v[{28+r}:{29+r}]")
    for r in range(4): e(f"v_min_u32 v{12+r}, -2, v{12+r}")
    e(f"global_store_dwordx4 {vS0}, v[12:15], {sp(sWS)} sc1")
    e("s_mov_b64 exec, -1")
    stamp(7)
    e("s_branch L_fin")

    A.label("L_st2")
    e(f"v_lshrrev_b32 {vc}, 4, {vLane}"); e(f"v_lshlrev_b32 {vc}, 2, {vc}"); e(f"v_and_b32 {vd}, 3, {vLane}"); e(f"v_add_u32 {vc}, {vc}, {vd}")
    e(f"s_lshl_b32 {sT[0]}, {sW}, 4"); e(f"v_add_u32 {vc}, {sT[0]}, {vc}")
    e(f"v_lshlrev_b32 {vd}, 3, {vc}")
    e(f"global_load_dwordx2 v[28:29], {vd}, {sp(sX)}")
    wfrag(F1, RAW, 8, 0)
    wfrag(F2, RAW, 4, 8192)
    e(f"v_bfe_u32 {vd}, {vLane}, 2, 2"); e(f"v_lshlrev_b32 {vd}, 11, {vd}")
    e(f"v_lshl_add_u32 v36, {vc}, 4, {vd}"); e(f"v_add_u32 v36, {WS_A1}, v36")
    for it in range(1, 4): e(f"v_add_u32 v{36+it}, {8192*it}, v36")
    e("s_waitcnt vmcnt(0)")
    e("v_lshlrev_b32 v32, 16, v28"); e("v_and_b32 v33, 0xffff0000, v28"); e("v_lshlrev_b32 v34, 16, v29"); e("v_and_b32 v35, 0xffff0000, v29")
    e(f"s_lshl_b32 {sT[0]}, {sW}, 3"); e(f"s_add_u32 {sT[0]}, {sT[0]}, {L_STAT}"); e(f"v_mov_b32 v40, {sT[0]}")
    e(f"v_mov_b32 v41, {L_STAT}")
    e(f"s_lshl_b32 {sT[0]}, {sW}, 8"); e(f"s_add_u32 {sT[0]}, {sT[0]}, {L_RED}")
    e(f"v_lshlrev_b32 v42, 5, {vLane}"); e(f"v_add_u32 v42, {sT[0]}, v42")
    e(f"v_bfe_u32 v43, {vLane}, 1, 3"); e("v_lshlrev_b32 v43, 8, v43")
    e(f"v_lshrrev_b32 {vd}, 4, {vLane}"); e(f"v_lshl_add_u32 v43, {vd}, 5, v43")
    e(f"v_and_b32 {vd}, 1, {vLane}"); e(f"v_lshl_add_u32 v43, {vd}, 4, v43"); e(f"v_add_u32 v43, {L_RED}, v43")
    e(f"s_lshl_b32 {sT[0]}, {sIdx}, 11"); e(f"s_lshl_b32 {sT[1]}, {sW}, 8"); e(f"s_add_u32 {sT[0]}, {sT[0]}, {sT[1]}"); e(f"s_add_u32 {sT[0]}, {sT[0]}, {WS_D2}")
    e(f"v_lshlrev_b32 {vS0}, 5, {vLane}"); e(f"v_add_u32 {vS0}, {sT[0]}, {vS0}")
    loads = [f"global_load_dwordx4 {vr(G+4*it)}, v{36+it}, {sp(sWS)} sc1" for it in range(4)]
    poll("L_poll2", loads, range(12, 28))
    stamp(6)
    for r in (0, 2): e(f"v_pk_add_f32 v[{12+r}:{13+r}], v[{12+r}:{13+r}], v[{16+r}:{17+r}]")
    for r in (0, 2): e(f"v_pk_add_f32 v[{20+r}:{21+r}], v[{20+r}:{21+r}], v[{24+r}:{25+r}]")
    for r in (0, 2): e(f"v_pk_add_f32 v[{12+r}:{13+r}], v[{12+r}:{13+r}], v[{20+r}:{21+r}]")
    for s in (8, 4):
        for r in range(4): e(f"v_add_f32_dpp v{12+r}, v{12+r}, v{12+r} row_ror:{s} {DPPF}")
    def rnd4(b, t):
        e(f"v_cvt_pk_bf16_f32 v{t}, v{b}, v{b+1}"); e(f"v_cvt_pk_bf16_f32 v{t+1}, v{b+2}, v{b+3}")
        e(f"v_lshlrev_b32 v{b}, 16, v{t}"); e(f"v_and_b32 v{b+1}, 0xffff0000, v{t}")
        e(f"v_lshlrev_b32 v{b+2}, 16, v{t+1}"); e(f"v_and_b32 v{b+3}, 0xffff0000, v{t+1}")
    rnd4(12, 16)
    for r in range(4): e(f"v_add_f32 v{12+r}, v{32+r}, v{12+r}")
    rnd4(12, 16)
    e(f"v_readfirstlane_b32 {sT[2]}, v12")
    for r in range(4): e(f"v_subrev_f32 v{16+r}, {sT[2]}, v{12+r}")
    e("v_add_f32 v20, v16, v17"); e("v_mul_f32 v21, v16, v16"); e("v_add_f32 v22, v18, v19"); e("v_fmac_f32 v21, v17, v17")
    e("v_add_f32 v20, v20, v22"); e("v_fmac_f32 v21, v18, v18"); e("v_fmac_f32 v21, v19, v19")
    for qp in ("[1,0,3,2]", "[2,3,0,1]"):
        e(f"v_add_f32_dpp v20, v20, v20 quad_perm:{qp} {DPPF}"); e(f"v_add_f32_dpp v21, v21, v21 quad_perm:{qp} {DPPF}")
    e("v_permlane32_swap_b32 v20, v21"); e("v_add_f32 v20, v20, v21")
    e("v_mov_b32 v21, v20"); e("v_permlane16_swap_b32 v21, v20"); e("v_add_f32 v20, v20, v21")
    e(f"v_readlane_b32 {sT[3]}, v20, 32")
    e("v_mul_f32 v21, 0x3c800000, v20")
    e(f"v_add_f32 v22, {sT[2]}, v21")
    e(f"v_fma_f32 v23, -v21, v20, {sT[3]}")
    e("s_mov_b64 exec, 1")
    e("ds_write_b64 v40, v[22:23]")
    e("s_mov_b64 exec, -1")
    e("s_waitcnt lgkmcnt(0)")
    e("s_barrier")
    for k in range(4): e(f"ds_read_b128 {vr(44+4*k)}, v41 offset:{16*k}")
    e("s_waitcnt lgkmcnt(0)")
    e("v_pk_add_f32 v[16:17], v[44:45], v[46:47]"); e("v_pk_add_f32 v[18:19], v[48:49], v[50:51]")
    e("v_pk_add_f32 v[20:21], v[52:53], v[54:55]"); e("v_pk_add_f32 v[22:23], v[56:57], v[58:59]")
    e("v_pk_add_f32 v[16:17], v[16:17], v[18:19]"); e("v_pk_add_f32 v[20:21], v[20:21], v[22:23]")
    e("v_pk_add_f32 v[16:17], v[16:17], v[20:21]")
    e("v_mul_f32 v16, 0x3e000000, v16")
    for k in range(8): e(f"v_sub_f32 v{44+2*k}, v{44+2*k}, v16")
    e("v_mul_f32 v18, v44, v44"); e("v_mul_f32 v19, v46, v46")
    for k in range(2, 8): e(f"v_fmac_f32 v{18+(k&1)}, v{44+2*k}, v{44+2*k}")
    e("v_add_f32 v18, v18, v19")
    e("v_fmac_f32 v17, 0x42800000, v18")
    e("v_mul_f32 v17, 0x3b000000, v17")
    def ln_finish(vm, vv, t):
        e(f"v_cvt_pk_bf16_f32 {t}, {vm}, {vv}")
        e(f"v_lshlrev_b32 {vm}, 16, {t}"); e(f"v_and_b32 {vv}, 0xffff0000, {t}")
        e(f"v_add_f32 {vv}, 0x3727c5ac, {vv}")
        e(f"v_cvt_pk_bf16_f32 {t}, {vv}, {vv}"); e(f"v_lshlrev_b32 {vv}, 16, {t}")
        e(f"v_sqrt_f32 {vv}, {vv}")
        e(f"v_cvt_pk_bf16_f32 {t}, {vv}, {vv}"); e(f"v_lshlrev_b32 {vv}, 16, {t}")
        e(f"v_rcp_f32 {vv}, {vv}")
    ln_finish("v16", "v17", "v18")
    for r in range(4): e(f"v_sub_f32 v{12+r}, v{12+r}, v16")
    rnd4(12, 20)
    for r in range(4): e(f"v_mul_f32 v{12+r}, v17, v{12+r}")
    e("v_cvt_pk_bf16_f32 v52, v12, v13"); e("v_cvt_pk_bf16_f32 v53, v14, v15")
    e(f"v_mov_b32_dpp v54, v52 quad_perm:[1,0,3,2] {DPPF}"); e(f"v_mov_b32_dpp v55, v53 quad_perm:[1,0,3,2] {DPPF}")
    for ee in range(8): e(f"v_mfma_f32_16x16x32_bf16 {vr(DD+4*ee)}, v[52:55], {vr(F1+4*ee)}, 0")
    for ee in range(8): e(f"v_add_f32_dpp v{12+ee}, v{DD+4*ee+2}, v{DD+4*ee} row_ror:8 {DPPF}")
    e("s_mov_b64 exec, 0xff")
    e("ds_write_b128 v42, v[12:15]"); e("ds_write_b128 v42, v[16:19] offset:16")
    e("s_mov_b64 exec, -1")
    e("s_waitcnt lgkmcnt(0)")
    e("s_barrier")
    e("ds_read_b128 v[12:15], v43"); e("ds_read_b128 v[16:19], v43 offset:128")
    e("s_waitcnt lgkmcnt(0)")
    for s in (8, 4, 2):
        for r in range(8): e(f"v_add_f32_dpp v{12+r}, v{12+r}, v{12+r} row_ror:{s} {DPPF}")
    rnd4(12, 20); rnd4(16, 22)
    for r in range(4): e(f"v_mul_f32 v{12+r}, v{12+r}, v{16+r}")
    e("v_cvt_pk_bf16_f32 v52, v12, v13"); e("v_cvt_pk_bf16_f32 v53, v14, v15")
    for ee in range(8): e(f"v_mfma_f32_16x16x16_bf16 {vr(DD+4*ee)}, v[52:53], {vr(F2+2*ee, 2)}, 0")
    for ee in range(8): e(f"v_add_f32_dpp v{12+ee}, v{DD+4*ee+1}, v{DD+4*ee} row_ror:8 {DPPF}")
    for ee in range(8): e(f"v_min_u32 v{12+ee}, -2, v{12+ee}")
    e("s_mov_b64 exec, 0xff")
    e(f"global_store_dwordx4 {vS0}, v[12:15], {sp(sWS)} sc1"); e(f"global_store_dwordx4 {vS0}, v[16:19], {sp(sWS)} offset:16 sc1")
    e("s_mov_b64 exec, -1")
    stamp(7)
    e("s_branch L_fin")

    A.label("L_st3")
    e(f"s_cmp_eq_u32 {sW}, 3"); e("s_cbranch_scc0 L_fin")
    e(f"v_and_b32 {vc}, 7, {vLane}"); e(f"v_lshlrev_b32 {vd}, 2, {vc}"); e(f"v_lshrrev_b32 {vf}, 4, {vLane}"); e(f"v_add_u32 {vd}, {vd}, {vf}")
    e(f"s_lshl_b32 {sT[0]}, {sIdx}, 5"); e(f"v_add_u32 {vd}, {sT[0]}, {vd}"); e(f"v_lshlrev_b32 {vS0}, 1, {vd}")
    e(f"global_load_ushort v60, {vS0}, {sp(sX)}")
    e(f"v_lshrrev_b32 {vd}, 3, {vLane}"); e(f"v_lshlrev_b32 {vd}, 11, {vd}"); e(f"v_lshl_add_u32 {vd}, {vc}, 4, {vd}")
    e(f"s_lshl_b32 {sT[0]}, {sIdx}, 7"); e(f"v_add_u32 {vd}, {sT[0]}, {vd}")
    e(f"v_add_u32 v44, {WS_A1}, {vd}"); e(f"v_add_u32 v45, {WS_A1 + 16384}, {vd}")
    for it in range(7): e(f"v_add_u32 v{46+it}, {WS_D2 + 16384*it}, {vd}")
    def red4(b):
        e(f"v_permlane32_swap_b32 v{b}, v{b+2}"); e(f"v_permlane32_swap_b32 v{b+1}, v{b+3}")
        e(f"v_add_f32 v{b}, v{b}, v{b+2}"); e(f"v_add_f32 v{b+1}, v{b+1}, v{b+3}")
        e(f"v_permlane16_swap_b32 v{b}, v{b+1}"); e(f"v_add_f32 v{b}, v{b}, v{b+1}")
        e(f"v_add_f32_dpp v{b}, v{b}, v{b} row_ror:8 {DPPF}")
    poll("L_poll3a", [f"global_load_dwordx4 {vr(12+4*it)}, v{44+it}, {sp(sWS)} sc1" for it in range(2)], range(12, 20))
    for r in (0, 2): e(f"v_pk_add_f32 v[{12+r}:{13+r}], v[{12+r}:{13+r}], v[{16+r}:{17+r}]")
    red4(12)
    e("v_cvt_pk_bf16_f32 v12, v12, v12"); e("v_lshlrev_b32 v12, 16, v12"); e("v_lshlrev_b32 v60, 16, v60")
    e("v_add_f32 v60, v60, v12"); e("v_cvt_pk_bf16_f32 v60, v60, v60"); e("v_lshlrev_b32 v60, 16, v60")
    stamp(6)
    poll("L_poll3b", [f"global_load_dwordx4 {vr(12+4*it)}, v{46+it}, {sp(sWS)} sc1" for it in range(7)], range(12, 40))
    for a, b in ((12, 16), (20, 24), (28, 32), (12, 20), (28, 36), (12, 28)):
        for r in (0, 2): e(f"v_pk_add_f32 v[{a+r}:{a+r+1}], v[{a+r}:{a+r+1}], v[{b+r}:{b+r+1}]")
    red4(12)
    e("v_cvt_pk_bf16_f32 v12, v12, v12"); e("v_lshlrev_b32 v12, 16, v12")
    e("v_add_f32 v12, v60, v12"); e("v_cvt_pk_bf16_f32 v12, v12, v12")
    e("s_mov_b32 exec_lo, 0x00ff00ff"); e("s_mov_b32 exec_hi, 0x00ff00ff")
    e(f"global_store_short {vS0}, v12, {sp(sOUT)}")
    e("s_mov_b64 exec, -1")
    stamp(7)

    A.label("L_fin")
    if debug:
        e("s_waitcnt vmcnt(0) lgkmcnt(0)")
        e("s_memrealtime s[96:97]")
        e("s_waitcnt lgkmcnt(0)")
        e(f"s_lshl_b32 {sT[0]}, s2, 3"); e(f"s_add_u32 {sT[0]}, {sT[0]}, {sW}"); e(f"s_lshl_b32 {sT[0]}, {sT[0]}, 6"); e(f"s_add_u32 {sT[0]}, {sT[0]}, {WS_STAMP}")
        e(f"v_mov_b32 v20, {sT[0]}")
        for i in range(9): e(f"v_mov_b32 v{4+i}, s{80+2*i}")
        e("s_getreg_b32 s52, hwreg(HW_REG_XCC_ID)"); e("v_mov_b32 v13, s52"); e("v_mov_b32 v14, s70"); e("v_mov_b32 v15, s72")
        e("s_mov_b64 exec, 1")
        for i in range(3): e(f"global_store_dwordx4 v20, v[{4+4*i}:{7+4*i}], {sp(sWS)} offset:{16*i}")
    A.label("L_end")
    e("s_endpgm")

    A.label("L_qwave")
    e("s_setprio 3")
    WQ = 128; XR = 12; XF = 20; QA = 36
    e(f"v_lshrrev_b32 v5, 1, {vLane}"); e("v_lshlrev_b32 v6, 5, v5")
    e("v_lshlrev_b32 v7, 17, v5"); e(f"v_and_b32 v8, 1, {vLane}"); e("v_lshl_add_u32 v7, v8, 4, v7")
    e(f"s_and_b32 {sT[4]}, s2, 7"); e(f"s_lshl_b32 {sT[4]}, {sT[4]}, 5"); e(f"s_lshr_b32 {sT[0]}, s2, 3"); e(f"s_add_u32 {sT[4]}, {sT[4]}, {sT[0]}")
    e(f"s_lshl_b32 {sT[0]}, {sT[4]}, 5"); e(f"v_add_u32 v7, {sT[0]}, v7")
    e("v_mov_b32 v9, 0")
    e(f"v_lshlrev_b32 {vVo}, 4, {vLane}")
    for r in range(4): e(f"v_mov_b32 v{60+r}, -1")
    e("s_waitcnt lgkmcnt(0)")
    e(f"global_load_dwordx4 {vr(XR)}, v6, {sp(sX)}"); e(f"global_load_dwordx4 {vr(XR+4)}, v6, {sp(sX)} offset:16")
    e(f"global_load_dword v10, v9, {sp(sWS)} sc1")
    for i in range(16):
        e(f"global_load_dwordx4 {vr(WQ+4*i)}, v7, {sp(sWQ)} nt")
        if i < 15: e("v_add_u32 v7, 0x2000, v7")
    e(f"s_mul_i32 {sT[1]}, s2, {PREC}"); e(f"s_add_u32 {sT[1]}, {sT[1]}, {WS_PART}"); e(f"v_add_u32 v11, {sT[1]}, {vVo}")
    e(f"global_store_dwordx4 v11, v[60:63], {sp(sWS)} sc1"); e(f"global_store_dwordx4 v11, v[60:63], {sp(sWS)} offset:1024 sc1")
    e("s_mov_b64 exec, 0xff"); e(f"global_store_dwordx4 v11, v[60:63], {sp(sWS)} offset:2048 sc1"); e("s_mov_b64 exec, -1")
    e(f"s_cmp_eq_u32 {sRole}, 1"); e("s_cbranch_scc0 L_qr1")
    e(f"s_lshl_b32 {sT[0]}, {sG}, 12"); e(f"s_lshl_b32 {sT[1]}, {sIdx}, 9"); e(f"s_add_u32 {sT[0]}, {sT[0]}, {sT[1]}"); e(f"s_add_u32 {sT[0]}, {sT[0]}, {WS_A1}")
    e(f"v_add_u32 v11, {sT[0]}, {vVo}")
    e("s_mov_b64 exec, 0xffffffff"); e(f"global_store_dwordx4 v11, v[60:63], {sp(sWS)} sc1"); e("s_mov_b64 exec, -1")
    e("s_waitcnt vmcnt(21)")
    e("s_branch L_qr2")
    A.label("L_qr1")
    e(f"s_cmp_eq_u32 {sRole}, 2"); e("s_cbranch_scc0 L_qr3")
    e(f"s_lshl_b32 {sT[0]}, {sIdx}, 11"); e(f"s_add_u32 {sT[0]}, {sT[0]}, {WS_D2}"); e(f"v_add_u32 v11, {sT[0]}, {vVo}")
    e(f"global_store_dwordx4 v11, v[60:63], {sp(sWS)} sc1"); e(f"global_store_dwordx4 v11, v[60:63], {sp(sWS)} offset:1024 sc1")
    e("s_waitcnt vmcnt(22)")
    e("s_branch L_qr2")
    A.label("L_qr3")
    e("s_waitcnt vmcnt(20)")
    A.label("L_qr2")
    for k in range(8):
        e(f"v_lshlrev_b32 v{XF+2*k}, 16, v{XR+k}"); e(f"v_and_b32 v{XF+2*k+1}, 0xffff0000, v{XR+k}")
    def wsum(r, tmp):
        for s in (8, 4, 2): e(f"v_add_f32_dpp {r}, {r}, {r} row_ror:{s} {DPPF}")
        e(f"v_mov_b32 {tmp}, {r}"); e(f"v_permlane16_swap_b32 {tmp}, {r}"); e(f"v_add_f32 {r}, {tmp}, {r}")
        e(f"v_mov_b32 {tmp}, {r}"); e(f"v_permlane32_swap_b32 {tmp}, {r}"); e(f"v_add_f32 {r}, {tmp}, {r}")
    for k in range(4): e(f"v_pk_add_f32 v[{44+2*k}:{45+2*k}], v[{XF+4*k}:{XF+4*k+1}], v[{XF+4*k+2}:{XF+4*k+3}]")
    e("v_pk_add_f32 v[44:45], v[44:45], v[46:47]"); e("v_pk_add_f32 v[48:49], v[48:49], v[50:51]"); e("v_pk_add_f32 v[44:45], v[44:45], v[48:49]")
    e(f"v_add_f32 {va}, v44, v45")
    wsum(va, vb)
    e(f"v_mul_f32 {va}, 0x3b000000, {va}")
    for k in range(16): e(f"v_sub_f32 v{44+k}, v{XF+k}, {va}")
    e(f"v_mul_f32 {vc}, v44, v44"); e(f"v_mul_f32 {vd}, v45, v45")
    for k in range(2, 16): e(f"v_fmac_f32 {(vc, vd)[k&1]}, v{44+k}, v{44+k}")
    e(f"v_add_f32 {vc}, {vc}, {vd}")
    wsum(vc, vb)
    e(f"v_mul_f32 {vc}, 0x3b000000, {vc}")
    ln_finish(va, vc, vb)
    for k in range(16): e(f"v_sub_f32 v{XF+k}, v{XF+k}, {va}")
    for k in range(8): e(f"v_cvt_pk_bf16_f32 v{XR+k}, v{XF+2*k}, v{XF+2*k+1}")
    for k in range(8):
        e(f"v_lshlrev_b32 v{XF+2*k}, 16, v{XR+k}"); e(f"v_and_b32 v{XF+2*k+1}, 0xffff0000, v{XR+k}")
    for k in range(16): e(f"v_mul_f32 v{XF+k}, {vc}, v{XF+k}")
    for k in range(8): e(f"v_cvt_pk_bf16_f32 v{XR+k}, v{XF+2*k}, v{XF+2*k+1}")
    for k in range(8): e(f"v_mov_b32 v{QA+k}, 0")
    e("s_waitcnt vmcnt(0)")
    if debug: e("s_memrealtime s[70:71]")
    e(f"v_readfirstlane_b32 {sTag}, v10")
    e(f"s_mul_i32 {sTag}, {sTag}, 0x0019660d"); e(f"s_add_u32 {sTag}, {sTag}, 0x3c6ef35f")
    for p in range(8):
        for ee in range(8):
            e(f"v_perm_b32 v{44+ee}, v{WQ+4*(2*p+1)+(ee>>1)}, v{WQ+4*(2*p)+(ee>>1)}, {sSelHi if ee & 1 else sSelLo}")
        for ee in range(8): e(f"v_dot2c_f32_bf16 v{QA+ee}, v{44+ee}, v{XR+p}")
    for o in (0, 1):
        e(f"v_permlane32_swap_b32 v{QA+o}, v{QA+4+o}"); e(f"v_permlane32_swap_b32 v{QA+2+o}, v{QA+6+o}")
    for o in (0, 1):
        e(f"v_add_f32 v{QA+o}, v{QA+o}, v{QA+4+o}"); e(f"v_add_f32 v{QA+2+o}, v{QA+2+o}, v{QA+6+o}")
    for o in (0, 1): e(f"v_permlane16_swap_b32 v{QA+o}, v{QA+2+o}")
    for o in (0, 1): e(f"v_add_f32 v{QA+o}, v{QA+o}, v{QA+2+o}")
    for s in (8, 4, 2):
        for o in (0, 1): e(f"v_add_f32_dpp v{QA+o}, v{QA+o}, v{QA+o} row_ror:{s} {DPPF}")
    e(f"v_cvt_pk_bf16_f32 v44, v{QA}, v{QA+1}"); e(f"v_mov_b32 v45, {sTag}")
    e(f"v_lshrrev_b32 v5, 4, {vLane}"); e("v_lshlrev_b32 v5, 3, v5"); e("v_lshl_add_u32 v5, v8, 5, v5")
    e(f"s_lshl_b32 {sT[0]}, {sT[4]}, 6"); e(f"s_add_u32 {sT[0]}, {sT[0]}, {WS_Q}"); e(f"v_add_u32 v5, {sT[0]}, v5")
    e("s_mov_b32 exec_lo, 0x00030003"); e("s_mov_b32 exec_hi, 0x00030003")
    e(f"global_store_dwordx2 v5, v[44:45], {sp(sWS)} sc1")
    e("s_mov_b64 exec, -1")
    e(f"s_lshl_b32 {sT[0]}, {sG}, 11"); e(f"s_add_u32 {sT[0]}, {sT[0]}, {WS_Q}")
    e(f"v_lshlrev_b32 v5, 5, {vLane}"); e(f"v_add_u32 v5, {sT[0]}, v5")
    e(f"v_add_u32 v6, {L_Q}, {vVo}")
    A.label("L_qpoll")
    e(f"s_sub_u32 {sTO}, {sTO}, 1"); e("s_cbranch_scc1 L_end")
    e(f"global_load_dwordx4 v[44:47], v5, {sp(sWS)} sc1"); e(f"global_load_dwordx4 v[48:51], v5, {sp(sWS)} offset:16 sc1")
    e("s_waitcnt vmcnt(0)")
    e(f"v_xor_b32 v45, {sTag}, v45"); e(f"v_xor_b32 v47, {sTag}, v47"); e(f"v_xor_b32 v49, {sTag}, v49"); e(f"v_xor_b32 v51, {sTag}, v51")
    e("v_or3_b32 v45, v45, v47, v49"); e("v_or_b32 v45, v45, v51")
    e("v_cmp_ne_u32 vcc, 0, v45")
    e("s_cbranch_vccnz L_qpoll")
    e("v_mov_b32 v45, v46"); e("v_mov_b32 v46, v48"); e("v_mov_b32 v47, v50")
    e("ds_write_b128 v6, v[44:47]")
    e("s_waitcnt lgkmcnt(0)")
    if debug: e("s_memrealtime s[72:73]")
    e("s_barrier")
    e("s_setprio 0")
    e(f"s_cmp_eq_u32 {sRole}, 0"); e("s_cbranch_scc1 L_fill")
    e(f"v_lshlrev_b32 v5, 8, {vLane}"); e(f"v_add_u32 v5, {WS_Q+4}, v5")
    A.label("L_apoll")
    e(f"s_sub_u32 {sTO}, {sTO}, 1"); e("s_cbranch_scc1 L_end")
    for k in range(4): e(f"global_load_dword v{44+k}, v5, {sp(sWS)} offset:{64*k} sc1")
    e("s_waitcnt vmcnt(0)")
    for k in range(4): e(f"v_xor_b32 v{44+k}, {sTag}, v{44+k}")
    e("v_or3_b32 v44, v44, v45, v46"); e("v_or_b32 v44, v44, v47")
    e("v_cmp_ne_u32 vcc, 0, v44")
    e("s_cbranch_vccnz L_apoll")
    e("s_cmp_eq_u32 s2, 0"); e("s_cbranch_scc0 L_fill")
    e(f"v_mov_b32 v44, {sTag}")
    e("s_mov_b64 exec, 1")
    e(f"global_store_dword v9, v44, {sp(sWS)} sc1")
    e("s_mov_b64 exec, -1")
    e("s_branch L_fill")

    A.raw('.section .rodata,"a"'); A.raw(".p2align 6"); A.raw(f".amdhsa_kernel {NAME}")
    for l in ["next_free_vgpr 256", "next_free_sgpr 102", "accum_offset 256", "group_segment_fixed_size 0", "kernarg_size 96",
              "user_sgpr_count 2", "user_sgpr_kernarg_segment_ptr 1", "system_sgpr_workgroup_id_x 1", "float_denorm_mode_32 3"]:
        A.raw("  .amdhsa_" + l)
    A.raw(".end_amdhsa_kernel")
    return A.text()

if __name__ == "__main__":
    dbg = "--debug" in sys.argv
    sys.stdout.write(gen(debug=dbg))
```

```python
import sys
sys.path.insert(0, "work")
from asmlib import Asm

NAME = "sequential_preLN__gqa_block_cached__glu_gated_bilinear__decode_kernel"

WS_EPOCH = 0
WS_Q = 0x1000
WS_PART = 0x10000
PREC = 2176
WS_A1 = 0xA0000
WS_D2 = 0xB0000
WS_STAMP = 0x800000
L_WTS = 0
WPW = 12 * 1024
L_Q = 8 * WPW
L_ACC = L_Q + 1024
L_MS = L_ACC + 16384
L_RED = L_MS + 256
L_STAT = L_RED + 4096
L_TOTAL = L_STAT + 256

KV_BYTES = 128 << 20

def gen(debug=False, nitems=8, opts=None):
    opts = opts or {}
    A = Asm(); e = A
    stamps = []
    def stamp(i):
        if debug:
            e(f"s_memrealtime s[{80+2*i}:{81+2*i}]")
    sX, sK, sV, sWQ, sWO, sWG, sWU, sWD, sOUT, sDBG, sWS = 8, 10, 12, 14, 16, 20, 22, 24, 26, 28, 30
    def sp(n): return f"s[{n}:{n+1}]"
    sW = "s3"; sG = "s4"; sC = "s5"
    srdK = "s[32:35]"; srdV = "s[36:39]"; srdW = "s[40:43]"
    sScale, sL2E, sSelLo, sSelHi = "s44", "s45", "s46", "s47"
    sO = ["s48", "s49", "s50", "s51"]
    sT = ["s52", "s53", "s54", "s55", "s56", "s57", "s58", "s59"]
    sTag = "s60"; sRole = "s61"; sIdx = "s62"; sCnt = "s63"; sTO = "s64"
    sEx = "s[66:67]"
    vLane = "v1"; vKo = "v2"; vVo = "v3"
    ACC = 4; PV_ = 12; BQ = 28; T = 44; M = 76
    vX0, vX1, vY0, vY1, vS0, vS1, vML, vL, va, vb, vc, vd, vMSa, vf = [f"v{M+i}" for i in range(14)]
    vKo2 = "v90"; vVo2 = "v91"
    RB = [128, 160, 192, 224]
    def vr(a, n=4): return f"v[{a}:{a+n-1}]"
    DPPF = "row_mask:0xf bank_mask:0xf"

    A.raw(f"; @launch grid=(256,1,1) block=(512,1,1) lds={L_TOTAL}")
    A.raw('.amdgcn_target "amdgcn-amd-amdhsa--gfx950"')
    A.raw(".text"); A.raw(f".globl {NAME}"); A.raw(".p2align 8"); A.raw(f".type {NAME},@function"); A.label(NAME)
    e("s_cmp_ge_u32 s2, 256"); e("s_cbranch_scc1 L_end")
    e("s_load_dwordx16 s[8:23], s[0:1], 0")
    e("s_load_dwordx8 s[24:31], s[0:1], 64")
    stamp(0)
    e(f"v_lshrrev_b32 v2, 6, v0"); e(f"v_and_b32 {vLane}, 63, v0")
    e(f"v_readfirstlane_b32 {sW}, v2")
    e(f"s_lshr_b32 {sG}, s2, 5"); e(f"s_and_b32 {sC}, s2, 31")
    e(f"s_mov_b32 {sSelLo}, 0x05040100"); e(f"s_mov_b32 {sSelHi}, 0x07060302")
    e(f"s_mov_b32 {sTO}, 0x400000")
    e(f"s_mov_b32 {sRole}, 0"); e(f"s_mov_b32 {sIdx}, 0")
    e(f"s_lshl_b32 {sT[0]}, {sG}, 1"); e(f"s_add_u32 {sT[0]}, {sT[0]}, {sC}"); e(f"s_sub_u32 {sT[0]}, {sT[0]}, 15")
    e(f"s_cmp_lt_u32 {sC}, 17"); e(f"s_cselect_b32 {sRole}, 3, {sRole}"); e(f"s_cselect_b32 {sIdx}, {sT[0]}, {sIdx}")
    e(f"s_mul_i32 {sT[0]}, {sG}, 7"); e(f"s_add_u32 {sT[0]}, {sT[0]}, {sC}"); e(f"s_sub_u32 {sT[0]}, {sT[0]}, 8")
    e(f"s_cmp_lt_u32 {sC}, 15"); e(f"s_cselect_b32 {sRole}, 2, {sRole}"); e(f"s_cselect_b32 {sIdx}, {sT[0]}, {sIdx}")
    e(f"s_cmp_lt_u32 {sC}, 8"); e(f"s_cselect_b32 {sRole}, 1, {sRole}"); e(f"s_cselect_b32 {sIdx}, {sC}, {sIdx}")
    e(f"s_cmp_eq_u32 {sW}, 0"); e("s_cbranch_scc1 L_qwave")

    A.label("L_fill")
    e(f"v_lshlrev_b32 {vVo}, 4, {vLane}")
    e(f"v_lshrrev_b32 v5, 4, {vLane}"); e("v_lshlrev_b32 v5, 6, v5")
    e(f"v_bfe_u32 v6, {vLane}, 2, 2"); e("v_lshlrev_b32 v6, 8, v6")
    e(f"v_and_b32 v7, 3, {vLane}"); e("v_lshlrev_b32 v7, 4, v7")
    e(f"v_add3_u32 {vKo}, v5, v6, v7")
    e(f"v_add_u32 {vKo2}, 0x1000, {vKo}"); e(f"v_add_u32 {vVo2}, 0x1000, {vVo}")
    e(f"s_lshl_b32 {sO[0]}, {sG}, 24"); e(f"s_lshl_b32 {sT[0]}, {sC}, 19"); e(f"s_add_u32 {sO[0]}, {sO[0]}, {sT[0]}")
    e(f"s_lshl_b32 {sT[0]}, {sW}, 13"); e(f"s_add_u32 {sO[0]}, {sO[0]}, {sT[0]}")
    e(f"s_add_u32 {sO[1]}, {sO[0]}, 0x10000"); e(f"s_add_u32 {sO[2]}, {sO[0]}, 0x20000"); e(f"s_add_u32 {sO[3]}, {sO[0]}, 0x30000")
    e(f"s_mov_b32 s34, {KV_BYTES}"); e("s_mov_b32 s35, 0x20000"); e(f"s_mov_b32 s38, {KV_BYTES}"); e("s_mov_b32 s39, 0x20000")
    e("s_waitcnt lgkmcnt(0)")
    e(f"s_mov_b32 s32, s{sK}"); e(f"s_mov_b32 s33, s{sK+1}"); e(f"s_mov_b32 s36, s{sV}"); e(f"s_mov_b32 s37, s{sV+1}")
    e(f"s_cmp_eq_u32 {sW}, 0"); e("s_cbranch_scc1 L_nobar0")
    e("s_barrier")
    A.label("L_nobar0")
    def ldK(bank, n, so):
        e(f"buffer_load_dwordx4 {vr(RB[bank]+4*n)}, {vKo if n < 4 else vKo2}, {srdK}, {so} offen offset:{(n%4)*1024} nt")
    def ldV(bank, n, so):
        e(f"buffer_load_dwordx4 {vr(RB[bank]+4*n)}, {vVo if n < 4 else vVo2}, {srdV}, {so} offen offset:{(n%4)*1024} nt")
    for n in range(8): ldK(0, n, sO[0])
    for n in range(8): ldK(1, n, sO[1])
    for n in range(8): ldV(2, n, sO[0])
    for n in range(8): ldK(3, n, sO[2])
    stamp(1)
    e(f"s_mul_i32 {sT[1]}, {sW}, {WPW}")
    e(f"s_cmp_eq_u32 {sRole}, 1"); e("s_cbranch_scc0 L_now1")
    e(f"s_mov_b32 s40, s{sWO}"); e(f"s_mov_b32 s41, s{sWO+1}"); e(f"s_mov_b32 s42, {4096*1024}"); e("s_mov_b32 s43, 0x20000")
    e(f"v_bfe_u32 v5, {vLane}, 4, 1"); e("v_lshlrev_b32 v5, 18, v5")
    e(f"v_lshrrev_b32 v6, 5, {vLane}"); e("v_lshlrev_b32 v6, 10, v6")
    e(f"v_and_b32 v7, 15, {vLane}"); e("v_lshlrev_b32 v7, 4, v7")
    e("v_add3_u32 v5, v5, v6, v7")
    e(f"s_lshl_b32 {sT[2]}, {sG}, 9")
    e(f"s_lshr_b32 {sT[3]}, {sW}, 1"); e(f"s_lshl_b32 {sT[3]}, {sT[3]}, 5"); e(f"s_add_u32 {sT[2]}, {sT[2]}, {sT[3]}")
    e(f"s_and_b32 {sT[3]}, {sIdx}, 4"); e(f"s_add_u32 {sT[2]}, {sT[2]}, {sT[3]}")
    e(f"s_and_b32 {sT[3]}, {sW}, 1"); e(f"s_lshl_b32 {sT[3]}, {sT[3]}, 1"); e(f"s_add_u32 {sT[2]}, {sT[2]}, {sT[3]}")
    e(f"s_lshl_b32 {sT[2]}, {sT[2]}, 10")
    e(f"s_and_b32 {sT[3]}, {sIdx}, 3"); e(f"s_lshl_b32 {sT[3]}, {sT[3]}, 8"); e(f"s_add_u32 {sT[2]}, {sT[2]}, {sT[3]}")
    for ep in range(8):
        e(f"s_add_u32 {sT[3]}, {sT[2]}, {(128*(ep>>2) + 8*(ep&3))*1024}")
        e(f"s_add_u32 m0, {sT[1]}, {ep*1024}")
        e(f"buffer_load_dwordx4 v5, {srdW}, {sT[3]} offen nt lds")
    e("s_branch L_wdone")
    A.label("L_now1")
    e(f"s_cmp_eq_u32 {sRole}, 2"); e("s_cbranch_scc0 L_wdone")
    e(f"v_lshrrev_b32 v5, 4, {vLane}"); e("v_lshlrev_b32 v5, 4, v5")
    e(f"v_and_b32 v6, 8, {vLane}"); e("v_add_u32 v5, v5, v6")
    e(f"s_lshl_b32 {sT[2]}, {sW}, 6"); e(f"v_add_u32 v5, {sT[2]}, v5")
    e("v_mul_u32_u24 v5, 3584, v5")
    e(f"v_and_b32 v6, 3, {vLane}"); e("v_lshlrev_b32 v6, 4, v6")
    e(f"s_lshl_b32 {sT[2]}, {sIdx}, 6"); e(f"v_add3_u32 v5, v5, v6, {sT[2]}")
    e(f"v_and_b32 v6, 4, {vLane}"); e("v_cmp_eq_u32 vcc, 0, v6")
    e(f"v_mov_b32 v6, s{sWU}"); e(f"v_mov_b32 v8, s{sWG}"); e("v_cndmask_b32 v6, v6, v8, vcc")
    e(f"v_mov_b32 v7, s{sWU+1}"); e(f"v_mov_b32 v8, s{sWG+1}"); e("v_cndmask_b32 v7, v7, v8, vcc")
    e("v_add_co_u32 v6, vcc, v6, v5"); e("v_addc_co_u32 v7, vcc, 0, v7, vcc")
    for ep in range(8):
        e(f"s_add_u32 m0, {sT[1]}, {ep*1024}")
        e(f"global_load_lds_dwordx4 v[6:7], off nt")
        if ep < 7:
            e("v_add_co_u32 v6, vcc, 3584, v6"); e("v_addc_co_u32 v7, vcc, 0, v7, vcc")
    e(f"s_mov_b32 s40, s{sWD}"); e(f"s_mov_b32 s41, s{sWD+1}"); e(f"s_mov_b32 s42, {1792*1024}"); e("s_mov_b32 s43, 0x20000")
    e(f"v_lshrrev_b32 v5, 4, {vLane}"); e("v_lshlrev_b32 v5, 13, v5")
    e(f"v_and_b32 v6, 8, {vLane}"); e("v_lshlrev_b32 v6, 9, v6")
    e(f"v_and_b32 v7, 7, {vLane}"); e("v_lshlrev_b32 v7, 4, v7")
    e("v_add3_u32 v5, v5, v6, v7")
    e(f"s_lshl_b32 {sT[2]}, {sIdx}, 15"); e(f"s_lshl_b32 {sT[3]}, {sW}, 7"); e(f"s_add_u32 {sT[2]}, {sT[2]}, {sT[3]}")
    e(f"s_add_u32 m0, {sT[1]}, {8*1024}")
    for ep in range(4):
        e(f"buffer_load_dwordx4 v5, {srdW}, {sT[2]} offen offset:{ep*1024} nt lds")
    A.label("L_wdone")
    e(f"s_mov_b32 {sScale}, 0x3db504f3")
    e(f"s_mov_b32 {sL2E}, 0x3fb8aa3b")
    for i in range(8): e(f"v_mov_b32 v{ACC+i}, 0")
    for i in range(16): e(f"v_mov_b32 v{PV_+i}, 0")
    e(f"v_mov_b32 {vML}, 0xff800000"); e(f"v_mov_b32 {vL}, 0")
    e(f"v_and_b32 {vMSa}, 3, {vLane}"); e(f"v_lshlrev_b32 {vMSa}, 5, {vMSa}")
    e(f"s_lshl_b32 {sT[0]}, {sW}, 2"); e(f"s_add_u32 {sT[0]}, {sT[0]}, {L_MS}"); e(f"v_add_u32 {vMSa}, {sT[0]}, {vMSa}")
    e(f"v_and_b32 {va}, 3, {vLane}"); e(f"v_lshlrev_b32 {va}, 8, {va}")
    e(f"v_lshrrev_b32 {vb}, 4, {vLane}"); e(f"v_lshlrev_b32 {vb}, 6, {vb}")
    e(f"s_mov_b32 {sT[0]}, {L_Q}")
    e(f"v_add3_u32 {va}, {va}, {vb}, {sT[0]}")
    e(f"v_bfe_u32 {vb}, {vLane}, 2, 2")
    for m in range(4):
        e(f"v_subrev_u32 {vc}, {m}, {vb}"); e(f"v_and_b32 {vc}, 3, {vc}")
        e(f"v_lshl_add_u32 v{T+m}, {vc}, 4, {va}")
    e(f"s_mov_b32 {sCnt}, {nitems}")
    e(f"s_cmp_eq_u32 {sW}, 0"); e("s_cbranch_scc1 L_nobar")
    e("s_barrier")
    A.label("L_nobar")
    for m in range(4): e(f"ds_read_b128 {vr(BQ+4*m)}, v{T+m}")
    stamp(2)
    e("s_waitcnt lgkmcnt(0)")

    def QK(bank, refill):
        for n in range(8):
            e("s_waitcnt vmcnt(31)")
            e(f"v_mfma_f32_16x16x32_bf16 {vr(T+4*n)}, {vr(RB[bank]+4*n)}, {vr(BQ+4*(n&3))}, 0")
            refill(n)
        for n in range(8):
            t, m = n >> 2, n & 3
            X = (vX0, vX1)[t]; Y = (vY0, vY1)[t]; D = T + 4 * n
            e(f"v_add_f32_dpp {Y}, v{D+3}, v{D+1} row_ror:8 row_mask:0xf bank_mask:{1 << ((m+1)&3):#x}")
            e(f"v_add_f32_dpp {X}, v{D+2}, v{D} row_ror:8 row_mask:0xf bank_mask:{1 << m:#x}")
        e(f"v_add_f32_dpp {vX0}, {vY0}, {vX0} row_ror:12 {DPPF}")
        e(f"v_add_f32_dpp {vX1}, {vY1}, {vX1} row_ror:12 {DPPF}")
        if opts.get("noround"):
            e(f"v_mul_f32 {vS0}, {sScale}, {vX0}"); e(f"v_mul_f32 {vS1}, {sScale}, {vX1}")
            return
        e(f"v_cvt_pk_bf16_f32 {vY0}, {vX0}, {vX1}")
        e(f"v_lshlrev_b32 {vX0}, 16, {vY0}"); e(f"v_and_b32 {vX1}, 0xffff0000, {vY0}")
        e(f"v_mul_f32 {vX0}, {sScale}, {vX0}"); e(f"v_mul_f32 {vX1}, {sScale}, {vX1}")
        e(f"v_cvt_pk_bf16_f32 {vY0}, {vX0}, {vX1}")
        e(f"v_lshlrev_b32 {vS0}, 16, {vY0}"); e(f"v_and_b32 {vS1}, 0xffff0000, {vY0}")
    def xlane(op, r, tmp):
        e(f"v_{op}_f32_dpp {r}, {r}, {r} row_ror:8 {DPPF}")
        e(f"v_{op}_f32_dpp {r}, {r}, {r} row_ror:4 {DPPF}")
        e(f"v_mov_b32 {tmp}, {r}"); e(f"v_permlane16_swap_b32 {tmp}, {r}"); e(f"v_{op}_f32 {r}, {tmp}, {r}")
        e(f"v_mov_b32 {tmp}, {r}"); e(f"v_permlane32_swap_b32 {tmp}, {r}"); e(f"v_{op}_f32 {r}, {tmp}, {r}")
    def SM():
        e(f"v_max_f32 {va}, {vS0}, {vS1}")
        xlane("max", va, vb)
        e(f"v_mul_f32 {va}, {sL2E}, {va}")
        e(f"v_max_f32 {va}, {va}, {vML}")
        e(f"v_sub_f32 {vf}, {vML}, {va}")
        e(f"v_fma_f32 {vc}, {vS0}, {sL2E}, -{va}")
        e(f"v_fma_f32 {vd}, {vS1}, {sL2E}, -{va}")
        e(f"v_exp_f32 {vf}, {vf}"); e(f"v_exp_f32 {vc}, {vc}"); e(f"v_exp_f32 {vd}, {vd}")
        e(f"v_mov_b32 {vML}, {va}")
        for i in range(8): e(f"v_mul_f32 v{ACC+i}, {vf}, v{ACC+i}")
        e(f"v_add_f32 {va}, {vc}, {vd}")
        e(f"v_mov_b32_dpp {vX0}, {vc} row_ror:12 {DPPF}")
        e(f"v_mov_b32_dpp {vX1}, {vd} row_ror:12 {DPPF}")
        e(f"v_cvt_pk_bf16_f32 {vX0}, {vc}, {vX0}")
        e(f"v_cvt_pk_bf16_f32 {vX1}, {vd}, {vX1}")
        e(f"v_add_f32_dpp {va}, {va}, {va} row_ror:8 {DPPF}")
        k = 0
        seq = []
        for rho in range(4):
            bm = f"row_mask:0xf bank_mask:{1 << rho:#x}"
            seq.append(f"v_mov_b32_dpp v{PV_+4*rho+0}, {vX0} quad_perm:[0,1,2,3] {bm}")
            seq.append(f"v_mov_b32_dpp v{PV_+4*rho+1}, {vX0} row_ror:8 {bm}")
            seq.append(f"v_mov_b32_dpp v{PV_+4*rho+2}, {vX1} quad_perm:[0,1,2,3] {bm}")
            seq.append(f"v_mov_b32_dpp v{PV_+4*rho+3}, {vX1} row_ror:8 {bm}")
        for s in seq[0:2]: e(s)
        e(f"v_add_f32_dpp {va}, {va}, {va} row_ror:4 {DPPF}")
        e(f"v_mov_b32 {vb}, {va}")
        for s in seq[2:4]: e(s)
        e(f"v_permlane16_swap_b32 {vb}, {va}"); e(f"v_add_f32 {va}, {vb}, {va}")
        e(f"v_mov_b32 {vb}, {va}")
        for s in seq[4:6]: e(s)
        e(f"v_permlane32_swap_b32 {vb}, {va}"); e(f"v_add_f32 {va}, {vb}, {va}")
        e(f"v_fma_f32 {vL}, {vL}, {vf}, {va}")
        for s in seq[6:]: e(s)
        e(f"ds_write2_b32 {vMSa}, {vML}, {vL} offset0:0 offset1:32")
    def PV(bank, refill):
        B = RB[bank]
        def perm(ee, k):
            rho = ee & 3; t = k >> 1
            n0 = 4 * t + ((rho + 2 * (k & 1)) & 3); n1 = 4 * t + ((rho + 2 * (k & 1) + 1) & 3)
            e(f"v_perm_b32 v{T+4*ee+k}, v{B+4*n1+(ee>>1)}, v{B+4*n0+(ee>>1)}, {sSelHi if ee & 1 else sSelLo}")
        e("s_waitcnt vmcnt(28)")
        for ee in range(8):
            perm(ee, 0); perm(ee, 1)
        for n in range(4): refill(n)
        e("s_waitcnt vmcnt(28)")
        order = [0, 4, 1, 5, 2, 6, 3, 7]
        def mf(ee):
            ac = vr(ACC + 4 * (ee >> 2))
            e(f"v_mfma_f32_16x16x32_bf16 {ac}, {vr(T+4*ee)}, {vr(PV_+4*(ee&3))}, {ac}")
        for idx, ee in enumerate(order):
            perm(ee, 2); perm(ee, 3)
            if idx >= 1: mf(order[idx - 1])
        for n in range(4, 8): refill(n)
        mf(order[7])
    def next_item(dst, src):
        e(f"s_add_u32 {dst}, {src}, 0x10000")
        e(f"s_sub_u32 {sCnt}, {sCnt}, 1")
        e(f"s_cmp_gt_i32 {sCnt}, 3")
        e(f"s_cselect_b32 {dst}, {dst}, {KV_BYTES}")

    QK(0, lambda n: ldV(0, n, sO[1]))
    SM()
    A.label("L_loop")
    QK(1, lambda n: ldK(1, n, sO[3]))
    PV(2, lambda n: ldV(2, n, sO[2]))
    e(f"s_cmp_eq_u32 {sO[1]}, {KV_BYTES}"); e("s_cbranch_scc1 L_done")
    next_item(sO[0], sO[3])
    SM()
    QK(3, lambda n: ldK(3, n, sO[0]))
    PV(0, lambda n: ldV(0, n, sO[3]))
    e(f"s_cmp_eq_u32 {sO[2]}, {KV_BYTES}"); e("s_cbranch_scc1 L_done")
    e(f"s_mov_b32 {sO[1]}, {sO[3]}"); e(f"s_mov_b32 {sO[2]}, {sO[0]}")
    next_item(sO[3], sO[0])
    SM()
    e("s_branch L_loop")

    A.label("L_done")
    stamp(3)
    e(f"s_lshl_b32 {sT[0]}, {sW}, 11"); e(f"s_add_u32 {sT[0]}, {sT[0]}, {L_ACC}")
    e(f"v_add_u32 {va}, {sT[0]}, {vVo}")
    e("s_nop 5")
    e(f"ds_write_b128 {va}, {vr(ACC)}"); e(f"ds_write_b128 {va}, {vr(ACC+4)} offset:1024")
    e("s_waitcnt lgkmcnt(0)")
    e("s_barrier")
    stamp(4)
    e(f"s_cmp_gt_u32 {sW}, 2"); e("s_cbranch_scc1 L_pubdone")
    e(f"v_and_b32 {vb}, 3, {vLane}"); e(f"v_lshlrev_b32 {vb}, 5, {vb}"); e(f"v_add_u32 {vb}, {L_MS}, {vb}")
    e(f"ds_read_b128 {vr(12)}, {vb}"); e(f"ds_read_b128 {vr(16)}, {vb} offset:16")
    e(f"s_mul_i32 {sT[1]}, s2, {PREC}"); e(f"s_add_u32 {sT[1]}, {sT[1]}, {WS_PART}")
    e(f"s_cmp_eq_u32 {sW}, 2"); e("s_cbranch_scc1 L_pubstat")
    e(f"s_lshl_b32 {sT[0]}, {sW}, 10"); e(f"s_add_u32 {sT[1]}, {sT[1]}, {sT[0]}"); e(f"s_add_u32 {sT[0]}, {sT[0]}, {L_ACC}")
    e(f"v_add_u32 {va}, {sT[0]}, {vVo}")
    for w in range(8): e(f"ds_read_b128 {vr(T+4*w)}, {va} offset:{2048*w}")
    e(f"v_add_u32 {vc}, {sT[1]}, {vVo}")
    def wts():
        e("v_max3_f32 v20, v12, v13, v14"); e("v_max3_f32 v21, v15, v16, v17"); e("v_max3_f32 v20, v20, v18, v19"); e("v_max_f32 v20, v20, v21")
        for w in range(8): e(f"v_sub_f32 v{12+w}, v{12+w}, v20")
        for w in range(8): e(f"v_exp_f32 v{12+w}, v{12+w}")
    e("s_waitcnt lgkmcnt(8)")
    wts()
    e("s_waitcnt lgkmcnt(6)")
    for w in range(8):
        if w in (2, 4, 6): e(f"s_waitcnt lgkmcnt({6-w})")
        for r in range(4):
            if w == 0: e(f"v_mul_f32 v{24+r}, v12, v{T+r}")
            else: e(f"v_fmac_f32 v{24+r}, v{12+w}, v{T+4*w+r}")
    for r in range(4): e(f"v_min_u32 v{24+r}, -2, v{24+r}")
    e("s_waitcnt vmcnt(0)")
    e(f"global_store_dwordx4 {vc}, v[24:27], {sp(sWS)} sc1")
    e("s_branch L_pubdone2")
    A.label("L_pubstat")
    e(f"ds_read_b128 {vr(T)}, {vb} offset:128"); e(f"ds_read_b128 {vr(T+4)}, {vb} offset:144")
    e(f"v_lshlrev_b32 {vc}, 3, {vLane}"); e(f"v_add_u32 {vc}, {sT[1]}, {vc}")
    e("s_waitcnt lgkmcnt(2)")
    wts()
    e("s_waitcnt lgkmcnt(0)")
    e(f"v_mul_f32 v21, v12, v{T}")
    for w in range(1, 8): e(f"v_fmac_f32 v21, v{12+w}, v{T+w}")
    e("v_min_u32 v20, -2, v20"); e("v_min_u32 v21, -2, v21")
    e("s_waitcnt vmcnt(0)")
    e("s_mov_b64 exec, 0xf")
    e(f"global_store_dwordx2 {vc}, v[20:21], {sp(sWS)} offset:2048 sc1")
    e("s_mov_b64 exec, -1")
    e("s_branch L_pubdone2")
    A.label("L_pubdone")
    e("s_waitcnt vmcnt(0)")
    A.label("L_pubdone2")
    stamp(5)
    e(f"s_cmp_eq_u32 {sRole}, 1"); e("s_cbranch_scc1 L_st1")
    e(f"s_cmp_eq_u32 {sRole}, 2"); e("s_cbranch_scc1 L_st2")
    e(f"s_cmp_eq_u32 {sRole}, 3"); e("s_cbranch_scc1 L_st3")
    e("s_branch L_fin")

    def poll(lbl, loads, regs):
        A.label(lbl)
        e(f"s_sub_u32 {sTO}, {sTO}, 1"); e("s_cbranch_scc1 L_end")
        for l in loads: e(l)
        e("s_waitcnt vmcnt(0)")
        regs = list(regs)
        acc = va
        e(f"v_max3_u32 {va}, v{regs[0]}, v{regs[1]}, v{regs[2]}")
        rest = regs[3:]
        if len(rest) >= 3:
            e(f"v_max3_u32 {vb}, v{rest[0]}, v{rest[1]}, v{rest[2]}"); rest = rest[3:]
            tog = 0
            while len(rest) >= 2:
                d = (va, vb)[tog]; tog ^= 1
                e(f"v_max3_u32 {d}, {d}, v{rest[0]}, v{rest[1]}"); rest = rest[2:]
            if rest: e(f"v_max3_u32 {va}, {va}, {vb}, v{rest[0]}")
            else: e(f"v_max_u32 {va}, {va}, {vb}")
        else:
            for r in rest: e(f"v_max_u32 {va}, {va}, v{r}")
        e(f"v_cmp_eq_u32 vcc, -1, {va}")
        e(f"s_cbranch_vccnz {lbl}")
    def wfrag(dst, raw, nload, ldsoff):
        e(f"s_mul_i32 {sT[0]}, {sW}, {WPW}"); e(f"v_add_u32 {va}, {sT[0]}, {vVo}")
        for n in range(nload): e(f"ds_read_b128 {vr(raw+4*n)}, {va} offset:{ldsoff + 1024*n}")
        e("s_waitcnt lgkmcnt(0)")
        h = nload // 2
        for ee in range(8):
            for k in range(h):
                e(f"v_perm_b32 v{dst+h*ee+k}, v{raw+4*(2*k+1)+(ee>>1)}, v{raw+4*(2*k)+(ee>>1)}, {sSelHi if ee & 1 else sSelLo}")
    F1 = 128; RAW = 192; G = 12; DD = 160; F2 = 224

    A.label("L_st1")
    wfrag(F1, RAW, 8, 0)
    e(f"v_bfe_u32 {vc}, {vLane}, 1, 3"); e(f"v_mul_u32_u24 {vc}, {PREC}, {vc}")
    e(f"s_mul_i32 {sT[0]}, {sG}, {32*PREC}"); e(f"s_add_u32 {sT[0]}, {sT[0]}, {WS_PART}"); e(f"v_add_u32 {vc}, {sT[0]}, {vc}")
    e(f"v_lshrrev_b32 {vd}, 4, {vLane}"); e(f"v_lshlrev_b32 {vd}, 1, {vd}"); e(f"v_and_b32 {vf}, 1, {vLane}"); e(f"v_add_u32 {vd}, {vd}, {vf}")
    e(f"v_and_b32 {vf}, 3, {vd}"); e(f"v_lshl_add_u32 v40, {vf}, 3, {vc}")
    e(f"s_lshr_b32 {sT[0]}, {sIdx}, 2"); e(f"s_lshl_b32 {sT[0]}, {sT[0]}, 10"); e(f"s_lshl_b32 {sT[1]}, {sW}, 7"); e(f"s_add_u32 {sT[0]}, {sT[0]}, {sT[1]}")
    e(f"v_lshl_add_u32 v36, {vd}, 4, {vc}"); e(f"v_add_u32 v36, {sT[0]}, v36")
    for it in range(1, 4):
        e(f"v_add_u32 v{36+it}, {8*PREC*it}, v36"); e(f"v_add_u32 v{40+it}, {8*PREC*it}, v40")
    e(f"s_lshl_b32 {sT[0]}, {sW}, 9"); e(f"s_add_u32 {sT[0]}, {sT[0]}, {L_RED}")
    e(f"v_lshlrev_b32 {vY0}, 5, {vLane}"); e(f"v_add_u32 {vY0}, {sT[0]}, {vY0}")
    e(f"v_add_u32 {vY1}, {L_RED}, {vVo}")
    e(f"s_lshl_b32 {sT[0]}, {sG}, 12"); e(f"s_lshl_b32 {sT[1]}, {sIdx}, 9"); e(f"s_add_u32 {sT[0]}, {sT[0]}, {sT[1]}"); e(f"s_add_u32 {sT[0]}, {sT[0]}, {WS_A1}")
    e(f"v_add_u32 {vS0}, {sT[0]}, {vVo}")
    loads = [f"global_load_dwordx2 v[{28+2*it}:{29+2*it}], v{40+it}, {sp(sWS)} offset:2048 sc1" for it in range(4)]
    loads += [f"global_load_dwordx4 {vr(G+4*it)}, v{36+it}, {sp(sWS)} sc1" for it in range(4)]
    poll("L_poll1", loads, range(12, 36))
    stamp(6)
    e(f"v_max3_f32 {va}, v28, v30, v32"); e(f"v_max_f32 {va}, {va}, v34")
    for s in (8, 4, 2): e(f"v_max_f32_dpp {va}, {va}, {va} row_ror:{s} {DPPF}")
    for it in range(4): e(f"v_sub_f32 v{28+2*it}, v{28+2*it}, {va}")
    for it in range(4): e(f"v_exp_f32 v{28+2*it}, v{28+2*it}")
    e(f"v_mul_f32 v48, v28, v29")
    for r in range(4): e(f"v_mul_f32 v{44+r}, v28, v{G+r}")
    for it in range(1, 4):
        e(f"v_fmac_f32 v48, v{28+2*it}, v{29+2*it}")
        for r in range(4): e(f"v_fmac_f32 v{44+r}, v{28+2*it}, v{G+4*it+r}")
    for s in (8, 4, 2):
        for r in (4, 0, 1, 2, 3): e(f"v_add_f32_dpp v{44+r}, v{44+r}, v{44+r} row_ror:{s} {DPPF}")
    e("v_rcp_f32 v48, v48")
    for r in range(4): e(f"v_mul_f32 v{44+r}, v48, v{44+r}")
    e("v_cvt_pk_bf16_f32 v52, v44, v45"); e("v_cvt_pk_bf16_f32 v53, v46, v47")
    e(f"v_mov_b32_dpp v54, v52 quad_perm:[1,0,3,2] {DPPF}"); e(f"v_mov_b32_dpp v55, v53 quad_perm:[1,0,3,2] {DPPF}")
    for ee in range(8): e(f"v_mfma_f32_16x16x32_bf16 {vr(DD+4*ee)}, v[52:55], {vr(F1+4*ee)}, 0")
    e("s_mov_b64 exec, 0xffff")
    for ee in range(0, 8, 2): e(f"ds_write2_b32 {vY0}, v{DD+4*ee}, v{DD+4*ee+4} offset0:{ee} offset1:{ee+1}")
    e("s_mov_b64 exec, -1")
    e("s_waitcnt lgkmcnt(0)")
    e("s_barrier")
    e(f"s_cmp_eq_u32 {sW}, 0"); e("s_cbranch_scc0 L_fin")
    e("s_mov_b64 exec, 0xffffffff")
    for w in range(8): e(f"ds_read_b128 {vr(12+4*w)}, {vY1} offset:{512*w}")
    for w in range(0, 8, 2):
        e(f"s_waitcnt lgkmcnt({6-w})")
        for r in (0, 2): e(f"v_pk_add_f32 v[{12+4*w+r}:{13+4*w+r}], v[{12+4*w+r}:{13+4*w+r}], v[{16+4*w+r}:{17+4*w+r}]")
        if w in (2, 6):
            b = 12 + 4 * (w - 2)
            for r in (0, 2): e(f"v_pk_add_f32 v[{b+r}:{b+r+1}], v[{b+r}:{b+r+1}], v[{b+8+r}:{b+9+r}]")
    for r in (0, 2): e(f"v_pk_add_f32 v[{12+r}:{13+r}], v[{12+r}:{13+r}], v[{28+r}:{29+r}]")
    for r in range(4): e(f"v_min_u32 v{12+r}, -2, v{12+r}")
    e(f"global_store_dwordx4 {vS0}, v[12:15], {sp(sWS)} sc1")
    e("s_mov_b64 exec, -1")
    stamp(7)
    e("s_branch L_fin")

    A.label("L_st2")
    e(f"v_lshrrev_b32 {vc}, 4, {vLane}"); e(f"v_lshlrev_b32 {vc}, 2, {vc}"); e(f"v_and_b32 {vd}, 3, {vLane}"); e(f"v_add_u32 {vc}, {vc}, {vd}")
    e(f"s_lshl_b32 {sT[0]}, {sW}, 4"); e(f"v_add_u32 {vc}, {sT[0]}, {vc}")
    e(f"v_lshlrev_b32 {vd}, 3, {vc}")
    e(f"global_load_dwordx2 v[28:29], {vd}, {sp(sX)}")
    wfrag(F1, RAW, 8, 0)
    wfrag(F2, RAW, 4, 8192)
    e(f"v_bfe_u32 {vd}, {vLane}, 2, 2"); e(f"v_lshlrev_b32 {vd}, 11, {vd}")
    e(f"v_lshl_add_u32 v36, {vc}, 4, {vd}"); e(f"v_add_u32 v36, {WS_A1}, v36")
    for it in range(1, 4): e(f"v_add_u32 v{36+it}, {8192*it}, v36")
    e("s_waitcnt vmcnt(0)")
    e("v_lshlrev_b32 v32, 16, v28"); e("v_and_b32 v33, 0xffff0000, v28"); e("v_lshlrev_b32 v34, 16, v29"); e("v_and_b32 v35, 0xffff0000, v29")
    e(f"s_lshl_b32 {sT[0]}, {sW}, 3"); e(f"s_add_u32 {sT[0]}, {sT[0]}, {L_STAT}"); e(f"v_mov_b32 v40, {sT[0]}")
    e(f"v_mov_b32 v41, {L_STAT}")
    e(f"s_lshl_b32 {sT[0]}, {sW}, 8"); e(f"s_add_u32 {sT[0]}, {sT[0]}, {L_RED}")
    e(f"v_lshlrev_b32 v42, 5, {vLane}"); e(f"v_add_u32 v42, {sT[0]}, v42")
    e(f"v_bfe_u32 v43, {vLane}, 1, 3"); e("v_lshlrev_b32 v43, 8, v43")
    e(f"v_lshrrev_b32 {vd}, 4, {vLane}"); e(f"v_lshl_add_u32 v43, {vd}, 5, v43")
    e(f"v_and_b32 {vd}, 1, {vLane}"); e(f"v_lshl_add_u32 v43, {vd}, 4, v43"); e(f"v_add_u32 v43, {L_RED}, v43")
    e(f"s_lshl_b32 {sT[0]}, {sIdx}, 11"); e(f"s_lshl_b32 {sT[1]}, {sW}, 8"); e(f"s_add_u32 {sT[0]}, {sT[0]}, {sT[1]}"); e(f"s_add_u32 {sT[0]}, {sT[0]}, {WS_D2}")
    e(f"v_lshlrev_b32 {vS0}, 5, {vLane}"); e(f"v_add_u32 {vS0}, {sT[0]}, {vS0}")
    loads = [f"global_load_dwordx4 {vr(G+4*it)}, v{36+it}, {sp(sWS)} sc1" for it in range(4)]
    poll("L_poll2", loads, range(12, 28))
    stamp(6)
    for r in (0, 2): e(f"v_pk_add_f32 v[{12+r}:{13+r}], v[{12+r}:{13+r}], v[{16+r}:{17+r}]")
    for r in (0, 2): e(f"v_pk_add_f32 v[{20+r}:{21+r}], v[{20+r}:{21+r}], v[{24+r}:{25+r}]")
    for r in (0, 2): e(f"v_pk_add_f32 v[{12+r}:{13+r}], v[{12+r}:{13+r}], v[{20+r}:{21+r}]")
    for s in (8, 4):
        for r in range(4): e(f"v_add_f32_dpp v{12+r}, v{12+r}, v{12+r} row_ror:{s} {DPPF}")
    def rnd4(b, t):
        e(f"v_cvt_pk_bf16_f32 v{t}, v{b}, v{b+1}"); e(f"v_cvt_pk_bf16_f32 v{t+1}, v{b+2}, v{b+3}")
        e(f"v_lshlrev_b32 v{b}, 16, v{t}"); e(f"v_and_b32 v{b+1}, 0xffff0000, v{t}")
        e(f"v_lshlrev_b32 v{b+2}, 16, v{t+1}"); e(f"v_and_b32 v{b+3}, 0xffff0000, v{t+1}")
    rnd4(12, 16)
    for r in range(4): e(f"v_add_f32 v{12+r}, v{32+r}, v{12+r}")
    rnd4(12, 16)
    e(f"v_readfirstlane_b32 {sT[2]}, v12")
    for r in range(4): e(f"v_subrev_f32 v{16+r}, {sT[2]}, v{12+r}")
    e("v_add_f32 v20, v16, v17"); e("v_mul_f32 v21, v16, v16"); e("v_add_f32 v22, v18, v19"); e("v_fmac_f32 v21, v17, v17")
    e("v_add_f32 v20, v20, v22"); e("v_fmac_f32 v21, v18, v18"); e("v_fmac_f32 v21, v19, v19")
    for qp in ("[1,0,3,2]", "[2,3,0,1]"):
        e(f"v_add_f32_dpp v20, v20, v20 quad_perm:{qp} {DPPF}"); e(f"v_add_f32_dpp v21, v21, v21 quad_perm:{qp} {DPPF}")
    e("v_permlane32_swap_b32 v20, v21"); e("v_add_f32 v20, v20, v21")
    e("v_mov_b32 v21, v20"); e("v_permlane16_swap_b32 v21, v20"); e("v_add_f32 v20, v20, v21")
    e(f"v_readlane_b32 {sT[3]}, v20, 32")
    e("v_mul_f32 v21, 0x3c800000, v20")
    e(f"v_add_f32 v22, {sT[2]}, v21")
    e(f"v_fma_f32 v23, -v21, v20, {sT[3]}")
    e("s_mov_b64 exec, 1")
    e("ds_write_b64 v40, v[22:23]")
    e("s_mov_b64 exec, -1")
    e("s_waitcnt lgkmcnt(0)")
    e("s_barrier")
    for k in range(4): e(f"ds_read_b128 {vr(44+4*k)}, v41 offset:{16*k}")
    e("s_waitcnt lgkmcnt(0)")
    e("v_pk_add_f32 v[16:17], v[44:45], v[46:47]"); e("v_pk_add_f32 v[18:19], v[48:49], v[50:51]")
    e("v_pk_add_f32 v[20:21], v[52:53], v[54:55]"); e("v_pk_add_f32 v[22:23], v[56:57], v[58:59]")
    e("v_pk_add_f32 v[16:17], v[16:17], v[18:19]"); e("v_pk_add_f32 v[20:21], v[20:21], v[22:23]")
    e("v_pk_add_f32 v[16:17], v[16:17], v[20:21]")
    e("v_mul_f32 v16, 0x3e000000, v16")
    for k in range(8): e(f"v_sub_f32 v{44+2*k}, v{44+2*k}, v16")
    e("v_mul_f32 v18, v44, v44"); e("v_mul_f32 v19, v46, v46")
    for k in range(2, 8): e(f"v_fmac_f32 v{18+(k&1)}, v{44+2*k}, v{44+2*k}")
    e("v_add_f32 v18, v18, v19")
    e("v_fmac_f32 v17, 0x42800000, v18")
    e("v_mul_f32 v17, 0x3b000000, v17")
    def ln_finish(vm, vv, t):
        e(f"v_cvt_pk_bf16_f32 {t}, {vm}, {vv}")
        e(f"v_lshlrev_b32 {vm}, 16, {t}"); e(f"v_and_b32 {vv}, 0xffff0000, {t}")
        e(f"v_add_f32 {vv}, 0x3727c5ac, {vv}")
        e(f"v_cvt_pk_bf16_f32 {t}, {vv}, {vv}"); e(f"v_lshlrev_b32 {vv}, 16, {t}")
        e(f"v_sqrt_f32 {vv}, {vv}")
        e(f"v_cvt_pk_bf16_f32 {t}, {vv}, {vv}"); e(f"v_lshlrev_b32 {vv}, 16, {t}")
        e(f"v_rcp_f32 {vv}, {vv}")
    ln_finish("v16", "v17", "v18")
    for r in range(4): e(f"v_sub_f32 v{12+r}, v{12+r}, v16")
    rnd4(12, 20)
    for r in range(4): e(f"v_mul_f32 v{12+r}, v17, v{12+r}")
    e("v_cvt_pk_bf16_f32 v52, v12, v13"); e("v_cvt_pk_bf16_f32 v53, v14, v15")
    e(f"v_mov_b32_dpp v54, v52 quad_perm:[1,0,3,2] {DPPF}"); e(f"v_mov_b32_dpp v55, v53 quad_perm:[1,0,3,2] {DPPF}")
    for ee in range(8): e(f"v_mfma_f32_16x16x32_bf16 {vr(DD+4*ee)}, v[52:55], {vr(F1+4*ee)}, 0")
    for ee in range(8): e(f"v_add_f32_dpp v{12+ee}, v{DD+4*ee+2}, v{DD+4*ee} row_ror:8 {DPPF}")
    e("s_mov_b64 exec, 0xff")
    e("ds_write_b128 v42, v[12:15]"); e("ds_write_b128 v42, v[16:19] offset:16")
    e("s_mov_b64 exec, -1")
    e("s_waitcnt lgkmcnt(0)")
    e("s_barrier")
    e("ds_read_b128 v[12:15], v43"); e("ds_read_b128 v[16:19], v43 offset:128")
    e("s_waitcnt lgkmcnt(0)")
    for s in (8, 4, 2):
        for r in range(8): e(f"v_add_f32_dpp v{12+r}, v{12+r}, v{12+r} row_ror:{s} {DPPF}")
    rnd4(12, 20); rnd4(16, 22)
    for r in range(4): e(f"v_mul_f32 v{12+r}, v{12+r}, v{16+r}")
    e("v_cvt_pk_bf16_f32 v52, v12, v13"); e("v_cvt_pk_bf16_f32 v53, v14, v15")
    for ee in range(8): e(f"v_mfma_f32_16x16x16_bf16 {vr(DD+4*ee)}, v[52:53], {vr(F2+2*ee, 2)}, 0")
    for ee in range(8): e(f"v_add_f32_dpp v{12+ee}, v{DD+4*ee+1}, v{DD+4*ee} row_ror:8 {DPPF}")
    for ee in range(8): e(f"v_min_u32 v{12+ee}, -2, v{12+ee}")
    e("s_mov_b64 exec, 0xff")
    e(f"global_store_dwordx4 {vS0}, v[12:15], {sp(sWS)} sc1"); e(f"global_store_dwordx4 {vS0}, v[16:19], {sp(sWS)} offset:16 sc1")
    e("s_mov_b64 exec, -1")
    stamp(7)
    e("s_branch L_fin")

    A.label("L_st3")
    e(f"s_cmp_eq_u32 {sW}, 3"); e("s_cbranch_scc0 L_fin")
    e(f"v_and_b32 {vc}, 7, {vLane}"); e(f"v_lshlrev_b32 {vd}, 2, {vc}"); e(f"v_lshrrev_b32 {vf}, 4, {vLane}"); e(f"v_add_u32 {vd}, {vd}, {vf}")
    e(f"s_lshl_b32 {sT[0]}, {sIdx}, 5"); e(f"v_add_u32 {vd}, {sT[0]}, {vd}"); e(f"v_lshlrev_b32 {vS0}, 1, {vd}")
    e(f"global_load_ushort v60, {vS0}, {sp(sX)}")
    e(f"v_lshrrev_b32 {vd}, 3, {vLane}"); e(f"v_lshlrev_b32 {vd}, 11, {vd}"); e(f"v_lshl_add_u32 {vd}, {vc}, 4, {vd}")
    e(f"s_lshl_b32 {sT[0]}, {sIdx}, 7"); e(f"v_add_u32 {vd}, {sT[0]}, {vd}")
    e(f"v_add_u32 v44, {WS_A1}, {vd}"); e(f"v_add_u32 v45, {WS_A1 + 16384}, {vd}")
    for it in range(7): e(f"v_add_u32 v{46+it}, {WS_D2 + 16384*it}, {vd}")
    def red4(b):
        e(f"v_permlane32_swap_b32 v{b}, v{b+2}"); e(f"v_permlane32_swap_b32 v{b+1}, v{b+3}")
        e(f"v_add_f32 v{b}, v{b}, v{b+2}"); e(f"v_add_f32 v{b+1}, v{b+1}, v{b+3}")
        e(f"v_permlane16_swap_b32 v{b}, v{b+1}"); e(f"v_add_f32 v{b}, v{b}, v{b+1}")
        e(f"v_add_f32_dpp v{b}, v{b}, v{b} row_ror:8 {DPPF}")
    poll("L_poll3a", [f"global_load_dwordx4 {vr(12+4*it)}, v{44+it}, {sp(sWS)} sc1" for it in range(2)], range(12, 20))
    for r in (0, 2): e(f"v_pk_add_f32 v[{12+r}:{13+r}], v[{12+r}:{13+r}], v[{16+r}:{17+r}]")
    red4(12)
    e("v_cvt_pk_bf16_f32 v12, v12, v12"); e("v_lshlrev_b32 v12, 16, v12"); e("v_lshlrev_b32 v60, 16, v60")
    e("v_add_f32 v60, v60, v12"); e("v_cvt_pk_bf16_f32 v60, v60, v60"); e("v_lshlrev_b32 v60, 16, v60")
    stamp(6)
    poll("L_poll3b", [f"global_load_dwordx4 {vr(12+4*it)}, v{46+it}, {sp(sWS)} sc1" for it in range(7)], range(12, 40))
    for a, b in ((12, 16), (20, 24), (28, 32), (12, 20), (28, 36), (12, 28)):
        for r in (0, 2): e(f"v_pk_add_f32 v[{a+r}:{a+r+1}], v[{a+r}:{a+r+1}], v[{b+r}:{b+r+1}]")
    red4(12)
    e("v_cvt_pk_bf16_f32 v12, v12, v12"); e("v_lshlrev_b32 v12, 16, v12")
    e("v_add_f32 v12, v60, v12"); e("v_cvt_pk_bf16_f32 v12, v12, v12")
    e("s_mov_b32 exec_lo, 0x00ff00ff"); e("s_mov_b32 exec_hi, 0x00ff00ff")
    e(f"global_store_short {vS0}, v12, {sp(sOUT)}")
    e("s_mov_b64 exec, -1")
    stamp(7)

    A.label("L_fin")
    if debug:
        e("s_waitcnt vmcnt(0) lgkmcnt(0)")
        e("s_memrealtime s[96:97]")
        e("s_waitcnt lgkmcnt(0)")
        e(f"s_lshl_b32 {sT[0]}, s2, 3"); e(f"s_add_u32 {sT[0]}, {sT[0]}, {sW}"); e(f"s_lshl_b32 {sT[0]}, {sT[0]}, 6"); e(f"s_add_u32 {sT[0]}, {sT[0]}, {WS_STAMP}")
        e(f"v_mov_b32 v20, {sT[0]}")
        for i in range(9): e(f"v_mov_b32 v{4+i}, s{80+2*i}")
        e("s_getreg_b32 s52, hwreg(HW_REG_XCC_ID)"); e("v_mov_b32 v13, s52"); e("v_mov_b32 v14, s70"); e("v_mov_b32 v15, s72")
        e("s_mov_b64 exec, 1")
        for i in range(3): e(f"global_store_dwordx4 v20, v[{4+4*i}:{7+4*i}], {sp(sWS)} offset:{16*i}")
    A.label("L_end")
    e("s_endpgm")

    A.label("L_qwave")
    e("s_setprio 3")
    WQ = 128; XR = 12; XF = 20; QA = 36
    e(f"v_lshrrev_b32 v5, 1, {vLane}"); e("v_lshlrev_b32 v6, 5, v5")
    e("v_lshlrev_b32 v7, 17, v5"); e(f"v_and_b32 v8, 1, {vLane}"); e("v_lshl_add_u32 v7, v8, 4, v7")
    e(f"s_and_b32 {sT[4]}, s2, 7"); e(f"s_lshl_b32 {sT[4]}, {sT[4]}, 5"); e(f"s_lshr_b32 {sT[0]}, s2, 3"); e(f"s_add_u32 {sT[4]}, {sT[4]}, {sT[0]}")
    e(f"s_lshl_b32 {sT[0]}, {sT[4]}, 5"); e(f"v_add_u32 v7, {sT[0]}, v7")
    e("v_mov_b32 v9, 0")
    e(f"v_lshlrev_b32 {vVo}, 4, {vLane}")
    for r in range(4): e(f"v_mov_b32 v{60+r}, -1")
    e("s_waitcnt lgkmcnt(0)")
    e(f"global_load_dwordx4 {vr(XR)}, v6, {sp(sX)}"); e(f"global_load_dwordx4 {vr(XR+4)}, v6, {sp(sX)} offset:16")
    e(f"global_load_dword v10, v9, {sp(sWS)} sc1")
    for i in range(16):
        e(f"global_load_dwordx4 {vr(WQ+4*i)}, v7, {sp(sWQ)} nt")
        if i < 15: e("v_add_u32 v7, 0x2000, v7")
    e(f"s_mul_i32 {sT[1]}, s2, {PREC}"); e(f"s_add_u32 {sT[1]}, {sT[1]}, {WS_PART}"); e(f"v_add_u32 v11, {sT[1]}, {vVo}")
    e(f"global_store_dwordx4 v11, v[60:63], {sp(sWS)} sc1"); e(f"global_store_dwordx4 v11, v[60:63], {sp(sWS)} offset:1024 sc1")
    e("s_mov_b64 exec, 0xff"); e(f"global_store_dwordx4 v11, v[60:63], {sp(sWS)} offset:2048 sc1"); e("s_mov_b64 exec, -1")
    e(f"s_cmp_eq_u32 {sRole}, 1"); e("s_cbranch_scc0 L_qr1")
    e(f"s_lshl_b32 {sT[0]}, {sG}, 12"); e(f"s_lshl_b32 {sT[1]}, {sIdx}, 9"); e(f"s_add_u32 {sT[0]}, {sT[0]}, {sT[1]}"); e(f"s_add_u32 {sT[0]}, {sT[0]}, {WS_A1}")
    e(f"v_add_u32 v11, {sT[0]}, {vVo}")
    e("s_mov_b64 exec, 0xffffffff"); e(f"global_store_dwordx4 v11, v[60:63], {sp(sWS)} sc1"); e("s_mov_b64 exec, -1")
    e("s_barrier")
    e("s_waitcnt vmcnt(21)")
    e("s_branch L_qr2")
    A.label("L_qr1")
    e(f"s_cmp_eq_u32 {sRole}, 2"); e("s_cbranch_scc0 L_qr3")
    e(f"s_lshl_b32 {sT[0]}, {sIdx}, 11"); e(f"s_add_u32 {sT[0]}, {sT[0]}, {WS_D2}"); e(f"v_add_u32 v11, {sT[0]}, {vVo}")
    e(f"global_store_dwordx4 v11, v[60:63], {sp(sWS)} sc1"); e(f"global_store_dwordx4 v11, v[60:63], {sp(sWS)} offset:1024 sc1")
    e("s_barrier")
    e("s_waitcnt vmcnt(22)")
    e("s_branch L_qr2")
    A.label("L_qr3")
    e("s_barrier")
    e("s_waitcnt vmcnt(20)")
    A.label("L_qr2")
    for k in range(8):
        e(f"v_lshlrev_b32 v{XF+2*k}, 16, v{XR+k}"); e(f"v_and_b32 v{XF+2*k+1}, 0xffff0000, v{XR+k}")
    def wsum(r, tmp):
        for s in (8, 4, 2): e(f"v_add_f32_dpp {r}, {r}, {r} row_ror:{s} {DPPF}")
        e(f"v_mov_b32 {tmp}, {r}"); e(f"v_permlane16_swap_b32 {tmp}, {r}"); e(f"v_add_f32 {r}, {tmp}, {r}")
        e(f"v_mov_b32 {tmp}, {r}"); e(f"v_permlane32_swap_b32 {tmp}, {r}"); e(f"v_add_f32 {r}, {tmp}, {r}")
    for k in range(4): e(f"v_pk_add_f32 v[{44+2*k}:{45+2*k}], v[{XF+4*k}:{XF+4*k+1}], v[{XF+4*k+2}:{XF+4*k+3}]")
    e("v_pk_add_f32 v[44:45], v[44:45], v[46:47]"); e("v_pk_add_f32 v[48:49], v[48:49], v[50:51]"); e("v_pk_add_f32 v[44:45], v[44:45], v[48:49]")
    e(f"v_add_f32 {va}, v44, v45")
    wsum(va, vb)
    e(f"v_mul_f32 {va}, 0x3b000000, {va}")
    for k in range(16): e(f"v_sub_f32 v{44+k}, v{XF+k}, {va}")
    e(f"v_mul_f32 {vc}, v44, v44"); e(f"v_mul_f32 {vd}, v45, v45")
    for k in range(2, 16): e(f"v_fmac_f32 {(vc, vd)[k&1]}, v{44+k}, v{44+k}")
    e(f"v_add_f32 {vc}, {vc}, {vd}")
    wsum(vc, vb)
    e(f"v_mul_f32 {vc}, 0x3b000000, {vc}")
    ln_finish(va, vc, vb)
    for k in range(16): e(f"v_sub_f32 v{XF+k}, v{XF+k}, {va}")
    for k in range(8): e(f"v_cvt_pk_bf16_f32 v{XR+k}, v{XF+2*k}, v{XF+2*k+1}")
    for k in range(8):
        e(f"v_lshlrev_b32 v{XF+2*k}, 16, v{XR+k}"); e(f"v_and_b32 v{XF+2*k+1}, 0xffff0000, v{XR+k}")
    for k in range(16): e(f"v_mul_f32 v{XF+k}, {vc}, v{XF+k}")
    for k in range(8): e(f"v_cvt_pk_bf16_f32 v{XR+k}, v{XF+2*k}, v{XF+2*k+1}")
    for k in range(8): e(f"v_mov_b32 v{QA+k}, 0")
    e("s_waitcnt vmcnt(0)")
    if debug: e("s_memrealtime s[70:71]")
    e(f"v_readfirstlane_b32 {sTag}, v10")
    e(f"s_mul_i32 {sTag}, {sTag}, 0x0019660d"); e(f"s_add_u32 {sTag}, {sTag}, 0x3c6ef35f")
    for p in range(8):
        for ee in range(8):
            e(f"v_perm_b32 v{44+ee}, v{WQ+4*(2*p+1)+(ee>>1)}, v{WQ+4*(2*p)+(ee>>1)}, {sSelHi if ee & 1 else sSelLo}")
        for ee in range(8): e(f"v_dot2c_f32_bf16 v{QA+ee}, v{44+ee}, v{XR+p}")
    for o in (0, 1):
        e(f"v_permlane32_swap_b32 v{QA+o}, v{QA+4+o}"); e(f"v_permlane32_swap_b32 v{QA+2+o}, v{QA+6+o}")
    for o in (0, 1):
        e(f"v_add_f32 v{QA+o}, v{QA+o}, v{QA+4+o}"); e(f"v_add_f32 v{QA+2+o}, v{QA+2+o}, v{QA+6+o}")
    for o in (0, 1): e(f"v_permlane16_swap_b32 v{QA+o}, v{QA+2+o}")
    for o in (0, 1): e(f"v_add_f32 v{QA+o}, v{QA+o}, v{QA+2+o}")
    for s in (8, 4, 2):
        for o in (0, 1): e(f"v_add_f32_dpp v{QA+o}, v{QA+o}, v{QA+o} row_ror:{s} {DPPF}")
    e(f"v_cvt_pk_bf16_f32 v44, v{QA}, v{QA+1}"); e(f"v_mov_b32 v45, {sTag}")
    e(f"v_lshrrev_b32 v5, 4, {vLane}"); e("v_lshlrev_b32 v5, 3, v5"); e("v_lshl_add_u32 v5, v8, 5, v5")
    e(f"s_lshl_b32 {sT[0]}, {sT[4]}, 6"); e(f"s_add_u32 {sT[0]}, {sT[0]}, {WS_Q}"); e(f"v_add_u32 v5, {sT[0]}, v5")
    e("s_mov_b32 exec_lo, 0x00030003"); e("s_mov_b32 exec_hi, 0x00030003")
    e(f"global_store_dwordx2 v5, v[44:45], {sp(sWS)} sc1")
    e("s_mov_b64 exec, -1")
    e(f"s_lshl_b32 {sT[0]}, {sG}, 11"); e(f"s_add_u32 {sT[0]}, {sT[0]}, {WS_Q}")
    e(f"v_lshlrev_b32 v5, 5, {vLane}"); e(f"v_add_u32 v5, {sT[0]}, v5")
    e(f"v_add_u32 v6, {L_Q}, {vVo}")
    A.label("L_qpoll")
    e(f"s_sub_u32 {sTO}, {sTO}, 1"); e("s_cbranch_scc1 L_end")
    e(f"global_load_dwordx4 v[44:47], v5, {sp(sWS)} sc1"); e(f"global_load_dwordx4 v[48:51], v5, {sp(sWS)} offset:16 sc1")
    e("s_waitcnt vmcnt(0)")
    e(f"v_xor_b32 v45, {sTag}, v45"); e(f"v_xor_b32 v47, {sTag}, v47"); e(f"v_xor_b32 v49, {sTag}, v49"); e(f"v_xor_b32 v51, {sTag}, v51")
    e("v_or3_b32 v45, v45, v47, v49"); e("v_or_b32 v45, v45, v51")
    e("v_cmp_ne_u32 vcc, 0, v45")
    e("s_cbranch_vccnz L_qpoll")
    e("v_mov_b32 v45, v46"); e("v_mov_b32 v46, v48"); e("v_mov_b32 v47, v50")
    e("ds_write_b128 v6, v[44:47]")
    e("s_waitcnt lgkmcnt(0)")
    if debug: e("s_memrealtime s[72:73]")
    e("s_barrier")
    e("s_setprio 0")
    e(f"s_cmp_eq_u32 {sRole}, 0"); e("s_cbranch_scc1 L_fill")
    e(f"v_lshlrev_b32 v5, 8, {vLane}"); e(f"v_add_u32 v5, {WS_Q+4}, v5")
    A.label("L_apoll")
    e(f"s_sub_u32 {sTO}, {sTO}, 1"); e("s_cbranch_scc1 L_end")
    for k in range(4): e(f"global_load_dword v{44+k}, v5, {sp(sWS)} offset:{64*k} sc1")
    e("s_waitcnt vmcnt(0)")
    for k in range(4): e(f"v_xor_b32 v{44+k}, {sTag}, v{44+k}")
    e("v_or3_b32 v44, v44, v45, v46"); e("v_or_b32 v44, v44, v47")
    e("v_cmp_ne_u32 vcc, 0, v44")
    e("s_cbranch_vccnz L_apoll")
    e("s_cmp_eq_u32 s2, 0"); e("s_cbranch_scc0 L_fill")
    e(f"v_mov_b32 v44, {sTag}")
    e("s_mov_b64 exec, 1")
    e(f"global_store_dword v9, v44, {sp(sWS)} sc1")
    e("s_mov_b64 exec, -1")
    e("s_branch L_fill")

    A.raw('.section .rodata,"a"'); A.raw(".p2align 6"); A.raw(f".amdhsa_kernel {NAME}")
    for l in ["next_free_vgpr 256", "next_free_sgpr 102", "accum_offset 256", "group_segment_fixed_size 0", "kernarg_size 96",
              "user_sgpr_count 2", "user_sgpr_kernarg_segment_ptr 1", "system_sgpr_workgroup_id_x 1", "float_denorm_mode_32 3"]:
        A.raw("  .amdhsa_" + l)
    A.raw(".end_amdhsa_kernel")
    return A.text()

if __name__ == "__main__":
    dbg = "--debug" in sys.argv
    sys.stdout.write(gen(debug=dbg))
```

```python
import sys
sys.path.insert(0, "work")
from asmlib import Asm

NAME = "sequential_preLN__gqa_block_cached__glu_gated_bilinear__decode_kernel"

WS_EPOCH = 0
WS_Q = 0xE0000
WS_ST = 0x8000
WS_PART = 0x10000
PREC = 2048
WS_A1 = 0xA0000
WS_D2 = 0xB0000
WS_STAMP = 0x800000
WPW = 12 * 1024
L_Q = 8 * WPW
L_ACC = L_Q + 1024
L_RED = L_ACC + 8192
L_STAT = L_RED + 4096
L_MS = L_STAT + 64
L_GS = L_MS + 128
L_FLAG = L_GS + 32
L_TOTAL = L_FLAG + 32

KV_BYTES = 128 << 20

def gen(debug=False, opts=None):
    opts = opts or {}
    A = Asm(); e = A
    def stamp(i):
        if debug: e(f"s_memrealtime s[{80+2*i}:{81+2*i}]")
    sX, sK, sV, sWQ, sWO, sWG, sWU, sWD, sOUT, sDBG, sWS = 8, 10, 12, 14, 16, 20, 22, 24, 26, 28, 30
    def sp(n): return f"s[{n}:{n+1}]"
    sW = "s3"; sG = "s4"; sC = "s5"
    srdK = "s[32:35]"; srdV = "s[36:39]"; srdW = "s[40:43]"
    sScale, sL2E, sSelLo, sSelHi = "s44", "s45", "s46", "s47"
    sOff = "s48"; sBase = "s49"; sWW = "s50"
    sT = ["s52", "s53", "s54", "s55", "s56", "s57", "s58", "s59"]
    sTag = "s60"; sRole = "s61"; sIdx = "s62"; sTO = "s64"
    vLane = "v1"; vKo = "v2"; vVo = "v3"
    ACC = 4; BQ = 12; PV_ = 12; SPK = 28; T = 44; M = 76
    vX0, vX1, vY0, vY1, vS0, vS1, vML, vL, va, vb, vc, vd, vMSa, vf = [f"v{M+i}" for i in range(14)]
    vKo2 = "v90"; vVo2 = "v91"; vMask = "v93"
    RING = opts.get("ring", 40); RBASE = 256 - 4 * RING
    assert RBASE >= 96
    W0 = opts.get("win", 5); BUDGET = opts.get("budget", 18)
    WHI = opts.get("whi", 6)
    BOOST = opts.get("boost", [0, 36, 150, 0])
    W = max(W0, WHI)
    sBoost = "s51"; sQP = "s63"
    sTB = ["s76", "s77", "s78", "s79"]
    def vr(a, n=4): return f"v[{a}:{a+n-1}]"
    DPPF = "row_mask:0xf bank_mask:0xf"
    def timeout():
        e(f"s_sub_u32 {sTO}, {sTO}, 1"); e("s_cbranch_scc1 L_end")
    def lds_wait(lbl, off, val, vaddr, vtmp, sleep=1):
        e(f"v_mov_b32 {vaddr}, {L_FLAG + off}")
        A.label(lbl)
        e(f"ds_read_b32 {vtmp}, {vaddr}")
        timeout()
        e("s_waitcnt lgkmcnt(0)")
        e(f"v_readfirstlane_b32 {sT[0]}, {vtmp}")
        e(f"s_cmp_ge_u32 {sT[0]}, {val}"); e(f"s_cbranch_scc1 {lbl}_go")
        e(f"s_sleep {sleep}"); e(f"s_branch {lbl}")
        A.label(lbl + "_go")

    A.raw(f"; @launch grid=(256,1,1) block=(512,1,1) lds={L_TOTAL}")
    A.raw('.amdgcn_target "amdgcn-amd-amdhsa--gfx950"')
    A.raw(".text"); A.raw(f".globl {NAME}"); A.raw(".p2align 8"); A.raw(f".type {NAME},@function"); A.label(NAME)
    e("s_cmp_ge_u32 s2, 256"); e("s_cbranch_scc1 L_end")
    e("s_load_dwordx16 s[8:23], s[0:1], 0")
    e("s_load_dwordx8 s[24:31], s[0:1], 64")
    stamp(0)
    e(f"v_lshrrev_b32 v2, 6, v0"); e(f"v_and_b32 {vLane}, 63, v0")
    e(f"v_readfirstlane_b32 {sW}, v2")
    e(f"s_lshr_b32 {sG}, s2, 5"); e(f"s_and_b32 {sC}, s2, 31")
    e(f"s_mov_b32 {sSelLo}, 0x05040100"); e(f"s_mov_b32 {sSelHi}, 0x07060302")
    e(f"s_mov_b32 {sTO}, 0x400000")
    e(f"v_lshlrev_b32 {vVo}, 4, {vLane}")
    def roles():
        e(f"s_mov_b32 {sRole}, 0"); e(f"s_mov_b32 {sIdx}, 0")
        e(f"s_lshl_b32 {sT[0]}, {sG}, 1"); e(f"s_add_u32 {sT[0]}, {sT[0]}, {sC}"); e(f"s_sub_u32 {sT[0]}, {sT[0]}, 15")
        e(f"s_cmp_lt_u32 {sC}, 17"); e(f"s_cselect_b32 {sRole}, 3, {sRole}"); e(f"s_cselect_b32 {sIdx}, {sT[0]}, {sIdx}")
        if opts.get("xmap", True):
            e(f"s_lshl_b32 {sT[0]}, {sC}, 3"); e(f"s_add_u32 {sT[0]}, {sT[0]}, {sG}"); e(f"s_sub_u32 {sT[0]}, {sT[0]}, 64")
        else:
            e(f"s_mul_i32 {sT[0]}, {sG}, 7"); e(f"s_add_u32 {sT[0]}, {sT[0]}, {sC}"); e(f"s_sub_u32 {sT[0]}, {sT[0]}, 8")
        e(f"s_cmp_lt_u32 {sC}, 15"); e(f"s_cselect_b32 {sRole}, 2, {sRole}"); e(f"s_cselect_b32 {sIdx}, {sT[0]}, {sIdx}")
        e(f"s_cmp_lt_u32 {sC}, 8"); e(f"s_cselect_b32 {sRole}, 1, {sRole}"); e(f"s_cselect_b32 {sIdx}, {sC}, {sIdx}")
    roles()
    e(f"s_cmp_ge_u32 {sW}, 4"); e("s_cbranch_scc1 L_service")

    e(f"v_lshrrev_b32 v5, 4, {vLane}"); e("v_lshlrev_b32 v5, 6, v5")
    e(f"v_bfe_u32 v6, {vLane}, 2, 2"); e("v_lshlrev_b32 v6, 8, v6")
    e(f"v_and_b32 v7, 3, {vLane}"); e("v_lshlrev_b32 v7, 4, v7")
    e(f"v_add3_u32 {vKo}, v5, v6, v7")
    e(f"v_add_u32 {vKo2}, 0x4000, {vKo}"); e(f"v_add_u32 {vVo2}, 0x4000, {vVo}")
    e(f"s_lshl_b32 {sBase}, s2, 19"); e(f"s_lshl_b32 {sT[0]}, {sW}, 12"); e(f"s_add_u32 {sBase}, {sBase}, {sT[0]}")
    e(f"s_mov_b32 {sOff}, {sBase}")
    e(f"s_mov_b32 s34, {KV_BYTES}"); e("s_mov_b32 s35, 0x20000"); e(f"s_mov_b32 s38, {KV_BYTES}"); e("s_mov_b32 s39, 0x20000")
    e("s_waitcnt lgkmcnt(0)")
    e(f"s_mov_b32 s32, s{sK}"); e(f"s_mov_b32 s33, s{sK+1}"); e(f"s_mov_b32 s36, s{sV}"); e(f"s_mov_b32 s37, s{sV+1}")
    NI = 16; NL = 8 * NI
    def slot(idx): return RBASE + 4 * (idx % RING)
    def issue(s):
        n = s & 7
        if s == NL: e(f"s_mov_b32 {sOff}, {sBase}")
        elif n == 0 and s: e(f"s_add_u32 {sOff}, {sOff}, 0x8000")
        if s < NL: e(f"buffer_load_dwordx4 {vr(slot(s))}, {vKo if n < 4 else vKo2}, {srdK}, {sOff} offen offset:{(n%4)*1024} nt")
        else: e(f"buffer_load_dwordx4 {vr(slot(s))}, {vVo if n < 4 else vVo2}, {srdV}, {sOff} offen offset:{(n%4)*1024} nt")
    tasks = []
    def task(need, frees, ins): tasks.append(dict(need=need, frees=frees, ins=ins))
    def xlane(op, r, tmp):
        return [f"v_{op}_f32_dpp {r}, {r}, {r} row_ror:8 {DPPF}", f"v_{op}_f32_dpp {r}, {r}, {r} row_ror:4 {DPPF}",
                f"v_mov_b32 {tmp}, {r}", f"v_permlane16_swap_b32 {tmp}, {r}", f"v_{op}_f32 {r}, {tmp}, {r}",
                f"v_mov_b32 {tmp}, {r}", f"v_permlane32_swap_b32 {tmp}, {r}", f"v_{op}_f32 {r}, {tmp}, {r}"]
    for i in range(NI):
        for n in range(8):
            task(8*i+n, [8*i+n], [f"v_mfma_f32_16x16x32_bf16 {vr(T+4*n)}, {vr(slot(8*i+n))}, {vr(BQ+4*(n&3))}, 0"])
        for t in range(2):
            ins = []
            for m in range(4):
                X = (vX0, vX1)[t]; Y = (vY0, vY1)[t]; D = T + 4 * (4*t+m)
                ins.append(f"v_add_f32_dpp {Y}, v{D+3}, v{D+1} row_ror:8 row_mask:0xf bank_mask:{1 << ((m+1)&3):#x}")
                ins.append(f"v_add_f32_dpp {X}, v{D+2}, v{D} row_ror:8 row_mask:0xf bank_mask:{1 << m:#x}")
            task(-1, [], ins)
        task(-1, [], [f"v_add_f32_dpp {vX0}, {vY0}, {vX0} row_ror:12 {DPPF}", f"v_add_f32_dpp {vX1}, {vY1}, {vX1} row_ror:12 {DPPF}",
                      f"v_cvt_pk_bf16_f32 {vY0}, {vX0}, {vX1}",
                      f"v_lshlrev_b32 {vX0}, 16, {vY0}", f"v_and_b32 {vX1}, 0xffff0000, {vY0}",
                      f"v_mul_f32 {vX0}, {sScale}, {vX0}", f"v_mul_f32 {vX1}, {sScale}, {vX1}",
                      f"v_cvt_pk_bf16_f32 v{SPK+i}, {vX0}, {vX1}",
                      f"v_lshlrev_b32 {vX0}, 16, v{SPK+i}", f"v_and_b32 {vX1}, 0xffff0000, v{SPK+i}",
                      (f"v_max_f32 {vML}, {vX0}, {vX1}" if i == 0 else f"v_max3_f32 {vML}, {vML}, {vX0}, {vX1}")])
    task(-1, [], xlane("max", vML, vb) + [f"v_mul_f32 {vML}, {sL2E}, {vML}"])
    task(-1, [], [f"v_mov_b32 v{PV_+k}, 0" for k in range(16)])
    for i in range(0, NI, 2):
        ins = []
        tmp = [(vX0, vX1), (vY0, vY1)]
        for k in range(2):
            a, b = tmp[k]; ins += [f"v_lshlrev_b32 {a}, 16, v{SPK+i+k}", f"v_and_b32 {b}, 0xffff0000, v{SPK+i+k}"]
        for k in range(2):
            a, b = tmp[k]; ins += [f"v_fma_f32 {a}, {a}, {sL2E}, -{vML}", f"v_fma_f32 {b}, {b}, {sL2E}, -{vML}"]
        for k in range(2):
            a, b = tmp[k]; ins += [f"v_exp_f32 {a}, {a}", f"v_exp_f32 {b}, {b}"]
        ins += [f"v_add_f32 {va}, {vX0}, {vX1}", f"v_cvt_pk_bf16_f32 v{SPK+i}, {vX0}, {vX1}", f"v_add_f32 {vb}, {vY0}, {vY1}", f"v_cvt_pk_bf16_f32 v{SPK+i+1}, {vY0}, {vY1}"]
        ins += [f"v_add_f32 {vL}, {va}, {vb}"] if i == 0 else [f"v_add_f32 {va}, {va}, {vb}", f"v_add_f32 {vL}, {vL}, {va}"]
        task(-1, [], ins)
    task(-1, [], xlane("add", vL, vb) + [f"ds_write_b64 {vMSa}, v[{M+6}:{M+7}]", f"v_mov_b32 {va}, {L_FLAG+4}", f"v_mov_b32 {vb}, 1",
                                         "s_mov_b64 exec, 1", f"ds_add_u32 {va}, {vb}", "s_mov_b64 exec, -1"])
    order = [0, 4, 1, 5, 2, 6, 3, 7]
    for i in range(NI):
        L0 = NL + 8 * i
        def perm(ee, k):
            rho = ee & 3; t = k >> 1
            n0 = 4 * t + ((rho + 2 * (k & 1)) & 3); n1 = 4 * t + ((rho + 2 * (k & 1) + 1) & 3)
            return f"v_perm_b32 v{T+4*ee+k}, v{slot(L0+n1)+(ee>>1)}, v{slot(L0+n0)+(ee>>1)}, {sSelHi if ee & 1 else sSelLo}"
        def mf(ee):
            ac = vr(ACC + 4 * (ee >> 2))
            return f"v_mfma_f32_16x16x32_bf16 {ac}, {vr(T+4*ee)}, {vr(PV_+4*(ee&3))}, {ac if (i or (ee & 3)) else 0}"
        if i == NI - 1:
            task(-1, [], "GSWAIT")
        ins = [f"v_mov_b32_dpp {vY0}, v{SPK+i} row_ror:12 {DPPF}",
               f"v_perm_b32 {vX0}, {vY0}, v{SPK+i}, {sSelLo}", f"v_perm_b32 {vX1}, {vY0}, v{SPK+i}, {sSelHi}"]
        for rho in range(4):
            bm = f"row_mask:0xf bank_mask:{1 << rho:#x}"
            ins += [f"v_mov_b32_dpp v{PV_+4*rho+0}, {vX0} quad_perm:[0,1,2,3] {bm}", f"v_mov_b32_dpp v{PV_+4*rho+1}, {vX0} row_ror:8 {bm}",
                    f"v_mov_b32_dpp v{PV_+4*rho+2}, {vX1} quad_perm:[0,1,2,3] {bm}", f"v_mov_b32_dpp v{PV_+4*rho+3}, {vX1} row_ror:8 {bm}"]
        task(-1, [], ins[:11]); task(-1, [], ins[11:])
        task(L0+3, [], [perm(ee, k) for ee in range(4) for k in range(2)])
        task(L0+3, [L0, L0+1, L0+2, L0+3], [perm(ee, k) for ee in range(4, 8) for k in range(2)])
        ins = []
        for idx, ee in enumerate(order):
            ins += [perm(ee, 2), perm(ee, 3)]
            if idx >= 1: ins.append(mf(order[idx - 1]))
        ins.append(mf(order[7]))
        task(L0+7, [], ins[:11]); task(L0+7, [L0+4, L0+5, L0+6, L0+7], ins[11:])

    def setup_misc():
        e(f"s_mov_b32 {sScale}, 0x3db504f3")
        e(f"s_mov_b32 {sL2E}, 0x3fb8aa3b")
        e(f"v_and_b32 {vMSa}, 3, {vLane}"); e(f"v_lshlrev_b32 {vMSa}, 3, {vMSa}")
        e(f"s_lshl_b32 {sT[0]}, {sW}, 5"); e(f"s_add_u32 {sT[0]}, {sT[0]}, {L_MS}"); e(f"v_add_u32 {vMSa}, {sT[0]}, {vMSa}")
        e(f"v_and_b32 {va}, 3, {vLane}"); e(f"v_lshlrev_b32 {va}, 8, {va}")
        e(f"v_lshrrev_b32 {vb}, 4, {vLane}"); e(f"v_lshlrev_b32 {vb}, 6, {vb}")
        e(f"s_mov_b32 {sT[0]}, {L_Q}")
        e(f"v_add3_u32 {va}, {va}, {vb}, {sT[0]}")
        e(f"v_bfe_u32 {vb}, {vLane}, 2, 2")
        for m in range(4):
            e(f"v_subrev_u32 {vc}, {m}, {vb}"); e(f"v_and_b32 {vc}, 3, {vc}")
            e(f"v_lshl_add_u32 v{T+m}, {vc}, 4, {va}")
        e(f"s_lshl_b32 {sT[0]}, {sW}, 11"); e(f"s_add_u32 {sT[0]}, {sT[0]}, {L_ACC}")
        e(f"v_add_u32 v92, {sT[0]}, {vVo}")
        e(f"s_mov_b32 {sBoost}, {BOOST[0]}")
        for r in (1, 2, 3): e(f"s_cmp_eq_u32 {sRole}, {r}"); e(f"s_cselect_b32 {sBoost}, {BOOST[r]}, {sBoost}")

    def emit_task(t):
        if t["ins"] == "GSWAIT":
            lds_wait("L_gsw", 8, 1, va, vb)
            e(f"v_and_b32 {va}, 3, {vLane}"); e(f"v_lshlrev_b32 {va}, 3, {va}"); e(f"v_add_u32 {va}, {L_GS}, {va}")
            e(f"ds_read_b64 v[{M+10}:{M+11}], {va}")
            e("s_waitcnt lgkmcnt(0)")
            e(f"v_sub_f32 {vf}, {vML}, {vc}"); e(f"v_exp_f32 {vf}, {vf}"); e(f"v_mul_f32 {vf}, {vf}, {vd}")
            return 16
        for x in t["ins"]: e(x)
        return len(t["ins"])
    ti = 0; freed = set()
    for s in range(2 * NL):
        if s == W0:
            e("s_barrier")
            setup_misc()
        if s == RING:
            stamp(1)
            lds_wait("L_qw", 0, 1, va, vb)
            for m in range(4): e(f"ds_read_b128 {vr(BQ+4*m)}, v{T+m}")
            stamp(2)
            e("s_waitcnt lgkmcnt(0)")
        if s >= RING:
            while (s - RING) not in freed:
                assert tasks[ti]["need"] <= s - 1 - W
                emit_task(tasks[ti]); freed.update(tasks[ti]["frees"]); ti += 1
        if W0 < s < max(BOOST):
            e(f"s_waitcnt vmcnt({WHI-1})")
            e(f"s_cmpk_gt_i32 {sBoost}, {s}"); e(f"s_cbranch_scc1 L_go{s}")
            A.opt(f"s_waitcnt vmcnt({W0-1})")
            A.label(f"L_go{s}")
        elif s >= W0: e(f"s_waitcnt vmcnt({W0-1})")
        issue(s)
        if s >= RING:
            spent = 0
            while ti < len(tasks) and tasks[ti]["need"] <= s - W and (spent == 0 or spent + len(tasks[ti]["ins"]) <= BUDGET):
                spent += emit_task(tasks[ti]); freed.update(tasks[ti]["frees"]); ti += 1
        if debug and s == NL: e("s_memrealtime s[74:75]")
    landed = 2 * NL - 1 - W
    while ti < len(tasks):
        if tasks[ti]["need"] > landed:
            landed = tasks[ti]["need"]; e(f"s_waitcnt vmcnt({2*NL-1-landed})")
        emit_task(tasks[ti]); ti += 1
    stamp(3)
    for k in range(8): e(f"v_mul_f32 v{ACC+k}, {vf}, v{ACC+k}")
    e(f"ds_write_b128 v92, {vr(ACC)}"); e(f"ds_write_b128 v92, {vr(ACC+4)} offset:1024")
    e("s_waitcnt lgkmcnt(0)")
    e("s_barrier")
    stamp(4)
    e(f"s_cmp_eq_u32 {sRole}, 1"); e("s_cbranch_scc1 L_st1")
    e(f"s_cmp_eq_u32 {sRole}, 2"); e("s_cbranch_scc1 L_st2")
    e("s_branch L_fin")

    def poll(lbl, loads, regs, sleep=0):
        A.label(lbl)
        timeout()
        if sleep: e(f"s_sleep {sleep}")
        for l in loads: e(l)
        regs = list(regs)
        n = len(loads)
        for li in range(n):
            e(f"s_waitcnt vmcnt({n-1-li})")
            r = regs[4*li:4*li+4]
            for k in range(4): e(f"v_xor_b32 v{r[k]}, {sTB[k]}, v{r[k]}")
            if li == 0: e(f"v_or_b32 {va}, v{r[0]}, v{r[1]}"); e(f"v_or_b32 {vb}, v{r[2]}, v{r[3]}")
            else: e(f"v_or3_b32 {va}, {va}, v{r[0]}, v{r[1]}"); e(f"v_or3_b32 {vb}, {vb}, v{r[2]}, v{r[3]}")
        e(f"v_or_b32 {va}, {va}, {vb}")
        e(f"v_and_b32 {va}, 0xff, {va}")
        e(f"v_cmp_ne_u32 vcc, 0, {va}")
        e(f"s_cbranch_vccnz {lbl}")
    def tag4(b):
        for k in range(4): e(f"v_and_or_b32 v{b+k}, v{b+k}, {vMask}, {sTB[k]}")
    def get_tag():
        e(f"v_mov_b32 {va}, {L_FLAG+16}"); e(f"ds_read_b32 {va}, {va}"); e(f"v_mov_b32 {vMask}, 0xffffff00")
        e("s_waitcnt lgkmcnt(0)")
        e(f"v_readfirstlane_b32 {sTag}, {va}")
        for k in range(4): e(f"s_bfe_u32 {sTB[k]}, {sTag}, {(8 << 16) | (8 * k):#x}")
    def wfrag(dst, raw, nload, ldsoff):
        e(f"s_mul_i32 {sT[0]}, {sW}, {WPW}"); e(f"v_add_u32 {va}, {sT[0]}, {vVo}")
        for n in range(nload): e(f"ds_read_b128 {vr(raw+4*n)}, {va} offset:{ldsoff + 1024*n}")
        e("s_waitcnt lgkmcnt(0)")
        wperm(dst, raw, nload)
    def wperm(dst, raw, nload):
        h = nload // 2
        for ee in range(8):
            for k in range(h):
                e(f"v_perm_b32 v{dst+h*ee+k}, v{raw+4*(2*k+1)+(ee>>1)}, v{raw+4*(2*k)+(ee>>1)}, {sSelHi if ee & 1 else sSelLo}")
    def pk(a, b): e(f"v_pk_add_f32 v[{a}:{a+1}], v[{a}:{a+1}], v[{b}:{b+1}]")
    def add4(a, b): pk(a, b); pk(a + 2, b + 2)
    F1 = 128; RAW = 192; G = 12; DD = 160; F2 = 224
    def svc_join(lbl):
        e(f"s_cmp_lt_u32 {sW}, 4"); e(f"s_cbranch_scc1 {lbl}")
        e("s_call_b64 s[66:67], L_publish")
        A.label(lbl)

    A.label("L_st1")
    get_tag()
    wfrag(F1, RAW, 8, 0)
    e(f"v_bfe_u32 {vc}, {vLane}, 1, 3"); e(f"v_lshlrev_b32 {vc}, 11, {vc}")
    e(f"v_lshrrev_b32 {vd}, 4, {vLane}"); e(f"v_lshl_add_u32 {vc}, {vd}, 5, {vc}"); e(f"v_and_b32 {vd}, 1, {vLane}"); e(f"v_lshl_add_u32 {vc}, {vd}, 4, {vc}")
    e(f"s_lshl_b32 {sT[0]}, {sG}, 16"); e(f"s_add_u32 {sT[0]}, {sT[0]}, {WS_PART}")
    e(f"s_lshr_b32 {sT[1]}, {sIdx}, 2"); e(f"s_lshl_b32 {sT[1]}, {sT[1]}, 10"); e(f"s_add_u32 {sT[0]}, {sT[0]}, {sT[1]}")
    e(f"s_lshl_b32 {sT[1]}, {sW}, 7"); e(f"s_add_u32 {sT[0]}, {sT[0]}, {sT[1]}")
    e(f"v_add_u32 v36, {sT[0]}, {vc}")
    for it in range(1, 4): e(f"v_add_u32 v{36+it}, {8*PREC*it}, v36")
    e(f"s_lshl_b32 {sT[0]}, {sW}, 9"); e(f"s_add_u32 {sT[0]}, {sT[0]}, {L_RED}")
    e(f"v_lshlrev_b32 {vY0}, 5, {vLane}"); e(f"v_add_u32 {vY0}, {sT[0]}, {vY0}")
    e(f"v_add_u32 {vY1}, {L_RED}, {vVo}")
    e(f"s_lshl_b32 {sT[0]}, {sG}, 12"); e(f"s_lshl_b32 {sT[1]}, {sIdx}, 9"); e(f"s_add_u32 {sT[0]}, {sT[0]}, {sT[1]}"); e(f"s_add_u32 {sT[0]}, {sT[0]}, {WS_A1}")
    e(f"v_add_u32 {vS0}, {sT[0]}, {vVo}")
    svc_join("L_j1")
    poll("L_poll1", [f"global_load_dwordx4 {vr(G+4*it)}, v{36+it}, {sp(sWS)} sc1" for it in range(4)], range(12, 28))
    stamp(6)
    add4(12, 16); add4(20, 24); add4(12, 20)
    for s in (8, 4, 2):
        for r in range(4): e(f"v_add_f32_dpp v{12+r}, v{12+r}, v{12+r} row_ror:{s} {DPPF}")
    e("v_cvt_pk_bf16_f32 v52, v12, v13"); e("v_cvt_pk_bf16_f32 v53, v14, v15")
    e(f"v_mov_b32_dpp v54, v52 quad_perm:[1,0,3,2] {DPPF}"); e(f"v_mov_b32_dpp v55, v53 quad_perm:[1,0,3,2] {DPPF}")
    for ee in range(8): e(f"v_mfma_f32_16x16x32_bf16 {vr(DD+4*ee)}, v[52:55], {vr(F1+4*ee)}, 0")
    e("s_mov_b64 exec, 0xffff")
    for ee in range(0, 8, 2): e(f"ds_write2_b32 {vY0}, v{DD+4*ee}, v{DD+4*ee+4} offset0:{ee} offset1:{ee+1}")
    e("s_mov_b64 exec, -1")
    e("s_waitcnt lgkmcnt(0)")
    e("s_barrier")
    e(f"s_cmp_eq_u32 {sW}, 0"); e("s_cbranch_scc0 L_fin")
    e("s_mov_b64 exec, 0xffffffff")
    for w in range(8): e(f"ds_read_b128 {vr(12+4*w)}, {vY1} offset:{512*w}")
    for w in range(0, 8, 2):
        e(f"s_waitcnt lgkmcnt({6-w})")
        add4(12 + 4*w, 16 + 4*w)
        if w in (2, 6): add4(12 + 4*(w-2), 12 + 4*w)
    add4(12, 28)
    tag4(12)
    e(f"global_store_dwordx4 {vS0}, v[12:15], {sp(sWS)} sc1")
    e("s_mov_b64 exec, -1")
    stamp(7)
    e("s_branch L_fin")

    A.label("L_st2")
    get_tag()
    e(f"v_lshrrev_b32 {vc}, 4, {vLane}"); e(f"v_lshlrev_b32 {vc}, 2, {vc}"); e(f"v_and_b32 {vd}, 3, {vLane}"); e(f"v_add_u32 {vc}, {vc}, {vd}")
    e(f"s_lshl_b32 {sT[0]}, {sW}, 4"); e(f"v_add_u32 {vc}, {sT[0]}, {vc}")
    e(f"v_lshlrev_b32 {vd}, 3, {vc}")
    e(f"global_load_dwordx2 v[28:29], {vd}, {sp(sX)}")
    wfrag(F1, RAW, 8, 0)
    wfrag(F2, RAW, 4, 8192)
    e(f"v_bfe_u32 {vd}, {vLane}, 2, 2"); e(f"v_lshlrev_b32 {vd}, 11, {vd}")
    e(f"v_lshl_add_u32 v36, {vc}, 4, {vd}"); e(f"v_add_u32 v36, {WS_A1}, v36")
    for it in range(1, 4): e(f"v_add_u32 v{36+it}, {8192*it}, v36")
    e(f"s_lshl_b32 {sT[0]}, {sW}, 3"); e(f"s_add_u32 {sT[0]}, {sT[0]}, {L_STAT}"); e(f"v_mov_b32 v40, {sT[0]}")
    e(f"v_mov_b32 v41, {L_STAT}")
    e(f"s_lshl_b32 {sT[0]}, {sW}, 8"); e(f"s_add_u32 {sT[0]}, {sT[0]}, {L_RED}")
    e(f"v_lshlrev_b32 v42, 5, {vLane}"); e(f"v_add_u32 v42, {sT[0]}, v42")
    e(f"v_bfe_u32 v43, {vLane}, 1, 3"); e("v_lshlrev_b32 v43, 8, v43")
    e(f"v_lshrrev_b32 {vd}, 4, {vLane}"); e(f"v_lshl_add_u32 v43, {vd}, 5, v43")
    e(f"v_and_b32 {vd}, 1, {vLane}"); e(f"v_lshl_add_u32 v43, {vd}, 4, v43"); e(f"v_add_u32 v43, {L_RED}, v43")
    e(f"s_lshl_b32 {sT[0]}, {sIdx}, 11"); e(f"s_lshl_b32 {sT[1]}, {sW}, 8"); e(f"s_add_u32 {sT[0]}, {sT[0]}, {sT[1]}"); e(f"s_add_u32 {sT[0]}, {sT[0]}, {WS_D2}")
    e(f"v_lshlrev_b32 {vS0}, 5, {vLane}"); e(f"v_add_u32 {vS0}, {sT[0]}, {vS0}")
    e("s_waitcnt vmcnt(0)")
    e("v_lshlrev_b32 v32, 16, v28"); e("v_and_b32 v33, 0xffff0000, v28"); e("v_lshlrev_b32 v34, 16, v29"); e("v_and_b32 v35, 0xffff0000, v29")
    svc_join("L_j2")
    poll("L_poll2", [f"global_load_dwordx4 {vr(G+4*it)}, v{36+it}, {sp(sWS)} sc1" for it in range(4)], range(12, 28))
    stamp(6)
    add4(12, 16); add4(20, 24); add4(12, 20)
    for s in (8, 4):
        for r in range(4): e(f"v_add_f32_dpp v{12+r}, v{12+r}, v{12+r} row_ror:{s} {DPPF}")
    def rnd4(b, t):
        e(f"v_cvt_pk_bf16_f32 v{t}, v{b}, v{b+1}"); e(f"v_cvt_pk_bf16_f32 v{t+1}, v{b+2}, v{b+3}")
        e(f"v_lshlrev_b32 v{b}, 16, v{t}"); e(f"v_and_b32 v{b+1}, 0xffff0000, v{t}")
        e(f"v_lshlrev_b32 v{b+2}, 16, v{t+1}"); e(f"v_and_b32 v{b+3}, 0xffff0000, v{t+1}")
    rnd4(12, 16)
    add4(12, 32)
    rnd4(12, 16)
    e(f"v_readfirstlane_b32 {sT[2]}, v12")
    for r in range(4): e(f"v_subrev_f32 v{16+r}, {sT[2]}, v{12+r}")
    e("v_add_f32 v20, v16, v17"); e("v_mul_f32 v21, v16, v16"); e("v_add_f32 v22, v18, v19"); e("v_fmac_f32 v21, v17, v17")
    e("v_add_f32 v20, v20, v22"); e("v_fmac_f32 v21, v18, v18"); e("v_fmac_f32 v21, v19, v19")
    for qp in ("[1,0,3,2]", "[2,3,0,1]"):
        e(f"v_add_f32_dpp v20, v20, v20 quad_perm:{qp} {DPPF}"); e(f"v_add_f32_dpp v21, v21, v21 quad_perm:{qp} {DPPF}")
    e("v_permlane32_swap_b32 v20, v21"); e("v_add_f32 v20, v20, v21")
    e("v_mov_b32 v21, v20"); e("v_permlane16_swap_b32 v21, v20"); e("v_add_f32 v20, v20, v21")
    e(f"v_readlane_b32 {sT[3]}, v20, 32")
    e("v_mul_f32 v21, 0x3c800000, v20")
    e(f"v_add_f32 v22, {sT[2]}, v21")
    e(f"v_fma_f32 v23, -v21, v20, {sT[3]}")
    e("s_mov_b64 exec, 1")
    e("ds_write_b64 v40, v[22:23]")
    e("s_mov_b64 exec, -1")
    e("s_waitcnt lgkmcnt(0)")
    e("s_barrier")
    for k in range(4): e(f"ds_read_b128 {vr(44+4*k)}, v41 offset:{16*k}")
    e("s_waitcnt lgkmcnt(0)")
    e("v_pk_add_f32 v[16:17], v[44:45], v[46:47]"); e("v_pk_add_f32 v[18:19], v[48:49], v[50:51]")
    e("v_pk_add_f32 v[20:21], v[52:53], v[54:55]"); e("v_pk_add_f32 v[22:23], v[56:57], v[58:59]")
    pk(16, 18); pk(20, 22); pk(16, 20)
    e("v_mul_f32 v16, 0x3e000000, v16")
    for k in range(8): e(f"v_sub_f32 v{44+2*k}, v{44+2*k}, v16")
    e("v_mul_f32 v18, v44, v44"); e("v_mul_f32 v19, v46, v46")
    for k in range(2, 8): e(f"v_fmac_f32 v{18+(k&1)}, v{44+2*k}, v{44+2*k}")
    e("v_add_f32 v18, v18, v19")
    e("v_fmac_f32 v17, 0x42800000, v18")
    e("v_mul_f32 v17, 0x3b000000, v17")
    def ln_finish(vm, vv, t):
        e(f"v_cvt_pk_bf16_f32 {t}, {vm}, {vv}")
        e(f"v_lshlrev_b32 {vm}, 16, {t}"); e(f"v_and_b32 {vv}, 0xffff0000, {t}")
        e(f"v_add_f32 {vv}, 0x3727c5ac, {vv}")
        e(f"v_cvt_pk_bf16_f32 {t}, {vv}, {vv}"); e(f"v_lshlrev_b32 {vv}, 16, {t}")
        e(f"v_sqrt_f32 {vv}, {vv}")
        e(f"v_cvt_pk_bf16_f32 {t}, {vv}, {vv}"); e(f"v_lshlrev_b32 {vv}, 16, {t}")
        e(f"v_rcp_f32 {vv}, {vv}")
    ln_finish("v16", "v17", "v18")
    for r in range(4): e(f"v_sub_f32 v{12+r}, v{12+r}, v16")
    rnd4(12, 20)
    for r in range(4): e(f"v_mul_f32 v{12+r}, v17, v{12+r}")
    e("v_cvt_pk_bf16_f32 v52, v12, v13"); e("v_cvt_pk_bf16_f32 v53, v14, v15")
    e(f"v_mov_b32_dpp v54, v52 quad_perm:[1,0,3,2] {DPPF}"); e(f"v_mov_b32_dpp v55, v53 quad_perm:[1,0,3,2] {DPPF}")
    for ee in range(8): e(f"v_mfma_f32_16x16x32_bf16 {vr(DD+4*ee)}, v[52:55], {vr(F1+4*ee)}, 0")
    for ee in range(8): e(f"v_add_f32_dpp v{12+ee}, v{DD+4*ee+2}, v{DD+4*ee} row_ror:8 {DPPF}")
    e("s_mov_b64 exec, 0xff")
    e("ds_write_b128 v42, v[12:15]"); e("ds_write_b128 v42, v[16:19] offset:16")
    e("s_mov_b64 exec, -1")
    e("s_waitcnt lgkmcnt(0)")
    e("s_barrier")
    e("ds_read_b128 v[12:15], v43"); e("ds_read_b128 v[16:19], v43 offset:128")
    e("s_waitcnt lgkmcnt(0)")
    for s in (8, 4, 2):
        for r in range(8): e(f"v_add_f32_dpp v{12+r}, v{12+r}, v{12+r} row_ror:{s} {DPPF}")
    rnd4(12, 20); rnd4(16, 22)
    for r in range(4): e(f"v_mul_f32 v{12+r}, v{12+r}, v{16+r}")
    e("v_cvt_pk_bf16_f32 v52, v12, v13"); e("v_cvt_pk_bf16_f32 v53, v14, v15")
    for ee in range(8): e(f"v_mfma_f32_16x16x16_bf16 {vr(DD+4*ee)}, v[52:53], {vr(F2+2*ee, 2)}, 0")
    for ee in range(8): e(f"v_add_f32_dpp v{12+ee}, v{DD+4*ee+1}, v{DD+4*ee} row_ror:8 {DPPF}")
    tag4(12); tag4(16)
    e("s_mov_b64 exec, 0xff")
    e(f"global_store_dwordx4 {vS0}, v[12:15], {sp(sWS)} sc1"); e(f"global_store_dwordx4 {vS0}, v[16:19], {sp(sWS)} offset:16 sc1")
    e("s_mov_b64 exec, -1")
    stamp(7)
    e("s_branch L_fin")

    A.label("L_st3")
    get_tag()
    e(f"v_and_b32 {vc}, 7, {vLane}"); e(f"v_lshlrev_b32 {vd}, 2, {vc}"); e(f"v_lshrrev_b32 {vf}, 4, {vLane}"); e(f"v_add_u32 {vd}, {vd}, {vf}")
    e(f"s_lshl_b32 {sT[0]}, {sIdx}, 5"); e(f"v_add_u32 {vd}, {sT[0]}, {vd}"); e(f"v_lshlrev_b32 {vS0}, 1, {vd}")
    e(f"global_load_ushort v60, {vS0}, {sp(sX)}")
    e(f"v_lshrrev_b32 {vd}, 3, {vLane}"); e(f"v_lshlrev_b32 {vd}, 11, {vd}"); e(f"v_lshl_add_u32 {vd}, {vc}, 4, {vd}")
    e(f"s_lshl_b32 {sT[0]}, {sIdx}, 7"); e(f"v_add_u32 {vd}, {sT[0]}, {vd}")
    e(f"v_add_u32 v44, {WS_A1}, {vd}"); e(f"v_add_u32 v45, {WS_A1 + 16384}, {vd}")
    for it in range(7): e(f"v_add_u32 v{46+it}, {WS_D2 + 16384*it}, {vd}")
    e("s_barrier")
    e(f"v_mov_b32 v61, {sTag}"); e("v_mov_b32 v62, 0")
    def red4(b):
        e(f"v_permlane32_swap_b32 v{b}, v{b+2}"); e(f"v_permlane32_swap_b32 v{b+1}, v{b+3}")
        e(f"v_add_f32 v{b}, v{b}, v{b+2}"); e(f"v_add_f32 v{b+1}, v{b+1}, v{b+3}")
        e(f"v_permlane16_swap_b32 v{b}, v{b+1}"); e(f"v_add_f32 v{b}, v{b}, v{b+1}")
        e(f"v_add_f32_dpp v{b}, v{b}, v{b} row_ror:8 {DPPF}")
    poll("L_poll3a", [f"global_load_dwordx4 {vr(12+4*it)}, v{44+it}, {sp(sWS)} sc1" for it in range(2)], range(12, 20))
    add4(12, 16)
    red4(12)
    e("v_cvt_pk_bf16_f32 v12, v12, v12"); e("v_lshlrev_b32 v12, 16, v12"); e("v_lshlrev_b32 v60, 16, v60")
    e("v_add_f32 v60, v60, v12"); e("v_cvt_pk_bf16_f32 v60, v60, v60"); e("v_lshlrev_b32 v60, 16, v60")
    stamp(6)
    poll("L_poll3b", [f"global_load_dwordx4 {vr(12+4*it)}, v{46+it}, {sp(sWS)} sc1" for it in range(7)], range(12, 40))
    for a, b in ((12, 16), (20, 24), (28, 32), (12, 20), (28, 36), (12, 28)): add4(a, b)
    red4(12)
    e("v_cvt_pk_bf16_f32 v12, v12, v12"); e("v_lshlrev_b32 v12, 16, v12")
    e("v_add_f32 v12, v60, v12"); e("v_cvt_pk_bf16_f32 v12, v12, v12")
    e("s_mov_b32 exec_lo, 0x00ff00ff"); e("s_mov_b32 exec_hi, 0x00ff00ff")
    e(f"global_store_short {vS0}, v12, {sp(sOUT)}")
    e(f"s_cmp_eq_u32 {sIdx}, 0"); e("s_cbranch_scc0 L_noep")
    e("s_mov_b64 exec, 1")
    e(f"global_store_dword v62, v61, {sp(sWS)}")
    A.label("L_noep")
    e("s_mov_b64 exec, -1")
    stamp(7)

    A.label("L_fin")
    if debug:
        e("s_waitcnt vmcnt(0) lgkmcnt(0)")
        e("s_memrealtime s[96:97]")
        e("s_waitcnt lgkmcnt(0)")
        e(f"s_lshl_b32 {sT[0]}, s2, 3"); e(f"s_add_u32 {sT[0]}, {sT[0]}, {sW}"); e(f"s_lshl_b32 {sT[0]}, {sT[0]}, 6"); e(f"s_add_u32 {sT[0]}, {sT[0]}, {WS_STAMP}")
        e(f"v_mov_b32 v20, {sT[0]}")
        for i in range(9): e(f"v_mov_b32 v{4+i}, s{80+2*i}")
        e("s_getreg_b32 s52, hwreg(HW_REG_XCC_ID)"); e("v_mov_b32 v13, s52"); e("v_mov_b32 v14, s70"); e("v_mov_b32 v15, s72"); e("v_mov_b32 v16, s74"); e("v_mov_b32 v17, s98")
        e("s_mov_b64 exec, 1")
        for i in range(4): e(f"global_store_dwordx4 v20, v[{4+4*i}:{7+4*i}], {sp(sWS)} offset:{16*i}")
    A.label("L_end")
    e("s_endpgm")

    A.label("L_publish")
    e(f"s_and_b32 {sT[0]}, {sW}, 1"); e(f"s_lshl_b32 {sT[0]}, {sT[0]}, 10")
    e(f"s_lshl_b32 {sT[1]}, s2, 11"); e(f"s_add_u32 {sT[1]}, {sT[1]}, {WS_PART}"); e(f"s_add_u32 {sT[1]}, {sT[1]}, {sT[0]}")
    e(f"s_add_u32 {sT[0]}, {sT[0]}, {L_ACC}")
    e(f"v_add_u32 {va}, {sT[0]}, {vVo}"); e(f"v_add_u32 {vb}, {sT[1]}, {vVo}")
    e("s_barrier")
    stamp(4)
    e(f"s_cmp_gt_u32 {sW}, 5"); e("s_cbranch_scc1 L_pubret")
    for w in range(4): e(f"ds_read_b128 {vr(12+4*w)}, {va} offset:{2048*w}")
    e("s_waitcnt lgkmcnt(2)"); add4(12, 16)
    e("s_waitcnt lgkmcnt(0)"); add4(20, 24); add4(12, 20)
    tag4(12)
    e(f"global_store_dwordx4 {vb}, v[12:15], {sp(sWS)} sc1")
    stamp(5)
    e("s_nop 1")
    A.label("L_pubret")
    e("s_setpc_b64 s[66:67]")
    A.fence()

    def tag_from(v):
        e(f"v_readfirstlane_b32 {sTag}, {v}")
        e(f"s_add_u32 {sTag}, {sTag}, 0x01010101")
        for k in range(4): e(f"s_bfe_u32 {sTB[k]}, {sTag}, {(8 << 16) | (8 * k):#x}")
    A.label("L_service")
    e("v_mov_b32 v9, 0")
    e(f"s_cmp_eq_u32 {sW}, 5"); e("s_cbranch_scc1 L_qprod")
    e(f"s_cmp_eq_u32 {sW}, 4"); e("s_cbranch_scc1 L_qget")
    e("s_waitcnt lgkmcnt(0)")
    e("s_barrier")
    A.label("L_sv3")
    lds_wait("L_sq", 0, 1, va, vb, sleep=8)
    A.label("L_dma")
    DW = opts.get("dmawin", 2)
    def thr(): e(f"s_waitcnt vmcnt({DW-1})")
    e(f"s_mov_b32 {sWW}, {sW}")
    if opts.get("nodma"): e("s_branch L_wdone")
    e(f"s_cmp_eq_u32 {sRole}, 1"); e("s_cbranch_scc0 L_now1")
    e(f"s_mov_b32 s40, s{sWO}"); e(f"s_mov_b32 s41, s{sWO+1}"); e(f"s_mov_b32 s42, {4096*1024}"); e("s_mov_b32 s43, 0x20000")
    e(f"v_bfe_u32 v5, {vLane}, 4, 1"); e("v_lshlrev_b32 v5, 18, v5")
    e(f"v_lshrrev_b32 v6, 5, {vLane}"); e("v_lshlrev_b32 v6, 10, v6")
    e(f"v_and_b32 v7, 15, {vLane}"); e("v_lshlrev_b32 v7, 4, v7")
    e("v_add3_u32 v5, v5, v6, v7")
    A.label("L_dma1")
    e(f"s_mul_i32 {sT[1]}, {sWW}, {WPW}")
    e(f"s_lshl_b32 {sT[2]}, {sG}, 9")
    e(f"s_lshr_b32 {sT[3]}, {sWW}, 1"); e(f"s_lshl_b32 {sT[3]}, {sT[3]}, 5"); e(f"s_add_u32 {sT[2]}, {sT[2]}, {sT[3]}")
    e(f"s_and_b32 {sT[3]}, {sIdx}, 4"); e(f"s_add_u32 {sT[2]}, {sT[2]}, {sT[3]}")
    e(f"s_and_b32 {sT[3]}, {sWW}, 1"); e(f"s_lshl_b32 {sT[3]}, {sT[3]}, 1"); e(f"s_add_u32 {sT[2]}, {sT[2]}, {sT[3]}")
    e(f"s_lshl_b32 {sT[2]}, {sT[2]}, 10")
    e(f"s_and_b32 {sT[3]}, {sIdx}, 3"); e(f"s_lshl_b32 {sT[3]}, {sT[3]}, 8"); e(f"s_add_u32 {sT[2]}, {sT[2]}, {sT[3]}")
    for ep in range(8):
        e(f"s_add_u32 {sT[3]}, {sT[2]}, {(128*(ep>>2) + 8*(ep&3))*1024}")
        e(f"s_add_u32 m0, {sT[1]}, {ep*1024}")
        thr()
        if not opts.get("nowo"): e(f"buffer_load_dwordx4 v5, {srdW}, {sT[3]} offen nt lds")
    e(f"s_sub_u32 {sWW}, {sWW}, 4"); e("s_cbranch_scc0 L_dma1")
    e("s_branch L_wdone")
    A.label("L_now1")
    e(f"s_cmp_eq_u32 {sRole}, 2"); e("s_cbranch_scc0 L_wdone")
    e(f"s_mov_b32 s40, s{sWD}"); e(f"s_mov_b32 s41, s{sWD+1}"); e(f"s_mov_b32 s42, {1792*1024}"); e("s_mov_b32 s43, 0x20000")
    e(f"v_lshrrev_b32 v9, 4, {vLane}"); e("v_lshlrev_b32 v9, 13, v9")
    e(f"v_and_b32 v6, 8, {vLane}"); e("v_lshlrev_b32 v6, 9, v6")
    e(f"v_and_b32 v7, 7, {vLane}"); e("v_lshlrev_b32 v7, 4, v7")
    e("v_add3_u32 v9, v9, v6, v7")
    A.label("L_dma2")
    e(f"s_mul_i32 {sT[1]}, {sWW}, {WPW}")
    e(f"v_lshrrev_b32 v5, 4, {vLane}"); e("v_lshlrev_b32 v5, 4, v5")
    e(f"v_and_b32 v6, 8, {vLane}"); e("v_add_u32 v5, v5, v6")
    e(f"s_lshl_b32 {sT[2]}, {sWW}, 6"); e(f"v_add_u32 v5, {sT[2]}, v5")
    e("v_mul_u32_u24 v5, 3584, v5")
    e(f"v_and_b32 v6, 3, {vLane}"); e("v_lshlrev_b32 v6, 4, v6")
    e(f"s_lshl_b32 {sT[2]}, {sIdx}, 6"); e(f"v_add3_u32 v5, v5, v6, {sT[2]}")
    e(f"v_and_b32 v6, 4, {vLane}"); e("v_cmp_eq_u32 vcc, 0, v6")
    e(f"v_mov_b32 v6, s{sWU}"); e(f"v_mov_b32 v8, s{sWG}"); e("v_cndmask_b32 v6, v6, v8, vcc")
    e(f"v_mov_b32 v7, s{sWU+1}"); e(f"v_mov_b32 v8, s{sWG+1}"); e("v_cndmask_b32 v7, v7, v8, vcc")
    e("v_add_co_u32 v6, vcc, v6, v5"); e("v_addc_co_u32 v7, vcc, 0, v7, vcc")
    for ep in range(8):
        e(f"s_add_u32 m0, {sT[1]}, {ep*1024}")
        thr()
        if not opts.get("nogu"): e(f"global_load_lds_dwordx4 v[6:7], off {opts.get('gupol', 'nt')}")
        if ep < 7:
            e("v_add_co_u32 v6, vcc, 3584, v6"); e("v_addc_co_u32 v7, vcc, 0, v7, vcc")
    e(f"s_lshl_b32 {sT[2]}, {sIdx}, 15"); e(f"s_lshl_b32 {sT[3]}, {sWW}, 7"); e(f"s_add_u32 {sT[2]}, {sT[2]}, {sT[3]}")
    e(f"s_add_u32 m0, {sT[1]}, {8*1024}")
    for ep in range(4):
        thr()
        if not opts.get("nodown"): e(f"buffer_load_dwordx4 v9, {srdW}, {sT[2]} offen offset:{ep*1024} nt lds")
    e(f"s_sub_u32 {sWW}, {sWW}, 4"); e("s_cbranch_scc0 L_dma2")
    A.label("L_wdone")
    e("s_waitcnt vmcnt(0)")
    stamp(1)
    e(f"s_cmp_eq_u32 {sW}, 4"); e("s_cbranch_scc1 L_stats")
    A.label("L_svc2")
    e(f"s_cmp_eq_u32 {sRole}, 1"); e("s_cbranch_scc1 L_st1")
    e(f"s_cmp_eq_u32 {sRole}, 2"); e("s_cbranch_scc1 L_st2")
    e(f"s_cmp_eq_u32 {sRole}, 3"); e("s_cbranch_scc0 L_svc3")
    e(f"s_cmp_eq_u32 {sW}, 7"); e("s_cbranch_scc1 L_st3")
    A.label("L_svc3")
    get_tag()
    e("s_call_b64 s[66:67], L_publish")
    e("s_branch L_fin")

    A.label("L_stats")
    lds_wait("L_sw", 4, 4, va, vb, sleep=8)
    e(f"v_and_b32 {vc}, 3, {vLane}"); e(f"v_lshlrev_b32 {va}, 3, {vc}"); e(f"v_add_u32 {va}, {L_MS}, {va}")
    for w in range(4): e(f"ds_read_b64 v[{12+2*w}:{13+2*w}], {va} offset:{32*w}")
    e("s_waitcnt lgkmcnt(0)")
    e("v_max3_f32 v20, v12, v14, v16"); e("v_max_f32 v20, v20, v18")
    for w in range(4): e(f"v_sub_f32 v{12+2*w}, v{12+2*w}, v20")
    for w in range(4): e(f"v_exp_f32 v{12+2*w}, v{12+2*w}")
    e("v_mul_f32 v22, v12, v13")
    for w in range(1, 4): e(f"v_fmac_f32 v22, v{12+2*w}, v{13+2*w}")
    e(f"v_mov_b32 v21, {sTag}"); e(f"v_mov_b32 v23, {sTag}")
    e(f"s_lshl_b32 {sT[0]}, s2, 6"); e(f"s_add_u32 {sT[0]}, {sT[0]}, {WS_ST}"); e(f"v_add_u32 v5, {sT[0]}, {vVo}")
    e("s_mov_b64 exec, 0xf")
    e(f"global_store_dwordx4 v5, v[20:23], {sp(sWS)} sc1")
    e("s_mov_b64 exec, -1")
    e(f"s_lshl_b32 {sT[0]}, {sG}, 11"); e(f"s_add_u32 {sT[0]}, {sT[0]}, {WS_ST}"); e(f"v_add_u32 v5, {sT[0]}, {vVo}")
    A.label("L_spoll")
    timeout()
    e(f"global_load_dwordx4 v[12:15], v5, {sp(sWS)} sc1"); e(f"global_load_dwordx4 v[16:19], v5, {sp(sWS)} offset:1024 sc1")
    e("s_waitcnt vmcnt(0)")
    for r in (13, 15, 17, 19): e(f"v_xor_b32 v{r}, {sTag}, v{r}")
    e("v_or3_b32 v13, v13, v15, v17"); e("v_or_b32 v13, v13, v19")
    e("v_cmp_ne_u32 vcc, 0, v13")
    e("s_cbranch_vccz L_sgot")
    e("s_sleep 8"); e("s_branch L_spoll")
    A.label("L_sgot")
    e("v_max_f32 v20, v12, v16")
    for x in xlane("max", "v20", "v21"): e(x)
    e("v_sub_f32 v12, v12, v20"); e("v_sub_f32 v16, v16, v20"); e("v_exp_f32 v12, v12"); e("v_exp_f32 v16, v16")
    e("v_mul_f32 v21, v12, v14"); e("v_fmac_f32 v21, v16, v18")
    for x in xlane("add", "v21", "v22"): e(x)
    e("v_rcp_f32 v21, v21")
    e(f"v_lshlrev_b32 {va}, 3, {vc}"); e(f"v_add_u32 {va}, {L_GS}, {va}")
    e(f"ds_write_b64 {va}, v[20:21]")
    e(f"v_mov_b32 {va}, {L_FLAG+8}"); e(f"v_mov_b32 {vb}, 1")
    e(f"ds_write_b32 {va}, {vb}")
    if debug: e("s_memrealtime s[98:99]")
    e("s_branch L_svc2")

    A.label("L_qprod")
    e("s_setprio 3")
    WQ = 128; XR = 12; XF = 20; QA = 36; XA = 66
    e(f"s_and_b32 {sT[5]}, {sC}, 7"); e(f"s_lshl_b32 {sQP}, {sG}, 3"); e(f"s_add_u32 {sQP}, {sQP}, {sT[5]}")
    e(f"s_lshr_b32 {sT[4]}, {sC}, 3")
    e(f"v_lshrrev_b32 v5, 3, {vLane}"); e("v_lshlrev_b32 v6, 2, v5")
    e(f"s_lshl_b32 {sT[0]}, {sT[4]}, 8"); e(f"v_add_u32 v6, {sT[0]}, v6")
    e("v_lshlrev_b32 v7, 14, v5"); e(f"v_and_b32 v4, 7, {vLane}"); e("v_lshl_add_u32 v7, v4, 4, v7")
    e(f"s_lshl_b32 {sT[0]}, {sT[4]}, 20"); e(f"s_lshl_b32 {sT[1]}, {sQP}, 7"); e(f"s_add_u32 {sT[0]}, {sT[0]}, {sT[1]}"); e(f"v_add_u32 v7, {sT[0]}, v7")
    e("s_waitcnt lgkmcnt(0)")
    e(f"global_load_dwordx4 {vr(XA)}, {vVo}, {sp(sX)}")
    for k in range(8): e(f"global_load_dword v{XR+k}, v6, {sp(sX)} offset:{32*k}")
    e(f"global_load_dword v10, v9, {sp(sWS)} sc1")
    for i in range(16):
        e(f"global_load_dwordx4 {vr(WQ+4*i)}, v7, {sp(sWQ)} {opts.get('wqpol', 'nt')}")
        if i < 15: e(f"v_add_u32 v7, {0x2000 if i % 2 == 0 else 0x1e000}, v7")
    e("s_barrier")
    e("s_waitcnt vmcnt(25)")
    for k in range(4):
        e(f"v_lshlrev_b32 v{44+2*k}, 16, v{XA+k}"); e(f"v_and_b32 v{45+2*k}, 0xffff0000, v{XA+k}")
    def wsum(r, tmp):
        for s in (8, 4, 2, 1): e(f"v_add_f32_dpp {r}, {r}, {r} row_ror:{s} {DPPF}")
        e(f"v_mov_b32 {tmp}, {r}"); e(f"v_permlane16_swap_b32 {tmp}, {r}"); e(f"v_add_f32 {r}, {tmp}, {r}")
        e(f"v_mov_b32 {tmp}, {r}"); e(f"v_permlane32_swap_b32 {tmp}, {r}"); e(f"v_add_f32 {r}, {tmp}, {r}")
    e("v_pk_add_f32 v[52:53], v[44:45], v[46:47]"); e("v_pk_add_f32 v[54:55], v[48:49], v[50:51]"); pk(52, 54)
    e(f"v_add_f32 {va}, v52, v53")
    wsum(va, vb)
    e(f"v_mul_f32 {va}, 0x3b000000, {va}")
    for k in range(8): e(f"v_sub_f32 v{44+k}, v{44+k}, {va}")
    e(f"v_mul_f32 {vc}, v44, v44"); e(f"v_mul_f32 {vd}, v45, v45")
    for k in range(2, 8): e(f"v_fmac_f32 {(vc, vd)[k&1]}, v{44+k}, v{44+k}")
    e(f"v_add_f32 {vc}, {vc}, {vd}")
    wsum(vc, vb)
    e(f"v_mul_f32 {vc}, 0x3b000000, {vc}")
    ln_finish(va, vc, vb)
    e("s_waitcnt vmcnt(17)")
    for k in range(8):
        e(f"v_lshlrev_b32 v{XF+2*k}, 16, v{XR+k}"); e(f"v_and_b32 v{XF+2*k+1}, 0xffff0000, v{XR+k}")
    for k in range(16): e(f"v_sub_f32 v{XF+k}, v{XF+k}, {va}")
    for k in range(8): e(f"v_cvt_pk_bf16_f32 v{XR+k}, v{XF+2*k}, v{XF+2*k+1}")
    for k in range(8):
        e(f"v_lshlrev_b32 v{XF+2*k}, 16, v{XR+k}"); e(f"v_and_b32 v{XF+2*k+1}, 0xffff0000, v{XR+k}")
    for k in range(16): e(f"v_mul_f32 v{XF+k}, {vc}, v{XF+k}")
    for k in range(8): e(f"v_cvt_pk_bf16_f32 v{XR+k}, v{XF+2*k}, v{XF+2*k+1}")
    for k in range(8): e(f"v_mov_b32 v{QA+k}, 0")
    e(f"v_lshrrev_b32 v5, 5, {vLane}"); e("v_lshlrev_b32 v5, 4, v5"); e("v_lshl_add_u32 v5, v4, 5, v5")
    e(f"s_lshl_b32 {sT[0]}, s2, 8"); e(f"s_add_u32 {sT[0]}, {sT[0]}, {WS_Q}"); e(f"v_add_u32 v5, {sT[0]}, v5")
    e(f"v_mov_b32 {vMask}, 0xffffff00")
    e("s_waitcnt vmcnt(16)")
    tag_from("v10")
    for p in range(8):
        e(f"s_waitcnt vmcnt({14 - 2*p})")
        for ee in range(8):
            e(f"v_perm_b32 v{44+ee}, v{WQ+4*(2*p+1)+(ee>>1)}, v{WQ+4*(2*p)+(ee>>1)}, {sSelHi if ee & 1 else sSelLo}")
        for ee in range(8): e(f"v_dot2c_f32_bf16 v{QA+ee}, v{44+ee}, v{XR+p}")
    if debug: e("s_memrealtime s[70:71]")
    for k in range(4): e(f"v_permlane32_swap_b32 v{QA+k}, v{QA+4+k}")
    for k in range(4): e(f"v_add_f32 v{QA+k}, v{QA+k}, v{QA+4+k}")
    for k in range(4): e(f"v_mov_b32 v{QA+4+k}, v{QA+k}")
    for k in range(4): e(f"v_permlane16_swap_b32 v{QA+4+k}, v{QA+k}")
    for k in range(4): e(f"v_add_f32 v{QA+k}, v{QA+k}, v{QA+4+k}")
    for k in range(4): e(f"v_add_f32_dpp v{QA+k}, v{QA+k}, v{QA+k} row_ror:8 {DPPF}")
    for k in range(4): e(f"v_add_u32 v{QA+k}, 0x80, v{QA+k}")
    tag4(QA)
    e("s_mov_b32 exec_lo, 0xff"); e("s_mov_b32 exec_hi, 0xff")
    e(f"global_store_dwordx4 v5, {vr(QA)}, {sp(sWS)} sc1")
    e("s_mov_b64 exec, -1")
    e("s_setprio 0")
    e("s_branch L_sv3")
    A.label("L_qget")
    e("v_mov_b32 v8, 0"); e("v_mov_b32 v10, 0"); e("v_mov_b32 v11, 0")
    e(f"v_mov_b32 v64, {L_FLAG}")
    e("ds_write_b128 v64, v[8:11]")
    e(f"s_lshl_b32 {sT[0]}, {sG}, 13"); e(f"s_add_u32 {sT[0]}, {sT[0]}, {WS_Q}")
    e(f"v_add_u32 v5, {sT[0]}, {vVo}"); e("v_add_u32 v7, 0x1000, v5")
    e(f"v_lshlrev_b32 v6, 3, {vLane}"); e(f"v_add_u32 v6, {L_Q}, v6")
    e("s_waitcnt lgkmcnt(0)")
    e(f"global_load_dword v10, v9, {sp(sWS)} sc1")
    e("s_barrier")
    e("s_waitcnt vmcnt(0)")
    tag_from("v10")
    e(f"v_mov_b32 v52, {sTag}"); e("ds_write_b32 v64, v52 offset:16")
    poll("L_qpoll", [f"global_load_dwordx4 {vr(12+4*k)}, {'v5' if k < 4 else 'v7'}, {sp(sWS)} offset:{1024*(k&3)} sc1" for k in range(8)], range(12, 44), sleep=opts.get("qsleep", 12))
    for h in range(2):
        add4(12+4*h, 20+4*h); add4(28+4*h, 36+4*h); add4(12+4*h, 28+4*h)
        e(f"v_cvt_pk_bf16_f32 v{12+4*h}, v{12+4*h}, v{13+4*h}"); e(f"v_cvt_pk_bf16_f32 v{13+4*h}, v{14+4*h}, v{15+4*h}")
        e(f"ds_write_b64 v6, v[{12+4*h}:{13+4*h}] offset:{512*h}")
    e("v_mov_b32 v48, 1"); e("ds_write_b32 v64, v48")
    if debug: e("s_memrealtime s[72:73]")
    e("s_branch L_dma")

    A.raw('.section .rodata,"a"'); A.raw(".p2align 6"); A.raw(f".amdhsa_kernel {NAME}")
    for l in ["next_free_vgpr 256", "next_free_sgpr 102", "accum_offset 256", "group_segment_fixed_size 0", "kernarg_size 96",
              "user_sgpr_count 2", "user_sgpr_kernarg_segment_ptr 1", "system_sgpr_workgroup_id_x 1", "float_denorm_mode_32 3"]:
        A.raw("  .amdhsa_" + l)
    A.raw(".end_amdhsa_kernel")
    return A.text()

if __name__ == "__main__":
    dbg = "--debug" in sys.argv
    sys.stdout.write(gen(debug=dbg))
```

```python
import sys
sys.path.insert(0, "work")
from asmlib import Asm

NAME = "sequential_preLN__gqa_block_cached__glu_gated_bilinear__decode_kernel"

WS_EPOCH = 0
WS_Q = 0xE0000
WS_ST = 0x8000
WS_PART = 0x10000
PREC = 2048
WS_A1 = 0xA0000
WS_D2 = 0xB0000
WS_STAMP = 0x800000
WPW = 8 * 1024
L_Q = 8 * WPW
L_ACC = L_Q + 1024
L_RED = L_ACC + 8192
L_STAT = L_RED + 4096
L_MS = L_STAT + 64
L_GS = L_MS + 128
L_QP = L_RED
L_FLAG = L_GS + 32
L_TOTAL = 98304

KV_BYTES = 128 << 20

def gen(debug=False, opts=None):
    opts = opts or {}
    A = Asm(); e = A
    def stamp(i):
        if debug: e(f"s_memrealtime s[{80+2*i}:{81+2*i}]")
    sX, sK, sV, sWQ, sWO, sWG, sWU, sWD, sOUT, sDBG, sWS = 8, 10, 12, 14, 16, 20, 22, 24, 26, 28, 30
    def sp(n): return f"s[{n}:{n+1}]"
    sW = "s3"; sG = "s4"; sC = "s5"
    srdK = "s[32:35]"; srdV = "s[36:39]"; srdW = "s[40:43]"
    sScale, sL2E, sSelLo, sSelHi = "s44", "s45", "s46", "s47"
    sOff = "s48"; sBase = "s49"; sWW = "s50"
    sT = ["s52", "s53", "s54", "s55", "s56", "s57", "s58", "s59"]
    sTag = "s60"; sRole = "s61"; sIdx = "s62"; sTO = "s64"
    vLane = "v1"; vKo = "v2"; vVo = "v3"
    ACC = 4; BQ = 12; PV_ = 12; SPK = 28; T = 44; M = 76
    vX0, vX1, vY0, vY1, vS0, vS1, vML, vL, va, vb, vc, vd, vMSa, vf = [f"v{M+i}" for i in range(14)]
    vKo2 = "v90"; vVo2 = "v91"; vMask = "v93"
    RING = opts.get("ring", 40); RBASE = 256 - 4 * RING
    assert RBASE >= 96
    W0 = opts.get("win", 5); BUDGET = opts.get("budget", 18)
    WHI = opts.get("whi", 7); WLO = opts.get("wlo", 4)
    FF = opts.get("ff", [0, 0x00000010, 0x00492492, 0])
    ENDS = opts.get("ends", 232)
    CKP = opts.get("ckp", [])
    W = WHI
    sFF = "s51"; sQP = "s63"; sLev = "s65"; sHi = "s66"; sLo = "s67"
    sTB = ["s76", "s77", "s78", "s79"]
    def vr(a, n=4): return f"v[{a}:{a+n-1}]"
    DPPF = "row_mask:0xf bank_mask:0xf"
    def timeout():
        e(f"s_sub_u32 {sTO}, {sTO}, 1"); e("s_cbranch_scc1 L_end")
    def lds_wait(lbl, off, val, vaddr, vtmp, sleep=1):
        e(f"v_mov_b32 {vaddr}, {L_FLAG + off}")
        A.label(lbl)
        e(f"ds_read_b32 {vtmp}, {vaddr}")
        timeout()
        e("s_waitcnt lgkmcnt(0)")
        e(f"v_readfirstlane_b32 {sT[0]}, {vtmp}")
        e(f"s_cmp_ge_u32 {sT[0]}, {val}"); e(f"s_cbranch_scc1 {lbl}_go")
        e(f"s_sleep {sleep}"); e(f"s_branch {lbl}")
        A.label(lbl + "_go")

    A.raw(f"; @launch grid=(256,1,1) block=(512,1,1) lds={L_TOTAL}")
    A.raw('.amdgcn_target "amdgcn-amd-amdhsa--gfx950"')
    A.raw(".text"); A.raw(f".globl {NAME}"); A.raw(".p2align 8"); A.raw(f".type {NAME},@function"); A.label(NAME)
    e("s_cmp_ge_u32 s2, 256"); e("s_cbranch_scc1 L_end")
    e("s_load_dwordx16 s[8:23], s[0:1], 0")
    e("s_load_dwordx8 s[24:31], s[0:1], 64")
    stamp(0)
    if debug: e("s_memtime s[100:101]")
    e(f"v_lshrrev_b32 v2, 6, v0"); e(f"v_and_b32 {vLane}, 63, v0")
    e(f"v_readfirstlane_b32 {sW}, v2")
    e(f"s_lshr_b32 {sG}, s2, 5"); e(f"s_and_b32 {sC}, s2, 31")
    e(f"s_mov_b32 {sSelLo}, 0x05040100"); e(f"s_mov_b32 {sSelHi}, 0x07060302")
    e(f"s_mov_b32 {sTO}, 0x400000")
    e(f"v_lshlrev_b32 {vVo}, 4, {vLane}")
    def roles():
        e(f"s_mov_b32 {sRole}, 0"); e(f"s_mov_b32 {sIdx}, 0")
        e(f"s_lshl_b32 {sT[0]}, {sG}, 1"); e(f"s_add_u32 {sT[0]}, {sT[0]}, {sC}"); e(f"s_sub_u32 {sT[0]}, {sT[0]}, 15")
        e(f"s_cmp_lt_u32 {sC}, 17"); e(f"s_cselect_b32 {sRole}, 3, {sRole}"); e(f"s_cselect_b32 {sIdx}, {sT[0]}, {sIdx}")
        if opts.get("xmap", True):
            e(f"s_lshl_b32 {sT[0]}, {sC}, 3"); e(f"s_add_u32 {sT[0]}, {sT[0]}, {sG}"); e(f"s_sub_u32 {sT[0]}, {sT[0]}, 64")
        else:
            e(f"s_mul_i32 {sT[0]}, {sG}, 7"); e(f"s_add_u32 {sT[0]}, {sT[0]}, {sC}"); e(f"s_sub_u32 {sT[0]}, {sT[0]}, 8")
        e(f"s_cmp_lt_u32 {sC}, 15"); e(f"s_cselect_b32 {sRole}, 2, {sRole}"); e(f"s_cselect_b32 {sIdx}, {sT[0]}, {sIdx}")
        e(f"s_cmp_lt_u32 {sC}, 8"); e(f"s_cselect_b32 {sRole}, 1, {sRole}"); e(f"s_cselect_b32 {sIdx}, {sC}, {sIdx}")
    roles()
    e(f"s_cmp_ge_u32 {sW}, 4"); e("s_cbranch_scc1 L_service")

    e(f"v_lshrrev_b32 v5, 4, {vLane}"); e("v_lshlrev_b32 v5, 6, v5")
    e(f"v_bfe_u32 v6, {vLane}, 2, 2"); e("v_lshlrev_b32 v6, 8, v6")
    e(f"v_and_b32 v7, 3, {vLane}"); e("v_lshlrev_b32 v7, 4, v7")
    e(f"v_add3_u32 {vKo}, v5, v6, v7")
    e(f"v_add_u32 {vKo2}, 0x4000, {vKo}"); e(f"v_add_u32 {vVo2}, 0x4000, {vVo}")
    e(f"s_lshl_b32 {sBase}, s2, 19"); e(f"s_lshl_b32 {sT[0]}, {sW}, 12"); e(f"s_add_u32 {sBase}, {sBase}, {sT[0]}")
    e(f"s_mov_b32 {sOff}, {sBase}")
    e(f"s_mov_b32 s34, {KV_BYTES}"); e("s_mov_b32 s35, 0x20000"); e(f"s_mov_b32 s38, {KV_BYTES}"); e("s_mov_b32 s39, 0x20000")
    e("s_waitcnt lgkmcnt(0)")
    e(f"s_mov_b32 s32, s{sK}"); e(f"s_mov_b32 s33, s{sK+1}"); e(f"s_mov_b32 s36, s{sV}"); e(f"s_mov_b32 s37, s{sV+1}")
    NI = 16; NL = 8 * NI
    def slot(idx): return RBASE + 4 * (idx % RING)
    def issue(s):
        n = s & 7
        if s == NL: e(f"s_mov_b32 {sOff}, {sBase}")
        elif n == 0 and s: e(f"s_add_u32 {sOff}, {sOff}, 0x8000")
        if s < NL: e(f"buffer_load_dwordx4 {vr(slot(s))}, {vKo if n < 4 else vKo2}, {srdK}, {sOff} offen offset:{(n%4)*1024} nt")
        else: e(f"buffer_load_dwordx4 {vr(slot(s))}, {vVo if n < 4 else vVo2}, {srdV}, {sOff} offen offset:{(n%4)*1024} nt")
    tasks = []
    def task(need, frees, ins): tasks.append(dict(need=need, frees=frees, ins=ins))
    def xlane(op, r, tmp):
        return [f"v_{op}_f32_dpp {r}, {r}, {r} row_ror:8 {DPPF}", f"v_{op}_f32_dpp {r}, {r}, {r} row_ror:4 {DPPF}",
                f"v_mov_b32 {tmp}, {r}", f"v_permlane16_swap_b32 {tmp}, {r}", f"v_{op}_f32 {r}, {tmp}, {r}",
                f"v_mov_b32 {tmp}, {r}", f"v_permlane32_swap_b32 {tmp}, {r}", f"v_{op}_f32 {r}, {tmp}, {r}"]
    for i in range(NI):
        for n in range(8):
            task(8*i+n, [8*i+n], [f"v_mfma_f32_16x16x32_bf16 {vr(T+4*n)}, {vr(slot(8*i+n))}, {vr(BQ+4*(n&3))}, 0"])
        for t in range(2):
            ins = []
            for m in range(4):
                X = (vX0, vX1)[t]; Y = (vY0, vY1)[t]; D = T + 4 * (4*t+m)
                ins.append(f"v_add_f32_dpp {Y}, v{D+3}, v{D+1} row_ror:8 row_mask:0xf bank_mask:{1 << ((m+1)&3):#x}")
                ins.append(f"v_add_f32_dpp {X}, v{D+2}, v{D} row_ror:8 row_mask:0xf bank_mask:{1 << m:#x}")
            task(-1, [], ins)
        task(-1, [], [f"v_add_f32_dpp {vX0}, {vY0}, {vX0} row_ror:12 {DPPF}", f"v_add_f32_dpp {vX1}, {vY1}, {vX1} row_ror:12 {DPPF}",
                      f"v_cvt_pk_bf16_f32 {vY0}, {vX0}, {vX1}",
                      f"v_lshlrev_b32 {vX0}, 16, {vY0}", f"v_and_b32 {vX1}, 0xffff0000, {vY0}",
                      f"v_mul_f32 {vX0}, {sScale}, {vX0}", f"v_mul_f32 {vX1}, {sScale}, {vX1}",
                      f"v_cvt_pk_bf16_f32 v{SPK+i}, {vX0}, {vX1}",
                      f"v_lshlrev_b32 {vX0}, 16, v{SPK+i}", f"v_and_b32 {vX1}, 0xffff0000, v{SPK+i}",
                      (f"v_max_f32 {vML}, {vX0}, {vX1}" if i == 0 else f"v_max3_f32 {vML}, {vML}, {vX0}, {vX1}")])
    task(-1, [], xlane("max", vML, vb) + [f"v_mul_f32 {vML}, {sL2E}, {vML}"])
    task(-1, [], [f"v_mov_b32 v{PV_+k}, 0" for k in range(16)])
    for i in range(0, NI, 2):
        ins = []
        tmp = [(vX0, vX1), (vY0, vY1)]
        for k in range(2):
            a, b = tmp[k]; ins += [f"v_lshlrev_b32 {a}, 16, v{SPK+i+k}", f"v_and_b32 {b}, 0xffff0000, v{SPK+i+k}"]
        for k in range(2):
            a, b = tmp[k]; ins += [f"v_fma_f32 {a}, {a}, {sL2E}, -{vML}", f"v_fma_f32 {b}, {b}, {sL2E}, -{vML}"]
        for k in range(2):
            a, b = tmp[k]; ins += [f"v_exp_f32 {a}, {a}", f"v_exp_f32 {b}, {b}"]
        ins += [f"v_add_f32 {va}, {vX0}, {vX1}", f"v_cvt_pk_bf16_f32 v{SPK+i}, {vX0}, {vX1}", f"v_add_f32 {vb}, {vY0}, {vY1}", f"v_cvt_pk_bf16_f32 v{SPK+i+1}, {vY0}, {vY1}"]
        ins += [f"v_add_f32 {vL}, {va}, {vb}"] if i == 0 else [f"v_add_f32 {va}, {va}, {vb}", f"v_add_f32 {vL}, {vL}, {va}"]
        task(-1, [], ins)
    task(-1, [], xlane("add", vL, vb) + [f"ds_write_b64 {vMSa}, v[{M+6}:{M+7}]", f"v_mov_b32 {va}, {L_FLAG+4}", f"v_mov_b32 {vb}, 1",
                                         "s_mov_b64 exec, 1", f"ds_add_u32 {va}, {vb}", "s_mov_b64 exec, -1"])
    order = [0, 4, 1, 5, 2, 6, 3, 7]
    for i in range(NI):
        L0 = NL + 8 * i
        def perm(ee, k):
            rho = ee & 3; t = k >> 1
            n0 = 4 * t + ((rho + 2 * (k & 1)) & 3); n1 = 4 * t + ((rho + 2 * (k & 1) + 1) & 3)
            return f"v_perm_b32 v{T+4*ee+k}, v{slot(L0+n1)+(ee>>1)}, v{slot(L0+n0)+(ee>>1)}, {sSelHi if ee & 1 else sSelLo}"
        def mf(ee):
            ac = vr(ACC + 4 * (ee >> 2))
            return f"v_mfma_f32_16x16x32_bf16 {ac}, {vr(T+4*ee)}, {vr(PV_+4*(ee&3))}, {ac if (i or (ee & 3)) else 0}"
        ins = [f"v_mov_b32_dpp {vY0}, v{SPK+i} row_ror:12 {DPPF}",
               f"v_perm_b32 {vX0}, {vY0}, v{SPK+i}, {sSelLo}", f"v_perm_b32 {vX1}, {vY0}, v{SPK+i}, {sSelHi}"]
        for rho in range(4):
            bm = f"row_mask:0xf bank_mask:{1 << rho:#x}"
            ins += [f"v_mov_b32_dpp v{PV_+4*rho+0}, {vX0} quad_perm:[0,1,2,3] {bm}", f"v_mov_b32_dpp v{PV_+4*rho+1}, {vX0} row_ror:8 {bm}",
                    f"v_mov_b32_dpp v{PV_+4*rho+2}, {vX1} quad_perm:[0,1,2,3] {bm}", f"v_mov_b32_dpp v{PV_+4*rho+3}, {vX1} row_ror:8 {bm}"]
        task(-1, [], ins[:11]); task(-1, [], ins[11:])
        task(L0+3, [], [perm(ee, k) for ee in range(4) for k in range(2)])
        task(L0+3, [L0, L0+1, L0+2, L0+3], [perm(ee, k) for ee in range(4, 8) for k in range(2)])
        ins = []
        for idx, ee in enumerate(order):
            ins += [perm(ee, 2), perm(ee, 3)]
            if idx >= 1: ins.append(mf(order[idx - 1]))
        ins.append(mf(order[7]))
        task(L0+7, [], ins[:11]); task(L0+7, [L0+4, L0+5, L0+6, L0+7], ins[11:])

    def setup_misc():
        e(f"s_mov_b32 {sScale}, 0x3db504f3")
        e(f"s_mov_b32 {sL2E}, 0x3fb8aa3b")
        e(f"v_and_b32 {vMSa}, 3, {vLane}"); e(f"v_lshlrev_b32 {vMSa}, 3, {vMSa}")
        e(f"s_lshl_b32 {sT[0]}, {sW}, 5"); e(f"s_add_u32 {sT[0]}, {sT[0]}, {L_MS}"); e(f"v_add_u32 {vMSa}, {sT[0]}, {vMSa}")
        e(f"v_and_b32 {va}, 3, {vLane}"); e(f"v_lshlrev_b32 {va}, 8, {va}")
        e(f"v_lshrrev_b32 {vb}, 4, {vLane}"); e(f"v_lshlrev_b32 {vb}, 6, {vb}")
        e(f"s_mov_b32 {sT[0]}, {L_Q}")
        e(f"v_add3_u32 {va}, {va}, {vb}, {sT[0]}")
        e(f"v_bfe_u32 {vb}, {vLane}, 2, 2")
        for m in range(4):
            e(f"v_subrev_u32 {vc}, {m}, {vb}"); e(f"v_and_b32 {vc}, 3, {vc}")
            e(f"v_lshl_add_u32 v{T+m}, {vc}, 4, {va}")
        e(f"s_lshl_b32 {sT[0]}, {sW}, 11"); e(f"s_add_u32 {sT[0]}, {sT[0]}, {L_ACC}")
        e(f"v_add_u32 v92, {sT[0]}, {vVo}")
        e(f"s_mov_b32 {sFF}, {FF[0]}")
        for r in (1, 2, 3): e(f"s_cmp_eq_u32 {sRole}, {r}"); e(f"s_cselect_b32 {sFF}, {FF[r]}, {sFF}")
        e(f"s_cmp_ge_u32 {sC}, {32 - 8 * opts.get('np', 2)}"); e(f"s_cselect_b32 {sT[0]}, {opts.get('ffq', 0x48)}, 0"); e(f"s_or_b32 {sFF}, {sFF}, {sT[0]}")
        e(f"v_mov_b32 v94, {L_FLAG}"); e(f"v_cmp_eq_u32 vcc, 0, {vLane}"); e("v_cndmask_b32 v95, 0, 1, vcc"); e(f"v_mov_b32 {vS0}, 0"); e(f"v_mov_b32 {vS1}, 0")
    def emit_task(t):
        for x in t["ins"]: e(x)
        return len(t["ins"])
    ti = 0; freed = set()
    for s in range(2 * NL):
        if s == W0:
            e("s_barrier")
            setup_misc()
        if s == RING:
            stamp(1)
            lds_wait("L_qw", 0, 1, va, vb)
            for m in range(4): e(f"ds_read_b128 {vr(BQ+4*m)}, v{T+m}")
            stamp(2)
            e("s_waitcnt lgkmcnt(0)")
        if s >= RING:
            while (s - RING) not in freed:
                assert tasks[ti]["need"] <= s - 1 - W
                emit_task(tasks[ti]); freed.update(tasks[ti]["frees"]); ti += 1
        if s >= ENDS: e(f"s_waitcnt vmcnt({WHI-1})")
        elif s >= 8:
            e(f"s_waitcnt vmcnt({WHI-1})")
            e(f"s_cmp_eq_u32 {sLev}, 2"); e(f"s_cbranch_scc1 L_go{s}")
            A.opt(f"s_waitcnt vmcnt({W0-1})")
            A.opt(f"s_cmp_eq_u32 {sLev}, 1"); A.opt(f"s_cbranch_scc1 L_go{s}")
            A.opt(f"s_waitcnt vmcnt({WLO-1})")
            A.label(f"L_go{s}")
        elif s >= W0: e(f"s_waitcnt vmcnt({W0-1})")
        issue(s)
        if s == opts.get("qstart", 14): e("ds_add_u32 v94, v95 offset:36")
        PS0, PS1 = opts.get("prange", (128, 224))
        if PS0 <= s < PS1 and s % 2 == 1:
            e("ds_add_u32 v94, v95 offset:20")
        if s % 8 == 7 and s + 1 < ENDS:
            dyn = s >= PS0 + 16
            if dyn:
                e("s_waitcnt lgkmcnt(0)")
                e(f"v_readfirstlane_b32 {sHi}, {vS0}"); e(f"v_readfirstlane_b32 {sLo}, {vS1}")
                e(f"ds_read_b64 v[{M+4}:{M+5}], v94 offset:24")
            e(f"s_bitcmp1_b32 {sFF}, {(s+1)//8}"); e(f"s_cselect_b32 {sLev}, 2, 1")
            if dyn:
                e(f"s_cmpk_gt_i32 {sHi}, {s+4}"); e(f"s_cselect_b32 {sLev}, 2, {sLev}")
                e(f"s_cmpk_gt_i32 {sLo}, {s+4}"); e(f"s_cselect_b32 {sLev}, 0, {sLev}")
        if s >= RING:
            spent = 0
            while ti < len(tasks) and tasks[ti]["need"] <= s - W and (spent == 0 or spent + len(tasks[ti]["ins"]) <= BUDGET):
                spent += emit_task(tasks[ti]); freed.update(tasks[ti]["frees"]); ti += 1
        if debug and s == NL: e("s_memrealtime s[74:75]")
    landed = 2 * NL - 1 - W
    while ti < len(tasks):
        if tasks[ti]["need"] > landed:
            landed = tasks[ti]["need"]; e(f"s_waitcnt vmcnt({2*NL-1-landed})")
        emit_task(tasks[ti]); ti += 1
    stamp(3)
    e(f"ds_write_b128 v92, {vr(ACC)}"); e(f"ds_write_b128 v92, {vr(ACC+4)} offset:1024")
    e("s_waitcnt lgkmcnt(0)")
    e("s_barrier")
    stamp(4)
    e(f"s_cmp_eq_u32 {sRole}, 1"); e("s_cbranch_scc1 L_st1")
    e(f"s_cmp_eq_u32 {sRole}, 2"); e("s_cbranch_scc1 L_st2")
    e("s_branch L_fin")

    def poll(lbl, loads, regs, sleep=0):
        A.label(lbl)
        timeout()
        if sleep: e(f"s_sleep {sleep}")
        for l in loads: e(l)
        regs = list(regs)
        n = len(loads)
        for li in range(n):
            e(f"s_waitcnt vmcnt({n-1-li})")
            r = regs[4*li:4*li+4]
            for k in range(4): e(f"v_xor_b32 v{r[k]}, {sTB[k]}, v{r[k]}")
            if li == 0: e(f"v_or_b32 {va}, v{r[0]}, v{r[1]}"); e(f"v_or_b32 {vb}, v{r[2]}, v{r[3]}")
            else: e(f"v_or3_b32 {va}, {va}, v{r[0]}, v{r[1]}"); e(f"v_or3_b32 {vb}, {vb}, v{r[2]}, v{r[3]}")
        e(f"v_or_b32 {va}, {va}, {vb}")
        e(f"v_and_b32 {va}, 0xff, {va}")
        e(f"v_cmp_ne_u32 vcc, 0, {va}")
        e(f"s_cbranch_vccnz {lbl}")
    def tag4(b):
        for k in range(4): e(f"v_and_or_b32 v{b+k}, v{b+k}, {vMask}, {sTB[k]}")
    def get_tag():
        e(f"v_mov_b32 {va}, {L_FLAG+16}"); e(f"ds_read_b32 {va}, {va}"); e(f"v_mov_b32 {vMask}, 0xffffff00")
        e("s_waitcnt lgkmcnt(0)")
        e(f"v_readfirstlane_b32 {sTag}, {va}")
        for k in range(4): e(f"s_bfe_u32 {sTB[k]}, {sTag}, {(8 << 16) | (8 * k):#x}")
    def wfrag(dst, raw, nload, ldsoff):
        e(f"s_mul_i32 {sT[0]}, {sW}, {WPW}"); e(f"v_add_u32 {va}, {sT[0]}, {vVo}")
        for n in range(nload): e(f"ds_read_b128 {vr(raw+4*n)}, {va} offset:{ldsoff + 1024*n}")
        e("s_waitcnt lgkmcnt(0)")
        wperm(dst, raw, nload)
    def wperm(dst, raw, nload):
        h = nload // 2
        for ee in range(8):
            for k in range(h):
                e(f"v_perm_b32 v{dst+h*ee+k}, v{raw+4*(2*k+1)+(ee>>1)}, v{raw+4*(2*k)+(ee>>1)}, {sSelHi if ee & 1 else sSelLo}")
    def pk(a, b): e(f"v_pk_add_f32 v[{a}:{a+1}], v[{a}:{a+1}], v[{b}:{b+1}]")
    def add4(a, b): pk(a, b); pk(a + 2, b + 2)
    F1 = 128; RAW = 192; G = 12; DD = 160; F2 = 224
    def svc_join(lbl):
        e(f"s_cmp_lt_u32 {sW}, 4"); e(f"s_cbranch_scc1 {lbl}")
        e("s_call_b64 s[66:67], L_publish")
        A.label(lbl)

    A.label("L_st1")
    get_tag()
    wfrag(F1, RAW, 8, 0)
    e(f"v_bfe_u32 {vc}, {vLane}, 1, 3"); e(f"v_lshlrev_b32 {vc}, 11, {vc}")
    e(f"v_lshrrev_b32 {vd}, 4, {vLane}"); e(f"v_lshl_add_u32 {vc}, {vd}, 5, {vc}"); e(f"v_and_b32 {vd}, 1, {vLane}"); e(f"v_lshl_add_u32 {vc}, {vd}, 4, {vc}")
    e(f"s_lshl_b32 {sT[0]}, {sG}, 16"); e(f"s_add_u32 {sT[0]}, {sT[0]}, {WS_PART}")
    e(f"s_lshr_b32 {sT[1]}, {sIdx}, 2"); e(f"s_lshl_b32 {sT[1]}, {sT[1]}, 10"); e(f"s_add_u32 {sT[0]}, {sT[0]}, {sT[1]}")
    e(f"s_lshl_b32 {sT[1]}, {sW}, 7"); e(f"s_add_u32 {sT[0]}, {sT[0]}, {sT[1]}")
    e(f"v_add_u32 v36, {sT[0]}, {vc}")
    for it in range(1, 4): e(f"v_add_u32 v{36+it}, {8*PREC*it}, v36")
    e(f"s_lshl_b32 {sT[0]}, {sW}, 9"); e(f"s_add_u32 {sT[0]}, {sT[0]}, {L_RED}")
    e(f"v_lshlrev_b32 {vY0}, 5, {vLane}"); e(f"v_add_u32 {vY0}, {sT[0]}, {vY0}")
    e(f"v_add_u32 {vY1}, {L_RED}, {vVo}")
    e(f"s_lshl_b32 {sT[0]}, {sG}, 12"); e(f"s_lshl_b32 {sT[1]}, {sIdx}, 9"); e(f"s_add_u32 {sT[0]}, {sT[0]}, {sT[1]}"); e(f"s_add_u32 {sT[0]}, {sT[0]}, {WS_A1}")
    e(f"v_add_u32 {vS0}, {sT[0]}, {vVo}")
    svc_join("L_j1")
    poll("L_poll1", [f"global_load_dwordx4 {vr(G+4*it)}, v{36+it}, {sp(sWS)} sc1" for it in range(4)], range(12, 28))
    stamp(6)
    add4(12, 16); add4(20, 24); add4(12, 20)
    for s in (8, 4, 2):
        for r in range(4): e(f"v_add_f32_dpp v{12+r}, v{12+r}, v{12+r} row_ror:{s} {DPPF}")
    e("v_cvt_pk_bf16_f32 v52, v12, v13"); e("v_cvt_pk_bf16_f32 v53, v14, v15")
    e(f"v_mov_b32_dpp v54, v52 quad_perm:[1,0,3,2] {DPPF}"); e(f"v_mov_b32_dpp v55, v53 quad_perm:[1,0,3,2] {DPPF}")
    for ee in range(8): e(f"v_mfma_f32_16x16x32_bf16 {vr(DD+4*ee)}, v[52:55], {vr(F1+4*ee)}, 0")
    e("s_mov_b64 exec, 0xffff")
    for ee in range(0, 8, 2): e(f"ds_write2_b32 {vY0}, v{DD+4*ee}, v{DD+4*ee+4} offset0:{ee} offset1:{ee+1}")
    e("s_mov_b64 exec, -1")
    e("s_waitcnt lgkmcnt(0)")
    e("s_barrier")
    e(f"s_cmp_eq_u32 {sW}, 0"); e("s_cbranch_scc0 L_fin")
    e("s_mov_b32 exec_hi, 0")
    for w in range(8): e(f"ds_read_b128 {vr(12+4*w)}, {vY1} offset:{512*w}")
    for w in range(0, 8, 2):
        e(f"s_waitcnt lgkmcnt({6-w})")
        add4(12 + 4*w, 16 + 4*w)
        if w in (2, 6): add4(12 + 4*(w-2), 12 + 4*w)
    add4(12, 28)
    tag4(12)
    e(f"global_store_dwordx4 {vS0}, v[12:15], {sp(sWS)} sc1")
    e("s_mov_b64 exec, -1")
    stamp(7)
    e("s_branch L_fin")

    A.label("L_st2")
    get_tag()
    e(f"v_lshrrev_b32 {vc}, 4, {vLane}"); e(f"v_lshlrev_b32 {vc}, 2, {vc}"); e(f"v_and_b32 {vd}, 3, {vLane}"); e(f"v_add_u32 {vc}, {vc}, {vd}")
    e(f"s_lshl_b32 {sT[0]}, {sW}, 4"); e(f"v_add_u32 {vc}, {sT[0]}, {vc}")
    e(f"v_lshlrev_b32 {vd}, 3, {vc}")
    e(f"global_load_dwordx2 v[28:29], {vd}, {sp(sX)}")
    wfrag(F1, RAW, 8, 0)
    e(f"v_bfe_u32 {vd}, {vLane}, 2, 2"); e(f"v_lshlrev_b32 {vd}, 11, {vd}")
    e(f"v_lshl_add_u32 v36, {vc}, 4, {vd}"); e(f"v_add_u32 v36, {WS_A1}, v36")
    for it in range(1, 4): e(f"v_add_u32 v{36+it}, {8192*it}, v36")
    e(f"s_lshl_b32 {sT[0]}, {sW}, 3"); e(f"s_add_u32 {sT[0]}, {sT[0]}, {L_STAT}"); e(f"v_mov_b32 v40, {sT[0]}")
    e(f"v_bfe_u32 v41, {vLane}, 1, 3"); e("v_lshlrev_b32 v41, 3, v41"); e(f"v_add_u32 v41, {L_STAT}, v41")
    e(f"v_mov_b32 v30, {L_STAT}")
    e(f"s_lshl_b32 {sT[0]}, {sW}, 8"); e(f"s_add_u32 {sT[0]}, {sT[0]}, {L_RED}")
    e(f"v_and_b32 v42, 7, {vLane}"); e("v_lshlrev_b32 v42, 5, v42"); e(f"v_and_b32 {vd}, 8, {vLane}"); e(f"v_lshl_add_u32 v42, {vd}, 1, v42"); e(f"v_add_u32 v42, {sT[0]}, v42")
    e(f"v_bfe_u32 v43, {vLane}, 1, 3"); e("v_lshlrev_b32 v43, 8, v43")
    e(f"v_lshrrev_b32 {vd}, 4, {vLane}"); e(f"v_lshl_add_u32 v43, {vd}, 5, v43")
    e(f"v_and_b32 {vd}, 1, {vLane}"); e(f"v_lshl_add_u32 v43, {vd}, 4, v43"); e(f"v_add_u32 v43, {L_RED}, v43")
    e(f"s_lshl_b32 {sT[0]}, {sIdx}, 11"); e(f"s_and_b32 {sT[1]}, {sW}, 3"); e(f"s_lshl_b32 {sT[1]}, {sT[1]}, 9"); e(f"s_add_u32 {sT[0]}, {sT[0]}, {sT[1]}"); e(f"s_add_u32 {sT[0]}, {sT[0]}, {WS_D2}")
    e(f"v_and_b32 {vS0}, 15, {vLane}"); e(f"v_lshlrev_b32 {vS0}, 5, {vS0}"); e(f"v_and_b32 {vd}, 16, {vLane}"); e(f"v_add3_u32 {vS0}, {vS0}, {vd}, {sT[0]}")
    e("s_waitcnt vmcnt(0)")
    e("v_lshlrev_b32 v32, 16, v28"); e("v_and_b32 v33, 0xffff0000, v28"); e("v_lshlrev_b32 v34, 16, v29"); e("v_and_b32 v35, 0xffff0000, v29")
    svc_join("L_j2")
    def gu_fold():
        for k in range(4):
            e(f"v_add_f32_dpp v{12+k}, v{DD+4*k+2}, v{DD+4*k} row_ror:8 row_mask:0xf bank_mask:0x3")
        for k in range(4):
            e(f"v_add_f32_dpp v{12+k}, v{DD+4*(k+4)}, v{DD+4*(k+4)+2} row_ror:8 row_mask:0xf bank_mask:0xc")
    for k in range(4): e(f"v_mov_b32 v{52+k}, 0x3f803f80")
    for ee in range(8): e(f"v_mfma_f32_16x16x32_bf16 {vr(DD+4*ee)}, v[52:55], {vr(F1+4*ee)}, 0")
    gu_fold()
    e("s_mov_b64 exec, 0xffff"); e("ds_write_b128 v42, v[12:15] offset:2048"); e("s_mov_b64 exec, -1")
    e("s_waitcnt lgkmcnt(0)")
    e("s_barrier")
    CS = 64
    e(f"ds_read_b128 {vr(CS)}, v43 offset:2048"); e(f"ds_read_b128 {vr(CS+4)}, v43 offset:{2048+128}")
    e("s_waitcnt lgkmcnt(0)")
    for s in (8, 4, 2):
        for r in range(8): e(f"v_add_f32_dpp v{CS+r}, v{CS+r}, v{CS+r} row_ror:{s} {DPPF}")
    poll("L_poll2", [f"global_load_dwordx4 {vr(G+4*it)}, v{36+it}, {sp(sWS)} sc1" for it in range(4)], range(12, 28))
    stamp(6)
    add4(12, 16); add4(20, 24); add4(12, 20)
    for s in (8, 4):
        for r in range(4): e(f"v_add_f32_dpp v{12+r}, v{12+r}, v{12+r} row_ror:{s} {DPPF}")
    def rnd4(b, t):
        e(f"v_cvt_pk_bf16_f32 v{t}, v{b}, v{b+1}"); e(f"v_cvt_pk_bf16_f32 v{t+1}, v{b+2}, v{b+3}")
        e(f"v_lshlrev_b32 v{b}, 16, v{t}"); e(f"v_and_b32 v{b+1}, 0xffff0000, v{t}")
        e(f"v_lshlrev_b32 v{b+2}, 16, v{t+1}"); e(f"v_and_b32 v{b+3}, 0xffff0000, v{t+1}")
    rnd4(12, 16)
    add4(12, 32)
    e("v_cvt_pk_bf16_f32 v52, v12, v13"); e("v_cvt_pk_bf16_f32 v53, v14, v15")
    e("v_lshlrev_b32 v16, 16, v52"); e("v_and_b32 v17, 0xffff0000, v52")
    e(f"v_mov_b32_dpp v54, v52 quad_perm:[1,0,3,2] {DPPF}"); e(f"v_mov_b32_dpp v55, v53 quad_perm:[1,0,3,2] {DPPF}")
    e(f"v_readfirstlane_b32 {sT[2]}, v16")
    e("v_lshlrev_b32 v18, 16, v53"); e("v_and_b32 v19, 0xffff0000, v53")
    st = [f"v_subrev_f32 v{16+r}, {sT[2]}, v{16+r}" for r in range(4)]
    st += ["v_add_f32 v20, v16, v17", "v_mul_f32 v21, v16, v16", "v_add_f32 v22, v18, v19", "v_fmac_f32 v21, v17, v17",
           "v_add_f32 v20, v20, v22", "v_fmac_f32 v21, v18, v18", "v_fmac_f32 v21, v19, v19"]
    for qp in ("[1,0,3,2]", "[2,3,0,1]"):
        st += [f"v_add_f32_dpp v20, v20, v20 quad_perm:{qp} {DPPF}", f"v_add_f32_dpp v21, v21, v21 quad_perm:{qp} {DPPF}"]
    st += ["v_permlane32_swap_b32 v20, v21", "v_add_f32 v20, v20, v21", "v_mov_b32 v21, v20", "v_permlane16_swap_b32 v21, v20", "v_add_f32 v20, v20, v21",
           f"v_readlane_b32 {sT[3]}, v20, 32", "v_mul_f32 v21, 0x3c800000, v20", f"v_add_f32 v22, {sT[2]}, v21", f"v_fma_f32 v23, -v21, v20, {sT[3]}"]
    cuts = [0, 3, 6, 9, 12, 13, 15, 18, len(st)]
    for ee in range(8):
        e(f"v_mfma_f32_16x16x32_bf16 {vr(DD+4*ee)}, v[52:55], {vr(F1+4*ee)}, 0")
        for x in st[cuts[ee]:cuts[ee+1]]: e(x)
    gu_fold()
    e("s_mov_b64 exec, 0xffff")
    e("ds_write_b64 v40, v[22:23]")
    e("ds_write_b128 v42, v[12:15]")
    e("s_mov_b64 exec, -1")
    e("s_waitcnt lgkmcnt(0)")
    e("s_barrier")
    e(f"s_cmp_lt_u32 {sW}, 4"); e("s_cbranch_scc1 L_fin")
    e("ds_read_b64 v[20:21], v41"); e("ds_read_b32 v22, v30")
    e("ds_read_b128 v[12:15], v43"); e("ds_read_b128 v[16:19], v43 offset:128")
    e("s_waitcnt lgkmcnt(2)")
    e("v_sub_f32 v20, v20, v22"); e("v_mul_f32 v23, 0x42800000, v20"); e("v_fmac_f32 v21, v23, v20")
    lnf = ["v_mul_f32 v23, 0x41000000, v20", "v_fma_f32 v21, -v23, v20, v21", "v_fmac_f32 v22, 0x3e000000, v20", "v_mul_f32 v21, 0x3b000000, v21",
           "v_cvt_pk_bf16_f32 v23, v22, v21", "v_lshlrev_b32 v22, 16, v23", "v_and_b32 v21, 0xffff0000, v23", "v_add_f32 v21, 0x3727c5ac, v21",
           "v_cvt_pk_bf16_f32 v23, v21, v21", "v_lshlrev_b32 v21, 16, v23", "v_sqrt_f32 v21, v21", "v_cvt_pk_bf16_f32 v23, v21, v21",
           "v_lshlrev_b32 v21, 16, v23", "v_rcp_f32 v21, v21"]
    for s in (8, 4, 2):
        e(f"v_add_f32_dpp v20, v20, v20 row_ror:{s} {DPPF}"); e(f"v_add_f32_dpp v21, v21, v21 row_ror:{s} {DPPF}")
        if s == 8: e("s_waitcnt lgkmcnt(0)")
        if s != 2:
            for r in range(4 if s == 8 else 0, 8 if s == 8 else 4): e(f"v_add_f32_dpp v{12+r}, v{12+r}, v{12+r} row_ror:8 {DPPF}")
    k = 0
    for s in (4, 2):
        for r in range(8):
            e(f"v_add_f32_dpp v{12+r}, v{12+r}, v{12+r} row_ror:{s} {DPPF}")
            if k < len(lnf): e(lnf[k]); k += 1
    for r in range(8): e(f"v_fma_f32 v{12+r}, -v22, v{CS+r}, v{12+r}")
    for r in range(8): e(f"v_mul_f32 v{12+r}, v21, v{12+r}")
    rnd4(12, 24); rnd4(16, 26)
    e("v_pk_mul_f32 v[12:13], v[12:13], v[16:17]"); e("v_pk_mul_f32 v[14:15], v[14:15], v[18:19]")
    e("v_cvt_pk_bf16_f32 v52, v12, v13"); e("v_cvt_pk_bf16_f32 v53, v14, v15")
    e(f"v_mov_b32_dpp v54, v52 quad_perm:[1,0,3,2] {DPPF}"); e(f"v_mov_b32_dpp v55, v53 quad_perm:[1,0,3,2] {DPPF}")
    for ee in range(8): e(f"v_mfma_f32_16x16x32_bf16 {vr(DD+4*ee)}, v[52:55], {vr(F2+4*ee)}, 0")
    for k in range(4): e(f"v_and_or_b32 v{12+k}, v{DD+4*k}, {vMask}, {sTB[k]}")
    e("s_mov_b32 exec_lo, 0xffff0000"); e("s_mov_b32 exec_hi, 0")
    for k in range(4): e(f"v_and_or_b32 v{12+k}, v{DD+4*(k+4)}, {vMask}, {sTB[k]}")
    e("s_mov_b32 exec_lo, -1")
    e(f"global_store_dwordx4 {vS0}, v[12:15], {sp(sWS)} sc1")
    e("s_mov_b64 exec, -1")
    stamp(7)
    e("s_branch L_fin")
    def ln_finish(vm, vv, t):
        e(f"v_cvt_pk_bf16_f32 {t}, {vm}, {vv}")
        e(f"v_lshlrev_b32 {vm}, 16, {t}"); e(f"v_and_b32 {vv}, 0xffff0000, {t}")
        e(f"v_add_f32 {vv}, 0x3727c5ac, {vv}")
        e(f"v_cvt_pk_bf16_f32 {t}, {vv}, {vv}"); e(f"v_lshlrev_b32 {vv}, 16, {t}")
        e(f"v_sqrt_f32 {vv}, {vv}")
        e(f"v_cvt_pk_bf16_f32 {t}, {vv}, {vv}"); e(f"v_lshlrev_b32 {vv}, 16, {t}")
        e(f"v_rcp_f32 {vv}, {vv}")

    A.label("L_st3")
    get_tag()
    e(f"v_and_b32 {vc}, 7, {vLane}"); e(f"v_lshlrev_b32 {vd}, 2, {vc}"); e(f"v_lshrrev_b32 {vf}, 4, {vLane}"); e(f"v_add_u32 {vd}, {vd}, {vf}")
    e(f"s_lshl_b32 {sT[0]}, {sIdx}, 5"); e(f"v_add_u32 {vd}, {sT[0]}, {vd}"); e(f"v_lshlrev_b32 {vS0}, 1, {vd}")
    e(f"global_load_ushort v60, {vS0}, {sp(sX)}")
    e(f"v_lshrrev_b32 {vd}, 3, {vLane}"); e(f"v_lshlrev_b32 {vd}, 11, {vd}"); e(f"v_lshl_add_u32 {vd}, {vc}, 4, {vd}")
    e(f"s_lshl_b32 {sT[0]}, {sIdx}, 7"); e(f"v_add_u32 {vd}, {sT[0]}, {vd}")
    e(f"v_add_u32 v44, {WS_A1}, {vd}"); e(f"v_add_u32 v45, {WS_A1 + 16384}, {vd}")
    for it in range(7): e(f"v_add_u32 v{46+it}, {WS_D2 + 16384*it}, {vd}")
    e("s_barrier")
    e(f"v_mov_b32 v61, {sTag}"); e("v_mov_b32 v62, 0")
    def red4(b):
        e(f"v_permlane32_swap_b32 v{b}, v{b+2}"); e(f"v_permlane32_swap_b32 v{b+1}, v{b+3}")
        e(f"v_add_f32 v{b}, v{b}, v{b+2}"); e(f"v_add_f32 v{b+1}, v{b+1}, v{b+3}")
        e(f"v_permlane16_swap_b32 v{b}, v{b+1}"); e(f"v_add_f32 v{b}, v{b}, v{b+1}")
        e(f"v_add_f32_dpp v{b}, v{b}, v{b} row_ror:8 {DPPF}")
    poll("L_poll3a", [f"global_load_dwordx4 {vr(12+4*it)}, v{44+it}, {sp(sWS)} sc1" for it in range(2)], range(12, 20))
    add4(12, 16)
    red4(12)
    e("v_cvt_pk_bf16_f32 v12, v12, v12"); e("v_lshlrev_b32 v12, 16, v12"); e("v_lshlrev_b32 v60, 16, v60")
    e("v_add_f32 v60, v60, v12"); e("v_cvt_pk_bf16_f32 v60, v60, v60"); e("v_lshlrev_b32 v60, 16, v60")
    stamp(6)
    poll("L_poll3b", [f"global_load_dwordx4 {vr(12+4*it)}, v{46+it}, {sp(sWS)} sc1" for it in range(7)], range(12, 40))
    for a, b in ((12, 16), (20, 24), (28, 32), (12, 20), (28, 36), (12, 28)): add4(a, b)
    red4(12)
    e("v_cvt_pk_bf16_f32 v12, v12, v12"); e("v_lshlrev_b32 v12, 16, v12")
    e("v_add_f32 v12, v60, v12"); e("v_cvt_pk_bf16_f32 v12, v12, v12")
    e("s_mov_b32 exec_lo, 0x00ff00ff"); e("s_mov_b32 exec_hi, 0x00ff00ff")
    e(f"global_store_short {vS0}, v12, {sp(sOUT)}")
    e(f"s_cmp_eq_u32 {sIdx}, 0"); e("s_cbranch_scc0 L_noep")
    e("s_mov_b64 exec, 1")
    e(f"global_store_dword v62, v61, {sp(sWS)}")
    A.label("L_noep")
    e("s_mov_b64 exec, -1")
    stamp(7)

    A.label("L_fin")
    if debug:
        e("s_waitcnt vmcnt(0) lgkmcnt(0)")
        e("s_memrealtime s[96:97]"); e("s_memtime s[6:7]")
        e("s_waitcnt lgkmcnt(0)")
        e("s_sub_u32 s6, s6, s100"); e("v_mov_b32 v18, s6")
        e(f"s_lshl_b32 {sT[0]}, s2, 3"); e(f"s_add_u32 {sT[0]}, {sT[0]}, {sW}"); e(f"s_lshl_b32 {sT[0]}, {sT[0]}, 6"); e(f"s_add_u32 {sT[0]}, {sT[0]}, {WS_STAMP}")
        e(f"v_mov_b32 v20, {sT[0]}")
        for i in range(9): e(f"v_mov_b32 v{4+i}, s{80+2*i}")
        e("s_getreg_b32 s52, hwreg(HW_REG_XCC_ID)"); e("v_mov_b32 v13, s52"); e("v_mov_b32 v14, s70"); e("v_mov_b32 v15, s72"); e("v_mov_b32 v16, s74"); e("v_mov_b32 v17, s98"); e("v_mov_b32 v19, s73")
        e("s_mov_b64 exec, 1")
        for i in range(4): e(f"global_store_dwordx4 v20, v[{4+4*i}:{7+4*i}], {sp(sWS)} offset:{16*i}")
    A.label("L_end")
    e("s_endpgm")

    A.label("L_publish")
    e(f"v_and_b32 {va}, 3, {vLane}"); e(f"v_lshlrev_b32 {va}, 3, {va}"); e(f"v_add_u32 {va}, {L_MS}, {va}")
    for w in range(4): e(f"ds_read_b32 v{56+2*w}, {va} offset:{32*w}")
    e(f"ds_read_b64 v[64:65], {va} offset:{L_GS - L_MS}")
    e(f"s_and_b32 {sT[0]}, {sW}, 1"); e(f"s_lshl_b32 {sT[0]}, {sT[0]}, 10")
    e(f"s_lshl_b32 {sT[1]}, s2, 11"); e(f"s_add_u32 {sT[1]}, {sT[1]}, {WS_PART}"); e(f"s_add_u32 {sT[1]}, {sT[1]}, {sT[0]}")
    e(f"s_add_u32 {sT[0]}, {sT[0]}, {L_ACC}")
    e("s_waitcnt lgkmcnt(0)")
    for w in range(4): e(f"v_sub_f32 v{56+2*w}, v{56+2*w}, v64")
    for w in range(4): e(f"v_exp_f32 v{56+2*w}, v{56+2*w}")
    for w in range(4): e(f"v_mul_f32 v{56+2*w}, v{56+2*w}, v65")
    for w in range(4): e(f"v_mov_b32 v{57+2*w}, v{56+2*w}")
    e(f"v_add_u32 {va}, {sT[0]}, {vVo}"); e(f"v_add_u32 {vb}, {sT[1]}, {vVo}")
    e("s_barrier")
    stamp(4)
    e(f"s_cmp_gt_u32 {sW}, 5"); e("s_cbranch_scc1 L_pubret")
    for w in range(4): e(f"ds_read_b128 {vr(12+4*w)}, {va} offset:{2048*w}")
    for w in range(4):
        e(f"s_waitcnt lgkmcnt({3-w})")
        for r in (0, 2):
            if w == 0: e(f"v_pk_mul_f32 v[{12+r}:{13+r}], v[{12+r}:{13+r}], v[56:57]")
            else: e(f"v_pk_fma_f32 v[{12+r}:{13+r}], v[{12+4*w+r}:{13+4*w+r}], v[{56+2*w}:{57+2*w}], v[{12+r}:{13+r}]")
    tag4(12)
    e(f"global_store_dwordx4 {vb}, v[12:15], {sp(sWS)} sc1")
    stamp(5)
    e("s_nop 1")
    A.label("L_pubret")
    e("s_setpc_b64 s[66:67]")
    A.fence()

    def tag_from(v):
        e(f"v_readfirstlane_b32 {sTag}, {v}")
        e(f"s_add_u32 {sTag}, {sTag}, 0x01010101")
        for k in range(4): e(f"s_bfe_u32 {sTB[k]}, {sTag}, {(8 << 16) | (8 * k):#x}")
    A.label("L_service")
    NP = opts.get("np", 2); C0 = 32 - 8 * NP
    e("v_mov_b32 v8, 0"); e("v_mov_b32 v9, 0"); e("v_mov_b32 v10, 0"); e("v_mov_b32 v11, 0")
    e(f"v_mov_b32 v64, {L_FLAG}")
    e(f"s_cmp_eq_u32 {sW}, 4"); e("s_cbranch_scc0 L_sv1")
    e("ds_write_b128 v64, v[8:11]"); e("ds_write_b128 v64, v[8:11] offset:16"); e("ds_write_b128 v64, v[8:11] offset:32")
    A.label("L_sv1")
    e(f"s_cmp_ge_u32 {sC}, {C0}"); e("s_cbranch_scc1 L_qprod")
    e("s_waitcnt lgkmcnt(0)")
    e(f"s_cmp_eq_u32 {sW}, 4"); e("s_cbranch_scc0 L_sv2")
    e(f"global_load_dword v10, v9, {sp(sWS)} sc1")
    e("s_barrier")
    e("s_waitcnt vmcnt(0)")
    tag_from("v10")
    e("s_branch L_qget")
    A.label("L_sv2")
    e("s_barrier")
    DW = opts.get("dmawin", 1)
    def thr(): e(f"s_waitcnt vmcnt({DW-1})")
    A.label("L_sv4")
    if opts.get("dmaq", True): lds_wait("L_dq", 0, 1, va, vb, sleep=8)
    A.label("L_down")
    e(f"s_cmp_eq_u32 {sRole}, 2"); e("s_cbranch_scc0 L_nodown")
    e(f"v_lshrrev_b32 v9, 4, {vLane}"); e("v_lshlrev_b32 v9, 13, v9")
    e(f"v_and_b32 v7, 15, {vLane}"); e("v_lshl_add_u32 v9, v7, 4, v9")
    e(f"s_lshl_b32 {sT[2]}, {sIdx}, 15"); e(f"s_and_b32 {sT[3]}, {sW}, 3"); e(f"s_lshl_b32 {sT[3]}, {sT[3]}, 8"); e(f"s_add_u32 {sT[2]}, {sT[2]}, {sT[3]}")
    e(f"s_add_u32 {sT[2]}, {sT[2]}, 4096"); e(f"v_add_u32 v9, {sT[2]}, v9")
    for ep in range(8):
        e(f"global_load_dwordx4 {vr(RAW+4*ep)}, v9, {sp(sWD)} offset:{1024*ep - 4096} nt")
        e(f"s_waitcnt vmcnt({1 if ep < 7 else 0})")
    wperm(F2, RAW, 8)
    A.label("L_nodown")
    e(f"s_cmp_eq_u32 {sW}, 4"); e("s_cbranch_scc1 L_stats")
    ND = opts.get("ndma", 3)
    if ND == 2: e(f"s_cmp_eq_u32 {sW}, 5"); e("s_cbranch_scc1 L_wdone")
    e(f"s_sub_u32 {sWW}, {sW}, {8 - ND}")
    if opts.get("nodma"): e("s_branch L_wdone")
    e(f"s_cmp_eq_u32 {sRole}, 1"); e("s_cbranch_scc0 L_now1")
    e(f"s_mov_b32 s40, s{sWO}"); e(f"s_mov_b32 s41, s{sWO+1}"); e(f"s_mov_b32 s42, {4096*1024}"); e("s_mov_b32 s43, 0x20000")
    e(f"v_bfe_u32 v5, {vLane}, 4, 1"); e("v_lshlrev_b32 v5, 18, v5")
    e(f"v_lshrrev_b32 v6, 5, {vLane}"); e("v_lshlrev_b32 v6, 10, v6")
    e(f"v_and_b32 v7, 15, {vLane}"); e("v_lshlrev_b32 v7, 4, v7")
    e("v_add3_u32 v5, v5, v6, v7")
    A.label("L_dma1")
    e(f"s_mul_i32 {sT[1]}, {sWW}, {WPW}")
    e(f"s_lshl_b32 {sT[2]}, {sG}, 9")
    e(f"s_lshr_b32 {sT[3]}, {sWW}, 1"); e(f"s_lshl_b32 {sT[3]}, {sT[3]}, 5"); e(f"s_add_u32 {sT[2]}, {sT[2]}, {sT[3]}")
    e(f"s_and_b32 {sT[3]}, {sIdx}, 4"); e(f"s_add_u32 {sT[2]}, {sT[2]}, {sT[3]}")
    e(f"s_and_b32 {sT[3]}, {sWW}, 1"); e(f"s_lshl_b32 {sT[3]}, {sT[3]}, 1"); e(f"s_add_u32 {sT[2]}, {sT[2]}, {sT[3]}")
    e(f"s_lshl_b32 {sT[2]}, {sT[2]}, 10")
    e(f"s_and_b32 {sT[3]}, {sIdx}, 3"); e(f"s_lshl_b32 {sT[3]}, {sT[3]}, 8"); e(f"s_add_u32 {sT[2]}, {sT[2]}, {sT[3]}")
    for ep in range(8):
        e(f"s_add_u32 {sT[3]}, {sT[2]}, {(128*(ep>>2) + 8*(ep&3))*1024}")
        e(f"s_add_u32 m0, {sT[1]}, {ep*1024}")
        thr()
        e(f"buffer_load_dwordx4 v5, {srdW}, {sT[3]} offen nt lds")
    e(f"s_add_u32 {sWW}, {sWW}, {ND}"); e(f"s_cmp_lt_u32 {sWW}, 8"); e("s_cbranch_scc1 L_dma1")
    e("s_branch L_wdone")
    A.label("L_now1")
    e(f"s_cmp_eq_u32 {sRole}, 2"); e("s_cbranch_scc0 L_wdone")
    e(f"v_lshrrev_b32 v5, 4, {vLane}"); e("v_lshlrev_b32 v5, 4, v5")
    e(f"v_and_b32 v6, 8, {vLane}"); e("v_add_u32 v5, v5, v6")
    e(f"s_lshl_b32 {sT[2]}, {sWW}, 6"); e(f"v_add_u32 v5, {sT[2]}, v5")
    e("v_mul_u32_u24 v5, 3584, v5")
    e(f"v_and_b32 v6, 3, {vLane}"); e("v_lshlrev_b32 v6, 4, v6")
    e(f"s_lshl_b32 {sT[2]}, {sIdx}, 6"); e(f"v_add3_u32 v5, v5, v6, {sT[2]}")
    e(f"v_and_b32 v6, 4, {vLane}"); e("v_cmp_eq_u32 vcc, 0, v6")
    e(f"v_mov_b32 v6, s{sWU}"); e(f"v_mov_b32 v8, s{sWG}"); e("v_cndmask_b32 v6, v6, v8, vcc")
    e(f"v_mov_b32 v7, s{sWU+1}"); e(f"v_mov_b32 v8, s{sWG+1}"); e("v_cndmask_b32 v7, v7, v8, vcc")
    e("v_add_co_u32 v6, vcc, v6, v5"); e("v_addc_co_u32 v7, vcc, 0, v7, vcc")
    A.label("L_dma2")
    e(f"s_mul_i32 {sT[1]}, {sWW}, {WPW}")
    for ep in range(8):
        e(f"s_add_u32 m0, {sT[1]}, {ep*1024}")
        thr()
        e(f"global_load_lds_dwordx4 v[6:7], off {opts.get('gupol', 'nt')}")
        e(f"v_add_co_u32 v6, vcc, {3584 if ep < 7 else 3584*(64*ND-7)}, v6"); e("v_addc_co_u32 v7, vcc, 0, v7, vcc")
    e(f"s_add_u32 {sWW}, {sWW}, {ND}"); e(f"s_cmp_lt_u32 {sWW}, 8"); e("s_cbranch_scc1 L_dma2")
    A.label("L_wdone")
    e("s_waitcnt vmcnt(0)")
    e(f"v_mov_b32 {va}, {L_FLAG+12}"); e(f"v_mov_b32 {vb}, 1")
    e("s_mov_b64 exec, 1"); e(f"ds_add_u32 {va}, {vb}"); e("s_mov_b64 exec, -1")
    stamp(1)
    A.label("L_svc2")
    lds_wait("L_dw", 12, 3, va, vb, sleep=16)
    lds_wait("L_sq", 8, 1, va, vb, sleep=16)
    e(f"s_cmp_eq_u32 {sRole}, 1"); e("s_cbranch_scc1 L_st1")
    e(f"s_cmp_eq_u32 {sRole}, 2"); e("s_cbranch_scc1 L_st2")
    e(f"s_cmp_eq_u32 {sRole}, 3"); e("s_cbranch_scc0 L_svc3")
    e(f"s_cmp_eq_u32 {sW}, 7"); e("s_cbranch_scc1 L_st3")
    A.label("L_svc3")
    get_tag()
    e("s_call_b64 s[66:67], L_publish")
    e("s_branch L_fin")

    A.label("L_stats")
    lds_wait("L_sw", 4, 4, va, vb, sleep=8)
    e(f"v_and_b32 {vc}, 3, {vLane}"); e(f"v_lshlrev_b32 {va}, 3, {vc}"); e(f"v_add_u32 {va}, {L_MS}, {va}")
    for w in range(4): e(f"ds_read_b64 v[{12+2*w}:{13+2*w}], {va} offset:{32*w}")
    e("s_waitcnt lgkmcnt(0)")
    e("v_max3_f32 v20, v12, v14, v16"); e("v_max_f32 v20, v20, v18")
    for w in range(4): e(f"v_sub_f32 v{12+2*w}, v{12+2*w}, v20")
    for w in range(4): e(f"v_exp_f32 v{12+2*w}, v{12+2*w}")
    e("v_mul_f32 v22, v12, v13")
    for w in range(1, 4): e(f"v_fmac_f32 v22, v{12+2*w}, v{13+2*w}")
    e(f"v_mov_b32 v21, {sTag}"); e(f"v_mov_b32 v23, {sTag}")
    e(f"s_lshl_b32 {sT[0]}, s2, 6"); e(f"s_add_u32 {sT[0]}, {sT[0]}, {WS_ST}"); e(f"v_add_u32 v5, {sT[0]}, {vVo}")
    e("s_mov_b64 exec, 0xf")
    e(f"global_store_dwordx4 v5, v[20:23], {sp(sWS)} sc1")
    e("s_mov_b64 exec, -1")
    e(f"s_lshl_b32 {sT[0]}, {sG}, 11"); e(f"s_add_u32 {sT[0]}, {sT[0]}, {WS_ST}"); e(f"v_add_u32 v5, {sT[0]}, {vVo}")
    A.label("L_spoll")
    timeout()
    e(f"global_load_dwordx4 v[12:15], v5, {sp(sWS)} sc1"); e(f"global_load_dwordx4 v[16:19], v5, {sp(sWS)} offset:1024 sc1")
    e("s_waitcnt vmcnt(0)")
    for r in (13, 15, 17, 19): e(f"v_xor_b32 v{r}, {sTag}, v{r}")
    e("v_or3_b32 v13, v13, v15, v17"); e("v_or_b32 v13, v13, v19")
    e("v_cmp_ne_u32 vcc, 0, v13")
    e("s_cbranch_vccz L_sgot")
    e("s_sleep 8"); e("s_branch L_spoll")
    A.label("L_sgot")
    e(f"v_mov_b32 v24, {L_FLAG}"); e("ds_read_b32 v25, v24 offset:20"); e("s_waitcnt lgkmcnt(0)"); e(f"v_readfirstlane_b32 {sT[1]}, v25")
    e(f"s_lshr_b32 {sT[1]}, {sT[1]}, 1"); e(f"s_add_u32 {sT[1]}, {sT[1]}, {opts.get('prange', (128, 224))[0]}")
    e(f"s_sub_i32 {sT[2]}, {opts.get('cref', 176)}, {sT[1]}")
    if debug: e(f"s_mov_b32 s73, {sT[2]}")
    e(f"s_add_u32 {sT[1]}, {sT[1]}, 8")
    e(f"s_mul_i32 {sT[3]}, {sT[2]}, {opts.get('gh', 7)}"); e(f"s_ashr_i32 {sT[3]}, {sT[3]}, 1"); e(f"s_add_i32 {sT[3]}, {sT[3]}, {sT[1]}"); e(f"v_mov_b32 v26, {sT[3]}")
    e(f"s_mul_i32 {sT[3]}, {sT[2]}, {-opts.get('gl', 4)}"); e(f"s_ashr_i32 {sT[3]}, {sT[3]}, 1"); e(f"s_add_i32 {sT[3]}, {sT[3]}, {sT[1]}"); e(f"v_mov_b32 v27, {sT[3]}")
    if not opts.get("noctl"): e("ds_write_b64 v24, v[26:27] offset:24")
    e("v_max_f32 v20, v12, v16")
    for x in xlane("max", "v20", "v21"): e(x)
    e("v_sub_f32 v12, v12, v20"); e("v_sub_f32 v16, v16, v20"); e("v_exp_f32 v12, v12"); e("v_exp_f32 v16, v16")
    e("v_mul_f32 v21, v12, v14"); e("v_fmac_f32 v21, v16, v18")
    for x in xlane("add", "v21", "v22"): e(x)
    e("v_rcp_f32 v21, v21")
    e(f"v_lshlrev_b32 {va}, 3, {vc}"); e(f"v_add_u32 {va}, {L_GS}, {va}")
    e(f"ds_write_b64 {va}, v[20:21]")
    e(f"v_mov_b32 {va}, {L_FLAG+8}"); e(f"v_mov_b32 {vb}, 1")
    e(f"ds_write_b32 {va}, {vb}")
    if debug: e("s_memrealtime s[98:99]")
    e("s_branch L_svc2")

    A.label("L_qprod")
    e("s_setprio 3")
    WQ = 128; XR = 12; XF = 20; QA = 36; XA = 66
    RW = 512 // NP // 4; NPR = RW // 16
    e(f"s_and_b32 {sT[5]}, {sC}, 7"); e(f"s_lshl_b32 {sQP}, {sG}, 3"); e(f"s_add_u32 {sQP}, {sQP}, {sT[5]}")
    e(f"s_sub_u32 {sT[4]}, {sC}, {C0}"); e(f"s_lshr_b32 {sT[4]}, {sT[4]}, 3")
    e(f"s_lshl_b32 {sT[3]}, {sT[4]}, 2"); e(f"s_add_u32 {sT[3]}, {sT[3]}, {sW}"); e(f"s_sub_u32 {sT[3]}, {sT[3]}, 4"); e(f"s_mul_i32 {sT[3]}, {sT[3]}, {RW}")
    e(f"v_lshrrev_b32 v5, 3, {vLane}"); e("v_lshlrev_b32 v6, 2, v5")
    e(f"s_lshl_b32 {sT[0]}, {sT[3]}, 1"); e(f"v_add_u32 v6, {sT[0]}, v6")
    e("v_lshlrev_b32 v7, 14, v5"); e(f"v_and_b32 v4, 7, {vLane}"); e("v_lshl_add_u32 v7, v4, 4, v7")
    e(f"s_lshl_b32 {sT[0]}, {sT[3]}, 13"); e(f"s_lshl_b32 {sT[1]}, {sQP}, 7"); e(f"s_add_u32 {sT[0]}, {sT[0]}, {sT[1]}"); e(f"v_add_u32 v7, {sT[0]}, v7")
    e("s_waitcnt lgkmcnt(0)")
    e(f"global_load_dwordx4 {vr(XA)}, {vVo}, {sp(sX)}")
    for k in range(NPR): e(f"global_load_dword v{XR+k}, v6, {sp(sX)} offset:{32*k}")
    e(f"global_load_dword v10, v9, {sp(sWS)} sc1")
    for i in range(2 * NPR):
        e(f"global_load_dwordx4 {vr(WQ+4*i)}, v7, {sp(sWQ)} {opts.get('wqpol', 'nt')}")
        if i < 2 * NPR - 1: e(f"v_add_u32 v7, {0x2000 if i % 2 == 0 else 0x1e000}, v7")
    e("s_barrier")
    e(f"s_waitcnt vmcnt({3*NPR + 1})")
    for k in range(4):
        e(f"v_lshlrev_b32 v{44+2*k}, 16, v{XA+k}"); e(f"v_and_b32 v{45+2*k}, 0xffff0000, v{XA+k}")
    def wsum(r, tmp):
        for s in (8, 4, 2, 1): e(f"v_add_f32_dpp {r}, {r}, {r} row_ror:{s} {DPPF}")
        e(f"v_mov_b32 {tmp}, {r}"); e(f"v_permlane16_swap_b32 {tmp}, {r}"); e(f"v_add_f32 {r}, {tmp}, {r}")
        e(f"v_mov_b32 {tmp}, {r}"); e(f"v_permlane32_swap_b32 {tmp}, {r}"); e(f"v_add_f32 {r}, {tmp}, {r}")
    e("v_pk_add_f32 v[52:53], v[44:45], v[46:47]"); e("v_pk_add_f32 v[54:55], v[48:49], v[50:51]"); pk(52, 54)
    e(f"v_add_f32 {va}, v52, v53")
    wsum(va, vb)
    e(f"v_mul_f32 {va}, 0x3b000000, {va}")
    for k in range(8): e(f"v_sub_f32 v{44+k}, v{44+k}, {va}")
    e(f"v_mul_f32 {vc}, v44, v44"); e(f"v_mul_f32 {vd}, v45, v45")
    for k in range(2, 8): e(f"v_fmac_f32 {(vc, vd)[k&1]}, v{44+k}, v{44+k}")
    e(f"v_add_f32 {vc}, {vc}, {vd}")
    wsum(vc, vb)
    e(f"v_mul_f32 {vc}, 0x3b000000, {vc}")
    ln_finish(va, vc, vb)
    e(f"s_waitcnt vmcnt({2*NPR + 1})")
    for k in range(NPR):
        e(f"v_lshlrev_b32 v{XF+2*k}, 16, v{XR+k}"); e(f"v_and_b32 v{XF+2*k+1}, 0xffff0000, v{XR+k}")
    for k in range(2*NPR): e(f"v_sub_f32 v{XF+k}, v{XF+k}, {va}")
    for k in range(NPR): e(f"v_cvt_pk_bf16_f32 v{XR+k}, v{XF+2*k}, v{XF+2*k+1}")
    for k in range(NPR):
        e(f"v_lshlrev_b32 v{XF+2*k}, 16, v{XR+k}"); e(f"v_and_b32 v{XF+2*k+1}, 0xffff0000, v{XR+k}")
    for k in range(2*NPR): e(f"v_mul_f32 v{XF+k}, {vc}, v{XF+k}")
    for k in range(NPR): e(f"v_cvt_pk_bf16_f32 v{XR+k}, v{XF+2*k}, v{XF+2*k+1}")
    for k in range(8): e(f"v_mov_b32 v{QA+k}, 0")
    e(f"v_lshrrev_b32 v5, 4, {vLane}"); e("v_lshlrev_b32 v5, 3, v5"); e("v_lshl_add_u32 v5, v4, 5, v5")
    e(f"s_lshl_b32 {sT[0]}, {sW}, 8"); e(f"s_add_u32 {sT[0]}, {sT[0]}, {L_QP - 1024}"); e(f"v_add_u32 v5, {sT[0]}, v5")
    for p in range(NPR):
        e(f"s_waitcnt vmcnt({2*NPR - 2 - 2*p})")
        for ee in range(8):
            e(f"v_perm_b32 v{44+ee}, v{WQ+4*(2*p+1)+(ee>>1)}, v{WQ+4*(2*p)+(ee>>1)}, {sSelHi if ee & 1 else sSelLo}")
        for ee in range(8): e(f"v_dot2c_f32_bf16 v{QA+ee}, v{44+ee}, v{XR+p}")
    if debug: e("s_memrealtime s[70:71]")
    for o in (0, 1):
        e(f"v_permlane32_swap_b32 v{QA+o}, v{QA+4+o}"); e(f"v_permlane32_swap_b32 v{QA+2+o}, v{QA+6+o}")
    for o in (0, 1):
        e(f"v_add_f32 v{QA+o}, v{QA+o}, v{QA+4+o}"); e(f"v_add_f32 v{QA+2+o}, v{QA+2+o}, v{QA+6+o}")
    for o in (0, 1): e(f"v_permlane16_swap_b32 v{QA+o}, v{QA+2+o}")
    for o in (0, 1): e(f"v_add_f32 v{QA+o}, v{QA+o}, v{QA+2+o}")
    for o in (0, 1): e(f"v_add_f32_dpp v{QA+o}, v{QA+o}, v{QA+o} row_ror:8 {DPPF}")
    e(f"ds_write_b64 v5, v[{QA}:{QA+1}]")
    e("v_mov_b32 v44, 1")
    e("s_mov_b64 exec, 1"); e("ds_add_u32 v64, v44 offset:32"); e("s_mov_b64 exec, -1")
    e(f"s_cmp_eq_u32 {sW}, 4"); e("s_cbranch_scc1 L_qp4")
    e("s_setprio 0")
    e("s_branch L_sv4")
    A.label("L_qp4")
    tag_from("v10")
    if NP == 1:
        e(f"s_lshl_b32 {sT[1]}, {sQP}, 8"); e(f"s_add_u32 {sT[1]}, {sT[1]}, {WS_Q}"); e(f"v_add_u32 v6, {sT[1]}, {vVo}")
        e(f"v_add_u32 v5, {L_QP}, {vVo}")
        lds_wait("L_qpw", 32, 4, va, vb, sleep=0)
        e("s_mov_b64 exec, 0xffff")
        for v in range(4): e(f"ds_read_b128 {vr(44+4*v)}, v5 offset:{256*v}")
        e("s_waitcnt lgkmcnt(0)")
        add4(44, 48); add4(52, 56); add4(44, 52)
        e("v_cvt_pk_bf16_f32 v44, v44, v45"); e("v_cvt_pk_bf16_f32 v46, v46, v47")
    else:
        e(f"s_mul_i32 {sT[1]}, {sG}, {NP}"); e(f"s_add_u32 {sT[1]}, {sT[1]}, {sT[4]}"); e(f"s_lshl_b32 {sT[1]}, {sT[1]}, 3"); e(f"s_add_u32 {sT[1]}, {sT[1]}, {sT[5]}")
        e(f"s_lshl_b32 {sT[1]}, {sT[1]}, 9"); e(f"s_add_u32 {sT[1]}, {sT[1]}, {WS_Q}"); e(f"v_add_u32 v6, {sT[1]}, {vVo}")
        e(f"v_lshlrev_b32 v5, 3, {vLane}"); e(f"v_add_u32 v5, {L_QP}, v5")
        lds_wait("L_qpw", 32, 4, va, vb, sleep=0)
        e("s_mov_b32 exec_hi, 0")
        for v in range(4): e(f"ds_read_b64 v[{48+2*v}:{49+2*v}], v5 offset:{256*v}")
        e("s_waitcnt lgkmcnt(0)")
        pk(48, 50); pk(52, 54)
        e("v_add_f32 v44, v48, v52"); e("v_add_f32 v46, v49, v53")
    e(f"v_mov_b32 v45, {sTag}"); e(f"v_mov_b32 v47, {sTag}")
    e(f"global_store_dwordx4 v6, v[44:47], {sp(sWS)} sc1")
    e("s_mov_b64 exec, -1")
    e("s_setprio 0")
    A.label("L_qget")
    NLD = 2 if NP == 1 else 4 * NP
    e(f"s_mul_i32 {sT[0]}, {sG}, {NLD*1024}"); e(f"s_add_u32 {sT[0]}, {sT[0]}, {WS_Q + 4096}")
    e(f"v_add_u32 v5, {sT[0]}, {vVo}"); e("v_add_u32 v7, 0x2000, v5")
    e(f"v_lshlrev_b32 v6, {3 if NP == 1 else 2}, {vLane}"); e(f"v_add_u32 v6, {L_Q}, v6")
    e(f"v_mov_b32 v52, {sTag}"); e("ds_write_b32 v64, v52 offset:16")
    if opts.get("qstart", 14): lds_wait("L_qs", 36, 1, va, vb, sleep=4)
    e(f"s_mov_b32 {sT[5]}, 0")
    A.label("L_qpoll")
    timeout()
    for k in range(NLD):
        e(f"s_bitcmp1_b32 {sT[5]}, {k}"); e(f"s_cbranch_scc1 L_qk{k}")
        e(f"global_load_dwordx4 {vr(128+4*k)}, {'v5' if k < 8 else 'v7'}, {sp(sWS)} offset:{1024*(k&7) - 4096} sc1")
        A.label(f"L_qk{k}")
    e("s_waitcnt vmcnt(0)")
    e(f"s_mov_b32 {sT[5]}, 0")
    for k in range(NLD):
        e(f"v_xor_b32 {va}, {sTag}, v{129+4*k}"); e(f"v_bitop3_b32 {va}, {va}, v{131+4*k}, {sTag} bitop3:0xf6")
        e(f"v_cmp_ne_u32 vcc, 0, {va}"); e("s_cmp_eq_u64 vcc, 0"); e(f"s_cselect_b32 {sT[0]}, {1 << k}, 0"); e(f"s_or_b32 {sT[5]}, {sT[5]}, {sT[0]}")
    e(f"s_cmp_eq_u32 {sT[5]}, {(1 << NLD) - 1}"); e("s_cbranch_scc1 L_qgot")
    e(f"s_sleep {opts.get('qsleep', 8)}"); e("s_branch L_qpoll")
    A.label("L_qgot")
    if NP == 1:
        for h in range(2):
            e(f"v_mov_b32 v{129+4*h}, v{130+4*h}"); e(f"ds_write_b64 v6, v[{128+4*h}:{129+4*h}] offset:{512*h}")
    else:
        for m in range(4):
            for o in (0, 2):
                r = 128 + 4*m + o
                e(f"v_add_f32 v{r}, v{r}, v{r+16}")
                if NP == 4: e(f"v_add_f32 v{r+32}, v{r+32}, v{r+48}"); e(f"v_add_f32 v{r}, v{r}, v{r+32}")
            e(f"v_cvt_pk_bf16_f32 v{128+4*m}, v{128+4*m}, v{130+4*m}")
            e(f"ds_write_b32 v6, v{128+4*m} offset:{256*m}")
    e("v_mov_b32 v48, 1"); e("ds_write_b32 v64, v48")
    if debug: e("s_memrealtime s[72:73]")
    e("s_branch L_down")

    A.raw('.section .rodata,"a"'); A.raw(".p2align 6"); A.raw(f".amdhsa_kernel {NAME}")
    for l in ["next_free_vgpr 256", "next_free_sgpr 102", "accum_offset 256", "group_segment_fixed_size 0", "kernarg_size 96",
              "user_sgpr_count 2", "user_sgpr_kernarg_segment_ptr 1", "system_sgpr_workgroup_id_x 1", "float_denorm_mode_32 3"]:
        A.raw("  .amdhsa_" + l)
    A.raw(".end_amdhsa_kernel")
    return A.text()

if __name__ == "__main__":
    dbg = "--debug" in sys.argv
    sys.stdout.write(gen(debug=dbg))
```

```python
import sys
sys.path.insert(0, "work")
from asmlib import Asm

NAME = "sequential_preLN__gqa_block_cached__glu_gated_bilinear__decode_kernel"

WS_EPOCH = 0
WS_Q = 0xE0000
WS_ST = 0x8000
WS_CK = 0xC000
WS_PART = 0x10000
PREC = 2048
WS_A1 = 0xA0000
WS_D2 = 0xB0000
WS_STAMP = 0x800000
WPW = 8 * 1024
L_Q = 8 * WPW
L_ACC = L_Q + 1024
L_RED = L_ACC + 8192
L_STAT = L_RED + 4096
L_MS = L_STAT + 64
L_GS = L_MS + 128
L_QP = L_RED
L_FLAG = L_GS + 32
L_TOTAL = 98304

KV_BYTES = 128 << 20

def gen(debug=False, opts=None):
    opts = opts or {}
    A = Asm(); e = A
    def stamp(i):
        if debug: e(f"s_memrealtime s[{80+2*i}:{81+2*i}]")
    sX, sK, sV, sWQ, sWO, sWG, sWU, sWD, sOUT, sDBG, sWS = 8, 10, 12, 14, 16, 20, 22, 24, 26, 28, 30
    def sp(n): return f"s[{n}:{n+1}]"
    sW = "s3"; sG = "s4"; sC = "s5"
    srdK = "s[32:35]"; srdV = "s[36:39]"; srdW = "s[40:43]"
    sScale, sL2E, sSelLo, sSelHi = "s44", "s45", "s46", "s47"
    sOff = "s48"; sBase = "s49"; sWW = "s50"
    sT = ["s52", "s53", "s54", "s55", "s56", "s57", "s58", "s59"]
    sTag = "s60"; sRole = "s61"; sIdx = "s62"; sTO = "s64"
    vLane = "v1"; vKo = "v2"; vVo = "v3"
    ACC = 4; BQ = 12; PV_ = 12; SPK = 28; T = 44; M = 76
    vX0, vX1, vY0, vY1, vS0, vS1, vML, vL, va, vb, vc, vd, vMSa, vf = [f"v{M+i}" for i in range(14)]
    vKo2 = "v90"; vVo2 = "v91"; vMask = "v93"
    RING = opts.get("ring", 40); RBASE = 256 - 4 * RING
    assert RBASE >= 96
    W0 = opts.get("win", 5); BUDGET = opts.get("budget", 18)
    WHI = opts.get("whi", 7); WLO = opts.get("wlo", 4)
    FF = opts.get("ff", [0, 0x00000010, 0x00092492, 0])
    ENDS = opts.get("ends", 232)
    CKP = opts.get("ckp", [])
    W = WHI
    sFF = "s51"; sQP = "s63"; sLev = "s65"; sHi = "s66"; sLo = "s67"
    sTB = ["s76", "s77", "s78", "s79"]
    def vr(a, n=4): return f"v[{a}:{a+n-1}]"
    DPPF = "row_mask:0xf bank_mask:0xf"
    def timeout():
        e(f"s_sub_u32 {sTO}, {sTO}, 1"); e("s_cbranch_scc1 L_end")
    def lds_wait(lbl, off, val, vaddr, vtmp, sleep=1):
        e(f"v_mov_b32 {vaddr}, {L_FLAG + off}")
        A.label(lbl)
        e(f"ds_read_b32 {vtmp}, {vaddr}")
        timeout()
        e("s_waitcnt lgkmcnt(0)")
        e(f"v_readfirstlane_b32 {sT[0]}, {vtmp}")
        e(f"s_cmp_ge_u32 {sT[0]}, {val}"); e(f"s_cbranch_scc1 {lbl}_go")
        e(f"s_sleep {sleep}"); e(f"s_branch {lbl}")
        A.label(lbl + "_go")

    A.raw(f"; @launch grid=(256,1,1) block=(512,1,1) lds={L_TOTAL}")
    A.raw('.amdgcn_target "amdgcn-amd-amdhsa--gfx950"')
    A.raw(".text"); A.raw(f".globl {NAME}"); A.raw(".p2align 8"); A.raw(f".type {NAME},@function"); A.label(NAME)
    e("s_cmp_ge_u32 s2, 256"); e("s_cbranch_scc1 L_end")
    e("s_load_dwordx16 s[8:23], s[0:1], 0")
    e("s_load_dwordx8 s[24:31], s[0:1], 64")
    stamp(0)
    if debug: e("s_memtime s[100:101]")
    e(f"v_lshrrev_b32 v2, 6, v0"); e(f"v_and_b32 {vLane}, 63, v0")
    e(f"v_readfirstlane_b32 {sW}, v2")
    e(f"s_lshr_b32 {sG}, s2, 5"); e(f"s_and_b32 {sC}, s2, 31")
    e(f"s_mov_b32 {sSelLo}, 0x05040100"); e(f"s_mov_b32 {sSelHi}, 0x07060302")
    e(f"s_mov_b32 {sTO}, 0x400000")
    e(f"v_lshlrev_b32 {vVo}, 4, {vLane}")
    def roles():
        e(f"s_mov_b32 {sRole}, 0"); e(f"s_mov_b32 {sIdx}, 0")
        e(f"s_lshl_b32 {sT[0]}, {sG}, 1"); e(f"s_add_u32 {sT[0]}, {sT[0]}, {sC}"); e(f"s_sub_u32 {sT[0]}, {sT[0]}, 15")
        e(f"s_cmp_lt_u32 {sC}, 17"); e(f"s_cselect_b32 {sRole}, 3, {sRole}"); e(f"s_cselect_b32 {sIdx}, {sT[0]}, {sIdx}")
        if opts.get("xmap", True):
            e(f"s_lshl_b32 {sT[0]}, {sC}, 3"); e(f"s_add_u32 {sT[0]}, {sT[0]}, {sG}"); e(f"s_sub_u32 {sT[0]}, {sT[0]}, 64")
        else:
            e(f"s_mul_i32 {sT[0]}, {sG}, 7"); e(f"s_add_u32 {sT[0]}, {sT[0]}, {sC}"); e(f"s_sub_u32 {sT[0]}, {sT[0]}, 8")
        e(f"s_cmp_lt_u32 {sC}, 15"); e(f"s_cselect_b32 {sRole}, 2, {sRole}"); e(f"s_cselect_b32 {sIdx}, {sT[0]}, {sIdx}")
        e(f"s_cmp_lt_u32 {sC}, 8"); e(f"s_cselect_b32 {sRole}, 1, {sRole}"); e(f"s_cselect_b32 {sIdx}, {sC}, {sIdx}")
    roles()
    e(f"s_cmp_ge_u32 {sW}, 4"); e("s_cbranch_scc1 L_service")

    e(f"v_lshrrev_b32 v5, 4, {vLane}"); e("v_lshlrev_b32 v5, 6, v5")
    e(f"v_bfe_u32 v6, {vLane}, 2, 2"); e("v_lshlrev_b32 v6, 8, v6")
    e(f"v_and_b32 v7, 3, {vLane}"); e("v_lshlrev_b32 v7, 4, v7")
    e(f"v_add3_u32 {vKo}, v5, v6, v7")
    e(f"v_add_u32 {vKo2}, 0x4000, {vKo}"); e(f"v_add_u32 {vVo2}, 0x4000, {vVo}")
    e(f"s_lshl_b32 {sBase}, s2, 19"); e(f"s_lshl_b32 {sT[0]}, {sW}, 12"); e(f"s_add_u32 {sBase}, {sBase}, {sT[0]}")
    e(f"s_mov_b32 {sOff}, {sBase}")
    e(f"s_mov_b32 s34, {KV_BYTES}"); e("s_mov_b32 s35, 0x20000"); e(f"s_mov_b32 s38, {KV_BYTES}"); e("s_mov_b32 s39, 0x20000")
    e("s_waitcnt lgkmcnt(0)")
    e(f"s_mov_b32 s32, s{sK}"); e(f"s_mov_b32 s33, s{sK+1}"); e(f"s_mov_b32 s36, s{sV}"); e(f"s_mov_b32 s37, s{sV+1}")
    NI = 16; NL = 8 * NI
    def slot(idx): return RBASE + 4 * (idx % RING)
    def issue(s):
        n = s & 7
        if s == NL: e(f"s_mov_b32 {sOff}, {sBase}")
        elif n == 0 and s: e(f"s_add_u32 {sOff}, {sOff}, 0x8000")
        if s < NL: e(f"buffer_load_dwordx4 {vr(slot(s))}, {vKo if n < 4 else vKo2}, {srdK}, {sOff} offen offset:{(n%4)*1024} {opts.get('kvpol', 'nt')}")
        else: e(f"buffer_load_dwordx4 {vr(slot(s))}, {vVo if n < 4 else vVo2}, {srdV}, {sOff} offen offset:{(n%4)*1024} {opts.get('kvpol', 'nt')}")
    tasks = []
    def task(need, frees, ins): tasks.append(dict(need=need, frees=frees, ins=ins))
    def xlane(op, r, tmp):
        return [f"v_{op}_f32_dpp {r}, {r}, {r} row_ror:8 {DPPF}", f"v_{op}_f32_dpp {r}, {r}, {r} row_ror:4 {DPPF}",
                f"v_mov_b32 {tmp}, {r}", f"v_permlane16_swap_b32 {tmp}, {r}", f"v_{op}_f32 {r}, {tmp}, {r}",
                f"v_mov_b32 {tmp}, {r}", f"v_permlane32_swap_b32 {tmp}, {r}", f"v_{op}_f32 {r}, {tmp}, {r}"]
    for i in range(NI):
        for n in range(8):
            task(8*i+n, [8*i+n], [f"v_mfma_f32_16x16x32_bf16 {vr(T+4*n)}, {vr(slot(8*i+n))}, {vr(BQ+4*(n&3))}, 0"])
        for t in range(2):
            ins = []
            for m in range(4):
                X = (vX0, vX1)[t]; Y = (vY0, vY1)[t]; D = T + 4 * (4*t+m)
                ins.append(f"v_add_f32_dpp {Y}, v{D+3}, v{D+1} row_ror:8 row_mask:0xf bank_mask:{1 << ((m+1)&3):#x}")
                ins.append(f"v_add_f32_dpp {X}, v{D+2}, v{D} row_ror:8 row_mask:0xf bank_mask:{1 << m:#x}")
            task(-1, [], ins)
        task(-1, [], [f"v_add_f32_dpp {vX0}, {vY0}, {vX0} row_ror:12 {DPPF}", f"v_add_f32_dpp {vX1}, {vY1}, {vX1} row_ror:12 {DPPF}",
                      f"v_cvt_pk_bf16_f32 {vY0}, {vX0}, {vX1}",
                      f"v_lshlrev_b32 {vX0}, 16, {vY0}", f"v_and_b32 {vX1}, 0xffff0000, {vY0}",
                      f"v_mul_f32 {vX0}, {sScale}, {vX0}", f"v_mul_f32 {vX1}, {sScale}, {vX1}",
                      f"v_cvt_pk_bf16_f32 v{SPK+i}, {vX0}, {vX1}",
                      f"v_lshlrev_b32 {vX0}, 16, v{SPK+i}", f"v_and_b32 {vX1}, 0xffff0000, v{SPK+i}",
                      (f"v_max_f32 {vML}, {vX0}, {vX1}" if i == 0 else f"v_max3_f32 {vML}, {vML}, {vX0}, {vX1}")])
    task(-1, [], xlane("max", vML, vb) + [f"v_mul_f32 {vML}, {sL2E}, {vML}"])
    task(-1, [], [f"v_mov_b32 v{PV_+k}, 0" for k in range(16)])
    for i in range(0, NI, 2):
        ins = []
        tmp = [(vX0, vX1), (vY0, vY1)]
        for k in range(2):
            a, b = tmp[k]; ins += [f"v_lshlrev_b32 {a}, 16, v{SPK+i+k}", f"v_and_b32 {b}, 0xffff0000, v{SPK+i+k}"]
        for k in range(2):
            a, b = tmp[k]; ins += [f"v_fma_f32 {a}, {a}, {sL2E}, -{vML}", f"v_fma_f32 {b}, {b}, {sL2E}, -{vML}"]
        for k in range(2):
            a, b = tmp[k]; ins += [f"v_exp_f32 {a}, {a}", f"v_exp_f32 {b}, {b}"]
        ins += [f"v_add_f32 {va}, {vX0}, {vX1}", f"v_cvt_pk_bf16_f32 v{SPK+i}, {vX0}, {vX1}", f"v_add_f32 {vb}, {vY0}, {vY1}", f"v_cvt_pk_bf16_f32 v{SPK+i+1}, {vY0}, {vY1}"]
        ins += [f"v_add_f32 {vL}, {va}, {vb}"] if i == 0 else [f"v_add_f32 {va}, {va}, {vb}", f"v_add_f32 {vL}, {vL}, {va}"]
        task(-1, [], ins)
    task(-1, [], xlane("add", vL, vb) + [f"ds_write_b64 {vMSa}, v[{M+6}:{M+7}]", f"v_mov_b32 {va}, {L_FLAG+4}", f"v_mov_b32 {vb}, 1",
                                         "s_mov_b64 exec, 1", f"ds_add_u32 {va}, {vb}", "s_mov_b64 exec, -1"])
    order = [0, 4, 1, 5, 2, 6, 3, 7]
    for i in range(NI):
        L0 = NL + 8 * i
        def perm(ee, k):
            rho = ee & 3; t = k >> 1
            n0 = 4 * t + ((rho + 2 * (k & 1)) & 3); n1 = 4 * t + ((rho + 2 * (k & 1) + 1) & 3)
            return f"v_perm_b32 v{T+4*ee+k}, v{slot(L0+n1)+(ee>>1)}, v{slot(L0+n0)+(ee>>1)}, {sSelHi if ee & 1 else sSelLo}"
        def mf(ee):
            ac = vr(ACC + 4 * (ee >> 2))
            return f"v_mfma_f32_16x16x32_bf16 {ac}, {vr(T+4*ee)}, {vr(PV_+4*(ee&3))}, {ac if (i or (ee & 3)) else 0}"
        ins = [f"v_mov_b32_dpp {vY0}, v{SPK+i} row_ror:12 {DPPF}",
               f"v_perm_b32 {vX0}, {vY0}, v{SPK+i}, {sSelLo}", f"v_perm_b32 {vX1}, {vY0}, v{SPK+i}, {sSelHi}"]
        for rho in range(4):
            bm = f"row_mask:0xf bank_mask:{1 << rho:#x}"
            ins += [f"v_mov_b32_dpp v{PV_+4*rho+0}, {vX0} quad_perm:[0,1,2,3] {bm}", f"v_mov_b32_dpp v{PV_+4*rho+1}, {vX0} row_ror:8 {bm}",
                    f"v_mov_b32_dpp v{PV_+4*rho+2}, {vX1} quad_perm:[0,1,2,3] {bm}", f"v_mov_b32_dpp v{PV_+4*rho+3}, {vX1} row_ror:8 {bm}"]
        task(-1, [], ins[:11]); task(-1, [], ins[11:])
        task(L0+3, [], [perm(ee, k) for ee in range(4) for k in range(2)])
        task(L0+3, [L0, L0+1, L0+2, L0+3], [perm(ee, k) for ee in range(4, 8) for k in range(2)])
        ins = []
        for idx, ee in enumerate(order):
            ins += [perm(ee, 2), perm(ee, 3)]
            if idx >= 1: ins.append(mf(order[idx - 1]))
        ins.append(mf(order[7]))
        task(L0+7, [], ins[:11]); task(L0+7, [L0+4, L0+5, L0+6, L0+7], ins[11:])

    def setup_misc():
        e(f"s_mov_b32 {sScale}, 0x3db504f3")
        e(f"s_mov_b32 {sL2E}, 0x3fb8aa3b")
        e(f"v_and_b32 {vMSa}, 3, {vLane}"); e(f"v_lshlrev_b32 {vMSa}, 3, {vMSa}")
        e(f"s_lshl_b32 {sT[0]}, {sW}, 5"); e(f"s_add_u32 {sT[0]}, {sT[0]}, {L_MS}"); e(f"v_add_u32 {vMSa}, {sT[0]}, {vMSa}")
        e(f"v_and_b32 {va}, 3, {vLane}"); e(f"v_lshlrev_b32 {va}, 8, {va}")
        e(f"v_lshrrev_b32 {vb}, 4, {vLane}"); e(f"v_lshlrev_b32 {vb}, 6, {vb}")
        e(f"s_mov_b32 {sT[0]}, {L_Q}")
        e(f"v_add3_u32 {va}, {va}, {vb}, {sT[0]}")
        e(f"v_bfe_u32 {vb}, {vLane}, 2, 2")
        for m in range(4):
            e(f"v_subrev_u32 {vc}, {m}, {vb}"); e(f"v_and_b32 {vc}, 3, {vc}")
            e(f"v_lshl_add_u32 v{T+m}, {vc}, 4, {va}")
        e(f"s_lshl_b32 {sT[0]}, {sW}, 11"); e(f"s_add_u32 {sT[0]}, {sT[0]}, {L_ACC}")
        e(f"v_add_u32 v92, {sT[0]}, {vVo}")
        e(f"s_mov_b32 {sFF}, {FF[0]}")
        for r in (1, 2, 3): e(f"s_cmp_eq_u32 {sRole}, {r}"); e(f"s_cselect_b32 {sFF}, {FF[r]}, {sFF}")
        e(f"s_cmp_ge_u32 {sC}, {32 - 8 * opts.get('np', 2)}"); e(f"s_cselect_b32 {sT[0]}, {opts.get('ffq', 0x48)}, 0"); e(f"s_or_b32 {sFF}, {sFF}, {sT[0]}")
        e(f"v_mov_b32 v94, {L_FLAG}"); e(f"v_cmp_eq_u32 vcc, 0, {vLane}"); e("v_cndmask_b32 v95, 0, 1, vcc"); e(f"v_mov_b32 {vS0}, 0"); e(f"v_mov_b32 {vS1}, 0")
    def emit_task(t):
        for x in t["ins"]:
            if opts.get("nocomp") and (x.startswith("v_perm") or x.startswith("v_mfma") or "_dpp" in x): continue
            e(x)
        return len(t["ins"])
    ti = 0; freed = set()
    for s in range(2 * NL):
        if s == W0:
            e("s_barrier")
            setup_misc()
        if s == RING:
            stamp(1)
            lds_wait("L_qw", 0, 1, va, vb)
            for m in range(4): e(f"ds_read_b128 {vr(BQ+4*m)}, v{T+m}")
            stamp(2)
            e("s_waitcnt lgkmcnt(0)")
        if s >= RING:
            while (s - RING) not in freed:
                assert tasks[ti]["need"] <= s - 1 - W
                emit_task(tasks[ti]); freed.update(tasks[ti]["frees"]); ti += 1
        if s >= ENDS: e(f"s_waitcnt vmcnt({WHI-1})")
        elif s >= 8:
            e(f"s_waitcnt vmcnt({WHI-1})")
            e(f"s_cmp_eq_u32 {sLev}, 2"); e(f"s_cbranch_scc1 L_go{s}")
            A.opt(f"s_waitcnt vmcnt({W0-1})")
            A.opt(f"s_cmp_eq_u32 {sLev}, 1"); A.opt(f"s_cbranch_scc1 L_go{s}")
            A.opt(f"s_waitcnt vmcnt({WLO-1})")
            A.label(f"L_go{s}")
        elif s >= W0: e(f"s_waitcnt vmcnt({W0-1})")
        issue(s)
        if s == opts.get("qstart", 28): e("ds_add_u32 v94, v95 offset:36")
        SG = opts.get("sg", 180); CA, GA = opts.get("cka", (88, 120))
        if s in (SG, CA, GA): e("ds_add_u32 v94, v95 offset:20")
        CP = opts.get("cper", 4)
        if (s % 8 == 7 or (s >= GA and s % CP == CP - 1)) and s + 1 < ENDS:
            dyn = s >= GA
            if dyn:
                e("s_waitcnt lgkmcnt(0)")
                e(f"v_readfirstlane_b32 {sHi}, {vS0}"); e(f"v_readfirstlane_b32 {sLo}, {vS1}")
                e(f"ds_read_b64 v[{M+4}:{M+5}], v94 offset:24")
            e(f"s_bitcmp1_b32 {sFF}, {(s+1)//8}"); e(f"s_cselect_b32 {sLev}, 2, 1")
            if dyn:
                e(f"s_cmpk_gt_i32 {sHi}, {s+CP//2}"); e(f"s_cselect_b32 {sLev}, 2, {sLev}")
                e(f"s_cmpk_gt_i32 {sLo}, {s+CP//2}"); e(f"s_cselect_b32 {sLev}, 0, {sLev}")
        if s >= RING:
            spent = 0
            while ti < len(tasks) and tasks[ti]["need"] <= s - W and (spent == 0 or spent + len(tasks[ti]["ins"]) <= BUDGET):
                spent += emit_task(tasks[ti]); freed.update(tasks[ti]["frees"]); ti += 1
        if debug and s == NL: e("s_memrealtime s[74:75]")
    landed = 2 * NL - 1 - W
    while ti < len(tasks):
        if tasks[ti]["need"] > landed:
            landed = tasks[ti]["need"]; e(f"s_waitcnt vmcnt({2*NL-1-landed})")
        emit_task(tasks[ti]); ti += 1
    stamp(3)
    e(f"ds_write_b128 v92, {vr(ACC)}"); e(f"ds_write_b128 v92, {vr(ACC+4)} offset:1024")
    e("s_waitcnt lgkmcnt(0)")
    e("s_barrier")
    stamp(4)
    e(f"s_cmp_eq_u32 {sRole}, 1"); e("s_cbranch_scc1 L_st1")
    e(f"s_cmp_eq_u32 {sRole}, 2"); e("s_cbranch_scc1 L_st2")
    e("s_branch L_fin")

    def poll(lbl, loads, regs, sleep=0):
        A.label(lbl)
        timeout()
        if sleep: e(f"s_sleep {sleep}")
        for l in loads: e(l)
        regs = list(regs)
        n = len(loads)
        for li in range(n):
            e(f"s_waitcnt vmcnt({n-1-li})")
            r = regs[4*li:4*li+4]
            for k in range(4): e(f"v_xor_b32 v{r[k]}, {sTB[k]}, v{r[k]}")
            if li == 0: e(f"v_or_b32 {va}, v{r[0]}, v{r[1]}"); e(f"v_or_b32 {vb}, v{r[2]}, v{r[3]}")
            else: e(f"v_or3_b32 {va}, {va}, v{r[0]}, v{r[1]}"); e(f"v_or3_b32 {vb}, {vb}, v{r[2]}, v{r[3]}")
        e(f"v_bitop3_b32 {va}, {va}, {vb}, {vMask} bitop3:0x54")
        e(f"v_cmp_ne_u32 vcc, 0, {va}")
        e(f"s_cbranch_vccnz {lbl}")
    def mpoll(lbl, loads, regs):
        n = len(loads); regs = list(regs); sP = sT[6]
        e(f"s_mov_b32 {sP}, {(1 << n) - 1}")
        A.label(lbl)
        timeout()
        for phase in range(2):
            for g0 in range(0, n, 4):
                e(f"s_and_b32 {sT[7]}, {sP}, {0xf << g0}"); e(f"s_cbranch_scc0 {lbl}_{phase}g{g0}")
                for k in range(g0, min(n, g0 + 4)):
                    e(f"s_bitcmp0_b32 {sP}, {k}"); e(f"s_cbranch_scc1 {lbl}_{phase}k{k}")
                    if phase == 0: e(loads[k])
                    else:
                        r = regs[4*k:4*k+4]
                        for j in range(4): e(f"v_xor_b32 v{r[j]}, {sTB[j]}, v{r[j]}")
                        e(f"v_or3_b32 {va}, v{r[0]}, v{r[1]}, v{r[2]}"); e(f"v_bitop3_b32 {va}, {va}, v{r[3]}, {vMask} bitop3:0x54")
                        e(f"v_cmp_ne_u32 vcc, 0, {va}"); e(f"s_cbranch_vccnz {lbl}_{phase}k{k}")
                        e(f"s_bitset0_b32 {sP}, {k}")
                    A.label(f"{lbl}_{phase}k{k}")
                A.label(f"{lbl}_{phase}g{g0}")
            if phase == 0: e("s_waitcnt vmcnt(0)")
        e(f"s_cmp_eq_u32 {sP}, 0"); e(f"s_cbranch_scc0 {lbl}")
        A.fence()
    def tag4(b):
        for k in range(4): e(f"v_and_or_b32 v{b+k}, v{b+k}, {vMask}, {sTB[k]}")
    def get_tag():
        e(f"v_mov_b32 {va}, {L_FLAG+16}"); e(f"ds_read_b32 {va}, {va}"); e(f"v_mov_b32 {vMask}, 0xffffff00")
        e("s_waitcnt lgkmcnt(0)")
        e(f"v_readfirstlane_b32 {sTag}, {va}")
        for k in range(4): e(f"s_bfe_u32 {sTB[k]}, {sTag}, {(8 << 16) | (8 * k):#x}")
    def wfrag(dst, raw, nload, ldsoff):
        e(f"s_mul_i32 {sT[0]}, {sW}, {WPW}"); e(f"v_add_u32 {va}, {sT[0]}, {vVo}")
        for n in range(nload): e(f"ds_read_b128 {vr(raw+4*n)}, {va} offset:{ldsoff + 1024*n}")
        e("s_waitcnt lgkmcnt(0)")
        wperm(dst, raw, nload)
    def wperm(dst, raw, nload):
        h = nload // 2
        for ee in range(8):
            for k in range(h):
                e(f"v_perm_b32 v{dst+h*ee+k}, v{raw+4*(2*k+1)+(ee>>1)}, v{raw+4*(2*k)+(ee>>1)}, {sSelHi if ee & 1 else sSelLo}")
    def pk(a, b): e(f"v_pk_add_f32 v[{a}:{a+1}], v[{a}:{a+1}], v[{b}:{b+1}]")
    def add4(a, b): pk(a, b); pk(a + 2, b + 2)
    F1 = 128; RAW = 192; G = 12; DD = 160; F2 = 224
    def svc_join(lbl):
        e(f"s_cmp_lt_u32 {sW}, 4"); e(f"s_cbranch_scc1 {lbl}")
        e("s_call_b64 s[66:67], L_publish")
        A.label(lbl)

    A.label("L_st1")
    get_tag()
    wfrag(F1, RAW, 8, 0)
    def gu_fold():
        for k in range(4):
            e(f"v_add_f32_dpp v{12+k}, v{DD+4*k+2}, v{DD+4*k} row_ror:8 row_mask:0xf bank_mask:0x3")
        for k in range(4):
            e(f"v_add_f32_dpp v{12+k}, v{DD+4*(k+4)}, v{DD+4*(k+4)+2} row_ror:8 row_mask:0xf bank_mask:0xc")
    e(f"v_bfe_u32 {vc}, {vLane}, 2, 2"); e(f"v_lshlrev_b32 {vc}, 11, {vc}")
    e(f"v_lshrrev_b32 {vd}, 4, {vLane}"); e(f"v_lshl_add_u32 {vc}, {vd}, 6, {vc}"); e(f"v_and_b32 {vd}, 3, {vLane}"); e(f"v_lshl_add_u32 {vc}, {vd}, 4, {vc}")
    s1G, s1C = (sIdx, sG) if opts.get("s1swap", True) else (sG, sIdx)
    e(f"s_lshl_b32 {sT[0]}, {s1G}, 16"); e(f"s_add_u32 {sT[0]}, {sT[0]}, {WS_PART}")
    e(f"s_lshl_b32 {sT[1]}, {sW}, 8"); e(f"s_add_u32 {sT[0]}, {sT[0]}, {sT[1]}")
    e(f"v_add_u32 v44, {sT[0]}, {vc}")
    for it in range(1, 8): e(f"v_add_u32 v{44+it}, {4*PREC*it}, v44")
    e(f"s_lshl_b32 {sT[0]}, {sW}, 8"); e(f"s_add_u32 {sT[0]}, {sT[0]}, {L_RED}")
    e(f"v_and_b32 {vY0}, 7, {vLane}"); e(f"v_lshlrev_b32 {vY0}, 5, {vY0}"); e(f"v_and_b32 {vd}, 8, {vLane}"); e(f"v_lshl_add_u32 {vY0}, {vd}, 1, {vY0}"); e(f"v_add_u32 {vY0}, {sT[0]}, {vY0}")
    e(f"v_add_u32 {vY1}, {L_RED}, {vVo}")
    e(f"s_lshl_b32 {sT[0]}, {s1G}, 11"); e(f"s_lshl_b32 {sT[1]}, {s1C}, 8"); e(f"s_add_u32 {sT[0]}, {sT[0]}, {sT[1]}"); e(f"s_add_u32 {sT[0]}, {sT[0]}, {WS_A1}")
    e(f"v_add_u32 {vS0}, {sT[0]}, {vVo}")
    svc_join("L_j1")
    mpoll("L_poll1", [f"global_load_dwordx4 {vr(G+4*it)}, v{44+it}, {sp(sWS)} sc1" for it in range(8)], range(12, 44))
    stamp(6)
    add4(12, 16); add4(20, 24); add4(28, 32); add4(36, 40); add4(12, 20); add4(28, 36); add4(12, 28)
    for s in (8, 4):
        for r in range(4): e(f"v_add_f32_dpp v{12+r}, v{12+r}, v{12+r} row_ror:{s} {DPPF}")
    e("v_cvt_pk_bf16_f32 v52, v12, v13"); e("v_cvt_pk_bf16_f32 v53, v14, v15")
    e(f"v_mov_b32_dpp v54, v52 quad_perm:[1,0,3,2] {DPPF}"); e(f"v_mov_b32_dpp v55, v53 quad_perm:[1,0,3,2] {DPPF}")
    for ee in range(8): e(f"v_mfma_f32_16x16x32_bf16 {vr(DD+4*ee)}, v[52:55], {vr(F1+4*ee)}, 0")
    gu_fold()
    e("s_mov_b64 exec, 0xffff")
    e(f"ds_write_b128 {vY0}, v[12:15]")
    e("s_waitcnt lgkmcnt(0)")
    e("s_barrier")
    e(f"s_cmp_eq_u32 {sW}, 0"); e("s_cbranch_scc0 L_fin")
    for w in range(8): e(f"ds_read_b128 {vr(12+4*w)}, {vY1} offset:{256*w}")
    for w in range(0, 8, 2):
        e(f"s_waitcnt lgkmcnt({6-w})")
        add4(12 + 4*w, 16 + 4*w)
        if w in (2, 6): add4(12 + 4*(w-2), 12 + 4*w)
    add4(12, 28)
    tag4(12)
    e(f"global_store_dwordx4 {vS0}, v[12:15], {sp(sWS)} sc1")
    stamp(7)
    e("s_branch L_fin")

    A.label("L_st2")
    get_tag()
    e(f"v_lshrrev_b32 {vc}, 4, {vLane}"); e(f"v_lshlrev_b32 {vc}, 2, {vc}"); e(f"v_and_b32 {vd}, 3, {vLane}"); e(f"v_add_u32 {vc}, {vc}, {vd}")
    e(f"s_lshl_b32 {sT[0]}, {sW}, 4"); e(f"v_add_u32 {vc}, {sT[0]}, {vc}")
    e(f"v_lshlrev_b32 {vd}, 3, {vc}")
    e(f"global_load_dwordx2 v[28:29], {vd}, {sp(sX)}")
    wfrag(F1, RAW, 8, 0)
    e(f"v_bfe_u32 {vd}, {vLane}, 2, 2"); e(f"v_lshlrev_b32 {vd}, 11, {vd}")
    e(f"v_lshl_add_u32 v36, {vc}, 4, {vd}"); e(f"v_add_u32 v36, {WS_A1}, v36")
    e(f"v_add_u32 v37, 8192, v36")
    e(f"s_lshl_b32 {sT[0]}, {sW}, 3"); e(f"s_add_u32 {sT[0]}, {sT[0]}, {L_STAT}"); e(f"v_mov_b32 v40, {sT[0]}")
    e(f"v_bfe_u32 v41, {vLane}, 1, 3"); e("v_lshlrev_b32 v41, 3, v41"); e(f"v_add_u32 v41, {L_STAT}, v41")
    e(f"v_mov_b32 v30, {L_STAT}")
    e(f"s_lshl_b32 {sT[0]}, {sW}, 8"); e(f"s_add_u32 {sT[0]}, {sT[0]}, {L_RED}")
    e(f"v_and_b32 v42, 7, {vLane}"); e("v_lshlrev_b32 v42, 5, v42"); e(f"v_and_b32 {vd}, 8, {vLane}"); e(f"v_lshl_add_u32 v42, {vd}, 1, v42"); e(f"v_add_u32 v42, {sT[0]}, v42")
    e(f"v_bfe_u32 v43, {vLane}, 1, 3"); e("v_lshlrev_b32 v43, 8, v43")
    e(f"v_lshrrev_b32 {vd}, 4, {vLane}"); e(f"v_lshl_add_u32 v43, {vd}, 5, v43")
    e(f"v_and_b32 {vd}, 1, {vLane}"); e(f"v_lshl_add_u32 v43, {vd}, 4, v43"); e(f"v_add_u32 v43, {L_RED}, v43")
    e(f"s_lshl_b32 {sT[0]}, {sIdx}, 11"); e(f"s_and_b32 {sT[1]}, {sW}, 3"); e(f"s_lshl_b32 {sT[1]}, {sT[1]}, 9"); e(f"s_add_u32 {sT[0]}, {sT[0]}, {sT[1]}"); e(f"s_add_u32 {sT[0]}, {sT[0]}, {WS_D2}")
    e(f"v_and_b32 {vS0}, 15, {vLane}"); e(f"v_lshlrev_b32 {vS0}, 5, {vS0}"); e(f"v_and_b32 {vd}, 16, {vLane}"); e(f"v_add3_u32 {vS0}, {vS0}, {vd}, {sT[0]}")
    e("s_waitcnt vmcnt(0)")
    e("v_lshlrev_b32 v32, 16, v28"); e("v_and_b32 v33, 0xffff0000, v28"); e("v_lshlrev_b32 v34, 16, v29"); e("v_and_b32 v35, 0xffff0000, v29")
    svc_join("L_j2")
    for k in range(4): e(f"v_mov_b32 v{52+k}, 0x3f803f80")
    for ee in range(8): e(f"v_mfma_f32_16x16x32_bf16 {vr(DD+4*ee)}, v[52:55], {vr(F1+4*ee)}, 0")
    gu_fold()
    e("s_mov_b64 exec, 0xffff"); e("ds_write_b128 v42, v[12:15] offset:2048"); e("s_mov_b64 exec, -1")
    e("s_waitcnt lgkmcnt(0)")
    e("s_barrier")
    CS = 64
    e(f"ds_read_b128 {vr(CS)}, v43 offset:2048"); e(f"ds_read_b128 {vr(CS+4)}, v43 offset:{2048+128}")
    e("s_waitcnt lgkmcnt(0)")
    for s in (8, 4, 2):
        for r in range(8): e(f"v_add_f32_dpp v{CS+r}, v{CS+r}, v{CS+r} row_ror:{s} {DPPF}")
    poll("L_poll2", [f"global_load_dwordx4 {vr(G+4*it)}, v{36+it}, {sp(sWS)} sc1" for it in range(2)], range(12, 20))
    stamp(6)
    add4(12, 16)
    for s in (8, 4):
        for r in range(4): e(f"v_add_f32_dpp v{12+r}, v{12+r}, v{12+r} row_ror:{s} {DPPF}")
    def rnd4(b, t):
        e(f"v_cvt_pk_bf16_f32 v{t}, v{b}, v{b+1}"); e(f"v_cvt_pk_bf16_f32 v{t+1}, v{b+2}, v{b+3}")
        e(f"v_lshlrev_b32 v{b}, 16, v{t}"); e(f"v_and_b32 v{b+1}, 0xffff0000, v{t}")
        e(f"v_lshlrev_b32 v{b+2}, 16, v{t+1}"); e(f"v_and_b32 v{b+3}, 0xffff0000, v{t+1}")
    rnd4(12, 16)
    add4(12, 32)
    e("v_cvt_pk_bf16_f32 v52, v12, v13"); e("v_cvt_pk_bf16_f32 v53, v14, v15")
    e("v_lshlrev_b32 v16, 16, v52"); e("v_and_b32 v17, 0xffff0000, v52")
    e(f"v_mov_b32_dpp v54, v52 quad_perm:[1,0,3,2] {DPPF}"); e(f"v_mov_b32_dpp v55, v53 quad_perm:[1,0,3,2] {DPPF}")
    e(f"v_readfirstlane_b32 {sT[2]}, v16")
    e("v_lshlrev_b32 v18, 16, v53"); e("v_and_b32 v19, 0xffff0000, v53")
    st = [f"v_subrev_f32 v{16+r}, {sT[2]}, v{16+r}" for r in range(4)]
    st += ["v_add_f32 v20, v16, v17", "v_mul_f32 v21, v16, v16", "v_add_f32 v22, v18, v19", "v_fmac_f32 v21, v17, v17",
           "v_add_f32 v20, v20, v22", "v_fmac_f32 v21, v18, v18", "v_fmac_f32 v21, v19, v19"]
    for qp in ("[1,0,3,2]", "[2,3,0,1]"):
        st += [f"v_add_f32_dpp v20, v20, v20 quad_perm:{qp} {DPPF}", f"v_add_f32_dpp v21, v21, v21 quad_perm:{qp} {DPPF}"]
    st += ["v_permlane32_swap_b32 v20, v21", "v_add_f32 v20, v20, v21", "v_mov_b32 v21, v20", "v_permlane16_swap_b32 v21, v20", "v_add_f32 v20, v20, v21",
           f"v_readlane_b32 {sT[3]}, v20, 32", "v_mul_f32 v21, 0x3c800000, v20", f"v_add_f32 v22, {sT[2]}, v21", f"v_fma_f32 v23, -v21, v20, {sT[3]}"]
    cuts = [0, 3, 6, 9, 12, 13, 15, 18, len(st)]
    for ee in range(8):
        e(f"v_mfma_f32_16x16x32_bf16 {vr(DD+4*ee)}, v[52:55], {vr(F1+4*ee)}, 0")
        for x in st[cuts[ee]:cuts[ee+1]]: e(x)
    gu_fold()
    e("s_mov_b64 exec, 0xffff")
    e("ds_write_b64 v40, v[22:23]")
    e("ds_write_b128 v42, v[12:15]")
    e("s_mov_b64 exec, -1")
    e("s_waitcnt lgkmcnt(0)")
    e("s_barrier")
    e(f"s_cmp_lt_u32 {sW}, 4"); e("s_cbranch_scc1 L_fin")
    e("ds_read_b64 v[20:21], v41"); e("ds_read_b32 v22, v30")
    e("ds_read_b128 v[12:15], v43"); e("ds_read_b128 v[16:19], v43 offset:128")
    e("s_waitcnt lgkmcnt(2)")
    e("v_sub_f32 v20, v20, v22"); e("v_mul_f32 v23, 0x42800000, v20"); e("v_fmac_f32 v21, v23, v20")
    lnf = ["v_mul_f32 v23, 0x41000000, v20", "v_fma_f32 v21, -v23, v20, v21", "v_fmac_f32 v22, 0x3e000000, v20", "v_mul_f32 v21, 0x3b000000, v21",
           "v_cvt_pk_bf16_f32 v23, v22, v21", "v_lshlrev_b32 v22, 16, v23", "v_and_b32 v21, 0xffff0000, v23", "v_add_f32 v21, 0x3727c5ac, v21",
           "v_cvt_pk_bf16_f32 v23, v21, v21", "v_lshlrev_b32 v21, 16, v23", "v_sqrt_f32 v21, v21", "v_cvt_pk_bf16_f32 v23, v21, v21",
           "v_lshlrev_b32 v21, 16, v23", "v_rcp_f32 v21, v21"]
    for s in (8, 4, 2):
        e(f"v_add_f32_dpp v20, v20, v20 row_ror:{s} {DPPF}"); e(f"v_add_f32_dpp v21, v21, v21 row_ror:{s} {DPPF}")
        if s == 8: e("s_waitcnt lgkmcnt(0)")
        if s != 2:
            for r in range(4 if s == 8 else 0, 8 if s == 8 else 4): e(f"v_add_f32_dpp v{12+r}, v{12+r}, v{12+r} row_ror:8 {DPPF}")
    k = 0
    for s in (4, 2):
        for r in range(8):
            e(f"v_add_f32_dpp v{12+r}, v{12+r}, v{12+r} row_ror:{s} {DPPF}")
            if k < len(lnf): e(lnf[k]); k += 1
    for r in range(8): e(f"v_fma_f32 v{12+r}, -v22, v{CS+r}, v{12+r}")
    for r in range(8): e(f"v_mul_f32 v{12+r}, v21, v{12+r}")
    rnd4(12, 24); rnd4(16, 26)
    e("v_pk_mul_f32 v[12:13], v[12:13], v[16:17]"); e("v_pk_mul_f32 v[14:15], v[14:15], v[18:19]")
    e("v_cvt_pk_bf16_f32 v52, v12, v13"); e("v_cvt_pk_bf16_f32 v53, v14, v15")
    e(f"v_mov_b32_dpp v54, v52 quad_perm:[1,0,3,2] {DPPF}"); e(f"v_mov_b32_dpp v55, v53 quad_perm:[1,0,3,2] {DPPF}")
    for ee in range(8): e(f"v_mfma_f32_16x16x32_bf16 {vr(DD+4*ee)}, v[52:55], {vr(F2+4*ee)}, 0")
    for k in range(4): e(f"v_and_or_b32 v{12+k}, v{DD+4*k}, {vMask}, {sTB[k]}")
    e("s_mov_b32 exec_lo, 0xffff0000"); e("s_mov_b32 exec_hi, 0")
    for k in range(4): e(f"v_and_or_b32 v{12+k}, v{DD+4*(k+4)}, {vMask}, {sTB[k]}")
    e("s_mov_b32 exec_lo, -1")
    e(f"global_store_dwordx4 {vS0}, v[12:15], {sp(sWS)} sc1")
    e("s_mov_b64 exec, -1")
    stamp(7)
    e("s_branch L_fin")
    def ln_finish(vm, vv, t):
        e(f"v_cvt_pk_bf16_f32 {t}, {vm}, {vv}")
        e(f"v_lshlrev_b32 {vm}, 16, {t}"); e(f"v_and_b32 {vv}, 0xffff0000, {t}")
        e(f"v_add_f32 {vv}, 0x3727c5ac, {vv}")
        e(f"v_cvt_pk_bf16_f32 {t}, {vv}, {vv}"); e(f"v_lshlrev_b32 {vv}, 16, {t}")
        e(f"v_sqrt_f32 {vv}, {vv}")
        e(f"v_cvt_pk_bf16_f32 {t}, {vv}, {vv}"); e(f"v_lshlrev_b32 {vv}, 16, {t}")
        e(f"v_rcp_f32 {vv}, {vv}")

    A.label("L_st3")
    get_tag()
    e(f"v_and_b32 {vc}, 7, {vLane}"); e(f"v_lshlrev_b32 {vd}, 2, {vc}"); e(f"v_lshrrev_b32 {vf}, 4, {vLane}"); e(f"v_add_u32 {vd}, {vd}, {vf}")
    e(f"s_lshl_b32 {sT[0]}, {sIdx}, 5"); e(f"v_add_u32 {vd}, {sT[0]}, {vd}"); e(f"v_lshlrev_b32 {vS0}, 1, {vd}")
    e(f"global_load_ushort v60, {vS0}, {sp(sX)}")
    e(f"v_lshrrev_b32 {vd}, 3, {vLane}"); e(f"v_lshlrev_b32 {vd}, 11, {vd}"); e(f"v_lshl_add_u32 {vd}, {vc}, 4, {vd}")
    e(f"s_lshl_b32 {sT[0]}, {sIdx}, 7"); e(f"v_add_u32 {vd}, {sT[0]}, {vd}")
    e(f"v_add_u32 v44, {WS_A1}, {vd}"); e(f"v_add_u32 v45, {WS_A1 + 16384}, {vd}")
    for it in range(7): e(f"v_add_u32 v{46+it}, {WS_D2 + 16384*it}, {vd}")
    e("s_barrier")
    e(f"v_mov_b32 v61, {sTag}"); e("v_mov_b32 v62, 0")
    def red4(b):
        e(f"v_permlane32_swap_b32 v{b}, v{b+2}"); e(f"v_permlane32_swap_b32 v{b+1}, v{b+3}")
        e(f"v_add_f32 v{b}, v{b}, v{b+2}"); e(f"v_add_f32 v{b+1}, v{b+1}, v{b+3}")
        e(f"v_permlane16_swap_b32 v{b}, v{b+1}"); e(f"v_add_f32 v{b}, v{b}, v{b+1}")
        e(f"v_add_f32_dpp v{b}, v{b}, v{b} row_ror:8 {DPPF}")
    poll("L_poll3a", [f"global_load_dwordx4 v[12:15], v44, {sp(sWS)} sc1"], range(12, 16))
    red4(12)
    e("v_cvt_pk_bf16_f32 v12, v12, v12"); e("v_lshlrev_b32 v12, 16, v12"); e("v_lshlrev_b32 v60, 16, v60")
    e("v_add_f32 v60, v60, v12"); e("v_cvt_pk_bf16_f32 v60, v60, v60"); e("v_lshlrev_b32 v60, 16, v60")
    stamp(6)
    poll("L_poll3b", [f"global_load_dwordx4 {vr(12+4*it)}, v{46+it}, {sp(sWS)} sc1" for it in range(7)], range(12, 40))
    for a, b in ((12, 16), (20, 24), (28, 32), (12, 20), (28, 36), (12, 28)): add4(a, b)
    red4(12)
    e("v_cvt_pk_bf16_f32 v12, v12, v12"); e("v_lshlrev_b32 v12, 16, v12")
    e("v_add_f32 v12, v60, v12"); e("v_cvt_pk_bf16_f32 v12, v12, v12")
    e("s_mov_b32 exec_lo, 0x00ff00ff"); e("s_mov_b32 exec_hi, 0x00ff00ff")
    e(f"global_store_short {vS0}, v12, {sp(sOUT)}")
    e(f"s_cmp_eq_u32 {sIdx}, 0"); e("s_cbranch_scc0 L_noep")
    e("s_mov_b64 exec, 1")
    e(f"global_store_dword v62, v61, {sp(sWS)}")
    A.label("L_noep")
    e("s_mov_b64 exec, -1")
    stamp(7)

    A.label("L_fin")
    if debug:
        e("s_mov_b64 exec, -1")
        e("s_waitcnt vmcnt(0) lgkmcnt(0)")
        e("s_memrealtime s[96:97]"); e("s_memtime s[6:7]")
        e("s_waitcnt lgkmcnt(0)")
        e("s_sub_u32 s6, s6, s100"); e("v_mov_b32 v18, s6")
        e(f"s_lshl_b32 {sT[0]}, s2, 3"); e(f"s_add_u32 {sT[0]}, {sT[0]}, {sW}"); e(f"s_lshl_b32 {sT[0]}, {sT[0]}, 6"); e(f"s_add_u32 {sT[0]}, {sT[0]}, {WS_STAMP}")
        e(f"v_mov_b32 v20, {sT[0]}")
        for i in range(9): e(f"v_mov_b32 v{4+i}, s{80+2*i}")
        e("s_getreg_b32 s52, hwreg(HW_REG_XCC_ID)"); e("v_mov_b32 v13, s52"); e("v_mov_b32 v14, s70"); e("v_mov_b32 v15, s72"); e("v_mov_b32 v16, s74"); e("v_mov_b32 v17, s98"); e("v_mov_b32 v19, s73")
        e("s_mov_b64 exec, 1")
        for i in range(4): e(f"global_store_dwordx4 v20, v[{4+4*i}:{7+4*i}], {sp(sWS)} offset:{16*i}")
    A.label("L_end")
    e("s_endpgm")

    A.label("L_publish")
    e(f"v_and_b32 {va}, 3, {vLane}"); e(f"v_lshlrev_b32 {va}, 3, {va}"); e(f"v_add_u32 {va}, {L_MS}, {va}")
    for w in range(4): e(f"ds_read_b32 v{56+2*w}, {va} offset:{32*w}")
    e(f"ds_read_b64 v[64:65], {va} offset:{L_GS - L_MS}")
    e(f"s_and_b32 {sT[0]}, {sW}, 1"); e(f"s_lshl_b32 {sT[0]}, {sT[0]}, 10")
    e(f"s_lshl_b32 {sT[1]}, s2, 11"); e(f"s_add_u32 {sT[1]}, {sT[1]}, {WS_PART}"); e(f"s_add_u32 {sT[1]}, {sT[1]}, {sT[0]}")
    e(f"s_add_u32 {sT[0]}, {sT[0]}, {L_ACC}")
    e("s_waitcnt lgkmcnt(0)")
    for w in range(4): e(f"v_sub_f32 v{56+2*w}, v{56+2*w}, v64")
    for w in range(4): e(f"v_exp_f32 v{56+2*w}, v{56+2*w}")
    for w in range(4): e(f"v_mul_f32 v{56+2*w}, v{56+2*w}, v65")
    for w in range(4): e(f"v_mov_b32 v{57+2*w}, v{56+2*w}")
    e(f"v_add_u32 {va}, {sT[0]}, {vVo}"); e(f"v_add_u32 {vb}, {sT[1]}, {vVo}")
    e("s_barrier")
    stamp(4)
    e(f"s_cmp_gt_u32 {sW}, 5"); e("s_cbranch_scc1 L_pubret")
    for w in range(4): e(f"ds_read_b128 {vr(12+4*w)}, {va} offset:{2048*w}")
    for w in range(4):
        e(f"s_waitcnt lgkmcnt({3-w})")
        for r in (0, 2):
            if w == 0: e(f"v_pk_mul_f32 v[{12+r}:{13+r}], v[{12+r}:{13+r}], v[56:57]")
            else: e(f"v_pk_fma_f32 v[{12+r}:{13+r}], v[{12+4*w+r}:{13+4*w+r}], v[{56+2*w}:{57+2*w}], v[{12+r}:{13+r}]")
    tag4(12)
    e(f"global_store_dwordx4 {vb}, v[12:15], {sp(sWS)} sc1")
    stamp(5)
    e("s_nop 1")
    A.label("L_pubret")
    e("s_setpc_b64 s[66:67]")
    A.fence()

    def tag_from(v):
        e(f"v_readfirstlane_b32 {sTag}, {v}")
        e(f"s_add_u32 {sTag}, {sTag}, 0x01010101")
        for k in range(4): e(f"s_bfe_u32 {sTB[k]}, {sTag}, {(8 << 16) | (8 * k):#x}")
    A.label("L_service")
    NP = opts.get("np", 2); C0 = 32 - 8 * NP
    e("v_mov_b32 v8, 0"); e("v_mov_b32 v9, 0"); e("v_mov_b32 v10, 0"); e("v_mov_b32 v11, 0")
    e(f"v_mov_b32 v64, {L_FLAG}")
    e(f"s_cmp_eq_u32 {sW}, 4"); e("s_cbranch_scc0 L_sv1")
    e("ds_write_b128 v64, v[8:11]"); e("ds_write_b128 v64, v[8:11] offset:16"); e("ds_write_b128 v64, v[8:11] offset:32")
    A.label("L_sv1")
    e(f"s_cmp_ge_u32 {sC}, {C0}"); e("s_cbranch_scc1 L_qprod")
    e("s_waitcnt lgkmcnt(0)")
    e(f"s_cmp_eq_u32 {sW}, 4"); e("s_cbranch_scc0 L_sv2")
    e(f"global_load_dword v10, v9, {sp(sWS)} sc1")
    e("s_barrier")
    e("s_waitcnt vmcnt(0)")
    tag_from("v10")
    e("s_branch L_qget")
    A.label("L_sv2")
    e("s_barrier")
    DW = opts.get("dmawin", 1)
    def thr(): e(f"s_waitcnt vmcnt({DW-1})")
    A.label("L_sv4")
    if opts.get("touch", False):
        e(f"s_cmp_eq_u32 {sW}, 7"); e("s_cbranch_scc0 L_notouch")
        e(f"v_lshlrev_b32 v5, 16, {vLane}"); e(f"s_lshl_b32 {sT[0]}, s2, 19"); e(f"v_add_u32 v5, {sT[0]}, v5")
        e("s_mov_b64 exec, 0xff")
        e(f"global_load_dword v6, v5, {sp(sV)} nt")
        e("s_mov_b64 exec, 1")
        e(f"global_load_dword v7, v9, {sp(sOUT)} nt")
        e("s_mov_b64 exec, -1")
        e("s_waitcnt vmcnt(0)")
        A.label("L_notouch")
    if opts.get("dmaq", False): lds_wait("L_dq", 0, 1, va, vb, sleep=8)
    A.label("L_down")
    e(f"s_cmp_eq_u32 {sRole}, 2"); e("s_cbranch_scc0 L_nodown")
    e(f"v_lshrrev_b32 v9, 4, {vLane}"); e("v_lshlrev_b32 v9, 13, v9")
    e(f"v_and_b32 v7, 15, {vLane}"); e("v_lshl_add_u32 v9, v7, 4, v9")
    e(f"s_lshl_b32 {sT[2]}, {sIdx}, 15"); e(f"s_and_b32 {sT[3]}, {sW}, 3"); e(f"s_lshl_b32 {sT[3]}, {sT[3]}, 8"); e(f"s_add_u32 {sT[2]}, {sT[2]}, {sT[3]}")
    e(f"s_add_u32 {sT[2]}, {sT[2]}, 4096"); e(f"v_add_u32 v9, {sT[2]}, v9")
    for ep in range(8):
        e(f"global_load_dwordx4 {vr(RAW+4*ep)}, v9, {sp(sWD)} offset:{1024*ep - 4096} nt")
        e(f"s_waitcnt vmcnt({1 if ep < 7 else 0})")
    wperm(F2, RAW, 8)
    A.label("L_nodown")
    ND = opts.get("ndma", 3)
    if ND < 4: e(f"s_cmp_eq_u32 {sW}, 4"); e("s_cbranch_scc1 L_stats")
    if ND == 2: e(f"s_cmp_eq_u32 {sW}, 5"); e("s_cbranch_scc1 L_wdone")
    e(f"s_sub_u32 {sWW}, {sW}, {8 - ND}")
    if opts.get("nodma"): e("s_branch L_wdone")
    e(f"s_cmp_eq_u32 {sRole}, 1"); e("s_cbranch_scc0 L_now1")
    e(f"s_mov_b32 s40, s{sWO}"); e(f"s_mov_b32 s41, s{sWO+1}"); e(f"s_mov_b32 s42, {4096*1024}"); e("s_mov_b32 s43, 0x20000")
    e(f"v_bfe_u32 v5, {vLane}, 3, 1"); e("v_lshlrev_b32 v5, 18, v5")
    e(f"v_lshrrev_b32 v6, 4, {vLane}"); e("v_lshlrev_b32 v6, 10, v6")
    e(f"v_and_b32 v7, 7, {vLane}"); e("v_lshlrev_b32 v7, 4, v7")
    e("v_add3_u32 v5, v5, v6, v7")
    A.label("L_dma1")
    e(f"s_mul_i32 {sT[1]}, {sWW}, {WPW}")
    e(f"s_lshl_b32 {sT[2]}, {s1G}, 9")
    e(f"s_and_b32 {sT[3]}, {sWW}, 3"); e(f"s_lshl_b32 {sT[3]}, {sT[3]}, 5"); e(f"s_add_u32 {sT[2]}, {sT[2]}, {sT[3]}")
    e(f"s_and_b32 {sT[3]}, {sWW}, 4"); e(f"s_add_u32 {sT[2]}, {sT[2]}, {sT[3]}")
    e(f"s_lshl_b32 {sT[2]}, {sT[2]}, 10")
    e(f"s_lshl_b32 {sT[3]}, {s1C}, 7"); e(f"s_add_u32 {sT[2]}, {sT[2]}, {sT[3]}")
    for ep in range(8):
        e(f"s_add_u32 {sT[3]}, {sT[2]}, {(128*(ep>>2) + 8*(ep&3))*1024}")
        e(f"s_add_u32 m0, {sT[1]}, {ep*1024}")
        thr()
        e(f"buffer_load_dwordx4 v5, {srdW}, {sT[3]} offen nt lds")
    e(f"s_add_u32 {sWW}, {sWW}, {ND}"); e(f"s_cmp_lt_u32 {sWW}, 8"); e("s_cbranch_scc1 L_dma1")
    e("s_branch L_wdone")
    A.label("L_now1")
    e(f"s_cmp_eq_u32 {sRole}, 2"); e("s_cbranch_scc0 L_wdone")
    e(f"v_lshrrev_b32 v5, 4, {vLane}"); e("v_lshlrev_b32 v5, 4, v5")
    e(f"v_and_b32 v6, 8, {vLane}"); e("v_add_u32 v5, v5, v6")
    e(f"s_lshl_b32 {sT[2]}, {sWW}, 6"); e(f"v_add_u32 v5, {sT[2]}, v5")
    e("v_mul_u32_u24 v5, 3584, v5")
    e(f"v_and_b32 v6, 3, {vLane}"); e("v_lshlrev_b32 v6, 4, v6")
    e(f"s_lshl_b32 {sT[2]}, {sIdx}, 6"); e(f"v_add3_u32 v5, v5, v6, {sT[2]}")
    e(f"v_and_b32 v6, 4, {vLane}"); e("v_cmp_eq_u32 vcc, 0, v6")
    e(f"v_mov_b32 v6, s{sWU}"); e(f"v_mov_b32 v8, s{sWG}"); e("v_cndmask_b32 v6, v6, v8, vcc")
    e(f"v_mov_b32 v7, s{sWU+1}"); e(f"v_mov_b32 v8, s{sWG+1}"); e("v_cndmask_b32 v7, v7, v8, vcc")
    e("v_add_co_u32 v6, vcc, v6, v5"); e("v_addc_co_u32 v7, vcc, 0, v7, vcc")
    A.label("L_dma2")
    e(f"s_mul_i32 {sT[1]}, {sWW}, {WPW}")
    for ep in range(8):
        e(f"s_add_u32 m0, {sT[1]}, {ep*1024}")
        thr()
        e(f"global_load_lds_dwordx4 v[6:7], off {opts.get('gupol', 'nt')}")
        e(f"v_add_co_u32 v6, vcc, {3584 if ep < 7 else 3584*(64*ND-7)}, v6"); e("v_addc_co_u32 v7, vcc, 0, v7, vcc")
    e(f"s_add_u32 {sWW}, {sWW}, {ND}"); e(f"s_cmp_lt_u32 {sWW}, 8"); e("s_cbranch_scc1 L_dma2")
    A.label("L_wdone")
    e("s_waitcnt vmcnt(0)")
    e(f"v_mov_b32 {va}, {L_FLAG+12}"); e(f"v_mov_b32 {vb}, 1")
    e("s_mov_b64 exec, 1"); e(f"ds_add_u32 {va}, {vb}"); e("s_mov_b64 exec, -1")
    stamp(1)
    if ND == 4: e(f"s_cmp_eq_u32 {sW}, 4"); e("s_cbranch_scc1 L_stats")
    A.label("L_svc2")
    lds_wait("L_dw", 12, max(3, ND), va, vb, sleep=16)
    lds_wait("L_sq", 8, 1, va, vb, sleep=16)
    e(f"s_cmp_eq_u32 {sRole}, 1"); e("s_cbranch_scc1 L_st1")
    e(f"s_cmp_eq_u32 {sRole}, 2"); e("s_cbranch_scc1 L_st2")
    e(f"s_cmp_eq_u32 {sRole}, 3"); e("s_cbranch_scc0 L_svc3")
    e(f"s_cmp_eq_u32 {sW}, 7"); e("s_cbranch_scc1 L_st3")
    A.label("L_svc3")
    get_tag()
    e("s_call_b64 s[66:67], L_publish")
    e("s_branch L_fin")

    A.label("L_stats")
    SG = opts.get("sg", 180); CA, GA = opts.get("cka", (88, 120)); SP = opts.get("spub", 150)
    GH = float(opts.get('gh', 0.32)); GL = float(opts.get('gl', 0.25))
    e(f"v_mov_b32 v24, {L_FLAG}")
    def control(base, lag, sub=None):
        e(f"v_mov_b32 v28, {float(base)}")
        if sub: e(f"v_sub_f32 v28, v28, {sub}")
        e(f"v_fmac_f32 v28, {GH}, {lag}")
        e(f"v_mov_b32 v29, {float(base)}"); e(f"v_fmac_f32 v29, {-GL}, {lag}")
        e(f"v_cmp_lt_f32 vcc, 0, {lag}"); e("v_cndmask_b32 v28, 0, v28, vcc"); e("v_cndmask_b32 v29, v29, 0, vcc")
        e("v_cvt_i32_f32 v26, v28"); e("v_cvt_i32_f32 v27, v29")
        if not opts.get("noctl"): e("ds_write_b64 v24, v[26:27] offset:24")
    lds_wait("L_ca", 20, 4, va, vb, sleep=4)
    e("s_memrealtime s[68:69]")
    e(f"s_lshl_b32 {sT[0]}, s2, 3"); e(f"s_add_u32 {sT[0]}, {sT[0]}, {WS_CK}"); e(f"v_mov_b32 v5, {sT[0]}"); e(f"v_mov_b32 v13, {sTag}")
    e("s_waitcnt lgkmcnt(0)"); e("v_mov_b32 v12, s68")
    e("s_mov_b64 exec, 1"); e(f"global_store_dwordx2 v5, v[12:13], {sp(sWS)} sc1"); e("s_mov_b64 exec, -1")
    e(f"v_add_u32 v5, {WS_CK}, {vVo}")
    lds_wait("L_ga", 20, 5, va, vb, sleep=8)
    e(f"global_load_dwordx4 v[12:15], v5, {sp(sWS)} sc1"); e(f"global_load_dwordx4 v[16:19], v5, {sp(sWS)} offset:1024 sc1")
    e("s_waitcnt vmcnt(0)")
    e(f"v_mov_b32 v20, {opts.get('miss', -400)}")
    for k in range(4):
        e(f"v_sub_u32 v{12+2*k}, s68, v{12+2*k}"); e(f"v_cmp_eq_u32 vcc, {sTag}, v{13+2*k}"); e(f"v_cndmask_b32 v{12+2*k}, v20, v{12+2*k}, vcc")
    e("v_add3_u32 v12, v12, v14, v16"); e("v_add_u32 v12, v12, v18"); e("v_cvt_f32_i32 v12, v12")
    e(f"v_add_f32_dpp v12, v12, v12 quad_perm:[1,0,3,2] {DPPF}"); e(f"v_add_f32_dpp v12, v12, v12 quad_perm:[2,3,0,1] {DPPF}")
    for x in xlane("add", "v12", "v13"): e(x)
    e(f"v_mov_b32 v19, {float(opts.get('abias', 0.0))}"); e("v_fmac_f32 v19, 0x3b800000, v12")
    control(GA + 10, "v19")
    e(f"v_subrev_f32 v30, {float(SP)}, v28"); e(f"v_mov_b32 v31, {float(SG + 10 - SP)}"); e("v_med3_f32 v30, v30, 0, v31")
    lds_wait("L_sw", 4, 4, va, vb, sleep=4)
    e("s_memrealtime s[68:69]")
    e(f"v_and_b32 {vc}, 3, {vLane}"); e(f"v_lshlrev_b32 {va}, 3, {vc}"); e(f"v_add_u32 {va}, {L_MS}, {va}")
    for w in range(4): e(f"ds_read_b64 v[{12+2*w}:{13+2*w}], {va} offset:{32*w}")
    e("s_waitcnt lgkmcnt(0)")
    e("v_max3_f32 v20, v12, v14, v16"); e("v_max_f32 v20, v20, v18")
    for w in range(4): e(f"v_sub_f32 v{12+2*w}, v{12+2*w}, v20")
    for w in range(4): e(f"v_exp_f32 v{12+2*w}, v{12+2*w}")
    e("v_mul_f32 v22, v12, v13")
    for w in range(1, 4): e(f"v_fmac_f32 v22, v{12+2*w}, v{13+2*w}")
    e(f"v_mov_b32 v21, {sTag}"); e("v_mov_b32 v23, s68")
    e(f"s_lshl_b32 {sT[0]}, s2, 6"); e(f"s_add_u32 {sT[0]}, {sT[0]}, {WS_ST}"); e(f"v_add_u32 v5, {sT[0]}, {vVo}")
    e("s_mov_b64 exec, 0xf")
    e(f"global_store_dwordx4 v5, v[20:23], {sp(sWS)} sc1")
    e("s_mov_b64 exec, -1")
    e(f"s_lshl_b32 {sT[0]}, {sG}, 11"); e(f"s_add_u32 {sT[0]}, {sT[0]}, {WS_ST}"); e(f"v_add_u32 v5, {sT[0]}, {vVo}")
    lds_wait("L_sg", 20, 9, va, vb, sleep=8)
    A.label("L_spoll")
    timeout()
    e(f"global_load_dwordx4 v[12:15], v5, {sp(sWS)} sc1"); e(f"global_load_dwordx4 v[16:19], v5, {sp(sWS)} offset:1024 sc1")
    e("s_waitcnt vmcnt(0)")
    e(f"v_xor_b32 v13, {sTag}, v13"); e(f"v_bitop3_b32 v13, v13, v17, {sTag} bitop3:0xf6")
    e("v_cmp_ne_u32 vcc, 0, v13")
    e("s_cbranch_vccz L_sgot")
    e(f"s_sleep {opts.get('ssleep', 32)}"); e("s_branch L_spoll")
    A.label("L_sgot")
    e("v_sub_u32 v15, s68, v15"); e("v_sub_u32 v19, s68, v19"); e("v_add_u32 v15, v15, v19"); e("v_cvt_f32_i32 v15, v15")
    for x in xlane("add", "v15", "v19"): e(x)
    e(f"v_mov_b32 v19, {float(opts.get('lbias', 20.0))}"); e("v_fmac_f32 v19, 0x3d000000, v15")
    control(SG + 10, "v19", "v30")
    if debug: e("v_cvt_i32_f32 v19, v19"); e("v_readfirstlane_b32 s73, v19")
    e("v_max_f32 v20, v12, v16")
    for x in xlane("max", "v20", "v21"): e(x)
    e("v_sub_f32 v12, v12, v20"); e("v_sub_f32 v16, v16, v20"); e("v_exp_f32 v12, v12"); e("v_exp_f32 v16, v16")
    e("v_mul_f32 v21, v12, v14"); e("v_fmac_f32 v21, v16, v18")
    for x in xlane("add", "v21", "v22"): e(x)
    e("v_rcp_f32 v21, v21")
    e(f"v_lshlrev_b32 {va}, 3, {vc}"); e(f"v_add_u32 {va}, {L_GS}, {va}")
    e(f"ds_write_b64 {va}, v[20:21]")
    e(f"v_mov_b32 {va}, {L_FLAG+8}"); e(f"v_mov_b32 {vb}, 1")
    e(f"ds_write_b32 {va}, {vb}")
    if debug: e("s_memrealtime s[98:99]")
    e("s_branch L_svc2")

    A.label("L_qprod")
    e("s_setprio 3")
    WQ = 128; XR = 12; XF = 20; QA = 36; XA = 66
    RW = 512 // NP // 4; NPR = RW // 16
    e(f"s_and_b32 {sT[5]}, {sC}, 7"); e(f"s_lshl_b32 {sQP}, {sG}, 3"); e(f"s_add_u32 {sQP}, {sQP}, {sT[5]}")
    e(f"s_sub_u32 {sT[4]}, {sC}, {C0}"); e(f"s_lshr_b32 {sT[4]}, {sT[4]}, 3")
    e(f"s_lshl_b32 {sT[3]}, {sT[4]}, 2"); e(f"s_add_u32 {sT[3]}, {sT[3]}, {sW}"); e(f"s_sub_u32 {sT[3]}, {sT[3]}, 4"); e(f"s_mul_i32 {sT[3]}, {sT[3]}, {RW}")
    e(f"v_lshrrev_b32 v5, 3, {vLane}"); e("v_lshlrev_b32 v6, 2, v5")
    e(f"s_lshl_b32 {sT[0]}, {sT[3]}, 1"); e(f"v_add_u32 v6, {sT[0]}, v6")
    e("v_lshlrev_b32 v7, 14, v5"); e(f"v_and_b32 v4, 7, {vLane}"); e("v_lshl_add_u32 v7, v4, 4, v7")
    e(f"s_lshl_b32 {sT[0]}, {sT[3]}, 13"); e(f"s_lshl_b32 {sT[1]}, {sQP}, 7"); e(f"s_add_u32 {sT[0]}, {sT[0]}, {sT[1]}"); e(f"v_add_u32 v7, {sT[0]}, v7")
    e("s_waitcnt lgkmcnt(0)")
    e(f"global_load_dwordx4 {vr(XA)}, {vVo}, {sp(sX)}")
    for k in range(NPR): e(f"global_load_dword v{XR+k}, v6, {sp(sX)} offset:{32*k}")
    e(f"global_load_dword v10, v9, {sp(sWS)} sc1")
    for i in range(2 * NPR):
        e(f"global_load_dwordx4 {vr(WQ+4*i)}, v7, {sp(sWQ)} {opts.get('wqpol', 'nt')}")
        if i < 2 * NPR - 1: e(f"v_add_u32 v7, {0x2000 if i % 2 == 0 else 0x1e000}, v7")
    e("s_barrier")
    e(f"s_waitcnt vmcnt({3*NPR + 1})")
    for k in range(4):
        e(f"v_lshlrev_b32 v{44+2*k}, 16, v{XA+k}"); e(f"v_and_b32 v{45+2*k}, 0xffff0000, v{XA+k}")
    def wsum(r, tmp):
        for s in (8, 4, 2, 1): e(f"v_add_f32_dpp {r}, {r}, {r} row_ror:{s} {DPPF}")
        e(f"v_mov_b32 {tmp}, {r}"); e(f"v_permlane16_swap_b32 {tmp}, {r}"); e(f"v_add_f32 {r}, {tmp}, {r}")
        e(f"v_mov_b32 {tmp}, {r}"); e(f"v_permlane32_swap_b32 {tmp}, {r}"); e(f"v_add_f32 {r}, {tmp}, {r}")
    e("v_pk_add_f32 v[52:53], v[44:45], v[46:47]"); e("v_pk_add_f32 v[54:55], v[48:49], v[50:51]"); pk(52, 54)
    e(f"v_add_f32 {va}, v52, v53")
    wsum(va, vb)
    e(f"v_mul_f32 {va}, 0x3b000000, {va}")
    for k in range(8): e(f"v_sub_f32 v{44+k}, v{44+k}, {va}")
    e(f"v_mul_f32 {vc}, v44, v44"); e(f"v_mul_f32 {vd}, v45, v45")
    for k in range(2, 8): e(f"v_fmac_f32 {(vc, vd)[k&1]}, v{44+k}, v{44+k}")
    e(f"v_add_f32 {vc}, {vc}, {vd}")
    wsum(vc, vb)
    e(f"v_mul_f32 {vc}, 0x3b000000, {vc}")
    ln_finish(va, vc, vb)
    e(f"s_waitcnt vmcnt({2*NPR + 1})")
    for k in range(NPR):
        e(f"v_lshlrev_b32 v{XF+2*k}, 16, v{XR+k}"); e(f"v_and_b32 v{XF+2*k+1}, 0xffff0000, v{XR+k}")
    for k in range(2*NPR): e(f"v_sub_f32 v{XF+k}, v{XF+k}, {va}")
    for k in range(NPR): e(f"v_cvt_pk_bf16_f32 v{XR+k}, v{XF+2*k}, v{XF+2*k+1}")
    for k in range(NPR):
        e(f"v_lshlrev_b32 v{XF+2*k}, 16, v{XR+k}"); e(f"v_and_b32 v{XF+2*k+1}, 0xffff0000, v{XR+k}")
    for k in range(2*NPR): e(f"v_mul_f32 v{XF+k}, {vc}, v{XF+k}")
    for k in range(NPR): e(f"v_cvt_pk_bf16_f32 v{XR+k}, v{XF+2*k}, v{XF+2*k+1}")
    for k in range(8): e(f"v_mov_b32 v{QA+k}, 0")
    e(f"v_lshrrev_b32 v5, 4, {vLane}"); e("v_lshlrev_b32 v5, 3, v5"); e("v_lshl_add_u32 v5, v4, 5, v5")
    e(f"s_lshl_b32 {sT[0]}, {sW}, 8"); e(f"s_add_u32 {sT[0]}, {sT[0]}, {L_QP - 1024}"); e(f"v_add_u32 v5, {sT[0]}, v5")
    for p in range(NPR):
        e(f"s_waitcnt vmcnt({2*NPR - 2 - 2*p})")
        for ee in range(8):
            e(f"v_perm_b32 v{44+ee}, v{WQ+4*(2*p+1)+(ee>>1)}, v{WQ+4*(2*p)+(ee>>1)}, {sSelHi if ee & 1 else sSelLo}")
        for ee in range(8): e(f"v_dot2c_f32_bf16 v{QA+ee}, v{44+ee}, v{XR+p}")
    if debug: e("s_memrealtime s[70:71]")
    for o in (0, 1):
        e(f"v_permlane32_swap_b32 v{QA+o}, v{QA+4+o}"); e(f"v_permlane32_swap_b32 v{QA+2+o}, v{QA+6+o}")
    for o in (0, 1):
        e(f"v_add_f32 v{QA+o}, v{QA+o}, v{QA+4+o}"); e(f"v_add_f32 v{QA+2+o}, v{QA+2+o}, v{QA+6+o}")
    for o in (0, 1): e(f"v_permlane16_swap_b32 v{QA+o}, v{QA+2+o}")
    for o in (0, 1): e(f"v_add_f32 v{QA+o}, v{QA+o}, v{QA+2+o}")
    for o in (0, 1): e(f"v_add_f32_dpp v{QA+o}, v{QA+o}, v{QA+o} row_ror:8 {DPPF}")
    e(f"ds_write_b64 v5, v[{QA}:{QA+1}]")
    e("v_mov_b32 v44, 1")
    e("s_mov_b64 exec, 1"); e("ds_add_u32 v64, v44 offset:32"); e("s_mov_b64 exec, -1")
    e(f"s_cmp_eq_u32 {sW}, 4"); e("s_cbranch_scc1 L_qp4")
    e("s_setprio 0")
    e("s_branch L_sv4")
    A.label("L_qp4")
    tag_from("v10")
    if NP == 1:
        e(f"s_lshl_b32 {sT[1]}, {sQP}, 8"); e(f"s_add_u32 {sT[1]}, {sT[1]}, {WS_Q}"); e(f"v_add_u32 v6, {sT[1]}, {vVo}")
        e(f"v_add_u32 v5, {L_QP}, {vVo}")
        lds_wait("L_qpw", 32, 4, va, vb, sleep=0)
        e("s_mov_b64 exec, 0xffff")
        for v in range(4): e(f"ds_read_b128 {vr(44+4*v)}, v5 offset:{256*v}")
        e("s_waitcnt lgkmcnt(0)")
        add4(44, 48); add4(52, 56); add4(44, 52)
        e("v_cvt_pk_bf16_f32 v44, v44, v45"); e("v_cvt_pk_bf16_f32 v46, v46, v47")
    else:
        e(f"s_mul_i32 {sT[1]}, {sG}, {NP}"); e(f"s_add_u32 {sT[1]}, {sT[1]}, {sT[4]}"); e(f"s_lshl_b32 {sT[1]}, {sT[1]}, 3"); e(f"s_add_u32 {sT[1]}, {sT[1]}, {sT[5]}")
        e(f"s_lshl_b32 {sT[1]}, {sT[1]}, 9"); e(f"s_add_u32 {sT[1]}, {sT[1]}, {WS_Q}"); e(f"v_add_u32 v6, {sT[1]}, {vVo}")
        e(f"v_lshlrev_b32 v5, 3, {vLane}"); e(f"v_add_u32 v5, {L_QP}, v5")
        lds_wait("L_qpw", 32, 4, va, vb, sleep=0)
        e("s_mov_b32 exec_hi, 0")
        for v in range(4): e(f"ds_read_b64 v[{48+2*v}:{49+2*v}], v5 offset:{256*v}")
        e("s_waitcnt lgkmcnt(0)")
        pk(48, 50); pk(52, 54)
        e("v_add_f32 v44, v48, v52"); e("v_add_f32 v46, v49, v53")
    e(f"v_mov_b32 v45, {sTag}"); e(f"v_mov_b32 v47, {sTag}")
    e(f"global_store_dwordx4 v6, v[44:47], {sp(sWS)} sc1")
    e("s_mov_b64 exec, -1")
    e("s_setprio 0")
    A.label("L_qget")
    NLD = 2 if NP == 1 else 4 * NP
    e(f"s_mul_i32 {sT[0]}, {sG}, {NLD*1024}"); e(f"s_add_u32 {sT[0]}, {sT[0]}, {WS_Q + 4096}")
    e(f"v_add_u32 v5, {sT[0]}, {vVo}"); e("v_add_u32 v7, 0x2000, v5")
    e(f"v_lshlrev_b32 v6, {3 if NP == 1 else 2}, {vLane}"); e(f"v_add_u32 v6, {L_Q}, v6")
    e(f"v_mov_b32 v52, {sTag}"); e("ds_write_b32 v64, v52 offset:16")
    if opts.get("qstart", 28): lds_wait("L_qs", 36, 1, va, vb, sleep=4)
    e(f"s_mov_b32 {sT[5]}, 0")
    A.label("L_qpoll")
    timeout()
    for k in range(NLD):
        e(f"s_bitcmp1_b32 {sT[5]}, {k}"); e(f"s_cbranch_scc1 L_qk{k}")
        e(f"global_load_dwordx4 {vr(128+4*k)}, {'v5' if k < 8 else 'v7'}, {sp(sWS)} offset:{1024*(k&7) - 4096} sc1")
        A.label(f"L_qk{k}")
    e("s_waitcnt vmcnt(0)")
    e(f"s_mov_b32 {sT[5]}, 0")
    for k in range(NLD):
        e(f"v_xor_b32 {va}, {sTag}, v{129+4*k}"); e(f"v_bitop3_b32 {va}, {va}, v{131+4*k}, {sTag} bitop3:0xf6")
        e(f"v_cmp_ne_u32 vcc, 0, {va}"); e("s_cmp_eq_u64 vcc, 0"); e(f"s_cselect_b32 {sT[0]}, {1 << k}, 0"); e(f"s_or_b32 {sT[5]}, {sT[5]}, {sT[0]}")
    e(f"s_cmp_eq_u32 {sT[5]}, {(1 << NLD) - 1}"); e("s_cbranch_scc1 L_qgot")
    e(f"s_sleep {opts.get('qsleep', 8)}"); e("s_branch L_qpoll")
    A.label("L_qgot")
    if NP == 1:
        for h in range(2):
            e(f"v_mov_b32 v{129+4*h}, v{130+4*h}"); e(f"ds_write_b64 v6, v[{128+4*h}:{129+4*h}] offset:{512*h}")
    else:
        for m in range(4):
            for o in (0, 2):
                r = 128 + 4*m + o
                e(f"v_add_f32 v{r}, v{r}, v{r+16}")
                if NP == 4: e(f"v_add_f32 v{r+32}, v{r+32}, v{r+48}"); e(f"v_add_f32 v{r}, v{r}, v{r+32}")
            e(f"v_cvt_pk_bf16_f32 v{128+4*m}, v{128+4*m}, v{130+4*m}")
            e(f"ds_write_b32 v6, v{128+4*m} offset:{256*m}")
    e("v_mov_b32 v48, 1"); e("ds_write_b32 v64, v48")
    if debug: e("s_memrealtime s[72:73]")
    e("s_branch L_down")

    A.raw('.section .rodata,"a"'); A.raw(".p2align 6"); A.raw(f".amdhsa_kernel {NAME}")
    for l in ["next_free_vgpr 256", "next_free_sgpr 102", "accum_offset 256", "group_segment_fixed_size 0", "kernarg_size 96",
              "user_sgpr_count 2", "user_sgpr_kernarg_segment_ptr 1", "system_sgpr_workgroup_id_x 1", "float_denorm_mode_32 3"]:
        A.raw("  .amdhsa_" + l)
    A.raw(".end_amdhsa_kernel")
    return A.text()

if __name__ == "__main__":
    dbg = "--debug" in sys.argv
    sys.stdout.write(gen(debug=dbg))
```

```python
import sys
sys.path.insert(0, "work")
from asmlib import Asm

NAME = "sequential_preLN__gqa_block_cached__glu_gated_bilinear__decode_kernel"

WS_EPOCH = 0
WS_Q = 0xE0000
WS_ST = 0x8000
WS_CK = 0xC000
WS_PART = 0x10000
PREC = 2048
WS_A1 = 0xA0000
WS_D2 = 0xB0000
WS_STAMP = 0x800000
WPW = 8 * 1024
L_Q = 8 * WPW
L_ACC = L_Q + 1024
L_RED = L_ACC + 8192
L_STAT = L_RED + 4096
L_MS = L_STAT + 64
L_GS = L_MS + 128
L_QP = L_RED
L_FLAG = L_GS + 32
L_TOTAL = 98304

KV_BYTES = 128 << 20

def gen(debug=False, opts=None):
    opts = opts or {}
    A = Asm(); e = A
    def stamp(i):
        if debug: e(f"s_memrealtime s[{80+2*i}:{81+2*i}]")
    sX, sK, sV, sWQ, sWO, sWG, sWU, sWD, sOUT, sDBG, sWS = 8, 10, 12, 14, 16, 20, 22, 24, 26, 28, 30
    def sp(n): return f"s[{n}:{n+1}]"
    sW = "s3"; sG = "s4"; sC = "s5"
    srdK = "s[32:35]"; srdV = "s[36:39]"; srdW = "s[40:43]"
    sScale, sL2E, sSelLo, sSelHi = "s44", "s45", "s46", "s47"
    sOff = "s48"; sBase = "s49"; sWW = "s50"
    sT = ["s52", "s53", "s54", "s55", "s56", "s57", "s58", "s59"]
    sTag = "s60"; sRole = "s61"; sIdx = "s62"; sTO = "s64"
    vLane = "v1"; vKo = "v2"; vVo = "v3"
    ACC = 4; BQ = 12; PV_ = 12; SPK = 28; T = 44; M = 76
    vX0, vX1, vY0, vY1, vS0, vS1, vML, vL, va, vb, vc, vd, vMSa, vf = [f"v{M+i}" for i in range(14)]
    vKo2 = "v90"; vVo2 = "v91"; vMask = "v93"
    RING = opts.get("ring", 40); RBASE = 256 - 4 * RING
    assert RBASE >= 96
    W0 = opts.get("win", 5); BUDGET = opts.get("budget", 18)
    WHI = opts.get("whi", 7); WLO = opts.get("wlo", 4)
    FF = opts.get("ff", [0, 0x00000010, 0x00012492, 0])
    ENDS = opts.get("ends", 232)
    CKP = opts.get("ckp", [])
    W = WHI
    sFF = "s51"; sQP = "s63"; sLev = "s65"; sHi = "s66"; sLo = "s67"
    sTB = ["s76", "s77", "s78", "s79"]
    def vr(a, n=4): return f"v[{a}:{a+n-1}]"
    DPPF = "row_mask:0xf bank_mask:0xf"
    def timeout():
        e(f"s_sub_u32 {sTO}, {sTO}, 1"); e("s_cbranch_scc1 L_end")
    def lds_wait(lbl, off, val, vaddr, vtmp, sleep=1):
        e(f"v_mov_b32 {vaddr}, {L_FLAG + off}")
        A.label(lbl)
        e(f"ds_read_b32 {vtmp}, {vaddr}")
        timeout()
        e("s_waitcnt lgkmcnt(0)")
        e(f"v_readfirstlane_b32 {sT[0]}, {vtmp}")
        e(f"s_cmp_ge_u32 {sT[0]}, {val}"); e(f"s_cbranch_scc1 {lbl}_go")
        e(f"s_sleep {sleep}"); e(f"s_branch {lbl}")
        A.label(lbl + "_go")

    A.raw(f"; @launch grid=(256,1,1) block=(512,1,1) lds={L_TOTAL}")
    A.raw('.amdgcn_target "amdgcn-amd-amdhsa--gfx950"')
    A.raw(".text"); A.raw(f".globl {NAME}"); A.raw(".p2align 8"); A.raw(f".type {NAME},@function"); A.label(NAME)
    e("s_load_dwordx2 s[32:33], s[0:1], 8")
    stamp(0)
    e("s_cmpk_ge_u32 s2, 256"); e("s_cbranch_scc1 L_end")
    e("v_cmp_lt_u32 vcc, 0xff, v0")
    e(f"v_and_b32 {vKo}, 3, v0"); e(f"v_lshlrev_b32 {vKo}, 4, {vKo}"); e("v_and_b32 v5, 48, v0"); e(f"v_lshl_or_b32 {vKo}, v5, 2, {vKo}")
    e("s_cbranch_vccnz L_service")
    e("v_and_b32 v5, 0xcc, v0"); e(f"v_lshl_or_b32 {vKo}, v5, 6, {vKo}")
    e(f"s_lshl_b32 {sOff}, s2, 19")
    e(f"s_mov_b32 s34, {KV_BYTES}"); e("s_mov_b32 s35, 0x20000")
    e("s_waitcnt lgkmcnt(0)")
    for n in range(4): e(f"buffer_load_dwordx4 {vr(RBASE+4*n)}, {vKo}, {srdK}, {sOff} offen offset:{n*1024} {opts.get('kvpol', 'nt')}")
    e("s_branch L_stream")
    def common():
        e("s_load_dwordx16 s[8:23], s[0:1], 0")
        e("s_load_dwordx8 s[24:31], s[0:1], 64")
        if opts.get("probe"): e("s_memrealtime s[80:81]")
        if debug: e("s_memtime s[100:101]")
        e(f"v_lshrrev_b32 v5, 6, v0"); e(f"v_and_b32 {vLane}, 63, v0")
        e(f"v_readfirstlane_b32 {sW}, v5")
        e(f"s_lshr_b32 {sG}, s2, 5"); e(f"s_and_b32 {sC}, s2, 31")
        e(f"v_lshlrev_b32 {vVo}, 4, {vLane}")
    def common2():
        e(f"s_mov_b32 {sSelLo}, 0x05040100"); e(f"s_mov_b32 {sSelHi}, 0x07060302")
        e(f"s_mov_b32 {sTO}, 0x400000")
        roles()
    def roles():
        e(f"s_mov_b32 {sRole}, 0"); e(f"s_mov_b32 {sIdx}, 0")
        e(f"s_lshl_b32 {sT[0]}, {sG}, 1"); e(f"s_add_u32 {sT[0]}, {sT[0]}, {sC}"); e(f"s_sub_u32 {sT[0]}, {sT[0]}, 15")
        e(f"s_cmp_lt_u32 {sC}, 17"); e(f"s_cselect_b32 {sRole}, 3, {sRole}"); e(f"s_cselect_b32 {sIdx}, {sT[0]}, {sIdx}")
        if opts.get("xmap", True):
            e(f"s_lshl_b32 {sT[0]}, {sC}, 3"); e(f"s_add_u32 {sT[0]}, {sT[0]}, {sG}"); e(f"s_sub_u32 {sT[0]}, {sT[0]}, 64")
        else:
            e(f"s_mul_i32 {sT[0]}, {sG}, 7"); e(f"s_add_u32 {sT[0]}, {sT[0]}, {sC}"); e(f"s_sub_u32 {sT[0]}, {sT[0]}, 8")
        e(f"s_cmp_lt_u32 {sC}, 15"); e(f"s_cselect_b32 {sRole}, 2, {sRole}"); e(f"s_cselect_b32 {sIdx}, {sT[0]}, {sIdx}")
        e(f"s_cmp_lt_u32 {sC}, 8"); e(f"s_cselect_b32 {sRole}, 1, {sRole}"); e(f"s_cselect_b32 {sIdx}, {sC}, {sIdx}")
    A.raw("@@SERVICE_HEAD@@")

    A.label("L_stream")
    e(f"v_add_u32 {vKo2}, 0x4000, {vKo}")
    vVs = "v0"
    NI = 16; NL = 8 * NI
    def slot(idx): return RBASE + 4 * (idx % RING)
    def issue(s):
        n = s & 7
        if s < 4: return
        if s == NL: e(f"s_lshl_b32 {sOff}, s2, 19")
        elif n == 0 and s: e(f"s_add_u32 {sOff}, {sOff}, 0x8000")
        if s < NL: e(f"buffer_load_dwordx4 {vr(slot(s))}, {vKo if n < 4 else vKo2}, {srdK}, {sOff} offen offset:{(n%4)*1024} {opts.get('kvpol', 'nt')}")
        else: e(f"buffer_load_dwordx4 {vr(slot(s))}, {vVs if n < 4 else vVo2}, {srdV}, {sOff} offen offset:{(n%4)*1024} {opts.get('kvpol', 'nt')}")
    tasks = []
    def task(need, frees, ins): tasks.append(dict(need=need, frees=frees, ins=ins))
    def xlane(op, r, tmp):
        return [f"v_{op}_f32_dpp {r}, {r}, {r} row_ror:8 {DPPF}", f"v_{op}_f32_dpp {r}, {r}, {r} row_ror:4 {DPPF}",
                f"v_mov_b32 {tmp}, {r}", f"v_permlane16_swap_b32 {tmp}, {r}", f"v_{op}_f32 {r}, {tmp}, {r}",
                f"v_mov_b32 {tmp}, {r}", f"v_permlane32_swap_b32 {tmp}, {r}", f"v_{op}_f32 {r}, {tmp}, {r}"]
    for i in range(NI):
        for n in range(8):
            task(8*i+n, [8*i+n], [f"v_mfma_f32_16x16x32_bf16 {vr(T+4*n)}, {vr(slot(8*i+n))}, {vr(BQ+4*(n&3))}, 0"])
        for t in range(2):
            ins = []
            for m in range(4):
                X = (vX0, vX1)[t]; Y = (vY0, vY1)[t]; D = T + 4 * (4*t+m)
                ins.append(f"v_add_f32_dpp {Y}, v{D+3}, v{D+1} row_ror:8 row_mask:0xf bank_mask:{1 << ((m+1)&3):#x}")
                ins.append(f"v_add_f32_dpp {X}, v{D+2}, v{D} row_ror:8 row_mask:0xf bank_mask:{1 << m:#x}")
            task(-1, [], ins)
        task(-1, [], [f"v_add_f32_dpp {vX0}, {vY0}, {vX0} row_ror:12 {DPPF}", f"v_add_f32_dpp {vX1}, {vY1}, {vX1} row_ror:12 {DPPF}",
                      f"v_cvt_pk_bf16_f32 {vY0}, {vX0}, {vX1}",
                      f"v_lshlrev_b32 {vX0}, 16, {vY0}", f"v_and_b32 {vX1}, 0xffff0000, {vY0}",
                      f"v_mul_f32 {vX0}, {sScale}, {vX0}", f"v_mul_f32 {vX1}, {sScale}, {vX1}",
                      f"v_cvt_pk_bf16_f32 v{SPK+i}, {vX0}, {vX1}",
                      f"v_lshlrev_b32 {vX0}, 16, v{SPK+i}", f"v_and_b32 {vX1}, 0xffff0000, v{SPK+i}",
                      (f"v_max_f32 {vML}, {vX0}, {vX1}" if i == 0 else f"v_max3_f32 {vML}, {vML}, {vX0}, {vX1}")])
    task(-1, [], xlane("max", vML, vb) + [f"v_mul_f32 {vML}, {sL2E}, {vML}"])
    task(-1, [], [f"v_mov_b32 v{PV_+k}, 0" for k in range(16)])
    for i in range(0, NI, 2):
        ins = []
        tmp = [(vX0, vX1), (vY0, vY1)]
        for k in range(2):
            a, b = tmp[k]; ins += [f"v_lshlrev_b32 {a}, 16, v{SPK+i+k}", f"v_and_b32 {b}, 0xffff0000, v{SPK+i+k}"]
        for k in range(2):
            a, b = tmp[k]; ins += [f"v_fma_f32 {a}, {a}, {sL2E}, -{vML}", f"v_fma_f32 {b}, {b}, {sL2E}, -{vML}"]
        for k in range(2):
            a, b = tmp[k]; ins += [f"v_exp_f32 {a}, {a}", f"v_exp_f32 {b}, {b}"]
        ins += [f"v_add_f32 {va}, {vX0}, {vX1}", f"v_cvt_pk_bf16_f32 v{SPK+i}, {vX0}, {vX1}", f"v_add_f32 {vb}, {vY0}, {vY1}", f"v_cvt_pk_bf16_f32 v{SPK+i+1}, {vY0}, {vY1}"]
        ins += [f"v_add_f32 {vL}, {va}, {vb}"] if i == 0 else [f"v_add_f32 {va}, {va}, {vb}", f"v_add_f32 {vL}, {vL}, {va}"]
        task(-1, [], ins)
    task(-1, [], xlane("add", vL, vb) + [f"ds_write_b64 {vMSa}, v[{M+6}:{M+7}]", f"v_mov_b32 {va}, {L_FLAG+4}", f"v_mov_b32 {vb}, 1",
                                         "s_mov_b64 exec, 1", f"ds_add_u32 {va}, {vb}", "s_mov_b64 exec, -1"])
    order = [0, 4, 1, 5, 2, 6, 3, 7]
    for i in range(NI):
        L0 = NL + 8 * i
        def perm(ee, k):
            rho = ee & 3; t = k >> 1
            n0 = 4 * t + ((rho + 2 * (k & 1)) & 3); n1 = 4 * t + ((rho + 2 * (k & 1) + 1) & 3)
            return f"v_perm_b32 v{T+4*ee+k}, v{slot(L0+n1)+(ee>>1)}, v{slot(L0+n0)+(ee>>1)}, {sSelHi if ee & 1 else sSelLo}"
        def mf(ee):
            ac = vr(ACC + 4 * (ee >> 2))
            return f"v_mfma_f32_16x16x32_bf16 {ac}, {vr(T+4*ee)}, {vr(PV_+4*(ee&3))}, {ac if (i or (ee & 3)) else 0}"
        ins = [f"v_mov_b32_dpp {vY0}, v{SPK+i} row_ror:12 {DPPF}",
               f"v_perm_b32 {vX0}, {vY0}, v{SPK+i}, {sSelLo}", f"v_perm_b32 {vX1}, {vY0}, v{SPK+i}, {sSelHi}"]
        for rho in range(4):
            bm = f"row_mask:0xf bank_mask:{1 << rho:#x}"
            ins += [f"v_mov_b32_dpp v{PV_+4*rho+0}, {vX0} quad_perm:[0,1,2,3] {bm}", f"v_mov_b32_dpp v{PV_+4*rho+1}, {vX0} row_ror:8 {bm}",
                    f"v_mov_b32_dpp v{PV_+4*rho+2}, {vX1} quad_perm:[0,1,2,3] {bm}", f"v_mov_b32_dpp v{PV_+4*rho+3}, {vX1} row_ror:8 {bm}"]
        task(-1, [], ins[:11]); task(-1, [], ins[11:])
        task(L0+3, [], [perm(ee, k) for ee in range(4) for k in range(2)])
        task(L0+3, [L0, L0+1, L0+2, L0+3], [perm(ee, k) for ee in range(4, 8) for k in range(2)])
        ins = []
        for idx, ee in enumerate(order):
            ins += [perm(ee, 2), perm(ee, 3)]
            if idx >= 1: ins.append(mf(order[idx - 1]))
        ins.append(mf(order[7]))
        task(L0+7, [], ins[:11]); task(L0+7, [L0+4, L0+5, L0+6, L0+7], ins[11:])

    def setup_misc():
        common(); common2()
        e(f"v_lshl_add_u32 {vVs}, v5, 12, {vVo}"); e(f"v_add_u32 {vVo2}, 0x4000, {vVs}")
        e(f"s_mov_b32 s38, {KV_BYTES}"); e("s_mov_b32 s39, 0x20000")
        e(f"s_mov_b32 {sScale}, 0x3db504f3")
        e(f"s_mov_b32 {sL2E}, 0x3fb8aa3b")
        e(f"v_and_b32 {vMSa}, 3, {vLane}"); e(f"v_lshlrev_b32 {vMSa}, 3, {vMSa}")
        e(f"s_lshl_b32 {sT[0]}, {sW}, 5"); e(f"s_add_u32 {sT[0]}, {sT[0]}, {L_MS}"); e(f"v_add_u32 {vMSa}, {sT[0]}, {vMSa}")
        e(f"v_and_b32 {va}, 3, {vLane}"); e(f"v_lshlrev_b32 {va}, 8, {va}")
        e(f"v_lshrrev_b32 {vb}, 4, {vLane}"); e(f"v_lshlrev_b32 {vb}, 6, {vb}")
        e(f"s_mov_b32 {sT[0]}, {L_Q}")
        e(f"v_add3_u32 {va}, {va}, {vb}, {sT[0]}")
        e(f"v_bfe_u32 {vb}, {vLane}, 2, 2")
        for m in range(4):
            e(f"v_subrev_u32 {vc}, {m}, {vb}"); e(f"v_and_b32 {vc}, 3, {vc}")
            e(f"v_lshl_add_u32 v{T+m}, {vc}, 4, {va}")
        e(f"s_lshl_b32 {sT[0]}, {sW}, 11"); e(f"s_add_u32 {sT[0]}, {sT[0]}, {L_ACC}")
        e(f"v_add_u32 v92, {sT[0]}, {vVo}")
        e(f"s_mov_b32 {sFF}, {FF[0]}")
        for r in (1, 2, 3): e(f"s_cmp_eq_u32 {sRole}, {r}"); e(f"s_cselect_b32 {sFF}, {FF[r]}, {sFF}")
        e(f"s_cmp_ge_u32 {sC}, {32 - 8 * opts.get('np', 2)}"); e(f"s_cselect_b32 {sT[0]}, {opts.get('ffq', 0x48)}, 0"); e(f"s_or_b32 {sFF}, {sFF}, {sT[0]}")
        e("s_waitcnt lgkmcnt(0)")
        e(f"s_mov_b32 s36, s{sV}"); e(f"s_mov_b32 s37, s{sV+1}")
        e(f"v_mov_b32 v94, {L_FLAG}"); e(f"v_cmp_eq_u32 vcc, 0, {vLane}"); e("v_cndmask_b32 v95, 0, 1, vcc"); e(f"v_mov_b32 {vS0}, 0"); e(f"v_mov_b32 {vS1}, 0")
    def emit_task(t):
        for x in t["ins"]:
            if opts.get("nocomp") and (x.startswith("v_perm") or x.startswith("v_mfma") or "_dpp" in x): continue
            e(x)
        return len(t["ins"])
    ti = 0; freed = set()
    for s in range(2 * NL):
        if s == W0:
            setup_misc()
            e("s_barrier")
        if s == RING:
            stamp(1)
            lds_wait("L_qw", 0, 1, va, vb)
            for m in range(4): e(f"ds_read_b128 {vr(BQ+4*m)}, v{T+m}")
            stamp(2)
            e("s_waitcnt lgkmcnt(0)")
        if s >= RING:
            while (s - RING) not in freed:
                assert tasks[ti]["need"] <= s - 1 - W
                emit_task(tasks[ti]); freed.update(tasks[ti]["frees"]); ti += 1
        if s >= ENDS: e(f"s_waitcnt vmcnt({WHI-1})")
        elif s >= 8:
            e(f"s_waitcnt vmcnt({WHI-1})")
            e(f"s_cmp_eq_u32 {sLev}, 2"); e(f"s_cbranch_scc1 L_go{s}")
            A.opt(f"s_waitcnt vmcnt({W0-1})")
            A.opt(f"s_cmp_eq_u32 {sLev}, 1"); A.opt(f"s_cbranch_scc1 L_go{s}")
            A.opt(f"s_waitcnt vmcnt({WLO-1})")
            A.label(f"L_go{s}")
        elif s >= W0: e(f"s_waitcnt vmcnt({W0-1})")
        if debug and s == 4: e("s_memrealtime s[70:71]")
        if debug and s == W0: e("s_memrealtime s[72:73]")
        issue(s)
        if s == opts.get("qstart", 24): e("ds_add_u32 v94, v95 offset:36")
        SG = opts.get("sg", 180); CA, GA = opts.get("cka", (88, 120))
        if s in (SG, CA, GA): e("ds_add_u32 v94, v95 offset:20")
        CP = opts.get("cper", 4)
        if (s % 8 == 7 or (s >= GA and s % CP == CP - 1)) and s + 1 < ENDS:
            dyn = s >= GA
            if dyn:
                e("s_waitcnt lgkmcnt(0)")
                e(f"v_readfirstlane_b32 {sHi}, {vS0}"); e(f"v_readfirstlane_b32 {sLo}, {vS1}")
                e(f"ds_read_b64 v[{M+4}:{M+5}], v94 offset:24")
            e(f"s_bitcmp1_b32 {sFF}, {(s+1)//8}"); e(f"s_cselect_b32 {sLev}, 2, 1")
            if dyn:
                e(f"s_cmpk_gt_i32 {sHi}, {s+CP//2}"); e(f"s_cselect_b32 {sLev}, 2, {sLev}")
                e(f"s_cmpk_gt_i32 {sLo}, {s+CP//2}"); e(f"s_cselect_b32 {sLev}, 0, {sLev}")
        if s >= RING:
            spent = 0
            while ti < len(tasks) and tasks[ti]["need"] <= s - W and (spent == 0 or spent + len(tasks[ti]["ins"]) <= BUDGET):
                spent += emit_task(tasks[ti]); freed.update(tasks[ti]["frees"]); ti += 1
        if debug and s == NL: e("s_memrealtime s[74:75]")
    landed = 2 * NL - 1 - W
    while ti < len(tasks):
        if tasks[ti]["need"] > landed:
            landed = tasks[ti]["need"]; e(f"s_waitcnt vmcnt({2*NL-1-landed})")
        emit_task(tasks[ti]); ti += 1
    stamp(3)
    e(f"ds_write_b128 v92, {vr(ACC)}"); e(f"ds_write_b128 v92, {vr(ACC+4)} offset:1024")
    e("s_waitcnt lgkmcnt(0)")
    e("s_barrier")
    stamp(4)
    e(f"s_cmp_eq_u32 {sRole}, 1"); e("s_cbranch_scc1 L_st1")
    e(f"s_cmp_eq_u32 {sRole}, 2"); e("s_cbranch_scc1 L_st2")
    e("s_branch L_fin")

    def poll(lbl, loads, regs, sleep=0):
        A.label(lbl)
        timeout()
        if sleep: e(f"s_sleep {sleep}")
        for l in loads: e(l)
        regs = list(regs)
        n = len(loads)
        for li in range(n):
            e(f"s_waitcnt vmcnt({n-1-li})")
            r = regs[4*li:4*li+4]
            for k in range(4): e(f"v_xor_b32 v{r[k]}, {sTB[k]}, v{r[k]}")
            if li == 0: e(f"v_or_b32 {va}, v{r[0]}, v{r[1]}"); e(f"v_or_b32 {vb}, v{r[2]}, v{r[3]}")
            else: e(f"v_or3_b32 {va}, {va}, v{r[0]}, v{r[1]}"); e(f"v_or3_b32 {vb}, {vb}, v{r[2]}, v{r[3]}")
        e(f"v_bitop3_b32 {va}, {va}, {vb}, {vMask} bitop3:0x54")
        e(f"v_cmp_ne_u32 vcc, 0, {va}")
        e(f"s_cbranch_vccnz {lbl}")
    def mpoll(lbl, loads, regs):
        n = len(loads); regs = list(regs); sP = sT[6]
        A.label(lbl)
        timeout()
        for phase in range(2):
            for g0 in range(0, n, 4):
                e(f"s_and_b32 {sT[7]}, {sP}, {0xf << g0}"); e(f"s_cbranch_scc0 {lbl}_{phase}g{g0}")
                for k in range(g0, min(n, g0 + 4)):
                    e(f"s_bitcmp0_b32 {sP}, {k}"); e(f"s_cbranch_scc1 {lbl}_{phase}k{k}")
                    if phase == 0: e(loads[k])
                    else:
                        r = regs[4*k:4*k+4]
                        for j in range(4): e(f"v_xor_b32 v{r[j]}, {sTB[j]}, v{r[j]}")
                        e(f"v_or3_b32 {va}, v{r[0]}, v{r[1]}, v{r[2]}"); e(f"v_bitop3_b32 {va}, {va}, v{r[3]}, {vMask} bitop3:0x54")
                        e(f"v_cmp_ne_u32 vcc, 0, {va}"); e(f"s_cbranch_vccnz {lbl}_{phase}k{k}")
                        e(f"s_bitset0_b32 {sP}, {k}")
                    A.label(f"{lbl}_{phase}k{k}")
                A.label(f"{lbl}_{phase}g{g0}")
            if phase == 0:
                A.label(lbl + "_w")
                e("s_waitcnt vmcnt(0)")
        e(f"s_cmp_eq_u32 {sP}, 0"); e(f"s_cbranch_scc0 {lbl}")
        A.fence()
    def tag4(b):
        for k in range(4): e(f"v_and_or_b32 v{b+k}, v{b+k}, {vMask}, {sTB[k]}")
    def get_tag():
        e(f"v_mov_b32 {va}, {L_FLAG+16}"); e(f"ds_read_b32 {va}, {va}"); e(f"v_mov_b32 {vMask}, 0xffffff00")
        e("s_waitcnt lgkmcnt(0)")
        e(f"v_readfirstlane_b32 {sTag}, {va}")
        for k in range(4): e(f"s_bfe_u32 {sTB[k]}, {sTag}, {(8 << 16) | (8 * k):#x}")
    def wfrag(dst, raw, nload, ldsoff):
        e(f"s_mul_i32 {sT[0]}, {sW}, {WPW}"); e(f"v_add_u32 {va}, {sT[0]}, {vVo}")
        for n in range(nload): e(f"ds_read_b128 {vr(raw+4*n)}, {va} offset:{ldsoff + 1024*n}")
        e("s_waitcnt lgkmcnt(0)")
        wperm(dst, raw, nload)
    def wperm(dst, raw, nload):
        h = nload // 2
        for ee in range(8):
            for k in range(h):
                e(f"v_perm_b32 v{dst+h*ee+k}, v{raw+4*(2*k+1)+(ee>>1)}, v{raw+4*(2*k)+(ee>>1)}, {sSelHi if ee & 1 else sSelLo}")
    def pk(a, b): e(f"v_pk_add_f32 v[{a}:{a+1}], v[{a}:{a+1}], v[{b}:{b+1}]")
    def add4(a, b): pk(a, b); pk(a + 2, b + 2)
    F1 = 128; RAW = 192; G = 12; DD = 160; F2 = 224
    def svc_join(lbl):
        e(f"s_cmp_lt_u32 {sW}, 4"); e(f"s_cbranch_scc1 {lbl}")
        e("s_call_b64 s[66:67], L_publish")
        A.label(lbl)

    def gu_fold():
        for k in range(4):
            e(f"v_add_f32_dpp v{12+k}, v{DD+4*k+2}, v{DD+4*k} row_ror:8 row_mask:0xf bank_mask:0x3")
        for k in range(4):
            e(f"v_add_f32_dpp v{12+k}, v{DD+4*(k+4)}, v{DD+4*(k+4)+2} row_ror:8 row_mask:0xf bank_mask:0xc")
    A.label("L_st1")
    e(f"v_bfe_u32 {vc}, {vLane}, 2, 2"); e(f"v_lshlrev_b32 {vc}, 11, {vc}")
    e(f"v_lshrrev_b32 {vd}, 4, {vLane}"); e(f"v_lshl_add_u32 {vc}, {vd}, 6, {vc}"); e(f"v_and_b32 {vd}, 3, {vLane}"); e(f"v_lshl_add_u32 {vc}, {vd}, 4, {vc}")
    s1G, s1C = (sIdx, sG) if opts.get("s1swap", True) else (sG, sIdx)
    e(f"s_lshl_b32 {sT[0]}, {s1G}, 16"); e(f"s_add_u32 {sT[0]}, {sT[0]}, {WS_PART}")
    e(f"s_lshl_b32 {sT[1]}, {sW}, 8"); e(f"s_add_u32 {sT[0]}, {sT[0]}, {sT[1]}")
    if opts.get("s1rot", True):
        e(f"s_lshl_b32 {sT[1]}, {s1C}, 13"); e(f"s_add_u32 {sT[0]}, {sT[0]}, {sT[1]}")
    e(f"v_add_u32 v44, {sT[0]}, {vc}")
    for it in range(1, 8): e(f"v_xor_b32 v{44+it}, {4*PREC*it}, v44")
    ld1 = [f"global_load_dwordx4 {vr(G+4*it)}, v{44+it}, {sp(sWS)} sc1" for it in range(8)]
    e(f"s_cmp_lt_u32 {sW}, 4"); e("s_cbranch_scc0 L_s1a")
    e("s_barrier")
    for l in ld1: e(l)
    A.label("L_s1a")
    get_tag()
    wfrag(F1, RAW, 8, 0)
    e(f"s_lshl_b32 {sT[0]}, {sW}, 8"); e(f"s_add_u32 {sT[0]}, {sT[0]}, {L_RED}")
    e(f"v_and_b32 {vY0}, 7, {vLane}"); e(f"v_lshlrev_b32 {vY0}, 5, {vY0}"); e(f"v_and_b32 {vd}, 8, {vLane}"); e(f"v_lshl_add_u32 {vY0}, {vd}, 1, {vY0}"); e(f"v_add_u32 {vY0}, {sT[0]}, {vY0}")
    e(f"v_add_u32 {vY1}, {L_RED}, {vVo}")
    e(f"s_lshl_b32 {sT[0]}, {s1G}, 11"); e(f"s_lshl_b32 {sT[1]}, {s1C}, 8"); e(f"s_add_u32 {sT[0]}, {sT[0]}, {sT[1]}"); e(f"s_add_u32 {sT[0]}, {sT[0]}, {WS_A1}")
    e(f"v_add_u32 {vS0}, {sT[0]}, {vVo}")
    e(f"s_mov_b32 {sT[6]}, 0xff")
    e(f"s_cmp_lt_u32 {sW}, 4"); e("s_cbranch_scc1 L_poll1_w")
    e("s_call_b64 s[66:67], L_publish")
    mpoll("L_poll1", ld1, range(12, 44))
    stamp(6)
    add4(12, 16); add4(20, 24); add4(28, 32); add4(36, 40); add4(12, 20); add4(28, 36); add4(12, 28)
    for s in (8, 4):
        for r in range(4): e(f"v_add_f32_dpp v{12+r}, v{12+r}, v{12+r} row_ror:{s} {DPPF}")
    e("v_cvt_pk_bf16_f32 v52, v12, v13"); e("v_cvt_pk_bf16_f32 v53, v14, v15")
    e(f"v_mov_b32_dpp v54, v52 quad_perm:[1,0,3,2] {DPPF}"); e(f"v_mov_b32_dpp v55, v53 quad_perm:[1,0,3,2] {DPPF}")
    for ee in range(8): e(f"v_mfma_f32_16x16x32_bf16 {vr(DD+4*ee)}, v[52:55], {vr(F1+4*ee)}, 0")
    gu_fold()
    e("s_mov_b64 exec, 0xffff")
    e(f"ds_write_b128 {vY0}, v[12:15]")
    e("s_waitcnt lgkmcnt(0)")
    e("s_barrier")
    e(f"s_cmp_eq_u32 {sW}, 0"); e("s_cbranch_scc0 L_fin")
    for w in range(8): e(f"ds_read_b128 {vr(12+4*w)}, {vY1} offset:{256*w}")
    for w in range(0, 8, 2):
        e(f"s_waitcnt lgkmcnt({6-w})")
        add4(12 + 4*w, 16 + 4*w)
        if w in (2, 6): add4(12 + 4*(w-2), 12 + 4*w)
    add4(12, 28)
    tag4(12)
    e(f"global_store_dwordx4 {vS0}, v[12:15], {sp(sWS)} sc1")
    stamp(7)
    e("s_branch L_fin")

    LATE = opts.get("latedown", True)
    def down_addr():
        e(f"v_lshrrev_b32 v9, 4, {vLane}"); e("v_lshlrev_b32 v9, 13, v9")
        e(f"v_and_b32 v7, 15, {vLane}"); e("v_lshl_add_u32 v9, v7, 4, v9")
        e(f"s_lshl_b32 {sT[2]}, {sIdx}, 15"); e(f"s_and_b32 {sT[3]}, {sW}, 3"); e(f"s_lshl_b32 {sT[3]}, {sT[3]}, 8"); e(f"s_add_u32 {sT[2]}, {sT[2]}, {sT[3]}")
        e(f"s_add_u32 {sT[2]}, {sT[2]}, 4096"); e(f"v_add_u32 v9, {sT[2]}, v9")
    def down_loads(paced):
        if paced:
            e(f"s_cmp_eq_u32 {sRole}, 2"); e("s_cbranch_scc0 L_nodown")
            down_addr()
        for ep in range(8):
            e(f"global_load_dwordx4 {vr(RAW+4*ep)}, v9, {sp(sWD)} offset:{1024*ep - 4096} nt")
            if paced: e(f"s_waitcnt vmcnt({1 if ep < 7 else 0})")
        if paced: wperm(F2, RAW, 8)
    A.label("L_st2")
    e(f"s_cmp_lt_u32 {sW}, 4"); e("s_cbranch_scc0 L_s2a")
    e("s_barrier")
    A.label("L_s2a")
    get_tag()
    e(f"v_lshrrev_b32 {vc}, 4, {vLane}"); e(f"v_lshlrev_b32 {vc}, 2, {vc}"); e(f"v_and_b32 {vd}, 3, {vLane}"); e(f"v_add_u32 {vc}, {vc}, {vd}")
    e(f"s_lshl_b32 {sT[0]}, {sW}, 4"); e(f"v_add_u32 {vc}, {sT[0]}, {vc}")
    e(f"v_lshlrev_b32 {vd}, 3, {vc}")
    e(f"global_load_dwordx2 v[28:29], {vd}, {sp(sX)}")
    wfrag(F1, RAW, 8, 0)
    e(f"v_bfe_u32 {vd}, {vLane}, 2, 2"); e(f"v_lshlrev_b32 {vd}, 11, {vd}")
    e(f"v_lshl_add_u32 v36, {vc}, 4, {vd}"); e(f"v_add_u32 v36, {WS_A1}, v36")
    e(f"v_add_u32 v37, 8192, v36")
    e(f"s_lshl_b32 {sT[0]}, {sW}, 3"); e(f"s_add_u32 {sT[0]}, {sT[0]}, {L_STAT}"); e(f"v_mov_b32 v40, {sT[0]}")
    e(f"v_bfe_u32 v41, {vLane}, 1, 3"); e("v_lshlrev_b32 v41, 3, v41"); e(f"v_add_u32 v41, {L_STAT}, v41")
    e(f"v_mov_b32 v30, {L_STAT}")
    e(f"s_lshl_b32 {sT[0]}, {sW}, 8"); e(f"s_add_u32 {sT[0]}, {sT[0]}, {L_RED}")
    e(f"v_and_b32 v42, 7, {vLane}"); e("v_lshlrev_b32 v42, 5, v42"); e(f"v_and_b32 {vd}, 8, {vLane}"); e(f"v_lshl_add_u32 v42, {vd}, 1, v42"); e(f"v_add_u32 v42, {sT[0]}, v42")
    e(f"v_bfe_u32 v43, {vLane}, 1, 3"); e("v_lshlrev_b32 v43, 8, v43")
    e(f"v_lshrrev_b32 {vd}, 4, {vLane}"); e(f"v_lshl_add_u32 v43, {vd}, 5, v43")
    e(f"v_and_b32 {vd}, 1, {vLane}"); e(f"v_lshl_add_u32 v43, {vd}, 4, v43"); e(f"v_add_u32 v43, {L_RED}, v43")
    e(f"s_lshl_b32 {sT[0]}, {sIdx}, 11"); e(f"s_and_b32 {sT[1]}, {sW}, 3"); e(f"s_lshl_b32 {sT[1]}, {sT[1]}, 9"); e(f"s_add_u32 {sT[0]}, {sT[0]}, {sT[1]}"); e(f"s_add_u32 {sT[0]}, {sT[0]}, {WS_D2}")
    e(f"v_and_b32 {vS0}, 15, {vLane}"); e(f"v_lshlrev_b32 {vS0}, 5, {vS0}"); e(f"v_and_b32 {vd}, 16, {vLane}"); e(f"v_add3_u32 {vS0}, {vS0}, {vd}, {sT[0]}")
    e("s_waitcnt vmcnt(0)")
    e("v_lshlrev_b32 v32, 16, v28"); e("v_and_b32 v33, 0xffff0000, v28"); e("v_lshlrev_b32 v34, 16, v29"); e("v_and_b32 v35, 0xffff0000, v29")
    if LATE: down_addr()
    e(f"s_cmp_lt_u32 {sW}, 4"); e("s_cbranch_scc1 L_j2")
    e("s_call_b64 s[66:67], L_publish")
    if LATE: down_loads(False)
    A.label("L_j2")
    for k in range(4): e(f"v_mov_b32 v{52+k}, 0x3f803f80")
    for ee in range(8): e(f"v_mfma_f32_16x16x32_bf16 {vr(DD+4*ee)}, v[52:55], {vr(F1+4*ee)}, 0")
    gu_fold()
    e("s_mov_b64 exec, 0xffff"); e("ds_write_b128 v42, v[12:15] offset:2048"); e("s_mov_b64 exec, -1")
    e("s_waitcnt lgkmcnt(0)")
    e("s_barrier")
    CS = 64
    e(f"ds_read_b128 {vr(CS)}, v43 offset:2048"); e(f"ds_read_b128 {vr(CS+4)}, v43 offset:{2048+128}")
    e("s_waitcnt lgkmcnt(0)")
    for s in (8, 4, 2):
        for r in range(8): e(f"v_add_f32_dpp v{CS+r}, v{CS+r}, v{CS+r} row_ror:{s} {DPPF}")
    if LATE:
        e(f"s_cmp_lt_u32 {sW}, 4"); e("s_cbranch_scc1 L_poll2")
        e("s_waitcnt vmcnt(0)")
        wperm(F2, RAW, 8)
        stamp(2)
    poll("L_poll2", [f"global_load_dwordx4 {vr(G+4*it)}, v{36+it}, {sp(sWS)} sc1" for it in range(2)], range(12, 20))
    stamp(6)
    add4(12, 16)
    for s in (8, 4):
        for r in range(4): e(f"v_add_f32_dpp v{12+r}, v{12+r}, v{12+r} row_ror:{s} {DPPF}")
    def rnd4(b, t):
        e(f"v_cvt_pk_bf16_f32 v{t}, v{b}, v{b+1}"); e(f"v_cvt_pk_bf16_f32 v{t+1}, v{b+2}, v{b+3}")
        e(f"v_lshlrev_b32 v{b}, 16, v{t}"); e(f"v_and_b32 v{b+1}, 0xffff0000, v{t}")
        e(f"v_lshlrev_b32 v{b+2}, 16, v{t+1}"); e(f"v_and_b32 v{b+3}, 0xffff0000, v{t+1}")
    rnd4(12, 16)
    add4(12, 32)
    e("v_cvt_pk_bf16_f32 v52, v12, v13"); e("v_cvt_pk_bf16_f32 v53, v14, v15")
    e("v_lshlrev_b32 v16, 16, v52"); e("v_and_b32 v17, 0xffff0000, v52")
    e(f"v_mov_b32_dpp v54, v52 quad_perm:[1,0,3,2] {DPPF}"); e(f"v_mov_b32_dpp v55, v53 quad_perm:[1,0,3,2] {DPPF}")
    e(f"v_readfirstlane_b32 {sT[2]}, v16")
    e("v_lshlrev_b32 v18, 16, v53"); e("v_and_b32 v19, 0xffff0000, v53")
    st = [f"v_subrev_f32 v{16+r}, {sT[2]}, v{16+r}" for r in range(4)]
    st += ["v_add_f32 v20, v16, v17", "v_mul_f32 v21, v16, v16", "v_add_f32 v22, v18, v19", "v_fmac_f32 v21, v17, v17",
           "v_add_f32 v20, v20, v22", "v_fmac_f32 v21, v18, v18", "v_fmac_f32 v21, v19, v19"]
    for qp in ("[1,0,3,2]", "[2,3,0,1]"):
        st += [f"v_add_f32_dpp v20, v20, v20 quad_perm:{qp} {DPPF}", f"v_add_f32_dpp v21, v21, v21 quad_perm:{qp} {DPPF}"]
    st += ["v_permlane32_swap_b32 v20, v21", "v_add_f32 v20, v20, v21", "v_mov_b32 v21, v20", "v_permlane16_swap_b32 v21, v20", "v_add_f32 v20, v20, v21",
           f"v_readlane_b32 {sT[3]}, v20, 32", "v_mul_f32 v21, 0x3c800000, v20", f"v_add_f32 v22, {sT[2]}, v21", f"v_fma_f32 v23, -v21, v20, {sT[3]}"]
    cuts = [0, 3, 6, 9, 12, 13, 15, 18, len(st)]
    for ee in range(8):
        e(f"v_mfma_f32_16x16x32_bf16 {vr(DD+4*ee)}, v[52:55], {vr(F1+4*ee)}, 0")
        for x in st[cuts[ee]:cuts[ee+1]]: e(x)
    gu_fold()
    e("s_mov_b64 exec, 0xffff")
    e("ds_write_b64 v40, v[22:23]")
    e("ds_write_b128 v42, v[12:15]")
    e("s_mov_b64 exec, -1")
    e("s_waitcnt lgkmcnt(0)")
    e("s_barrier")
    e(f"s_cmp_lt_u32 {sW}, 4"); e("s_cbranch_scc1 L_fin")
    e("ds_read_b64 v[20:21], v41"); e("ds_read_b32 v22, v30")
    e("ds_read_b128 v[12:15], v43"); e("ds_read_b128 v[16:19], v43 offset:128")
    e("s_waitcnt lgkmcnt(2)")
    e("v_sub_f32 v20, v20, v22"); e("v_mul_f32 v23, 0x42800000, v20"); e("v_fmac_f32 v21, v23, v20")
    lnf = ["v_mul_f32 v23, 0x41000000, v20", "v_fma_f32 v21, -v23, v20, v21", "v_fmac_f32 v22, 0x3e000000, v20", "v_mul_f32 v21, 0x3b000000, v21",
           "v_cvt_pk_bf16_f32 v23, v22, v21", "v_lshlrev_b32 v22, 16, v23", "v_and_b32 v21, 0xffff0000, v23", "v_add_f32 v21, 0x3727c5ac, v21",
           "v_cvt_pk_bf16_f32 v23, v21, v21", "v_lshlrev_b32 v21, 16, v23", "v_sqrt_f32 v21, v21", "v_cvt_pk_bf16_f32 v23, v21, v21",
           "v_lshlrev_b32 v21, 16, v23", "v_rcp_f32 v21, v21"]
    for s in (8, 4, 2):
        e(f"v_add_f32_dpp v20, v20, v20 row_ror:{s} {DPPF}"); e(f"v_add_f32_dpp v21, v21, v21 row_ror:{s} {DPPF}")
        if s == 8: e("s_waitcnt lgkmcnt(0)")
        if s != 2:
            for r in range(4 if s == 8 else 0, 8 if s == 8 else 4): e(f"v_add_f32_dpp v{12+r}, v{12+r}, v{12+r} row_ror:8 {DPPF}")
    k = 0
    for s in (4, 2):
        for r in range(8):
            e(f"v_add_f32_dpp v{12+r}, v{12+r}, v{12+r} row_ror:{s} {DPPF}")
            if k < len(lnf): e(lnf[k]); k += 1
    for r in range(8): e(f"v_fma_f32 v{12+r}, -v22, v{CS+r}, v{12+r}")
    for r in range(8): e(f"v_mul_f32 v{12+r}, v21, v{12+r}")
    rnd4(12, 24); rnd4(16, 26)
    e("v_pk_mul_f32 v[12:13], v[12:13], v[16:17]"); e("v_pk_mul_f32 v[14:15], v[14:15], v[18:19]")
    e("v_cvt_pk_bf16_f32 v52, v12, v13"); e("v_cvt_pk_bf16_f32 v53, v14, v15")
    e(f"v_mov_b32_dpp v54, v52 quad_perm:[1,0,3,2] {DPPF}"); e(f"v_mov_b32_dpp v55, v53 quad_perm:[1,0,3,2] {DPPF}")
    for ee in range(8): e(f"v_mfma_f32_16x16x32_bf16 {vr(DD+4*ee)}, v[52:55], {vr(F2+4*ee)}, 0")
    for k in range(4): e(f"v_and_or_b32 v{12+k}, v{DD+4*k}, {vMask}, {sTB[k]}")
    e("s_mov_b32 exec_lo, 0xffff0000"); e("s_mov_b32 exec_hi, 0")
    for k in range(4): e(f"v_and_or_b32 v{12+k}, v{DD+4*(k+4)}, {vMask}, {sTB[k]}")
    e("s_mov_b32 exec_lo, -1")
    e(f"global_store_dwordx4 {vS0}, v[12:15], {sp(sWS)} sc1")
    e("s_mov_b64 exec, -1")
    stamp(7)
    e("s_branch L_fin")
    def ln_finish(vm, vv, t):
        e(f"v_cvt_pk_bf16_f32 {t}, {vm}, {vv}")
        e(f"v_lshlrev_b32 {vm}, 16, {t}"); e(f"v_and_b32 {vv}, 0xffff0000, {t}")
        e(f"v_add_f32 {vv}, 0x3727c5ac, {vv}")
        e(f"v_cvt_pk_bf16_f32 {t}, {vv}, {vv}"); e(f"v_lshlrev_b32 {vv}, 16, {t}")
        e(f"v_sqrt_f32 {vv}, {vv}")
        e(f"v_cvt_pk_bf16_f32 {t}, {vv}, {vv}"); e(f"v_lshlrev_b32 {vv}, 16, {t}")
        e(f"v_rcp_f32 {vv}, {vv}")

    A.label("L_st3")
    get_tag()
    e(f"v_and_b32 {vc}, 7, {vLane}"); e(f"v_lshlrev_b32 {vd}, 2, {vc}"); e(f"v_lshrrev_b32 {vf}, 4, {vLane}"); e(f"v_add_u32 {vd}, {vd}, {vf}")
    e(f"s_lshl_b32 {sT[0]}, {sIdx}, 5"); e(f"v_add_u32 {vd}, {sT[0]}, {vd}"); e(f"v_lshlrev_b32 {vS0}, 1, {vd}")
    e(f"global_load_ushort v60, {vS0}, {sp(sX)}")
    e(f"v_lshrrev_b32 {vd}, 3, {vLane}"); e(f"v_lshlrev_b32 {vd}, 11, {vd}"); e(f"v_lshl_add_u32 {vd}, {vc}, 4, {vd}")
    e(f"s_lshl_b32 {sT[0]}, {sIdx}, 7"); e(f"v_add_u32 {vd}, {sT[0]}, {vd}")
    e(f"v_add_u32 v44, {WS_A1}, {vd}"); e(f"v_add_u32 v45, {WS_A1 + 16384}, {vd}")
    for it in range(7): e(f"v_add_u32 v{46+it}, {WS_D2 + 16384*it}, {vd}")
    e("s_barrier")
    e("s_barrier")
    e(f"v_mov_b32 v61, {sTag}"); e("v_mov_b32 v62, 0")
    def red4(b):
        e(f"v_permlane32_swap_b32 v{b}, v{b+2}"); e(f"v_permlane32_swap_b32 v{b+1}, v{b+3}")
        e(f"v_add_f32 v{b}, v{b}, v{b+2}"); e(f"v_add_f32 v{b+1}, v{b+1}, v{b+3}")
        e(f"v_permlane16_swap_b32 v{b}, v{b+1}"); e(f"v_add_f32 v{b}, v{b}, v{b+1}")
        e(f"v_add_f32_dpp v{b}, v{b}, v{b} row_ror:8 {DPPF}")
    poll("L_poll3a", [f"global_load_dwordx4 v[12:15], v44, {sp(sWS)} sc1"], range(12, 16))
    red4(12)
    e("v_cvt_pk_bf16_f32 v12, v12, v12"); e("v_lshlrev_b32 v12, 16, v12"); e("v_lshlrev_b32 v60, 16, v60")
    e("v_add_f32 v60, v60, v12"); e("v_cvt_pk_bf16_f32 v60, v60, v60"); e("v_lshlrev_b32 v60, 16, v60")
    stamp(6)
    poll("L_poll3b", [f"global_load_dwordx4 {vr(12+4*it)}, v{46+it}, {sp(sWS)} sc1" for it in range(7)], range(12, 40))
    for a, b in ((12, 16), (20, 24), (28, 32), (12, 20), (28, 36), (12, 28)): add4(a, b)
    red4(12)
    e("v_cvt_pk_bf16_f32 v12, v12, v12"); e("v_lshlrev_b32 v12, 16, v12")
    e("v_add_f32 v12, v60, v12")
    if opts.get("probe"):
        lo, hi = opts["probe"]
        e("s_memrealtime s[82:83]"); e("s_waitcnt lgkmcnt(0)"); e("s_sub_u32 s82, s82, s80")
        e(f"s_sub_u32 s83, s82, {lo}"); e(f"s_cmp_lt_u32 s83, {hi - lo}"); e("s_cbranch_scc1 L_pok")
        for _ in range(16): e("s_sleep 127")
        A.label("L_pok")
    e("v_cvt_pk_bf16_f32 v12, v12, v12")
    e("s_mov_b32 exec_lo, 0x00ff00ff"); e("s_mov_b32 exec_hi, 0x00ff00ff")
    e(f"global_store_short {vS0}, v12, {sp(sOUT)}")
    e(f"s_cmp_eq_u32 {sIdx}, 0"); e("s_cbranch_scc0 L_noep")
    e("s_mov_b64 exec, 1")
    e(f"global_store_dword v62, v61, {sp(sWS)}")
    A.label("L_noep")
    e("s_mov_b64 exec, -1")
    stamp(7)

    A.label("L_fin")
    if debug:
        e("s_mov_b64 exec, -1")
        e("s_waitcnt vmcnt(0) lgkmcnt(0)")
        e("s_memrealtime s[96:97]"); e("s_memtime s[6:7]")
        e("s_waitcnt lgkmcnt(0)")
        e("s_sub_u32 s6, s6, s100"); e("v_mov_b32 v18, s6")
        e(f"s_lshl_b32 {sT[0]}, s2, 3"); e(f"s_add_u32 {sT[0]}, {sT[0]}, {sW}"); e(f"s_lshl_b32 {sT[0]}, {sT[0]}, 6"); e(f"s_add_u32 {sT[0]}, {sT[0]}, {WS_STAMP}")
        e(f"v_mov_b32 v20, {sT[0]}")
        for i in range(9): e(f"v_mov_b32 v{4+i}, s{80+2*i}")
        e("s_getreg_b32 s52, hwreg(HW_REG_XCC_ID)"); e("v_mov_b32 v13, s52"); e("v_mov_b32 v14, s70"); e("v_mov_b32 v15, s72"); e("v_mov_b32 v16, s74"); e("v_mov_b32 v17, s98"); e("v_mov_b32 v19, s73")
        e("s_mov_b64 exec, 1")
        for i in range(4): e(f"global_store_dwordx4 v20, v[{4+4*i}:{7+4*i}], {sp(sWS)} offset:{16*i}")
    A.label("L_end")
    e("s_endpgm")

    A.label("L_publish")
    e(f"v_and_b32 {va}, 3, {vLane}"); e(f"v_lshlrev_b32 {va}, 3, {va}"); e(f"v_add_u32 {va}, {L_MS}, {va}")
    for w in range(4): e(f"ds_read_b32 v{56+2*w}, {va} offset:{32*w}")
    e(f"ds_read_b64 v[64:65], {va} offset:{L_GS - L_MS}")
    e(f"s_and_b32 {sT[0]}, {sW}, 1"); e(f"s_lshl_b32 {sT[0]}, {sT[0]}, 10")
    e(f"s_lshl_b32 {sT[1]}, s2, 11"); e(f"s_add_u32 {sT[1]}, {sT[1]}, {WS_PART}"); e(f"s_add_u32 {sT[1]}, {sT[1]}, {sT[0]}")
    e(f"s_add_u32 {sT[0]}, {sT[0]}, {L_ACC}")
    e("s_waitcnt lgkmcnt(0)")
    for w in range(4): e(f"v_sub_f32 v{56+2*w}, v{56+2*w}, v64")
    for w in range(4): e(f"v_exp_f32 v{56+2*w}, v{56+2*w}")
    for w in range(4): e(f"v_mul_f32 v{56+2*w}, v{56+2*w}, v65")
    for w in range(4): e(f"v_mov_b32 v{57+2*w}, v{56+2*w}")
    e(f"v_add_u32 {va}, {sT[0]}, {vVo}"); e(f"v_add_u32 {vb}, {sT[1]}, {vVo}")
    e("s_barrier")
    stamp(4)
    e(f"s_cmp_gt_u32 {sW}, 5"); e("s_cbranch_scc1 L_pubret")
    for w in range(4): e(f"ds_read_b128 {vr(12+4*w)}, {va} offset:{2048*w}")
    for w in range(4):
        e(f"s_waitcnt lgkmcnt({3-w})")
        for r in (0, 2):
            if w == 0: e(f"v_pk_mul_f32 v[{12+r}:{13+r}], v[{12+r}:{13+r}], v[56:57]")
            else: e(f"v_pk_fma_f32 v[{12+r}:{13+r}], v[{12+4*w+r}:{13+4*w+r}], v[{56+2*w}:{57+2*w}], v[{12+r}:{13+r}]")
    tag4(12)
    e(f"global_store_dwordx4 {vb}, v[12:15], {sp(sWS)} {opts.get('ppol', 'sc1')}")
    if opts.get("pwb"): e("buffer_wbl2 sc1")
    stamp(5)
    A.label("L_pubret")
    e("s_barrier")
    e("s_setpc_b64 s[66:67]")
    A.fence()

    def tag_from(v):
        e(f"v_readfirstlane_b32 {sTag}, {v}")
        e(f"s_add_u32 {sTag}, {sTag}, 0x01010101")
        for k in range(4): e(f"s_bfe_u32 {sTB[k]}, {sTag}, {(8 << 16) | (8 * k):#x}")
    NP = opts.get("np", 2); C0 = 32 - 8 * NP
    DW = opts.get("dmawin", 1)
    def thr(): e(f"s_waitcnt vmcnt({DW-1})")
    A.label("L_sv4")
    if opts.get("touch", False):
        e(f"s_cmp_eq_u32 {sW}, 7"); e("s_cbranch_scc0 L_notouch")
        e(f"v_lshlrev_b32 v5, 16, {vLane}"); e(f"s_lshl_b32 {sT[0]}, s2, 19"); e(f"v_add_u32 v5, {sT[0]}, v5")
        e("s_mov_b64 exec, 0xff")
        e(f"global_load_dword v6, v5, {sp(sV)} nt")
        e("s_mov_b64 exec, 1")
        e(f"global_load_dword v7, v9, {sp(sOUT)} nt")
        e("s_mov_b64 exec, -1")
        e("s_waitcnt vmcnt(0)")
        A.label("L_notouch")
    if opts.get("dmaq", False): lds_wait("L_dq", 0, 1, va, vb, sleep=8)
    A.label("L_down")
    if not LATE: down_loads(True)
    A.label("L_nodown")
    ND = opts.get("ndma", 3)
    if ND < 4: e(f"s_cmp_eq_u32 {sW}, 4"); e("s_cbranch_scc1 L_stats")
    if ND == 2: e(f"s_cmp_eq_u32 {sW}, 5"); e("s_cbranch_scc1 L_wdone")
    e(f"s_sub_u32 {sWW}, {sW}, {8 - ND}")
    if opts.get("nodma"): e("s_branch L_wdone")
    e(f"s_cmp_eq_u32 {sRole}, 1"); e("s_cbranch_scc0 L_now1")
    e(f"s_mov_b32 s40, s{sWO}"); e(f"s_mov_b32 s41, s{sWO+1}"); e(f"s_mov_b32 s42, {4096*1024}"); e("s_mov_b32 s43, 0x20000")
    e(f"v_bfe_u32 v5, {vLane}, 3, 1"); e("v_lshlrev_b32 v5, 18, v5")
    e(f"v_lshrrev_b32 v6, 4, {vLane}"); e("v_lshlrev_b32 v6, 10, v6")
    e(f"v_and_b32 v7, 7, {vLane}"); e("v_lshlrev_b32 v7, 4, v7")
    e("v_add3_u32 v5, v5, v6, v7")
    A.label("L_dma1")
    e(f"s_mul_i32 {sT[1]}, {sWW}, {WPW}")
    e(f"s_lshl_b32 {sT[2]}, {s1G}, 9")
    e(f"s_and_b32 {sT[3]}, {sWW}, 3"); e(f"s_lshl_b32 {sT[3]}, {sT[3]}, 5"); e(f"s_add_u32 {sT[2]}, {sT[2]}, {sT[3]}")
    e(f"s_and_b32 {sT[3]}, {sWW}, 4"); e(f"s_add_u32 {sT[2]}, {sT[2]}, {sT[3]}")
    e(f"s_lshl_b32 {sT[2]}, {sT[2]}, 10")
    e(f"s_lshl_b32 {sT[3]}, {s1C}, 7"); e(f"s_add_u32 {sT[2]}, {sT[2]}, {sT[3]}")
    for ep in range(8):
        e(f"s_add_u32 {sT[3]}, {sT[2]}, {(128*(ep>>2) + 8*(ep&3))*1024}")
        e(f"s_add_u32 m0, {sT[1]}, {ep*1024}")
        thr()
        e(f"buffer_load_dwordx4 v5, {srdW}, {sT[3]} offen nt lds")
    e(f"s_add_u32 {sWW}, {sWW}, {ND}"); e(f"s_cmp_lt_u32 {sWW}, 8"); e("s_cbranch_scc1 L_dma1")
    e("s_branch L_wdone")
    A.label("L_now1")
    e(f"s_cmp_eq_u32 {sRole}, 2"); e("s_cbranch_scc0 L_wdone")
    e(f"v_lshrrev_b32 v5, 4, {vLane}"); e("v_lshlrev_b32 v5, 4, v5")
    e(f"v_and_b32 v6, 8, {vLane}"); e("v_add_u32 v5, v5, v6")
    e(f"s_lshl_b32 {sT[2]}, {sWW}, 6"); e(f"v_add_u32 v5, {sT[2]}, v5")
    e("v_mul_u32_u24 v5, 3584, v5")
    e(f"v_and_b32 v6, 3, {vLane}"); e("v_lshlrev_b32 v6, 4, v6")
    e(f"s_lshl_b32 {sT[2]}, {sIdx}, 6"); e(f"v_add3_u32 v5, v5, v6, {sT[2]}")
    e(f"v_and_b32 v6, 4, {vLane}"); e("v_cmp_eq_u32 vcc, 0, v6")
    e(f"v_mov_b32 v6, s{sWU}"); e(f"v_mov_b32 v8, s{sWG}"); e("v_cndmask_b32 v6, v6, v8, vcc")
    e(f"v_mov_b32 v7, s{sWU+1}"); e(f"v_mov_b32 v8, s{sWG+1}"); e("v_cndmask_b32 v7, v7, v8, vcc")
    e("v_add_co_u32 v6, vcc, v6, v5"); e("v_addc_co_u32 v7, vcc, 0, v7, vcc")
    A.label("L_dma2")
    e(f"s_mul_i32 {sT[1]}, {sWW}, {WPW}")
    for ep in range(8):
        e(f"s_add_u32 m0, {sT[1]}, {ep*1024}")
        thr()
        e(f"global_load_lds_dwordx4 v[6:7], off {opts.get('gupol', 'nt')}")
        e(f"v_add_co_u32 v6, vcc, {3584 if ep < 7 else 3584*(64*ND-7)}, v6"); e("v_addc_co_u32 v7, vcc, 0, v7, vcc")
    e(f"s_add_u32 {sWW}, {sWW}, {ND}"); e(f"s_cmp_lt_u32 {sWW}, 8"); e("s_cbranch_scc1 L_dma2")
    A.label("L_wdone")
    e("s_waitcnt vmcnt(0)")
    e(f"v_mov_b32 {va}, {L_FLAG+12}"); e(f"v_mov_b32 {vb}, 1")
    e("s_mov_b64 exec, 1"); e(f"ds_add_u32 {va}, {vb}"); e("s_mov_b64 exec, -1")
    stamp(1)
    if ND == 4: e(f"s_cmp_eq_u32 {sW}, 4"); e("s_cbranch_scc1 L_stats")
    A.label("L_svc2")
    lds_wait("L_dw", 12, max(3, ND), va, vb, sleep=16)
    lds_wait("L_sq", 8, 1, va, vb, sleep=16)
    e(f"s_cmp_eq_u32 {sRole}, 1"); e("s_cbranch_scc1 L_st1")
    e(f"s_cmp_eq_u32 {sRole}, 2"); e("s_cbranch_scc1 L_st2")
    e(f"s_cmp_eq_u32 {sRole}, 3"); e("s_cbranch_scc0 L_svc3")
    e(f"s_cmp_eq_u32 {sW}, 7"); e("s_cbranch_scc1 L_st3")
    A.label("L_svc3")
    get_tag()
    e("s_call_b64 s[66:67], L_publish")
    e("s_branch L_fin")

    A.label("L_stats")
    SG = opts.get("sg", 180); CA, GA = opts.get("cka", (88, 120)); SP = opts.get("spub", 150)
    GH = float(opts.get('gh', 0.32)); GL = float(opts.get('gl', 0.25))
    e(f"v_mov_b32 v24, {L_FLAG}")
    def control(base, lag, sub=None):
        e(f"v_mov_b32 v28, {float(base)}")
        if sub: e(f"v_sub_f32 v28, v28, {sub}")
        e(f"v_fmac_f32 v28, {GH}, {lag}")
        e(f"v_mov_b32 v29, {float(base)}"); e(f"v_fmac_f32 v29, {-GL}, {lag}")
        e(f"v_cmp_lt_f32 vcc, 0, {lag}"); e("v_cndmask_b32 v28, 0, v28, vcc"); e("v_cndmask_b32 v29, v29, 0, vcc")
        e("v_cvt_i32_f32 v26, v28"); e("v_cvt_i32_f32 v27, v29")
        if not opts.get("noctl"): e("ds_write_b64 v24, v[26:27] offset:24")
    lds_wait("L_ca", 20, 4, va, vb, sleep=4)
    e("s_memrealtime s[68:69]")
    e(f"s_lshl_b32 {sT[0]}, s2, 3"); e(f"s_add_u32 {sT[0]}, {sT[0]}, {WS_CK}"); e(f"v_mov_b32 v5, {sT[0]}"); e(f"v_mov_b32 v13, {sTag}")
    e("s_waitcnt lgkmcnt(0)"); e("v_mov_b32 v12, s68")
    e("s_mov_b64 exec, 1"); e(f"global_store_dwordx2 v5, v[12:13], {sp(sWS)} sc1"); e("s_mov_b64 exec, -1")
    e(f"v_add_u32 v5, {WS_CK}, {vVo}")
    lds_wait("L_ga", 20, 5, va, vb, sleep=8)
    e(f"global_load_dwordx4 v[12:15], v5, {sp(sWS)} sc1"); e(f"global_load_dwordx4 v[16:19], v5, {sp(sWS)} offset:1024 sc1")
    e("s_waitcnt vmcnt(0)")
    e(f"v_mov_b32 v20, {opts.get('miss', -400)}")
    for k in range(4):
        e(f"v_sub_u32 v{12+2*k}, s68, v{12+2*k}"); e(f"v_cmp_eq_u32 vcc, {sTag}, v{13+2*k}"); e(f"v_cndmask_b32 v{12+2*k}, v20, v{12+2*k}, vcc")
    e("v_add3_u32 v12, v12, v14, v16"); e("v_add_u32 v12, v12, v18"); e("v_cvt_f32_i32 v12, v12")
    e(f"v_add_f32_dpp v12, v12, v12 quad_perm:[1,0,3,2] {DPPF}"); e(f"v_add_f32_dpp v12, v12, v12 quad_perm:[2,3,0,1] {DPPF}")
    for x in xlane("add", "v12", "v13"): e(x)
    e(f"v_mov_b32 v19, {float(opts.get('abias', 0.0))}"); e("v_fmac_f32 v19, 0x3b800000, v12")
    control(GA + 10, "v19")
    e(f"v_subrev_f32 v30, {float(SP)}, v28"); e(f"v_mov_b32 v31, {float(SG + 10 - SP)}"); e("v_med3_f32 v30, v30, 0, v31")
    lds_wait("L_sw", 4, 4, va, vb, sleep=4)
    e("s_memrealtime s[68:69]")
    e(f"v_and_b32 {vc}, 3, {vLane}"); e(f"v_lshlrev_b32 {va}, 3, {vc}"); e(f"v_add_u32 {va}, {L_MS}, {va}")
    for w in range(4): e(f"ds_read_b64 v[{12+2*w}:{13+2*w}], {va} offset:{32*w}")
    e("s_waitcnt lgkmcnt(0)")
    e("v_max3_f32 v20, v12, v14, v16"); e("v_max_f32 v20, v20, v18")
    for w in range(4): e(f"v_sub_f32 v{12+2*w}, v{12+2*w}, v20")
    for w in range(4): e(f"v_exp_f32 v{12+2*w}, v{12+2*w}")
    e("v_mul_f32 v22, v12, v13")
    for w in range(1, 4): e(f"v_fmac_f32 v22, v{12+2*w}, v{13+2*w}")
    e(f"v_mov_b32 v21, {sTag}"); e("v_mov_b32 v23, s68")
    e(f"s_lshl_b32 {sT[0]}, s2, 6"); e(f"s_add_u32 {sT[0]}, {sT[0]}, {WS_ST}"); e(f"v_add_u32 v5, {sT[0]}, {vVo}")
    e("s_mov_b64 exec, 0xf")
    e(f"global_store_dwordx4 v5, v[20:23], {sp(sWS)} sc1")
    e("s_mov_b64 exec, -1")
    e(f"s_lshl_b32 {sT[0]}, {sG}, 11"); e(f"s_add_u32 {sT[0]}, {sT[0]}, {WS_ST}"); e(f"v_add_u32 v5, {sT[0]}, {vVo}")
    lds_wait("L_sg", 20, 9, va, vb, sleep=8)
    A.label("L_spoll")
    timeout()
    e(f"global_load_dwordx4 v[12:15], v5, {sp(sWS)} sc1"); e(f"global_load_dwordx4 v[16:19], v5, {sp(sWS)} offset:1024 sc1")
    e("s_waitcnt vmcnt(0)")
    e(f"v_xor_b32 v13, {sTag}, v13"); e(f"v_bitop3_b32 v13, v13, v17, {sTag} bitop3:0xf6")
    e("v_cmp_ne_u32 vcc, 0, v13")
    e("s_cbranch_vccz L_sgot")
    e(f"s_sleep {opts.get('ssleep', 32)}"); e("s_branch L_spoll")
    A.label("L_sgot")
    e("v_sub_u32 v15, s68, v15"); e("v_sub_u32 v19, s68, v19"); e("v_add_u32 v15, v15, v19"); e("v_cvt_f32_i32 v15, v15")
    for x in xlane("add", "v15", "v19"): e(x)
    e(f"s_cmp_eq_u32 {sRole}, 1"); e(f"s_cselect_b32 {sT[0]}, {opts.get('r1bias', 0) + opts.get('lbias', 20)}, {opts.get('lbias', 20)}")
    e(f"v_cvt_f32_i32 v19, {sT[0]}"); e("v_fmac_f32 v19, 0x3d000000, v15")
    control(SG + 10, "v19", "v30")
    if debug: e("v_cvt_i32_f32 v19, v19"); e("v_readfirstlane_b32 s73, v19")
    e("v_max_f32 v20, v12, v16")
    for x in xlane("max", "v20", "v21"): e(x)
    e("v_sub_f32 v12, v12, v20"); e("v_sub_f32 v16, v16, v20"); e("v_exp_f32 v12, v12"); e("v_exp_f32 v16, v16")
    e("v_mul_f32 v21, v12, v14"); e("v_fmac_f32 v21, v16, v18")
    for x in xlane("add", "v21", "v22"): e(x)
    e("v_rcp_f32 v21, v21")
    e(f"v_lshlrev_b32 {va}, 3, {vc}"); e(f"v_add_u32 {va}, {L_GS}, {va}")
    e(f"ds_write_b64 {va}, v[20:21]")
    e(f"v_mov_b32 {va}, {L_FLAG+8}"); e(f"v_mov_b32 {vb}, 1")
    e(f"ds_write_b32 {va}, {vb}")
    if debug: e("s_memrealtime s[98:99]")
    e("s_branch L_svc2")

    main_lines = A.lines; A.lines = []; A.fence()
    A.label("L_service")
    common()
    e("v_mov_b32 v8, 0"); e("v_mov_b32 v9, 0"); e("v_mov_b32 v10, 0"); e("v_mov_b32 v11, 0")
    e(f"v_mov_b32 v64, {L_FLAG}")
    e(f"s_cmp_eq_u32 {sW}, 4"); e("s_cbranch_scc0 L_sv1")
    e("ds_write_b128 v64, v[8:11]"); e("ds_write_b128 v64, v[8:11] offset:16"); e("ds_write_b128 v64, v[8:11] offset:32")
    A.label("L_sv1")
    if opts.get("cpre", True):
        e("s_getpc_b64 s[6:7]")
        e(f"v_lshl_add_u32 v6, v5, 11, {vVo}")
        e("v_add_u32 v6, 0xffffe000, v6")
        e("global_load_dwordx4 v[56:59], v6, s[6:7]"); e("global_load_dwordx4 v[60:63], v6, s[6:7] offset:1024")
    e(f"s_cmp_ge_u32 {sC}, {C0}"); e("s_cbranch_scc1 L_qprod")
    common2()
    e("s_waitcnt lgkmcnt(0)")
    e("s_barrier")
    e(f"s_cmp_eq_u32 {sW}, 4"); e("s_cbranch_scc0 L_sv4")
    e(f"global_load_dword v10, v9, {sp(sWS)} sc1")
    e("s_waitcnt vmcnt(0)")
    tag_from("v10")
    e("s_branch L_qget")
    A.label("L_qprod")
    e("s_setprio 3")
    WQ = 128; XR = 12; XF = 20; QA = 36; XA = 66
    RW = 512 // NP // 4; NPR = RW // 16
    e(f"s_and_b32 {sT[5]}, {sC}, 7"); e(f"s_lshl_b32 {sQP}, {sG}, 3"); e(f"s_add_u32 {sQP}, {sQP}, {sT[5]}")
    e(f"s_sub_u32 {sT[4]}, {sC}, {C0}"); e(f"s_lshr_b32 {sT[4]}, {sT[4]}, 3")
    e(f"s_lshl_b32 {sT[3]}, {sT[4]}, 2"); e(f"s_add_u32 {sT[3]}, {sT[3]}, {sW}"); e(f"s_sub_u32 {sT[3]}, {sT[3]}, 4"); e(f"s_mul_i32 {sT[3]}, {sT[3]}, {RW}")
    e(f"v_lshrrev_b32 v5, 3, {vLane}"); e("v_lshlrev_b32 v6, 2, v5")
    e(f"s_lshl_b32 {sT[0]}, {sT[3]}, 1"); e(f"v_add_u32 v6, {sT[0]}, v6")
    e("v_lshlrev_b32 v7, 14, v5"); e(f"v_and_b32 v4, 7, {vLane}"); e("v_lshl_add_u32 v7, v4, 4, v7")
    e(f"s_lshl_b32 {sT[0]}, {sT[3]}, 13"); e(f"s_lshl_b32 {sT[1]}, {sQP}, 7"); e(f"s_add_u32 {sT[0]}, {sT[0]}, {sT[1]}"); e(f"v_add_u32 v7, {sT[0]}, v7")
    e("s_waitcnt lgkmcnt(0)")
    e(f"global_load_dwordx4 {vr(XA)}, {vVo}, {sp(sX)}")
    for k in range(NPR): e(f"global_load_dword v{XR+k}, v6, {sp(sX)} offset:{32*k}")
    e(f"global_load_dword v10, v9, {sp(sWS)} sc1")
    for i in range(2 * NPR):
        e(f"global_load_dwordx4 {vr(WQ+4*i)}, v7, {sp(sWQ)} {opts.get('wqpol', 'nt')}")
        if i < 2 * NPR - 1: e(f"v_add_u32 v7, {0x2000 if i % 2 == 0 else 0x1e000}, v7")
    e("s_barrier")
    common2()
    e(f"s_waitcnt vmcnt({3*NPR + 1})")
    for k in range(4):
        e(f"v_lshlrev_b32 v{44+2*k}, 16, v{XA+k}"); e(f"v_and_b32 v{45+2*k}, 0xffff0000, v{XA+k}")
    def wsum(r, tmp):
        for s in (8, 4, 2, 1): e(f"v_add_f32_dpp {r}, {r}, {r} row_ror:{s} {DPPF}")
        e(f"v_mov_b32 {tmp}, {r}"); e(f"v_permlane16_swap_b32 {tmp}, {r}"); e(f"v_add_f32 {r}, {tmp}, {r}")
        e(f"v_mov_b32 {tmp}, {r}"); e(f"v_permlane32_swap_b32 {tmp}, {r}"); e(f"v_add_f32 {r}, {tmp}, {r}")
    e("v_pk_add_f32 v[52:53], v[44:45], v[46:47]"); e("v_pk_add_f32 v[54:55], v[48:49], v[50:51]"); pk(52, 54)
    e(f"v_add_f32 {va}, v52, v53")
    wsum(va, vb)
    e(f"v_mul_f32 {va}, 0x3b000000, {va}")
    for k in range(8): e(f"v_sub_f32 v{44+k}, v{44+k}, {va}")
    e(f"v_mul_f32 {vc}, v44, v44"); e(f"v_mul_f32 {vd}, v45, v45")
    for k in range(2, 8): e(f"v_fmac_f32 {(vc, vd)[k&1]}, v{44+k}, v{44+k}")
    e(f"v_add_f32 {vc}, {vc}, {vd}")
    wsum(vc, vb)
    e(f"v_mul_f32 {vc}, 0x3b000000, {vc}")
    ln_finish(va, vc, vb)
    e(f"s_waitcnt vmcnt({2*NPR + 1})")
    for k in range(NPR):
        e(f"v_lshlrev_b32 v{XF+2*k}, 16, v{XR+k}"); e(f"v_and_b32 v{XF+2*k+1}, 0xffff0000, v{XR+k}")
    for k in range(2*NPR): e(f"v_sub_f32 v{XF+k}, v{XF+k}, {va}")
    for k in range(NPR): e(f"v_cvt_pk_bf16_f32 v{XR+k}, v{XF+2*k}, v{XF+2*k+1}")
    for k in range(NPR):
        e(f"v_lshlrev_b32 v{XF+2*k}, 16, v{XR+k}"); e(f"v_and_b32 v{XF+2*k+1}, 0xffff0000, v{XR+k}")
    for k in range(2*NPR): e(f"v_mul_f32 v{XF+k}, {vc}, v{XF+k}")
    for k in range(NPR): e(f"v_cvt_pk_bf16_f32 v{XR+k}, v{XF+2*k}, v{XF+2*k+1}")
    for k in range(8): e(f"v_mov_b32 v{QA+k}, 0")
    e(f"v_lshrrev_b32 v5, 4, {vLane}"); e("v_lshlrev_b32 v5, 3, v5"); e("v_lshl_add_u32 v5, v4, 5, v5")
    e(f"s_lshl_b32 {sT[0]}, {sW}, 8"); e(f"s_add_u32 {sT[0]}, {sT[0]}, {L_QP - 1024}"); e(f"v_add_u32 v5, {sT[0]}, v5")
    for p in range(NPR):
        e(f"s_waitcnt vmcnt({2*NPR - 2 - 2*p})")
        for ee in range(8):
            e(f"v_perm_b32 v{44+ee}, v{WQ+4*(2*p+1)+(ee>>1)}, v{WQ+4*(2*p)+(ee>>1)}, {sSelHi if ee & 1 else sSelLo}")
        for ee in range(8): e(f"v_dot2c_f32_bf16 v{QA+ee}, v{44+ee}, v{XR+p}")
    if debug: e("s_memrealtime s[70:71]")
    for o in (0, 1):
        e(f"v_permlane32_swap_b32 v{QA+o}, v{QA+4+o}"); e(f"v_permlane32_swap_b32 v{QA+2+o}, v{QA+6+o}")
    for o in (0, 1):
        e(f"v_add_f32 v{QA+o}, v{QA+o}, v{QA+4+o}"); e(f"v_add_f32 v{QA+2+o}, v{QA+2+o}, v{QA+6+o}")
    for o in (0, 1): e(f"v_permlane16_swap_b32 v{QA+o}, v{QA+2+o}")
    for o in (0, 1): e(f"v_add_f32 v{QA+o}, v{QA+o}, v{QA+2+o}")
    for o in (0, 1): e(f"v_add_f32_dpp v{QA+o}, v{QA+o}, v{QA+o} row_ror:8 {DPPF}")
    e(f"ds_write_b64 v5, v[{QA}:{QA+1}]")
    e("v_mov_b32 v44, 1")
    e("s_mov_b64 exec, 1"); e("ds_add_u32 v64, v44 offset:32"); e("s_mov_b64 exec, -1")
    e(f"s_cmp_eq_u32 {sW}, 4"); e("s_cbranch_scc1 L_qp4")
    e("s_setprio 0")
    e("s_branch L_sv4")
    A.label("L_qp4")
    tag_from("v10")
    if NP == 1:
        e(f"s_lshl_b32 {sT[1]}, {sQP}, 8"); e(f"s_add_u32 {sT[1]}, {sT[1]}, {WS_Q}"); e(f"v_add_u32 v6, {sT[1]}, {vVo}")
        e(f"v_add_u32 v5, {L_QP}, {vVo}")
        lds_wait("L_qpw", 32, 4, va, vb, sleep=0)
        e("s_mov_b64 exec, 0xffff")
        for v in range(4): e(f"ds_read_b128 {vr(44+4*v)}, v5 offset:{256*v}")
        e("s_waitcnt lgkmcnt(0)")
        add4(44, 48); add4(52, 56); add4(44, 52)
        e("v_cvt_pk_bf16_f32 v44, v44, v45"); e("v_cvt_pk_bf16_f32 v46, v46, v47")
    else:
        e(f"s_mul_i32 {sT[1]}, {sG}, {NP}"); e(f"s_add_u32 {sT[1]}, {sT[1]}, {sT[4]}"); e(f"s_lshl_b32 {sT[1]}, {sT[1]}, 3"); e(f"s_add_u32 {sT[1]}, {sT[1]}, {sT[5]}")
        e(f"s_lshl_b32 {sT[1]}, {sT[1]}, 9"); e(f"s_add_u32 {sT[1]}, {sT[1]}, {WS_Q}"); e(f"v_add_u32 v6, {sT[1]}, {vVo}")
        e(f"v_lshlrev_b32 v5, 3, {vLane}"); e(f"v_add_u32 v5, {L_QP}, v5")
        lds_wait("L_qpw", 32, 4, va, vb, sleep=0)
        e("s_mov_b32 exec_hi, 0")
        for v in range(4): e(f"ds_read_b64 v[{48+2*v}:{49+2*v}], v5 offset:{256*v}")
        e("s_waitcnt lgkmcnt(0)")
        pk(48, 50); pk(52, 54)
        e("v_add_f32 v44, v48, v52"); e("v_add_f32 v46, v49, v53")
    e(f"v_mov_b32 v45, {sTag}"); e(f"v_mov_b32 v47, {sTag}")
    e(f"global_store_dwordx4 v6, v[44:47], {sp(sWS)} sc1")
    e("s_mov_b64 exec, -1")
    e("s_setprio 0")
    A.label("L_qget")
    NLD = 2 if NP == 1 else 4 * NP
    e(f"s_mul_i32 {sT[0]}, {sG}, {NLD*1024}"); e(f"s_add_u32 {sT[0]}, {sT[0]}, {WS_Q + 4096}")
    e(f"v_add_u32 v5, {sT[0]}, {vVo}"); e("v_add_u32 v7, 0x2000, v5")
    e(f"v_lshlrev_b32 v6, {3 if NP == 1 else 2}, {vLane}"); e(f"v_add_u32 v6, {L_Q}, v6")
    e(f"v_mov_b32 v52, {sTag}"); e("ds_write_b32 v64, v52 offset:16")
    if opts.get("qstart", 24): lds_wait("L_qs", 36, 1, va, vb, sleep=4)
    e(f"s_mov_b32 {sT[5]}, 0")
    A.label("L_qpoll")
    timeout()
    for k in range(NLD):
        e(f"s_bitcmp1_b32 {sT[5]}, {k}"); e(f"s_cbranch_scc1 L_qk{k}")
        e(f"global_load_dwordx4 {vr(128+4*k)}, {'v5' if k < 8 else 'v7'}, {sp(sWS)} offset:{1024*(k&7) - 4096} sc1")
        A.label(f"L_qk{k}")
    e("s_waitcnt vmcnt(0)")
    e(f"s_mov_b32 {sT[5]}, 0")
    for k in range(NLD):
        e(f"v_xor_b32 {va}, {sTag}, v{129+4*k}"); e(f"v_bitop3_b32 {va}, {va}, v{131+4*k}, {sTag} bitop3:0xf6")
        e(f"v_cmp_ne_u32 vcc, 0, {va}"); e("s_cmp_eq_u64 vcc, 0"); e(f"s_cselect_b32 {sT[0]}, {1 << k}, 0"); e(f"s_or_b32 {sT[5]}, {sT[5]}, {sT[0]}")
    e(f"s_cmp_eq_u32 {sT[5]}, {(1 << NLD) - 1}"); e("s_cbranch_scc1 L_qgot")
    e(f"s_sleep {opts.get('qsleep', 8)}"); e("s_branch L_qpoll")
    A.label("L_qgot")
    if NP == 1:
        for h in range(2):
            e(f"v_mov_b32 v{129+4*h}, v{130+4*h}"); e(f"ds_write_b64 v6, v[{128+4*h}:{129+4*h}] offset:{512*h}")
    else:
        for m in range(4):
            for o in (0, 2):
                r = 128 + 4*m + o
                e(f"v_add_f32 v{r}, v{r}, v{r+16}")
                if NP == 4: e(f"v_add_f32 v{r+32}, v{r+32}, v{r+48}"); e(f"v_add_f32 v{r}, v{r}, v{r+32}")
            e(f"v_cvt_pk_bf16_f32 v{128+4*m}, v{128+4*m}, v{130+4*m}")
            e(f"ds_write_b32 v6, v{128+4*m} offset:{256*m}")
    e("v_mov_b32 v48, 1"); e("ds_write_b32 v64, v48")
    if debug: e("s_memrealtime s[72:73]")
    e("s_branch L_down")

    head = A.lines; A.lines = main_lines
    k = A.lines.index("@@SERVICE_HEAD@@"); A.lines[k:k+1] = head
    A.raw('.section .rodata,"a"'); A.raw(".p2align 6"); A.raw(f".amdhsa_kernel {NAME}")
    for l in ["next_free_vgpr 256", "next_free_sgpr 102", "accum_offset 256", "group_segment_fixed_size 0", "kernarg_size 96",
              "user_sgpr_count 2", "user_sgpr_kernarg_segment_ptr 1", "system_sgpr_workgroup_id_x 1", "float_denorm_mode_32 3"]:
        A.raw("  .amdhsa_" + l)
    A.raw(".end_amdhsa_kernel")
    return A.text()

if __name__ == "__main__":
    dbg = "--debug" in sys.argv
    sys.stdout.write(gen(debug=dbg))
```

```python
import sys
sys.path.insert(0, "work")
from asmlib import Asm

NAME = "sequential_preLN__gqa_block_cached__glu_gated_bilinear__decode_kernel"

WS_EPOCH = 0
WS_Q = 0xE0000
WS_ST = 0x8000
WS_CK = 0xC000
WS_PART = 0x10000
PREC = 2048
WS_A1 = 0xA0000
WS_D2 = 0xB0000
WS_STAMP = 0x800000
WPW = 8 * 1024
L_Q = 8 * WPW
L_ACC = L_Q + 1024
L_RED = L_ACC + 8192
L_STAT = L_RED + 4096
L_MS = L_STAT + 64
L_GS = L_MS + 128
L_QP = L_RED
L_FLAG = L_GS + 32
L_TOTAL = 98304

KV_BYTES = 128 << 20

def gen(debug=False, opts=None):
    opts = opts or {}
    A = Asm(); e = A
    def stamp(i):
        if debug: e(f"s_memrealtime s[{80+2*i}:{81+2*i}]")
    sX, sK, sV, sWQ, sWO, sWG, sWU, sWD, sOUT, sDBG, sWS = 8, 10, 12, 14, 16, 20, 22, 24, 26, 28, 30
    def sp(n): return f"s[{n}:{n+1}]"
    sW = "s3"; sG = "s4"; sC = "s5"
    srdK = "s[32:35]"; srdV = "s[36:39]"; srdW = "s[40:43]"
    sScale, sL2E, sSelLo, sSelHi = "s44", "s45", "s46", "s47"
    sOff = "s48"; sId = "s49"; sWW = "s50"
    sT = ["s52", "s53", "s54", "s55", "s56", "s57", "s58", "s59"]
    sTag = "s60"; sRole = "s61"; sIdx = "s62"; sTO = "s64"
    vLane = "v1"; vKo = "v2"; vVo = "v3"
    ACC = 4; BQ = 12; PV_ = 12; SPK = 28; T = 44; M = 76
    vX0, vX1, vY0, vY1, vS0, vS1, vML, vL, va, vb, vc, vd, vMSa, vf = [f"v{M+i}" for i in range(14)]
    vKo2 = "v90"; vVo2 = "v91"; vMask = "v93"
    RING = opts.get("ring", 40); RBASE = 256 - 4 * RING
    assert RBASE >= 96
    W0 = opts.get("win", 5); BUDGET = opts.get("budget", 18)
    WHI = opts.get("whi", 7); WLO = opts.get("wlo", 4)
    FF = opts.get("ff", [0, 0x00000010, 0x00012492, 0])
    ENDS = opts.get("ends", 232)
    CKP = opts.get("ckp", [])
    W = WHI
    sFF = "s51"; sQP = "s63"; sLev = "s65"; sHi = "s66"; sLo = "s67"
    sTB = ["s76", "s77", "s78", "s79"]
    def vr(a, n=4): return f"v[{a}:{a+n-1}]"
    DPPF = "row_mask:0xf bank_mask:0xf"
    def timeout():
        e(f"s_sub_u32 {sTO}, {sTO}, 1"); e("s_cbranch_scc1 L_end")
    def lds_wait(lbl, off, val, vaddr, vtmp, sleep=1):
        e(f"v_mov_b32 {vaddr}, {L_FLAG + off}")
        A.label(lbl)
        e(f"ds_read_b32 {vtmp}, {vaddr}")
        timeout()
        e("s_waitcnt lgkmcnt(0)")
        e(f"v_readfirstlane_b32 {sT[0]}, {vtmp}")
        e(f"s_cmp_ge_u32 {sT[0]}, {val}"); e(f"s_cbranch_scc1 {lbl}_go")
        e(f"s_sleep {sleep}"); e(f"s_branch {lbl}")
        A.label(lbl + "_go")

    A.raw(f"; @launch grid=(256,1,1) block=(512,1,1) lds={L_TOTAL}")
    A.raw('.amdgcn_target "amdgcn-amd-amdhsa--gfx950"')
    A.raw(".text"); A.raw(f".globl {NAME}"); A.raw(".p2align 8"); A.raw(f".type {NAME},@function"); A.label(NAME)
    e("s_load_dwordx2 s[32:33], s[0:1], 8")
    stamp(0)
    e("s_cmpk_ge_u32 s2, 256"); e("s_cbranch_scc1 L_end")
    e("v_cmp_lt_u32 vcc, 0xff, v0")
    e(f"v_and_b32 {vKo}, 3, v0"); e(f"v_lshlrev_b32 {vKo}, 4, {vKo}"); e("v_and_b32 v5, 48, v0"); e(f"v_lshl_or_b32 {vKo}, v5, 2, {vKo}")
    e("s_cbranch_vccnz L_service")
    e("v_and_b32 v5, 0xcc, v0"); e(f"v_lshl_or_b32 {vKo}, v5, 6, {vKo}")
    e(f"s_mul_i32 {sOff}, s2, 0x01010000"); e(f"s_and_b32 {sOff}, {sOff}, 0x07f80000")
    e("s_lshl_b32 s34, 1, 27"); e("s_lshl_b32 s35, 1, 17")
    e("s_waitcnt lgkmcnt(0)")
    for n in range(4): e(f"buffer_load_dwordx4 {vr(RBASE+4*n)}, {vKo}, {srdK}, {sOff} offen offset:{n*1024} {opts.get('kvpol', 'nt')}")
    e("s_branch L_stream")
    def common():
        e("s_load_dwordx16 s[8:23], s[0:1], 0")
        e("s_load_dwordx8 s[24:31], s[0:1], 64")
        if opts.get("probe"): e("s_memrealtime s[80:81]")
        if debug: e("s_memtime s[100:101]")
        e(f"v_lshrrev_b32 v5, 6, v0"); e(f"v_and_b32 {vLane}, 63, v0")
        e(f"v_readfirstlane_b32 {sW}, v5")
        e(f"s_and_b32 {sG}, s2, 7"); e(f"s_lshr_b32 {sC}, s2, 3")
        e(f"s_lshl_b32 {sId}, {sG}, 5"); e(f"s_add_u32 {sId}, {sId}, {sC}")
        e(f"v_lshlrev_b32 {vVo}, 4, {vLane}")
    def common2():
        e(f"s_mov_b32 {sSelLo}, 0x05040100"); e(f"s_mov_b32 {sSelHi}, 0x07060302")
        e(f"s_mov_b32 {sTO}, 0x400000")
        roles()
    def roles():
        e(f"s_mov_b32 {sRole}, 0"); e(f"s_mov_b32 {sIdx}, 0")
        e(f"s_lshl_b32 {sT[0]}, {sG}, 1"); e(f"s_add_u32 {sT[0]}, {sT[0]}, {sC}"); e(f"s_sub_u32 {sT[0]}, {sT[0]}, 15")
        e(f"s_cmp_lt_u32 {sC}, 17"); e(f"s_cselect_b32 {sRole}, 3, {sRole}"); e(f"s_cselect_b32 {sIdx}, {sT[0]}, {sIdx}")
        if opts.get("xmap", False):
            e(f"s_lshl_b32 {sT[0]}, {sC}, 3"); e(f"s_add_u32 {sT[0]}, {sT[0]}, {sG}"); e(f"s_sub_u32 {sT[0]}, {sT[0]}, 64")
        else:
            e(f"s_mul_i32 {sT[0]}, {sG}, 7"); e(f"s_add_u32 {sT[0]}, {sT[0]}, {sC}"); e(f"s_sub_u32 {sT[0]}, {sT[0]}, 8")
        e(f"s_cmp_lt_u32 {sC}, 15"); e(f"s_cselect_b32 {sRole}, 2, {sRole}"); e(f"s_cselect_b32 {sIdx}, {sT[0]}, {sIdx}")
        e(f"s_cmp_lt_u32 {sC}, 8"); e(f"s_cselect_b32 {sRole}, 1, {sRole}"); e(f"s_cselect_b32 {sIdx}, {sC}, {sIdx}")
    A.raw("@@SERVICE_HEAD@@")

    A.label("L_stream")
    e(f"v_add_u32 {vKo2}, 0x4000, {vKo}")
    vVs = "v0"
    NI = 16; NL = 8 * NI
    def slot(idx): return RBASE + 4 * (idx % RING)
    def issue(s):
        n = s & 7
        if s < 4: return
        if s == NL: e(f"s_lshl_b32 {sOff}, {sId}, 19")
        elif n == 0 and s: e(f"s_add_u32 {sOff}, {sOff}, 0x8000")
        if s < NL: e(f"buffer_load_dwordx4 {vr(slot(s))}, {vKo if n < 4 else vKo2}, {srdK}, {sOff} offen offset:{(n%4)*1024} {opts.get('kvpol', 'nt')}")
        else: e(f"buffer_load_dwordx4 {vr(slot(s))}, {vVs if n < 4 else vVo2}, {srdV}, {sOff} offen offset:{(n%4)*1024} {opts.get('kvpol', 'nt')}")
    tasks = []
    def task(need, frees, ins): tasks.append(dict(need=need, frees=frees, ins=ins))
    def xlane(op, r, tmp):
        return [f"v_{op}_f32_dpp {r}, {r}, {r} row_ror:8 {DPPF}", f"v_{op}_f32_dpp {r}, {r}, {r} row_ror:4 {DPPF}",
                f"v_mov_b32 {tmp}, {r}", f"v_permlane16_swap_b32 {tmp}, {r}", f"v_{op}_f32 {r}, {tmp}, {r}",
                f"v_mov_b32 {tmp}, {r}", f"v_permlane32_swap_b32 {tmp}, {r}", f"v_{op}_f32 {r}, {tmp}, {r}"]
    for i in range(NI):
        for n in range(8):
            task(8*i+n, [8*i+n], [f"v_mfma_f32_16x16x32_bf16 {vr(T+4*n)}, {vr(slot(8*i+n))}, {vr(BQ+4*(n&3))}, 0"])
        for t in range(2):
            ins = []
            for m in range(4):
                X = (vX0, vX1)[t]; Y = (vY0, vY1)[t]; D = T + 4 * (4*t+m)
                ins.append(f"v_add_f32_dpp {Y}, v{D+3}, v{D+1} row_ror:8 row_mask:0xf bank_mask:{1 << ((m+1)&3):#x}")
                ins.append(f"v_add_f32_dpp {X}, v{D+2}, v{D} row_ror:8 row_mask:0xf bank_mask:{1 << m:#x}")
            task(-1, [], ins)
        task(-1, [], [f"v_add_f32_dpp {vX0}, {vY0}, {vX0} row_ror:12 {DPPF}", f"v_add_f32_dpp {vX1}, {vY1}, {vX1} row_ror:12 {DPPF}",
                      f"v_cvt_pk_bf16_f32 {vY0}, {vX0}, {vX1}",
                      f"v_lshlrev_b32 {vX0}, 16, {vY0}", f"v_and_b32 {vX1}, 0xffff0000, {vY0}",
                      f"v_mul_f32 {vX0}, {sScale}, {vX0}", f"v_mul_f32 {vX1}, {sScale}, {vX1}",
                      f"v_cvt_pk_bf16_f32 v{SPK+i}, {vX0}, {vX1}",
                      f"v_lshlrev_b32 {vX0}, 16, v{SPK+i}", f"v_and_b32 {vX1}, 0xffff0000, v{SPK+i}",
                      (f"v_max_f32 {vML}, {vX0}, {vX1}" if i == 0 else f"v_max3_f32 {vML}, {vML}, {vX0}, {vX1}")])
    task(-1, [], xlane("max", vML, vb) + [f"v_mul_f32 {vML}, {sL2E}, {vML}"])
    task(-1, [], [f"v_mov_b32 v{PV_+k}, 0" for k in range(16)])
    for i in range(0, NI, 2):
        ins = []
        tmp = [(vX0, vX1), (vY0, vY1)]
        for k in range(2):
            a, b = tmp[k]; ins += [f"v_lshlrev_b32 {a}, 16, v{SPK+i+k}", f"v_and_b32 {b}, 0xffff0000, v{SPK+i+k}"]
        for k in range(2):
            a, b = tmp[k]; ins += [f"v_fma_f32 {a}, {a}, {sL2E}, -{vML}", f"v_fma_f32 {b}, {b}, {sL2E}, -{vML}"]
        for k in range(2):
            a, b = tmp[k]; ins += [f"v_exp_f32 {a}, {a}", f"v_exp_f32 {b}, {b}"]
        ins += [f"v_add_f32 {va}, {vX0}, {vX1}", f"v_cvt_pk_bf16_f32 v{SPK+i}, {vX0}, {vX1}", f"v_add_f32 {vb}, {vY0}, {vY1}", f"v_cvt_pk_bf16_f32 v{SPK+i+1}, {vY0}, {vY1}"]
        ins += [f"v_add_f32 {vL}, {va}, {vb}"] if i == 0 else [f"v_add_f32 {va}, {va}, {vb}", f"v_add_f32 {vL}, {vL}, {va}"]
        task(-1, [], ins)
    task(-1, [], xlane("add", vL, vb) + [f"ds_write_b64 {vMSa}, v[{M+6}:{M+7}]", f"v_mov_b32 {va}, {L_FLAG+4}", f"v_mov_b32 {vb}, 1",
                                         "s_mov_b64 exec, 1", f"ds_add_u32 {va}, {vb}", "s_mov_b64 exec, -1"])
    order = [0, 4, 1, 5, 2, 6, 3, 7]
    for i in range(NI):
        L0 = NL + 8 * i
        def perm(ee, k):
            rho = ee & 3; t = k >> 1
            n0 = 4 * t + ((rho + 2 * (k & 1)) & 3); n1 = 4 * t + ((rho + 2 * (k & 1) + 1) & 3)
            return f"v_perm_b32 v{T+4*ee+k}, v{slot(L0+n1)+(ee>>1)}, v{slot(L0+n0)+(ee>>1)}, {sSelHi if ee & 1 else sSelLo}"
        def mf(ee):
            ac = vr(ACC + 4 * (ee >> 2))
            return f"v_mfma_f32_16x16x32_bf16 {ac}, {vr(T+4*ee)}, {vr(PV_+4*(ee&3))}, {ac if (i or (ee & 3)) else 0}"
        ins = [f"v_mov_b32_dpp {vY0}, v{SPK+i} row_ror:12 {DPPF}",
               f"v_perm_b32 {vX0}, {vY0}, v{SPK+i}, {sSelLo}", f"v_perm_b32 {vX1}, {vY0}, v{SPK+i}, {sSelHi}"]
        for rho in range(4):
            bm = f"row_mask:0xf bank_mask:{1 << rho:#x}"
            ins += [f"v_mov_b32_dpp v{PV_+4*rho+0}, {vX0} quad_perm:[0,1,2,3] {bm}", f"v_mov_b32_dpp v{PV_+4*rho+1}, {vX0} row_ror:8 {bm}",
                    f"v_mov_b32_dpp v{PV_+4*rho+2}, {vX1} quad_perm:[0,1,2,3] {bm}", f"v_mov_b32_dpp v{PV_+4*rho+3}, {vX1} row_ror:8 {bm}"]
        task(-1, [], ins[:11]); task(-1, [], ins[11:])
        task(L0+3, [], [perm(ee, k) for ee in range(4) for k in range(2)])
        task(L0+3, [L0, L0+1, L0+2, L0+3], [perm(ee, k) for ee in range(4, 8) for k in range(2)])
        ins = []
        for idx, ee in enumerate(order):
            ins += [perm(ee, 2), perm(ee, 3)]
            if idx >= 1: ins.append(mf(order[idx - 1]))
        ins.append(mf(order[7]))
        task(L0+7, [], ins[:11]); task(L0+7, [L0+4, L0+5, L0+6, L0+7], ins[11:])

    def setup_misc():
        common(); common2()
        e(f"v_lshl_add_u32 {vVs}, v5, 12, {vVo}"); e(f"v_add_u32 {vVo2}, 0x4000, {vVs}")
        e(f"s_mov_b32 s38, {KV_BYTES}"); e("s_mov_b32 s39, 0x20000")
        e(f"s_mov_b32 {sScale}, 0x3db504f3")
        e(f"s_mov_b32 {sL2E}, 0x3fb8aa3b")
        e(f"v_and_b32 {vMSa}, 3, {vLane}"); e(f"v_lshlrev_b32 {vMSa}, 3, {vMSa}")
        e(f"s_lshl_b32 {sT[0]}, {sW}, 5"); e(f"s_add_u32 {sT[0]}, {sT[0]}, {L_MS}"); e(f"v_add_u32 {vMSa}, {sT[0]}, {vMSa}")
        e(f"v_and_b32 {va}, 3, {vLane}"); e(f"v_lshlrev_b32 {va}, 8, {va}")
        e(f"v_lshrrev_b32 {vb}, 4, {vLane}"); e(f"v_lshlrev_b32 {vb}, 6, {vb}")
        e(f"s_mov_b32 {sT[0]}, {L_Q}")
        e(f"v_add3_u32 {va}, {va}, {vb}, {sT[0]}")
        e(f"v_bfe_u32 {vb}, {vLane}, 2, 2")
        for m in range(4):
            e(f"v_subrev_u32 {vc}, {m}, {vb}"); e(f"v_and_b32 {vc}, 3, {vc}")
            e(f"v_lshl_add_u32 v{T+m}, {vc}, 4, {va}")
        e(f"s_lshl_b32 {sT[0]}, {sW}, 11"); e(f"s_add_u32 {sT[0]}, {sT[0]}, {L_ACC}")
        e(f"v_add_u32 v92, {sT[0]}, {vVo}")
        e(f"s_mov_b32 {sFF}, {FF[0]}")
        for r in (1, 2, 3): e(f"s_cmp_eq_u32 {sRole}, {r}"); e(f"s_cselect_b32 {sFF}, {FF[r]}, {sFF}")
        e(f"s_cmp_ge_u32 {sC}, {32 - 8 * opts.get('np', 2)}"); e(f"s_cselect_b32 {sT[0]}, {opts.get('ffq', 0x48)}, 0"); e(f"s_or_b32 {sFF}, {sFF}, {sT[0]}")
        e("s_waitcnt lgkmcnt(0)")
        e(f"s_mov_b32 s36, s{sV}"); e(f"s_mov_b32 s37, s{sV+1}")
        e(f"v_mov_b32 v94, {L_FLAG}"); e(f"v_cmp_eq_u32 vcc, 0, {vLane}"); e("v_cndmask_b32 v95, 0, 1, vcc"); e(f"v_mov_b32 {vS0}, 0"); e(f"v_mov_b32 {vS1}, 0")
    def emit_task(t):
        for x in t["ins"]:
            if opts.get("nocomp") and (x.startswith("v_perm") or x.startswith("v_mfma") or "_dpp" in x): continue
            e(x)
        return len(t["ins"])
    ti = 0; freed = set()
    for s in range(2 * NL):
        if s == W0:
            setup_misc()
            e("s_barrier")
        if s == RING:
            stamp(1)
            lds_wait("L_qw", 0, 1, va, vb)
            for m in range(4): e(f"ds_read_b128 {vr(BQ+4*m)}, v{T+m}")
            stamp(2)
            e("s_waitcnt lgkmcnt(0)")
        if s >= RING:
            while (s - RING) not in freed:
                assert tasks[ti]["need"] <= s - 1 - W
                emit_task(tasks[ti]); freed.update(tasks[ti]["frees"]); ti += 1
        if s >= ENDS: e(f"s_waitcnt vmcnt({WHI-1})")
        elif s >= 8:
            e(f"s_waitcnt vmcnt({WHI-1})")
            e(f"s_cmp_eq_u32 {sLev}, 2"); e(f"s_cbranch_scc1 L_go{s}")
            A.opt(f"s_waitcnt vmcnt({W0-1})")
            A.opt(f"s_cmp_eq_u32 {sLev}, 1"); A.opt(f"s_cbranch_scc1 L_go{s}")
            A.opt(f"s_waitcnt vmcnt({WLO-1})")
            A.label(f"L_go{s}")
        elif s >= W0: e(f"s_waitcnt vmcnt({W0-1})")
        if debug and s == 4: e("s_memrealtime s[70:71]")
        if debug and s == W0: e("s_memrealtime s[72:73]")
        issue(s)
        if s == opts.get("qstart", 24): e("ds_add_u32 v94, v95 offset:36")
        SG = opts.get("sg", 180); CA, GA = opts.get("cka", (88, 120))
        if s in (SG, CA, GA, opts.get("prerd", 252) or -1): e("ds_add_u32 v94, v95 offset:20")
        CP = opts.get("cper", 4)
        if (s % 8 == 7 or (s >= GA and s % CP == CP - 1)) and s + 1 < ENDS:
            dyn = s >= GA
            if dyn:
                e("s_waitcnt lgkmcnt(0)")
                e(f"v_readfirstlane_b32 {sHi}, {vS0}"); e(f"v_readfirstlane_b32 {sLo}, {vS1}")
                e(f"ds_read_b64 v[{M+4}:{M+5}], v94 offset:24")
            e(f"s_bitcmp1_b32 {sFF}, {(s+1)//8}"); e(f"s_cselect_b32 {sLev}, 2, 1")
            if dyn:
                e(f"s_cmpk_gt_i32 {sHi}, {s+CP//2}"); e(f"s_cselect_b32 {sLev}, 2, {sLev}")
                e(f"s_cmpk_gt_i32 {sLo}, {s+CP//2}"); e(f"s_cselect_b32 {sLev}, 0, {sLev}")
        if s >= RING:
            spent = 0
            while ti < len(tasks) and tasks[ti]["need"] <= s - W and (spent == 0 or spent + len(tasks[ti]["ins"]) <= BUDGET):
                spent += emit_task(tasks[ti]); freed.update(tasks[ti]["frees"]); ti += 1
        if debug and s == NL: e("s_memrealtime s[74:75]")
    landed = 2 * NL - 1 - W
    while ti < len(tasks):
        if tasks[ti]["need"] > landed:
            landed = tasks[ti]["need"]; e(f"s_waitcnt vmcnt({2*NL-1-landed})")
        emit_task(tasks[ti]); ti += 1
    stamp(3)
    e(f"ds_write_b128 v92, {vr(ACC)}"); e(f"ds_write_b128 v92, {vr(ACC+4)} offset:1024")
    e("s_waitcnt lgkmcnt(0)")
    e("s_barrier")
    stamp(4)
    e(f"s_cmp_eq_u32 {sRole}, 1"); e("s_cbranch_scc1 L_st1")
    e(f"s_cmp_eq_u32 {sRole}, 2"); e("s_cbranch_scc1 L_st2")
    e("s_branch L_fin")

    def poll(lbl, loads, regs, sleep=0):
        A.label(lbl)
        timeout()
        if sleep: e(f"s_sleep {sleep}")
        for l in loads: e(l)
        regs = list(regs)
        n = len(loads)
        for li in range(n):
            e(f"s_waitcnt vmcnt({n-1-li})")
            r = regs[4*li:4*li+4]
            for k in range(4): e(f"v_xor_b32 v{r[k]}, {sTB[k]}, v{r[k]}")
            if li == 0: e(f"v_or_b32 {va}, v{r[0]}, v{r[1]}"); e(f"v_or_b32 {vb}, v{r[2]}, v{r[3]}")
            else: e(f"v_or3_b32 {va}, {va}, v{r[0]}, v{r[1]}"); e(f"v_or3_b32 {vb}, {vb}, v{r[2]}, v{r[3]}")
        e(f"v_bitop3_b32 {va}, {va}, {vb}, {vMask} bitop3:0x54")
        e(f"v_cmp_ne_u32 vcc, 0, {va}")
        e(f"s_cbranch_vccnz {lbl}")
    MK = 8
    def mpoll_init(n):
        for k in range(n): e(f"s_mov_b64 s[{MK+2*k}:{MK+2*k+1}], -1")
    def mpoll(lbl, loads, regs):
        n = len(loads); regs = list(regs)
        A.label(lbl)
        timeout()
        if debug: e("s_mov_b32 s74, s98"); e("s_memrealtime s[98:99]")
        for k in range(n):
            e(f"s_mov_b64 exec, s[{MK+2*k}:{MK+2*k+1}]"); e(f"s_cbranch_execz {lbl}_0k{k}")
            e(loads[k])
            A.label(f"{lbl}_0k{k}")
        A.label(lbl + "_w")
        e("s_mov_b64 s[6:7], 0")
        e("s_waitcnt vmcnt(0) lgkmcnt(0)" if debug else "s_waitcnt vmcnt(0)")
        for k in range(n):
            e(f"s_mov_b64 exec, s[{MK+2*k}:{MK+2*k+1}]"); e(f"s_cbranch_execz {lbl}_1k{k}")
            r = regs[4*k:4*k+4]
            for j in range(4): e(f"v_xor_b32 v{r[j]}, {sTB[j]}, v{r[j]}")
            e(f"v_or3_b32 {va}, v{r[0]}, v{r[1]}, v{r[2]}"); e(f"v_bitop3_b32 {va}, {va}, v{r[3]}, {vMask} bitop3:0x54")
            e(f"v_cmp_ne_u32 s[{MK+2*k}:{MK+2*k+1}], 0, {va}")
            e(f"s_or_b64 s[6:7], s[6:7], s[{MK+2*k}:{MK+2*k+1}]")
            A.label(f"{lbl}_1k{k}")
        e("s_cmp_eq_u64 s[6:7], 0"); e(f"s_cbranch_scc0 {lbl}")
        e("s_mov_b64 exec, -1")
        A.fence()
    def tag4(b):
        for k in range(4): e(f"v_and_or_b32 v{b+k}, v{b+k}, {vMask}, {sTB[k]}")
    def get_tag():
        e(f"v_mov_b32 {va}, {L_FLAG+16}"); e(f"ds_read_b32 {va}, {va}"); e(f"v_mov_b32 {vMask}, 0xffffff00")
        e("s_waitcnt lgkmcnt(0)")
        e(f"v_readfirstlane_b32 {sTag}, {va}")
        for k in range(4): e(f"s_bfe_u32 {sTB[k]}, {sTag}, {(8 << 16) | (8 * k):#x}")
    def wfrag(dst, raw, nload, ldsoff):
        e(f"s_mul_i32 {sT[0]}, {sW}, {WPW}"); e(f"v_add_u32 {va}, {sT[0]}, {vVo}")
        for n in range(nload): e(f"ds_read_b128 {vr(raw+4*n)}, {va} offset:{ldsoff + 1024*n}")
        e("s_waitcnt lgkmcnt(0)")
        wperm(dst, raw, nload)
    def wperm(dst, raw, nload):
        h = nload // 2
        for ee in range(8):
            for k in range(h):
                e(f"v_perm_b32 v{dst+h*ee+k}, v{raw+4*(2*k+1)+(ee>>1)}, v{raw+4*(2*k)+(ee>>1)}, {sSelHi if ee & 1 else sSelLo}")
    def pk(a, b): e(f"v_pk_add_f32 v[{a}:{a+1}], v[{a}:{a+1}], v[{b}:{b+1}]")
    def add4(a, b): pk(a, b); pk(a + 2, b + 2)
    F1 = 128; RAW = 192; G = 12; DD = 160; F2 = 224
    def svc_join(lbl):
        e(f"s_cmp_lt_u32 {sW}, 4"); e(f"s_cbranch_scc1 {lbl}")
        e("s_call_b64 s[66:67], L_publish")
        A.label(lbl)

    def gu_fold():
        for k in range(4):
            e(f"v_add_f32_dpp v{12+k}, v{DD+4*k+1}, v{DD+4*k} row_ror:8 row_mask:0xf bank_mask:0x3")
        for k in range(4):
            e(f"v_add_f32_dpp v{12+k}, v{DD+4*(k+4)}, v{DD+4*(k+4)+1} row_ror:8 row_mask:0xf bank_mask:0xc")
    def rowsum(b):
        e(f"v_permlane32_swap_b32 v{b}, v{b+2}"); e(f"v_permlane32_swap_b32 v{b+1}, v{b+3}")
        pk(b, b + 2)
        e(f"v_permlane16_swap_b32 v{b}, v{b+1}"); e(f"v_add_f32 v{b}, v{b}, v{b+1}")
    def afrag(src, extra=()):
        e(f"v_mov_b32_dpp v53, {src} row_ror:14 {DPPF}")
        e(f"v_cvt_pk_bf16_f32 v52, {src}, v53")
        for x in extra: e(x)
        for k in (1, 2, 3): e(f"v_mov_b32_dpp v{52+k}, v52 row_ror:{16-4*k} {DPPF}")
    A.label("L_st1")
    e(f"v_lshrrev_b32 {vc}, 4, {vLane}"); e(f"v_lshlrev_b32 {vc}, 11, {vc}")
    e(f"v_and_b32 {vd}, 15, {vLane}"); e(f"v_lshl_add_u32 {vc}, {vd}, 4, {vc}")
    s1G, s1C = (sIdx, sG) if opts.get("s1swap", False) else (sG, sIdx)
    e(f"s_lshl_b32 {sT[0]}, {s1G}, 16"); e(f"s_add_u32 {sT[0]}, {sT[0]}, {WS_PART}")
    e(f"s_lshl_b32 {sT[1]}, {sW}, 8"); e(f"s_add_u32 {sT[0]}, {sT[0]}, {sT[1]}")
    if opts.get("s1rot", True):
        e(f"s_lshl_b32 {sT[1]}, {s1C}, 13"); e(f"s_add_u32 {sT[0]}, {sT[0]}, {sT[1]}")
    e(f"v_add_u32 v44, {sT[0]}, {vc}")
    for it in range(1, 8): e(f"v_xor_b32 v{44+it}, {4*PREC*it}, v44")
    ld1 = [f"global_load_dwordx4 {vr(G+4*it)}, v{44+it}, {sp(sWS)} sc1" for it in range(8)]
    e(f"s_cmp_lt_u32 {sW}, 4"); e("s_cbranch_scc0 L_s1a")
    e("s_barrier")
    for l in ld1: e(l)
    A.label("L_s1a")
    get_tag()
    wfrag(F1, RAW, 8, 0)
    e(f"s_lshl_b32 {sT[0]}, {sW}, 8"); e(f"s_add_u32 {sT[0]}, {sT[0]}, {L_RED}")
    e(f"v_and_b32 {vY0}, 7, {vLane}"); e(f"v_lshlrev_b32 {vY0}, 5, {vY0}"); e(f"v_and_b32 {vd}, 8, {vLane}"); e(f"v_lshl_add_u32 {vY0}, {vd}, 1, {vY0}"); e(f"v_add_u32 {vY0}, {sT[0]}, {vY0}")
    e(f"v_add_u32 {vY1}, {L_RED}, {vVo}")
    e(f"s_lshl_b32 {sT[0]}, {s1G}, 11"); e(f"s_lshl_b32 {sT[1]}, {s1C}, 8"); e(f"s_add_u32 {sT[0]}, {sT[0]}, {sT[1]}"); e(f"s_add_u32 {sT[0]}, {sT[0]}, {WS_A1}")
    e(f"v_add_u32 {vS0}, {sT[0]}, {vVo}")
    mpoll_init(8)
    e(f"s_cmp_lt_u32 {sW}, 4"); e("s_cbranch_scc1 L_poll1_w")
    e("s_call_b64 s[66:67], L_publish")
    mpoll("L_poll1", ld1, range(12, 44))
    stamp(6)
    add4(12, 16); add4(20, 24); add4(28, 32); add4(36, 40); add4(12, 20); add4(28, 36); add4(12, 28)
    rowsum(12)
    afrag("v12")
    for ee in range(8): e(f"v_mfma_f32_16x16x32_bf16 {vr(DD+4*ee)}, v[52:55], {vr(F1+4*ee)}, 0")
    gu_fold()
    e("s_mov_b64 exec, 0xffff")
    e(f"ds_write_b128 {vY0}, v[12:15]")
    e("s_waitcnt lgkmcnt(0)")
    e("s_barrier")
    e(f"s_cmp_eq_u32 {sW}, 0"); e("s_cbranch_scc0 L_fin")
    for w in range(8): e(f"ds_read_b128 {vr(12+4*w)}, {vY1} offset:{256*w}")
    for w in range(0, 8, 2):
        e(f"s_waitcnt lgkmcnt({6-w})")
        add4(12 + 4*w, 16 + 4*w)
        if w in (2, 6): add4(12 + 4*(w-2), 12 + 4*w)
    add4(12, 28)
    tag4(12)
    e(f"global_store_dwordx4 {vS0}, v[12:15], {sp(sWS)} sc1")
    stamp(7)
    e("s_branch L_fin")

    LATE = opts.get("latedown", True)
    def down_addr():
        e(f"v_lshrrev_b32 v9, 4, {vLane}"); e("v_lshlrev_b32 v9, 13, v9")
        e(f"v_and_b32 v7, 15, {vLane}"); e("v_lshl_add_u32 v9, v7, 4, v9")
        e(f"s_lshl_b32 {sT[2]}, {sIdx}, 15"); e(f"s_and_b32 {sT[3]}, {sW}, 3"); e(f"s_lshl_b32 {sT[3]}, {sT[3]}, 8"); e(f"s_add_u32 {sT[2]}, {sT[2]}, {sT[3]}")
        e(f"s_add_u32 {sT[2]}, {sT[2]}, 4096"); e(f"v_add_u32 v9, {sT[2]}, v9")
    def down_loads(paced):
        if paced:
            e(f"s_cmp_eq_u32 {sRole}, 2"); e("s_cbranch_scc0 L_nodown")
            down_addr()
        for ep in range(8):
            e(f"global_load_dwordx4 {vr(RAW+4*ep)}, v9, {sp(sWD)} offset:{1024*ep - 4096} nt")
            if paced: e(f"s_waitcnt vmcnt({1 if ep < 7 else 0})")
        if paced: wperm(F2, RAW, 8)
    A.label("L_st2")
    e(f"s_cmp_lt_u32 {sW}, 4"); e("s_cbranch_scc0 L_s2a")
    e("s_barrier")
    A.label("L_s2a")
    get_tag()
    e(f"v_and_b32 {vc}, 15, {vLane}")
    e(f"s_lshl_b32 {sT[0]}, {sW}, 4"); e(f"v_add_u32 {vc}, {sT[0]}, {vc}")
    e(f"v_lshrrev_b32 {vf}, 4, {vLane}"); e(f"v_lshl_add_u32 {vd}, {vc}, 2, {vf}"); e(f"v_lshlrev_b32 {vd}, 1, {vd}")
    e(f"global_load_ushort v28, {vd}, {sp(sX)}")
    wfrag(F1, RAW, 8, 0)
    e(f"v_lshlrev_b32 {vd}, 11, {vf}")
    e(f"v_lshl_add_u32 v36, {vc}, 4, {vd}"); e(f"v_add_u32 v36, {WS_A1}, v36")
    e(f"v_add_u32 v37, 8192, v36")
    e(f"s_lshl_b32 {sT[0]}, {sW}, 3"); e(f"s_add_u32 {sT[0]}, {sT[0]}, {L_STAT}"); e(f"v_mov_b32 v40, {sT[0]}")
    e(f"v_bfe_u32 v41, {vLane}, 1, 3"); e("v_lshlrev_b32 v41, 3, v41"); e(f"v_add_u32 v41, {L_STAT}, v41")
    e(f"v_mov_b32 v30, {L_STAT}")
    e(f"s_lshl_b32 {sT[0]}, {sW}, 8"); e(f"s_add_u32 {sT[0]}, {sT[0]}, {L_RED}")
    e(f"v_and_b32 v42, 7, {vLane}"); e("v_lshlrev_b32 v42, 5, v42"); e(f"v_and_b32 {vd}, 8, {vLane}"); e(f"v_lshl_add_u32 v42, {vd}, 1, v42"); e(f"v_add_u32 v42, {sT[0]}, v42")
    e(f"v_bfe_u32 v43, {vLane}, 1, 3"); e("v_lshlrev_b32 v43, 8, v43")
    e(f"v_lshrrev_b32 {vd}, 4, {vLane}"); e(f"v_lshl_add_u32 v43, {vd}, 5, v43")
    e(f"v_and_b32 {vd}, 1, {vLane}"); e(f"v_lshl_add_u32 v43, {vd}, 4, v43"); e(f"v_add_u32 v43, {L_RED}, v43")
    e(f"s_lshl_b32 {sT[0]}, {sIdx}, 11"); e(f"s_and_b32 {sT[1]}, {sW}, 3"); e(f"s_lshl_b32 {sT[1]}, {sT[1]}, 9"); e(f"s_add_u32 {sT[0]}, {sT[0]}, {sT[1]}"); e(f"s_add_u32 {sT[0]}, {sT[0]}, {WS_D2}")
    e(f"v_and_b32 {vS0}, 15, {vLane}"); e(f"v_lshlrev_b32 {vS0}, 5, {vS0}"); e(f"v_and_b32 {vd}, 16, {vLane}"); e(f"v_add3_u32 {vS0}, {vS0}, {vd}, {sT[0]}")
    e("s_waitcnt vmcnt(0)")
    e("v_lshlrev_b32 v32, 16, v28")
    if LATE: down_addr()
    e(f"s_cmp_lt_u32 {sW}, 4"); e("s_cbranch_scc1 L_j2")
    e("s_call_b64 s[66:67], L_publish")
    if LATE: down_loads(False)
    A.label("L_j2")
    for k in range(4): e(f"v_mov_b32 v{52+k}, 0x3f803f80")
    for ee in range(8): e(f"v_mfma_f32_16x16x32_bf16 {vr(DD+4*ee)}, v[52:55], {vr(F1+4*ee)}, 0")
    gu_fold()
    e("s_mov_b64 exec, 0xffff"); e("ds_write_b128 v42, v[12:15] offset:2048"); e("s_mov_b64 exec, -1")
    e("s_waitcnt lgkmcnt(0)")
    e("s_barrier")
    CS = 64
    e(f"ds_read_b128 {vr(CS)}, v43 offset:2048"); e(f"ds_read_b128 {vr(CS+4)}, v43 offset:{2048+128}")
    e("s_waitcnt lgkmcnt(0)")
    for s in (8, 4, 2):
        for r in range(8): e(f"v_add_f32_dpp v{CS+r}, v{CS+r}, v{CS+r} row_ror:{s} {DPPF}")
    if LATE:
        e(f"s_cmp_lt_u32 {sW}, 4"); e("s_cbranch_scc1 L_poll2")
        e("s_waitcnt vmcnt(0)")
        wperm(F2, RAW, 8)
        stamp(2)
    poll("L_poll2", [f"global_load_dwordx4 {vr(G+4*it)}, v{36+it}, {sp(sWS)} sc1" for it in range(2)], range(12, 20))
    stamp(6)
    add4(12, 16)
    rowsum(12)
    def rnd4(b, t):
        e(f"v_cvt_pk_bf16_f32 v{t}, v{b}, v{b+1}"); e(f"v_cvt_pk_bf16_f32 v{t+1}, v{b+2}, v{b+3}")
        e(f"v_lshlrev_b32 v{b}, 16, v{t}"); e(f"v_and_b32 v{b+1}, 0xffff0000, v{t}")
        e(f"v_lshlrev_b32 v{b+2}, 16, v{t+1}"); e(f"v_and_b32 v{b+3}, 0xffff0000, v{t+1}")
    e("v_cvt_pk_bf16_f32 v12, v12, v12"); e("v_lshlrev_b32 v12, 16, v12"); e("v_add_f32 v12, v32, v12")
    afrag("v12", ["v_lshlrev_b32 v20, 16, v52"])
    e(f"v_readfirstlane_b32 {sT[2]}, v20")
    st = [f"v_subrev_f32 v20, {sT[2]}, v20", "v_mul_f32 v21, v20, v20",
          "v_permlane32_swap_b32 v20, v21", "v_add_f32 v20, v20, v21", "v_mov_b32 v21, v20",
          "v_permlane16_swap_b32 v21, v20", "v_add_f32 v20, v20, v21"]
    st += [f"v_add_f32_dpp v20, v20, v20 row_ror:{k} {DPPF}" for k in (8, 4, 2, 1)]
    st += [f"v_readlane_b32 {sT[3]}, v20, 32", "v_mul_f32 v21, 0x3c800000, v20", f"v_add_f32 v22, {sT[2]}, v21", f"v_fma_f32 v23, -v21, v20, {sT[3]}"]
    cuts = [0, 2, 5, 7, 8, 9, 10, 11, len(st)]
    for ee in range(8):
        e(f"v_mfma_f32_16x16x32_bf16 {vr(DD+4*ee)}, v[52:55], {vr(F1+4*ee)}, 0")
        for x in st[cuts[ee]:cuts[ee+1]]: e(x)
    gu_fold()
    e("s_mov_b64 exec, 0xffff")
    e("ds_write_b64 v40, v[22:23]")
    e("ds_write_b128 v42, v[12:15]")
    e("s_mov_b64 exec, -1")
    e("s_waitcnt lgkmcnt(0)")
    e("s_barrier")
    e(f"s_cmp_lt_u32 {sW}, 4"); e("s_cbranch_scc1 L_fin")
    e("ds_read_b64 v[20:21], v41"); e("ds_read_b32 v22, v30")
    e("ds_read_b128 v[12:15], v43"); e("ds_read_b128 v[16:19], v43 offset:128")
    e("s_waitcnt lgkmcnt(2)")
    e("v_sub_f32 v20, v20, v22"); e("v_mul_f32 v23, 0x42800000, v20"); e("v_fmac_f32 v21, v23, v20")
    lnf = ["v_mul_f32 v23, 0x41000000, v20", "v_fma_f32 v21, -v23, v20, v21", "v_fmac_f32 v22, 0x3e000000, v20", "v_mul_f32 v21, 0x3b000000, v21",
           "v_cvt_pk_bf16_f32 v23, v22, v21", "v_lshlrev_b32 v22, 16, v23", "v_and_b32 v21, 0xffff0000, v23", "v_add_f32 v21, 0x3727c5ac, v21",
           "v_cvt_pk_bf16_f32 v23, v21, v21", "v_lshlrev_b32 v21, 16, v23", "v_sqrt_f32 v21, v21", "v_cvt_pk_bf16_f32 v23, v21, v21",
           "v_lshlrev_b32 v21, 16, v23", "v_rcp_f32 v21, v21"]
    for s in (8, 4, 2):
        e(f"v_add_f32_dpp v20, v20, v20 row_ror:{s} {DPPF}"); e(f"v_add_f32_dpp v21, v21, v21 row_ror:{s} {DPPF}")
        if s == 8: e("s_waitcnt lgkmcnt(0)")
        if s != 2:
            for r in range(4 if s == 8 else 0, 8 if s == 8 else 4): e(f"v_add_f32_dpp v{12+r}, v{12+r}, v{12+r} row_ror:8 {DPPF}")
    k = 0
    for s in (4, 2):
        for r in range(8):
            e(f"v_add_f32_dpp v{12+r}, v{12+r}, v{12+r} row_ror:{s} {DPPF}")
            if k < len(lnf): e(lnf[k]); k += 1
    for r in range(8): e(f"v_fma_f32 v{12+r}, -v22, v{CS+r}, v{12+r}")
    for r in range(8): e(f"v_mul_f32 v{12+r}, v21, v{12+r}")
    rnd4(12, 24); rnd4(16, 26)
    e("v_pk_mul_f32 v[12:13], v[12:13], v[16:17]"); e("v_pk_mul_f32 v[14:15], v[14:15], v[18:19]")
    e("v_cvt_pk_bf16_f32 v52, v12, v13"); e("v_cvt_pk_bf16_f32 v53, v14, v15")
    e(f"v_mov_b32_dpp v54, v52 quad_perm:[1,0,3,2] {DPPF}"); e(f"v_mov_b32_dpp v55, v53 quad_perm:[1,0,3,2] {DPPF}")
    for ee in range(8): e(f"v_mfma_f32_16x16x32_bf16 {vr(DD+4*ee)}, v[52:55], {vr(F2+4*ee)}, 0")
    for k in range(4): e(f"v_and_or_b32 v{12+k}, v{DD+4*k}, {vMask}, {sTB[k]}")
    e("s_mov_b32 exec_lo, 0xffff0000"); e("s_mov_b32 exec_hi, 0")
    for k in range(4): e(f"v_and_or_b32 v{12+k}, v{DD+4*(k+4)}, {vMask}, {sTB[k]}")
    e("s_mov_b32 exec_lo, -1")
    e(f"global_store_dwordx4 {vS0}, v[12:15], {sp(sWS)} sc1")
    e("s_mov_b64 exec, -1")
    stamp(7)
    e("s_branch L_fin")
    def ln_finish(vm, vv, t):
        e(f"v_cvt_pk_bf16_f32 {t}, {vm}, {vv}")
        e(f"v_lshlrev_b32 {vm}, 16, {t}"); e(f"v_and_b32 {vv}, 0xffff0000, {t}")
        e(f"v_add_f32 {vv}, 0x3727c5ac, {vv}")
        e(f"v_cvt_pk_bf16_f32 {t}, {vv}, {vv}"); e(f"v_lshlrev_b32 {vv}, 16, {t}")
        e(f"v_sqrt_f32 {vv}, {vv}")
        e(f"v_cvt_pk_bf16_f32 {t}, {vv}, {vv}"); e(f"v_lshlrev_b32 {vv}, 16, {t}")
        e(f"v_rcp_f32 {vv}, {vv}")

    A.label("L_st3")
    get_tag()
    e(f"v_and_b32 {vc}, 7, {vLane}"); e(f"v_lshlrev_b32 {vd}, 2, {vc}"); e(f"v_lshrrev_b32 {vf}, 4, {vLane}"); e(f"v_add_u32 {vd}, {vd}, {vf}")
    e(f"s_lshl_b32 {sT[0]}, {sIdx}, 5"); e(f"v_add_u32 {vd}, {sT[0]}, {vd}"); e(f"v_lshlrev_b32 {vS0}, 1, {vd}")
    e(f"global_load_ushort v60, {vS0}, {sp(sX)}")
    e(f"v_lshrrev_b32 {vd}, 3, {vLane}"); e(f"v_lshlrev_b32 {vd}, 11, {vd}"); e(f"v_lshl_add_u32 {vd}, {vc}, 4, {vd}")
    e(f"s_lshl_b32 {sT[0]}, {sIdx}, 7"); e(f"v_add_u32 {vd}, {sT[0]}, {vd}")
    e(f"v_add_u32 v44, {WS_A1}, {vd}"); e(f"v_add_u32 v45, {WS_A1 + 16384}, {vd}")
    for it in range(7): e(f"v_add_u32 v{46+it}, {WS_D2 + 16384*it}, {vd}")
    e("s_barrier")
    e("s_barrier")
    e(f"v_mov_b32 v61, {sTag}"); e("v_mov_b32 v62, 0")
    def red4(b):
        e(f"v_permlane32_swap_b32 v{b}, v{b+2}"); e(f"v_permlane32_swap_b32 v{b+1}, v{b+3}")
        e(f"v_add_f32 v{b}, v{b}, v{b+2}"); e(f"v_add_f32 v{b+1}, v{b+1}, v{b+3}")
        e(f"v_permlane16_swap_b32 v{b}, v{b+1}"); e(f"v_add_f32 v{b}, v{b}, v{b+1}")
        e(f"v_add_f32_dpp v{b}, v{b}, v{b} row_ror:8 {DPPF}")
    poll("L_poll3a", [f"global_load_dwordx4 v[12:15], v44, {sp(sWS)} sc1"], range(12, 16))
    red4(12)
    e("v_cvt_pk_bf16_f32 v12, v12, v12"); e("v_lshlrev_b32 v12, 16, v12"); e("v_lshlrev_b32 v60, 16, v60")
    e("v_add_f32 v60, v60, v12"); e("v_cvt_pk_bf16_f32 v60, v60, v60"); e("v_lshlrev_b32 v60, 16, v60")
    stamp(6)
    poll("L_poll3b", [f"global_load_dwordx4 {vr(12+4*it)}, v{46+it}, {sp(sWS)} sc1" for it in range(7)], range(12, 40))
    for a, b in ((12, 16), (20, 24), (28, 32), (12, 20), (28, 36), (12, 28)): add4(a, b)
    red4(12)
    e("v_cvt_pk_bf16_f32 v12, v12, v12"); e("v_lshlrev_b32 v12, 16, v12")
    e("v_add_f32 v12, v60, v12")
    if opts.get("probe"):
        lo, hi = opts["probe"]
        e("s_memrealtime s[82:83]"); e("s_waitcnt lgkmcnt(0)"); e("s_sub_u32 s82, s82, s80")
        e(f"s_sub_u32 s83, s82, {lo}"); e(f"s_cmp_lt_u32 s83, {hi - lo}"); e("s_cbranch_scc1 L_pok")
        for _ in range(16): e("s_sleep 127")
        A.label("L_pok")
    e("v_cvt_pk_bf16_f32 v12, v12, v12")
    e("s_mov_b32 exec_lo, 0x00ff00ff"); e("s_mov_b32 exec_hi, 0x00ff00ff")
    e(f"global_store_short {vS0}, v12, {sp(sOUT)}")
    e(f"s_cmp_eq_u32 {sIdx}, 0"); e("s_cbranch_scc0 L_noep")
    e("s_mov_b64 exec, 1")
    e(f"global_store_dword v62, v61, {sp(sWS)}")
    A.label("L_noep")
    e("s_mov_b64 exec, -1")
    stamp(7)

    A.label("L_fin")
    if debug:
        e("s_mov_b64 exec, -1")
        e("s_waitcnt vmcnt(0) lgkmcnt(0)")
        e("s_memrealtime s[96:97]"); e("s_memtime s[6:7]")
        e("s_waitcnt lgkmcnt(0)")
        e("s_sub_u32 s6, s6, s100"); e("v_mov_b32 v18, s6")
        e(f"s_lshl_b32 {sT[0]}, {sId}, 3"); e(f"s_add_u32 {sT[0]}, {sT[0]}, {sW}"); e(f"s_lshl_b32 {sT[0]}, {sT[0]}, 6"); e(f"s_add_u32 {sT[0]}, {sT[0]}, {WS_STAMP}")
        e(f"v_mov_b32 v20, {sT[0]}")
        for i in range(9): e(f"v_mov_b32 v{4+i}, s{80+2*i}")
        e("s_getreg_b32 s52, hwreg(HW_REG_XCC_ID)"); e("v_mov_b32 v13, s52"); e("v_mov_b32 v14, s70"); e("v_mov_b32 v15, s72"); e("v_mov_b32 v16, s74"); e("v_mov_b32 v17, s98"); e("v_mov_b32 v19, s73")
        e("s_mov_b64 exec, 1")
        for i in range(4): e(f"global_store_dwordx4 v20, v[{4+4*i}:{7+4*i}], {sp(sWS)} offset:{16*i}")
    A.label("L_end")
    e("s_endpgm")

    A.label("L_publish")
    e(f"v_and_b32 {va}, 3, {vLane}"); e(f"v_lshlrev_b32 {va}, 3, {va}"); e(f"v_add_u32 {va}, {L_MS}, {va}")
    for w in range(4): e(f"ds_read_b32 v{56+2*w}, {va} offset:{32*w}")
    e(f"ds_read_b64 v[64:65], {va} offset:{L_GS - L_MS}")
    e(f"v_mov_b32 {vb}, {L_FLAG+40}"); e(f"ds_read_b32 {vb}, {vb}")
    e(f"s_and_b32 {sT[0]}, {sW}, 1"); e(f"s_lshl_b32 {sT[0]}, {sT[0]}, 10")
    e(f"s_lshl_b32 {sT[1]}, {sId}, 11"); e(f"s_add_u32 {sT[1]}, {sT[1]}, {WS_PART}"); e(f"s_add_u32 {sT[1]}, {sT[1]}, {sT[0]}")
    e(f"s_add_u32 {sT[0]}, {sT[0]}, {L_ACC}")
    e("s_waitcnt lgkmcnt(0)")
    e(f"v_readfirstlane_b32 {sT[2]}, {vb}")
    for w in range(4): e(f"v_sub_f32 v{56+2*w}, v{56+2*w}, v64")
    for w in range(4): e(f"v_exp_f32 v{56+2*w}, v{56+2*w}")
    for w in range(4): e(f"v_mul_f32 v{56+2*w}, v{56+2*w}, v65")
    for w in range(4): e(f"v_mov_b32 v{57+2*w}, v{56+2*w}")
    e(f"v_add_u32 {va}, {sT[0]}, {vVo}"); e(f"v_add_u32 {vb}, {sT[1]}, {vVo}")
    if opts.get("prerd", 252):
        e(f"s_cmp_gt_u32 {sW}, 5"); e("s_cbranch_scc1 L_nopre")
        e(f"s_cmp_eq_u32 {sT[2]}, 0"); e("s_cbranch_scc0 L_nopre")
        lds_wait("L_pw", 20, 13, "v12", "v13", sleep=4)
        e(f"global_load_dwordx4 v[12:15], {vb}, {sp(sWS)} {opts.get('prepol', 'nt')}")
        e("s_waitcnt vmcnt(0)")
        A.label("L_nopre")
    e("s_barrier")
    stamp(4)
    e(f"s_cmp_gt_u32 {sW}, 5"); e("s_cbranch_scc1 L_pubret")
    for w in range(4): e(f"ds_read_b128 {vr(12+4*w)}, {va} offset:{2048*w}")
    for w in range(4):
        e(f"s_waitcnt lgkmcnt({3-w})")
        for r in (0, 2):
            if w == 0: e(f"v_pk_mul_f32 v[{12+r}:{13+r}], v[{12+r}:{13+r}], v[56:57]")
            else: e(f"v_pk_fma_f32 v[{12+r}:{13+r}], v[{12+4*w+r}:{13+4*w+r}], v[{56+2*w}:{57+2*w}], v[{12+r}:{13+r}]")
    tag4(12)
    e(f"s_cmp_eq_u32 {sT[2]}, 0"); e("s_cbranch_scc1 L_publ")
    e(f"global_store_dwordx4 {vb}, v[12:15], {sp(sWS)} sc1"); e("s_branch L_pubd")
    A.label("L_publ")
    e(f"global_store_dwordx4 {vb}, v[12:15], {sp(sWS)}")
    A.label("L_pubd")
    stamp(5)
    A.label("L_pubret")
    e("s_barrier")
    e("s_setpc_b64 s[66:67]")
    A.fence()

    def tag_from(v):
        e(f"v_readfirstlane_b32 {sTag}, {v}")
        e(f"s_add_u32 {sTag}, {sTag}, 0x01010101")
        for k in range(4): e(f"s_bfe_u32 {sTB[k]}, {sTag}, {(8 << 16) | (8 * k):#x}")
    NP = opts.get("np", 2); C0 = 32 - 8 * NP
    DW = opts.get("dmawin", 1)
    def thr(): e(f"s_waitcnt vmcnt({DW-1})")
    A.label("L_sv4")
    if opts.get("touch", False):
        e(f"s_cmp_eq_u32 {sW}, 7"); e("s_cbranch_scc0 L_notouch")
        e(f"v_lshlrev_b32 v5, 16, {vLane}"); e(f"s_lshl_b32 {sT[0]}, s2, 19"); e(f"v_add_u32 v5, {sT[0]}, v5")
        e("s_mov_b64 exec, 0xff")
        e(f"global_load_dword v6, v5, {sp(sV)} nt")
        e("s_mov_b64 exec, 1")
        e(f"global_load_dword v7, v9, {sp(sOUT)} nt")
        e("s_mov_b64 exec, -1")
        e("s_waitcnt vmcnt(0)")
        A.label("L_notouch")
    if opts.get("dmaq", False): lds_wait("L_dq", 0, 1, va, vb, sleep=8)
    A.label("L_down")
    if not LATE: down_loads(True)
    A.label("L_nodown")
    ND = opts.get("ndma", 3)
    if ND < 4: e(f"s_cmp_eq_u32 {sW}, 4"); e("s_cbranch_scc1 L_stats")
    if ND == 2: e(f"s_cmp_eq_u32 {sW}, 5"); e("s_cbranch_scc1 L_wdone")
    e(f"s_sub_u32 {sWW}, {sW}, {8 - ND}")
    if opts.get("nodma"): e("s_branch L_wdone")
    e(f"s_cmp_eq_u32 {sRole}, 1"); e("s_cbranch_scc0 L_now1")
    e(f"s_mov_b32 s40, s{sWO}"); e(f"s_mov_b32 s41, s{sWO+1}"); e(f"s_mov_b32 s42, {4096*1024}"); e("s_mov_b32 s43, 0x20000")
    e(f"v_bfe_u32 v5, {vLane}, 3, 1"); e("v_lshlrev_b32 v5, 17, v5")
    e(f"v_lshrrev_b32 v6, 4, {vLane}"); e("v_lshlrev_b32 v6, 13, v6")
    e(f"v_and_b32 v7, 7, {vLane}"); e("v_lshlrev_b32 v7, 4, v7")
    e("v_add3_u32 v5, v5, v6, v7")
    A.label("L_dma1")
    e(f"s_mul_i32 {sT[1]}, {sWW}, {WPW}")
    e(f"s_lshl_b32 {sT[2]}, {s1G}, 9")
    e(f"s_and_b32 {sT[3]}, {sWW}, 3"); e(f"s_lshl_b32 {sT[3]}, {sT[3]}, 5"); e(f"s_add_u32 {sT[2]}, {sT[2]}, {sT[3]}")
    e(f"s_and_b32 {sT[3]}, {sWW}, 4"); e(f"s_add_u32 {sT[2]}, {sT[2]}, {sT[3]}")
    e(f"s_lshl_b32 {sT[2]}, {sT[2]}, 10")
    e(f"s_lshl_b32 {sT[3]}, {s1C}, 7"); e(f"s_add_u32 {sT[2]}, {sT[2]}, {sT[3]}")
    for ep in range(8):
        e(f"s_add_u32 {sT[3]}, {sT[2]}, {(256*(ep&1) + (ep>>1))*1024}")
        e(f"s_add_u32 m0, {sT[1]}, {ep*1024}")
        thr()
        e(f"buffer_load_dwordx4 v5, {srdW}, {sT[3]} offen nt lds")
    e(f"s_add_u32 {sWW}, {sWW}, {ND}"); e(f"s_cmp_lt_u32 {sWW}, 8"); e("s_cbranch_scc1 L_dma1")
    e("s_branch L_wdone")
    A.label("L_now1")
    e(f"s_cmp_eq_u32 {sRole}, 2"); e("s_cbranch_scc0 L_wdone")
    e(f"v_lshrrev_b32 v5, 4, {vLane}"); e(f"v_bfe_u32 v6, {vLane}, 3, 1"); e("v_lshl_add_u32 v5, v6, 2, v5")
    e(f"s_lshl_b32 {sT[2]}, {sWW}, 6"); e(f"v_add_u32 v5, {sT[2]}, v5")
    e("v_mul_u32_u24 v5, 3584, v5")
    e(f"v_and_b32 v6, 3, {vLane}"); e("v_lshlrev_b32 v6, 4, v6")
    e(f"s_lshl_b32 {sT[2]}, {sIdx}, 6"); e(f"v_add3_u32 v5, v5, v6, {sT[2]}")
    e(f"v_and_b32 v6, 4, {vLane}"); e("v_cmp_eq_u32 vcc, 0, v6")
    e(f"v_mov_b32 v6, s{sWU}"); e(f"v_mov_b32 v8, s{sWG}"); e("v_cndmask_b32 v6, v6, v8, vcc")
    e(f"v_mov_b32 v7, s{sWU+1}"); e(f"v_mov_b32 v8, s{sWG+1}"); e("v_cndmask_b32 v7, v7, v8, vcc")
    e("v_add_co_u32 v6, vcc, v6, v5"); e("v_addc_co_u32 v7, vcc, 0, v7, vcc")
    A.label("L_dma2")
    e(f"s_mul_i32 {sT[1]}, {sWW}, {WPW}")
    for ep in range(8):
        e(f"s_add_u32 m0, {sT[1]}, {ep*1024}")
        thr()
        e(f"global_load_lds_dwordx4 v[6:7], off {opts.get('gupol', 'nt')}")
        e(f"v_add_co_u32 v6, vcc, {3584*8 if ep < 7 else 3584*(64*ND-56)}, v6"); e("v_addc_co_u32 v7, vcc, 0, v7, vcc")
    e(f"s_add_u32 {sWW}, {sWW}, {ND}"); e(f"s_cmp_lt_u32 {sWW}, 8"); e("s_cbranch_scc1 L_dma2")
    A.label("L_wdone")
    e("s_waitcnt vmcnt(0)")
    e(f"v_mov_b32 {va}, {L_FLAG+12}"); e(f"v_mov_b32 {vb}, 1")
    e("s_mov_b64 exec, 1"); e(f"ds_add_u32 {va}, {vb}"); e("s_mov_b64 exec, -1")
    stamp(1)
    if ND == 4: e(f"s_cmp_eq_u32 {sW}, 4"); e("s_cbranch_scc1 L_stats")
    A.label("L_svc2")
    lds_wait("L_dw", 12, max(3, ND), va, vb, sleep=16)
    lds_wait("L_sq", 8, 1, va, vb, sleep=16)
    e(f"s_cmp_eq_u32 {sRole}, 1"); e("s_cbranch_scc1 L_st1")
    e(f"s_cmp_eq_u32 {sRole}, 2"); e("s_cbranch_scc1 L_st2")
    e(f"s_cmp_eq_u32 {sRole}, 3"); e("s_cbranch_scc0 L_svc3")
    e(f"s_cmp_eq_u32 {sW}, 7"); e("s_cbranch_scc1 L_st3")
    A.label("L_svc3")
    get_tag()
    e("s_call_b64 s[66:67], L_publish")
    e("s_branch L_fin")

    A.label("L_stats")
    SG = opts.get("sg", 180); CA, GA = opts.get("cka", (88, 120)); SP = opts.get("spub", 150)
    GH = float(opts.get('gh', 0.32)); GL = float(opts.get('gl', 0.25))
    e(f"v_mov_b32 v24, {L_FLAG}")
    def control(base, lag, sub=None):
        e(f"v_mov_b32 v28, {float(base)}")
        if sub: e(f"v_sub_f32 v28, v28, {sub}")
        e(f"v_fmac_f32 v28, {GH}, {lag}")
        e(f"v_mov_b32 v29, {float(base)}"); e(f"v_fmac_f32 v29, {-GL}, {lag}")
        e(f"v_cmp_lt_f32 vcc, 0, {lag}"); e("v_cndmask_b32 v28, 0, v28, vcc"); e("v_cndmask_b32 v29, v29, 0, vcc")
        e("v_cvt_i32_f32 v26, v28"); e("v_cvt_i32_f32 v27, v29")
        if not opts.get("noctl"): e("ds_write_b64 v24, v[26:27] offset:24")
    e("s_getreg_b32 s71, hwreg(HW_REG_XCC_ID, 0, 4)")
    def ck_pub(k):
        e("s_memrealtime s[68:69]")
        e(f"s_lshl_b32 {sT[0]}, {sId}, 3"); e(f"s_add_u32 {sT[0]}, {sT[0]}, {WS_CK + 2048*k}"); e(f"v_mov_b32 v5, {sT[0]}"); e(f"v_mov_b32 v33, {sTag}")
        e("s_waitcnt lgkmcnt(0)"); e("s_lshl_b32 s68, s68, 4"); e("s_or_b32 s68, s68, s71"); e("v_mov_b32 v32, s68")
        e("s_mov_b64 exec, 1"); e(f"global_store_dwordx2 v5, v[32:33], {sp(sWS)} sc1"); e("s_mov_b64 exec, -1")
    def ck_load(k):
        e(f"v_lshlrev_b32 v6, 5, {vLane}"); e(f"v_add_u32 v6, {WS_CK + 2048*k}, v6")
        e(f"global_load_dwordx4 v[32:35], v6, {sp(sWS)} sc1"); e(f"global_load_dwordx4 v[36:39], v6, {sp(sWS)} offset:16 sc1")
    def ck_lag(bias):
        e(f"v_mov_b32 v40, {opts.get('miss', -400) * 16}")
        for k in range(4):
            e(f"v_sub_u32 v{32+2*k}, s68, v{32+2*k}"); e(f"v_cmp_eq_u32 vcc, {sTag}, v{33+2*k}"); e(f"v_cndmask_b32 v{32+2*k}, v40, v{32+2*k}, vcc")
        e("v_add3_u32 v32, v32, v34, v36"); e("v_add_u32 v32, v32, v38"); e("v_cvt_f32_i32 v32, v32")
        e(f"v_add_f32_dpp v32, v32, v32 quad_perm:[1,0,3,2] {DPPF}"); e(f"v_add_f32_dpp v32, v32, v32 quad_perm:[2,3,0,1] {DPPF}")
        for x in xlane("add", "v32", "v33"): e(x)
        e(f"v_mov_b32 v19, {float(bias)}"); e("v_fmac_f32 v19, 0x39800000, v32")
    lds_wait("L_ca", 20, 4, va, vb, sleep=4)
    ck_pub(0)
    lds_wait("L_ga", 20, 5, va, vb, sleep=8)
    ck_load(0)
    e("s_waitcnt vmcnt(0)")
    e("v_or3_b32 v41, v32, v34, v36"); e("v_or_b32 v41, v41, v38"); e("v_and_b32 v42, v32, v34"); e("v_and_b32 v43, v36, v38"); e("v_and_b32 v42, v42, v43")
    e("v_xor_b32 v41, s71, v41"); e("v_bitop3_b32 v41, v41, v42, s71 bitop3:0xf6"); e("v_and_b32 v41, 15, v41")
    for k in range(4): e(f"v_bitop3_b32 v41, v41, v{33+2*k}, {sTag} bitop3:0xf6")
    e("v_cmp_ne_u32 vcc, 0, v41")
    e(f"s_lshl_b32 {sT[0]}, {sG}, 3"); e(f"s_lshr_b64 vcc, vcc, {sT[0]}"); e("s_and_b32 s70, vcc_lo, 0xff")
    if opts.get("nolocal"): e("s_mov_b32 s70, 1")
    e("v_mov_b32 v41, s70"); e("ds_write_b32 v24, v41 offset:40")
    ck_lag(opts.get('abias', 0.0))
    control(GA + 10, "v19")
    e(f"v_subrev_f32 v30, {float(SP)}, v28"); e(f"v_mov_b32 v31, {float(SG + 10 - SP)}"); e("v_med3_f32 v30, v30, 0, v31")
    lds_wait("L_sw", 4, 4, va, vb, sleep=4)
    ck_pub(1)
    e(f"v_and_b32 {vc}, 3, {vLane}"); e(f"v_lshlrev_b32 {va}, 3, {vc}"); e(f"v_add_u32 {va}, {L_MS}, {va}")
    for w in range(4): e(f"ds_read_b64 v[{12+2*w}:{13+2*w}], {va} offset:{32*w}")
    e("s_waitcnt lgkmcnt(0)")
    e("v_max3_f32 v20, v12, v14, v16"); e("v_max_f32 v20, v20, v18")
    for w in range(4): e(f"v_sub_f32 v{12+2*w}, v{12+2*w}, v20")
    for w in range(4): e(f"v_exp_f32 v{12+2*w}, v{12+2*w}")
    e("v_mul_f32 v22, v12, v13")
    for w in range(1, 4): e(f"v_fmac_f32 v22, v{12+2*w}, v{13+2*w}")
    e(f"v_mov_b32 v21, {sTag}"); e(f"v_mov_b32 v23, {sTag}")
    e(f"s_lshl_b32 {sT[0]}, {sId}, 6"); e(f"s_add_u32 {sT[0]}, {sT[0]}, {WS_ST}"); e(f"v_add_u32 v5, {sT[0]}, {vVo}")
    e("s_mov_b64 exec, 0xf")
    e("s_cmp_eq_u32 s70, 0"); e("s_cbranch_scc1 L_stl")
    e(f"global_store_dwordx4 v5, v[20:23], {sp(sWS)} sc1"); e("s_branch L_std")
    A.label("L_stl")
    e(f"global_store_dwordx4 v5, v[20:23], {sp(sWS)}")
    A.label("L_std")
    e("s_mov_b64 exec, -1")
    e(f"s_lshl_b32 {sT[0]}, {sG}, 11"); e(f"s_add_u32 {sT[0]}, {sT[0]}, {WS_ST}"); e(f"v_add_u32 v5, {sT[0]}, {vVo}")
    lds_wait("L_sg", 20, 9, va, vb, sleep=8)
    ck_load(1)
    e("s_waitcnt vmcnt(0)")
    ck_lag(opts.get('lbias', 20))
    control(SG + 10, "v19", "v30")
    if debug: e("v_cvt_i32_f32 v19, v19"); e("v_readfirstlane_b32 s73, v19")
    A.label("L_spoll")
    timeout()
    e(f"global_load_dwordx4 v[12:15], v5, {sp(sWS)} sc1"); e(f"global_load_dwordx4 v[16:19], v5, {sp(sWS)} offset:1024 sc1")
    e("s_waitcnt vmcnt(0)")
    e(f"v_xor_b32 v13, {sTag}, v13")
    for r in (15, 17, 19): e(f"v_bitop3_b32 v13, v13, v{r}, {sTag} bitop3:0xf6")
    e("v_cmp_ne_u32 vcc, 0, v13")
    e("s_cbranch_vccz L_sgot")
    e(f"s_sleep {opts.get('ssleep', 32)}"); e("s_branch L_spoll")
    A.label("L_sgot")
    e("v_max_f32 v20, v12, v16")
    for x in xlane("max", "v20", "v21"): e(x)
    e("v_sub_f32 v12, v12, v20"); e("v_sub_f32 v16, v16, v20"); e("v_exp_f32 v12, v12"); e("v_exp_f32 v16, v16")
    e("v_mul_f32 v21, v12, v14"); e("v_fmac_f32 v21, v16, v18")
    for x in xlane("add", "v21", "v22"): e(x)
    e("v_rcp_f32 v21, v21")
    e(f"v_lshlrev_b32 {va}, 3, {vc}"); e(f"v_add_u32 {va}, {L_GS}, {va}")
    e(f"ds_write_b64 {va}, v[20:21]")
    e(f"v_mov_b32 {va}, {L_FLAG+8}"); e(f"v_mov_b32 {vb}, 1")
    e(f"ds_write_b32 {va}, {vb}")
    if debug: e("s_memrealtime s[98:99]")
    e("s_branch L_svc2")

    main_lines = A.lines; A.lines = []; A.fence()
    A.label("L_service")
    common()
    e("v_mov_b32 v8, 0"); e("v_mov_b32 v9, 0"); e("v_mov_b32 v10, 0"); e("v_mov_b32 v11, 0")
    e(f"v_mov_b32 v64, {L_FLAG}")
    e(f"s_cmp_eq_u32 {sW}, 4"); e("s_cbranch_scc0 L_sv1")
    e("ds_write_b128 v64, v[8:11]"); e("ds_write_b128 v64, v[8:11] offset:16"); e("ds_write_b128 v64, v[8:11] offset:32")
    A.label("L_sv1")
    if opts.get("cpre", True):
        e("s_getpc_b64 s[6:7]")
        e(f"v_lshl_add_u32 v6, v5, 11, {vVo}")
        e("v_add_u32 v6, 0xffffe000, v6")
        e("global_load_dwordx4 v[56:59], v6, s[6:7]"); e("global_load_dwordx4 v[60:63], v6, s[6:7] offset:1024")
    e(f"s_cmp_ge_u32 {sC}, {C0}"); e("s_cbranch_scc1 L_qprod")
    common2()
    e("s_waitcnt lgkmcnt(0)")
    e("s_barrier")
    e(f"s_cmp_eq_u32 {sW}, 4"); e("s_cbranch_scc0 L_sv4")
    e(f"global_load_dword v10, v9, {sp(sWS)} sc1")
    e("s_waitcnt vmcnt(0)")
    tag_from("v10")
    e("s_branch L_qget")
    A.label("L_qprod")
    e("s_setprio 3")
    WQ = 128; XR = 12; XF = 20; QA = 36; XA = 66
    RW = 512 // NP // 4; NPR = RW // 16
    e(f"s_and_b32 {sT[5]}, {sC}, 7"); e(f"s_lshl_b32 {sQP}, {sG}, 3"); e(f"s_add_u32 {sQP}, {sQP}, {sT[5]}")
    e(f"s_sub_u32 {sT[4]}, {sC}, {C0}"); e(f"s_lshr_b32 {sT[4]}, {sT[4]}, 3")
    e(f"s_lshl_b32 {sT[3]}, {sT[4]}, 2"); e(f"s_add_u32 {sT[3]}, {sT[3]}, {sW}"); e(f"s_sub_u32 {sT[3]}, {sT[3]}, 4"); e(f"s_mul_i32 {sT[3]}, {sT[3]}, {RW}")
    e(f"v_lshrrev_b32 v5, 3, {vLane}"); e("v_lshlrev_b32 v6, 2, v5")
    e(f"s_lshl_b32 {sT[0]}, {sT[3]}, 1"); e(f"v_add_u32 v6, {sT[0]}, v6")
    e("v_lshlrev_b32 v7, 14, v5"); e(f"v_and_b32 v4, 7, {vLane}"); e("v_lshl_add_u32 v7, v4, 4, v7")
    e(f"s_lshl_b32 {sT[0]}, {sT[3]}, 13"); e(f"s_lshl_b32 {sT[1]}, {sQP}, 7"); e(f"s_add_u32 {sT[0]}, {sT[0]}, {sT[1]}"); e(f"v_add_u32 v7, {sT[0]}, v7")
    e("s_waitcnt lgkmcnt(0)")
    e(f"global_load_dwordx4 {vr(XA)}, {vVo}, {sp(sX)}")
    for k in range(NPR): e(f"global_load_dword v{XR+k}, v6, {sp(sX)} offset:{32*k}")
    e(f"global_load_dword v10, v9, {sp(sWS)} sc1")
    for i in range(2 * NPR):
        e(f"global_load_dwordx4 {vr(WQ+4*i)}, v7, {sp(sWQ)} {opts.get('wqpol', 'nt')}")
        if i < 2 * NPR - 1: e(f"v_add_u32 v7, {0x2000 if i % 2 == 0 else 0x1e000}, v7")
    e("s_barrier")
    common2()
    e(f"s_waitcnt vmcnt({3*NPR + 1})")
    for k in range(4):
        e(f"v_lshlrev_b32 v{44+2*k}, 16, v{XA+k}"); e(f"v_and_b32 v{45+2*k}, 0xffff0000, v{XA+k}")
    def wsum(r, tmp):
        for s in (8, 4, 2, 1): e(f"v_add_f32_dpp {r}, {r}, {r} row_ror:{s} {DPPF}")
        e(f"v_mov_b32 {tmp}, {r}"); e(f"v_permlane16_swap_b32 {tmp}, {r}"); e(f"v_add_f32 {r}, {tmp}, {r}")
        e(f"v_mov_b32 {tmp}, {r}"); e(f"v_permlane32_swap_b32 {tmp}, {r}"); e(f"v_add_f32 {r}, {tmp}, {r}")
    e("v_pk_add_f32 v[52:53], v[44:45], v[46:47]"); e("v_pk_add_f32 v[54:55], v[48:49], v[50:51]"); pk(52, 54)
    e(f"v_add_f32 {va}, v52, v53")
    wsum(va, vb)
    e(f"v_mul_f32 {va}, 0x3b000000, {va}")
    for k in range(8): e(f"v_sub_f32 v{44+k}, v{44+k}, {va}")
    e(f"v_mul_f32 {vc}, v44, v44"); e(f"v_mul_f32 {vd}, v45, v45")
    for k in range(2, 8): e(f"v_fmac_f32 {(vc, vd)[k&1]}, v{44+k}, v{44+k}")
    e(f"v_add_f32 {vc}, {vc}, {vd}")
    wsum(vc, vb)
    e(f"v_mul_f32 {vc}, 0x3b000000, {vc}")
    ln_finish(va, vc, vb)
    e(f"s_waitcnt vmcnt({2*NPR + 1})")
    for k in range(NPR):
        e(f"v_lshlrev_b32 v{XF+2*k}, 16, v{XR+k}"); e(f"v_and_b32 v{XF+2*k+1}, 0xffff0000, v{XR+k}")
    for k in range(2*NPR): e(f"v_sub_f32 v{XF+k}, v{XF+k}, {va}")
    for k in range(NPR): e(f"v_cvt_pk_bf16_f32 v{XR+k}, v{XF+2*k}, v{XF+2*k+1}")
    for k in range(NPR):
        e(f"v_lshlrev_b32 v{XF+2*k}, 16, v{XR+k}"); e(f"v_and_b32 v{XF+2*k+1}, 0xffff0000, v{XR+k}")
    for k in range(2*NPR): e(f"v_mul_f32 v{XF+k}, {vc}, v{XF+k}")
    for k in range(NPR): e(f"v_cvt_pk_bf16_f32 v{XR+k}, v{XF+2*k}, v{XF+2*k+1}")
    for k in range(8): e(f"v_mov_b32 v{QA+k}, 0")
    e(f"v_lshrrev_b32 v5, 4, {vLane}"); e("v_lshlrev_b32 v5, 3, v5"); e("v_lshl_add_u32 v5, v4, 5, v5")
    e(f"s_lshl_b32 {sT[0]}, {sW}, 8"); e(f"s_add_u32 {sT[0]}, {sT[0]}, {L_QP - 1024}"); e(f"v_add_u32 v5, {sT[0]}, v5")
    for p in range(NPR):
        e(f"s_waitcnt vmcnt({2*NPR - 2 - 2*p})")
        for ee in range(8):
            e(f"v_perm_b32 v{44+ee}, v{WQ+4*(2*p+1)+(ee>>1)}, v{WQ+4*(2*p)+(ee>>1)}, {sSelHi if ee & 1 else sSelLo}")
        for ee in range(8): e(f"v_dot2c_f32_bf16 v{QA+ee}, v{44+ee}, v{XR+p}")
    if debug: e("s_memrealtime s[70:71]")
    for o in (0, 1):
        e(f"v_permlane32_swap_b32 v{QA+o}, v{QA+4+o}"); e(f"v_permlane32_swap_b32 v{QA+2+o}, v{QA+6+o}")
    for o in (0, 1):
        e(f"v_add_f32 v{QA+o}, v{QA+o}, v{QA+4+o}"); e(f"v_add_f32 v{QA+2+o}, v{QA+2+o}, v{QA+6+o}")
    for o in (0, 1): e(f"v_permlane16_swap_b32 v{QA+o}, v{QA+2+o}")
    for o in (0, 1): e(f"v_add_f32 v{QA+o}, v{QA+o}, v{QA+2+o}")
    for o in (0, 1): e(f"v_add_f32_dpp v{QA+o}, v{QA+o}, v{QA+o} row_ror:8 {DPPF}")
    e(f"ds_write_b64 v5, v[{QA}:{QA+1}]")
    e("v_mov_b32 v44, 1")
    e("s_mov_b64 exec, 1"); e("ds_add_u32 v64, v44 offset:32"); e("s_mov_b64 exec, -1")
    e(f"s_cmp_eq_u32 {sW}, 4"); e("s_cbranch_scc1 L_qp4")
    e("s_setprio 0")
    e("s_branch L_sv4")
    A.label("L_qp4")
    tag_from("v10")
    if NP == 1:
        e(f"s_lshl_b32 {sT[1]}, {sQP}, 8"); e(f"s_add_u32 {sT[1]}, {sT[1]}, {WS_Q}"); e(f"v_add_u32 v6, {sT[1]}, {vVo}")
        e(f"v_add_u32 v5, {L_QP}, {vVo}")
        lds_wait("L_qpw", 32, 4, va, vb, sleep=0)
        e("s_mov_b64 exec, 0xffff")
        for v in range(4): e(f"ds_read_b128 {vr(44+4*v)}, v5 offset:{256*v}")
        e("s_waitcnt lgkmcnt(0)")
        add4(44, 48); add4(52, 56); add4(44, 52)
        e("v_cvt_pk_bf16_f32 v44, v44, v45"); e("v_cvt_pk_bf16_f32 v46, v46, v47")
    else:
        e(f"s_mul_i32 {sT[1]}, {sG}, {NP}"); e(f"s_add_u32 {sT[1]}, {sT[1]}, {sT[4]}"); e(f"s_lshl_b32 {sT[1]}, {sT[1]}, 3"); e(f"s_add_u32 {sT[1]}, {sT[1]}, {sT[5]}")
        e(f"s_lshl_b32 {sT[1]}, {sT[1]}, 9"); e(f"s_add_u32 {sT[1]}, {sT[1]}, {WS_Q}"); e(f"v_add_u32 v6, {sT[1]}, {vVo}")
        e(f"v_lshlrev_b32 v5, 3, {vLane}"); e(f"v_add_u32 v5, {L_QP}, v5")
        lds_wait("L_qpw", 32, 4, va, vb, sleep=0)
        e("s_mov_b32 exec_hi, 0")
        for v in range(4): e(f"ds_read_b64 v[{48+2*v}:{49+2*v}], v5 offset:{256*v}")
        e("s_waitcnt lgkmcnt(0)")
        pk(48, 50); pk(52, 54)
        e("v_add_f32 v44, v48, v52"); e("v_add_f32 v46, v49, v53")
    e(f"v_mov_b32 v45, {sTag}"); e(f"v_mov_b32 v47, {sTag}")
    e(f"global_store_dwordx4 v6, v[44:47], {sp(sWS)} sc1")
    e("s_mov_b64 exec, -1")
    e("s_setprio 0")
    A.label("L_qget")
    NLD = 2 if NP == 1 else 4 * NP
    e(f"s_mul_i32 {sT[0]}, {sG}, {NLD*1024}"); e(f"s_add_u32 {sT[0]}, {sT[0]}, {WS_Q + 4096}")
    e(f"v_add_u32 v5, {sT[0]}, {vVo}"); e("v_add_u32 v7, 0x2000, v5")
    e(f"v_lshlrev_b32 v6, {3 if NP == 1 else 2}, {vLane}"); e(f"v_add_u32 v6, {L_Q}, v6")
    e(f"v_mov_b32 v52, {sTag}"); e("ds_write_b32 v64, v52 offset:16")
    if opts.get("qstart", 24): lds_wait("L_qs", 36, 1, va, vb, sleep=4)
    e(f"s_mov_b32 {sT[5]}, 0")
    A.label("L_qpoll")
    timeout()
    for k in range(NLD):
        e(f"s_bitcmp1_b32 {sT[5]}, {k}"); e(f"s_cbranch_scc1 L_qk{k}")
        e(f"global_load_dwordx4 {vr(128+4*k)}, {'v5' if k < 8 else 'v7'}, {sp(sWS)} offset:{1024*(k&7) - 4096} sc1")
        A.label(f"L_qk{k}")
    e("s_waitcnt vmcnt(0)")
    e(f"s_mov_b32 {sT[5]}, 0")
    for k in range(NLD):
        e(f"v_xor_b32 {va}, {sTag}, v{129+4*k}"); e(f"v_bitop3_b32 {va}, {va}, v{131+4*k}, {sTag} bitop3:0xf6")
        e(f"v_cmp_ne_u32 vcc, 0, {va}"); e("s_cmp_eq_u64 vcc, 0"); e(f"s_cselect_b32 {sT[0]}, {1 << k}, 0"); e(f"s_or_b32 {sT[5]}, {sT[5]}, {sT[0]}")
    e(f"s_cmp_eq_u32 {sT[5]}, {(1 << NLD) - 1}"); e("s_cbranch_scc1 L_qgot")
    e(f"s_sleep {opts.get('qsleep', 8)}"); e("s_branch L_qpoll")
    A.label("L_qgot")
    if NP == 1:
        for h in range(2):
            e(f"v_mov_b32 v{129+4*h}, v{130+4*h}"); e(f"ds_write_b64 v6, v[{128+4*h}:{129+4*h}] offset:{512*h}")
    else:
        for m in range(4):
            for o in (0, 2):
                r = 128 + 4*m + o
                e(f"v_add_f32 v{r}, v{r}, v{r+16}")
                if NP == 4: e(f"v_add_f32 v{r+32}, v{r+32}, v{r+48}"); e(f"v_add_f32 v{r}, v{r}, v{r+32}")
            e(f"v_cvt_pk_bf16_f32 v{128+4*m}, v{128+4*m}, v{130+4*m}")
            e(f"ds_write_b32 v6, v{128+4*m} offset:{256*m}")
    e("v_mov_b32 v48, 1"); e("ds_write_b32 v64, v48")
    if debug: e("s_memrealtime s[72:73]")
    e("s_branch L_down")

    head = A.lines; A.lines = main_lines
    k = A.lines.index("@@SERVICE_HEAD@@"); A.lines[k:k+1] = head
    A.raw('.section .rodata,"a"'); A.raw(".p2align 6"); A.raw(f".amdhsa_kernel {NAME}")
    for l in ["next_free_vgpr 256", "next_free_sgpr 102", "accum_offset 256", "group_segment_fixed_size 0", "kernarg_size 96",
              "user_sgpr_count 2", "user_sgpr_kernarg_segment_ptr 1", "system_sgpr_workgroup_id_x 1", "float_denorm_mode_32 3"]:
        A.raw("  .amdhsa_" + l)
    A.raw(".end_amdhsa_kernel")
    return A.text()

if __name__ == "__main__":
    dbg = "--debug" in sys.argv
    sys.stdout.write(gen(debug=dbg))
```

```python
import sys
sys.path.insert(0, "work")
from asmlib import Asm

NAME = "sequential_preLN__gqa_block_cached__glu_gated_bilinear__decode_kernel"

WS_EPOCH = 0
WS_Q = 0xE0000
WS_ST = 0x8000
WS_CK = 0xC000
WS_PART = 0x10000
PREC = 2048
WS_A1 = 0xA0000
WS_D2 = 0xB0000
WS_STAMP = 0x800000
WPW = 8 * 1024
L_Q = 8 * WPW
L_ACC = L_Q + 1024
L_RED = L_ACC + 8192
L_STAT = L_RED + 4096
L_MS = L_STAT + 64
L_GS = L_MS + 128
L_QP = L_RED
L_FLAG = L_GS + 32
L_TOTAL = 98304

KV_BYTES = 128 << 20

def gen(debug=False, opts=None):
    opts = opts or {}
    A = Asm(); e = A
    def stamp(i):
        if debug: e(f"s_memrealtime s[{80+2*i}:{81+2*i}]")
    sX, sK, sV, sWQ, sWO, sWG, sWU, sWD, sOUT, sDBG, sWS = 8, 10, 12, 14, 16, 20, 22, 24, 26, 28, 30
    def sp(n): return f"s[{n}:{n+1}]"
    sW = "s3"; sG = "s4"; sC = "s5"
    srdK = "s[32:35]"; srdV = "s[36:39]"; srdW = "s[40:43]"
    sScale, sL2E, sSelLo, sSelHi = "s44", "s45", "s46", "s47"
    sOff = "s48"; sId = "s49"; sWW = "s50"
    sT = ["s52", "s53", "s54", "s55", "s56", "s57", "s58", "s59"]
    sTag = "s60"; sRole = "s61"; sIdx = "s62"; sTO = "s64"
    vLane = "v1"; vKo = "v2"; vVo = "v3"
    ACC = 4; BQ = 12; PV_ = 12; SPK = 28; T = 44; M = 76
    vX0, vX1, vY0, vY1, vS0, vS1, vML, vL, va, vb, vc, vd, vMSa, vf = [f"v{M+i}" for i in range(14)]
    vKo2 = "v90"; vVo2 = "v91"; vMask = "v93"
    RING = opts.get("ring", 40); RBASE = 256 - 4 * RING
    assert RBASE >= 96
    W0 = opts.get("win", 5); BUDGET = opts.get("budget", 18)
    WHI = opts.get("whi", 7); WLO = opts.get("wlo", 4)
    FF = opts.get("ff", [0, 0x00001110, 0x00000492, 0])
    ENDS = opts.get("ends", 232)
    CKP = opts.get("ckp", [])
    W = WHI
    sFF = "s51"; sQP = "s63"; sLev = "s65"; sHi = "s66"; sLo = "s67"
    sTB = ["s76", "s77", "s78", "s79"]
    def vr(a, n=4): return f"v[{a}:{a+n-1}]"
    DPPF = "row_mask:0xf bank_mask:0xf"
    def timeout():
        e(f"s_sub_u32 {sTO}, {sTO}, 1"); e("s_cbranch_scc1 L_end")
    def lds_wait(lbl, off, val, vaddr, vtmp, sleep=1):
        e(f"v_mov_b32 {vaddr}, {L_FLAG + off}")
        A.label(lbl)
        e(f"ds_read_b32 {vtmp}, {vaddr}")
        timeout()
        e("s_waitcnt lgkmcnt(0)")
        e(f"v_readfirstlane_b32 {sT[0]}, {vtmp}")
        e(f"s_cmp_ge_u32 {sT[0]}, {val}"); e(f"s_cbranch_scc1 {lbl}_go")
        e(f"s_sleep {sleep}"); e(f"s_branch {lbl}")
        A.label(lbl + "_go")

    A.raw(f"; @launch grid=(256,1,1) block=(512,1,1) lds={L_TOTAL}")
    A.raw('.amdgcn_target "amdgcn-amd-amdhsa--gfx950"')
    A.raw(".text"); A.raw(f".globl {NAME}"); A.raw(".p2align 8"); A.raw(f".type {NAME},@function"); A.label(NAME)
    e("s_load_dwordx2 s[32:33], s[0:1], 8")
    stamp(0)
    e("s_cmpk_ge_u32 s2, 256"); e("s_cbranch_scc1 L_end")
    e("v_cmp_lt_u32 vcc, 0xff, v0")
    e(f"v_and_b32 {vKo}, 3, v0"); e(f"v_lshlrev_b32 {vKo}, 4, {vKo}"); e("v_and_b32 v5, 48, v0"); e(f"v_lshl_or_b32 {vKo}, v5, 2, {vKo}")
    e("s_cbranch_vccnz L_service")
    e("v_and_b32 v5, 0xcc, v0"); e(f"v_lshl_or_b32 {vKo}, v5, 6, {vKo}")
    e(f"s_mul_i32 {sOff}, s2, 0x01010000"); e(f"s_and_b32 {sOff}, {sOff}, 0x07f80000")
    e("s_lshl_b32 s34, 1, 27"); e("s_lshl_b32 s35, 1, 17")
    e("s_waitcnt lgkmcnt(0)")
    for n in range(4): e(f"buffer_load_dwordx4 {vr(RBASE+4*n)}, {vKo}, {srdK}, {sOff} offen offset:{n*1024} {opts.get('kvpol', 'nt')}")
    e("s_branch L_stream")
    def common():
        e("s_load_dwordx16 s[8:23], s[0:1], 0")
        e("s_load_dwordx8 s[24:31], s[0:1], 64")
        if opts.get("probe"): e("s_memrealtime s[80:81]")
        if debug: e("s_memtime s[100:101]")
        e(f"v_lshrrev_b32 v5, 6, v0"); e(f"v_and_b32 {vLane}, 63, v0")
        e(f"v_readfirstlane_b32 {sW}, v5")
        e(f"s_and_b32 {sG}, s2, 7"); e(f"s_lshr_b32 {sC}, s2, 3")
        e(f"s_lshl_b32 {sId}, {sG}, 5"); e(f"s_add_u32 {sId}, {sId}, {sC}")
        e(f"v_lshlrev_b32 {vVo}, 4, {vLane}")
    def common2():
        e(f"s_mov_b32 {sSelLo}, 0x05040100"); e(f"s_mov_b32 {sSelHi}, 0x07060302")
        e(f"s_mov_b32 {sTO}, 0x400000")
        roles()
    def roles():
        e(f"s_mov_b32 {sRole}, 0"); e(f"s_mov_b32 {sIdx}, 0")
        e(f"s_lshl_b32 {sT[0]}, {sG}, 1"); e(f"s_add_u32 {sT[0]}, {sT[0]}, {sW}"); e(f"s_sub_u32 {sT[0]}, {sT[0]}, 6")
        e(f"s_cmp_lt_u32 {sC}, 16"); e(f"s_cselect_b32 {sRole}, 3, {sRole}"); e(f"s_cselect_b32 {sIdx}, {sT[0]}, {sIdx}")
        if opts.get("xmap", False):
            e(f"s_lshl_b32 {sT[0]}, {sC}, 3"); e(f"s_add_u32 {sT[0]}, {sT[0]}, {sG}"); e(f"s_sub_u32 {sT[0]}, {sT[0]}, 64")
        else:
            e(f"s_mul_i32 {sT[0]}, {sG}, 7"); e(f"s_add_u32 {sT[0]}, {sT[0]}, {sC}"); e(f"s_sub_u32 {sT[0]}, {sT[0]}, 8")
        e(f"s_cmp_lt_u32 {sC}, 15"); e(f"s_cselect_b32 {sRole}, 2, {sRole}"); e(f"s_cselect_b32 {sIdx}, {sT[0]}, {sIdx}")
        e(f"s_cmp_lt_u32 {sC}, 8"); e(f"s_cselect_b32 {sRole}, 1, {sRole}"); e(f"s_cselect_b32 {sIdx}, {sC}, {sIdx}")
    A.raw("@@SERVICE_HEAD@@")

    A.label("L_stream")
    e(f"v_add_u32 {vKo2}, 0x4000, {vKo}")
    vVs = "v0"
    NI = 16; NL = 8 * NI
    def slot(idx): return RBASE + 4 * (idx % RING)
    def issue(s):
        n = s & 7
        if s < 4: return
        if s == NL: e(f"s_lshl_b32 {sOff}, {sId}, 19")
        elif n == 0 and s: e(f"s_add_u32 {sOff}, {sOff}, 0x8000")
        if s < NL: e(f"buffer_load_dwordx4 {vr(slot(s))}, {vKo if n < 4 else vKo2}, {srdK}, {sOff} offen offset:{(n%4)*1024} {opts.get('kvpol', 'nt')}")
        else: e(f"buffer_load_dwordx4 {vr(slot(s))}, {vVs if n < 4 else vVo2}, {srdV}, {sOff} offen offset:{(n%4)*1024} {opts.get('kvpol', 'nt')}")
    tasks = []
    def task(need, frees, ins): tasks.append(dict(need=need, frees=frees, ins=ins))
    def xlane(op, r, tmp):
        return [f"v_{op}_f32_dpp {r}, {r}, {r} row_ror:8 {DPPF}", f"v_{op}_f32_dpp {r}, {r}, {r} row_ror:4 {DPPF}",
                f"v_mov_b32 {tmp}, {r}", f"v_permlane16_swap_b32 {tmp}, {r}", f"v_{op}_f32 {r}, {tmp}, {r}",
                f"v_mov_b32 {tmp}, {r}", f"v_permlane32_swap_b32 {tmp}, {r}", f"v_{op}_f32 {r}, {tmp}, {r}"]
    for i in range(NI):
        for n in range(8):
            task(8*i+n, [8*i+n], [f"v_mfma_f32_16x16x32_bf16 {vr(T+4*n)}, {vr(slot(8*i+n))}, {vr(BQ+4*(n&3))}, 0"])
        for t in range(2):
            ins = []
            for m in range(4):
                X = (vX0, vX1)[t]; Y = (vY0, vY1)[t]; D = T + 4 * (4*t+m)
                ins.append(f"v_add_f32_dpp {Y}, v{D+3}, v{D+1} row_ror:8 row_mask:0xf bank_mask:{1 << ((m+1)&3):#x}")
                ins.append(f"v_add_f32_dpp {X}, v{D+2}, v{D} row_ror:8 row_mask:0xf bank_mask:{1 << m:#x}")
            task(-1, [], ins)
        task(-1, [], [f"v_add_f32_dpp {vX0}, {vY0}, {vX0} row_ror:12 {DPPF}", f"v_add_f32_dpp {vX1}, {vY1}, {vX1} row_ror:12 {DPPF}",
                      f"v_cvt_pk_bf16_f32 {vY0}, {vX0}, {vX1}",
                      f"v_lshlrev_b32 {vX0}, 16, {vY0}", f"v_and_b32 {vX1}, 0xffff0000, {vY0}",
                      f"v_mul_f32 {vX0}, {sScale}, {vX0}", f"v_mul_f32 {vX1}, {sScale}, {vX1}",
                      f"v_cvt_pk_bf16_f32 v{SPK+i}, {vX0}, {vX1}",
                      f"v_lshlrev_b32 {vX0}, 16, v{SPK+i}", f"v_and_b32 {vX1}, 0xffff0000, v{SPK+i}",
                      (f"v_max_f32 {vML}, {vX0}, {vX1}" if i == 0 else f"v_max3_f32 {vML}, {vML}, {vX0}, {vX1}")])
    task(-1, [], xlane("max", vML, vb) + [f"v_mul_f32 {vML}, {sL2E}, {vML}"])
    task(-1, [], [f"v_mov_b32 v{PV_+k}, 0" for k in range(16)])
    for i in range(0, NI, 2):
        ins = []
        tmp = [(vX0, vX1), (vY0, vY1)]
        for k in range(2):
            a, b = tmp[k]; ins += [f"v_lshlrev_b32 {a}, 16, v{SPK+i+k}", f"v_and_b32 {b}, 0xffff0000, v{SPK+i+k}"]
        for k in range(2):
            a, b = tmp[k]; ins += [f"v_fma_f32 {a}, {a}, {sL2E}, -{vML}", f"v_fma_f32 {b}, {b}, {sL2E}, -{vML}"]
        for k in range(2):
            a, b = tmp[k]; ins += [f"v_exp_f32 {a}, {a}", f"v_exp_f32 {b}, {b}"]
        ins += [f"v_add_f32 {va}, {vX0}, {vX1}", f"v_cvt_pk_bf16_f32 v{SPK+i}, {vX0}, {vX1}", f"v_add_f32 {vb}, {vY0}, {vY1}", f"v_cvt_pk_bf16_f32 v{SPK+i+1}, {vY0}, {vY1}"]
        ins += [f"v_add_f32 {vL}, {va}, {vb}"] if i == 0 else [f"v_add_f32 {va}, {va}, {vb}", f"v_add_f32 {vL}, {vL}, {va}"]
        task(-1, [], ins)
    task(-1, [], xlane("add", vL, vb) + [f"ds_write_b64 {vMSa}, v[{M+6}:{M+7}]", f"v_mov_b32 {va}, {L_FLAG+4}", f"v_mov_b32 {vb}, 1",
                                         "s_mov_b64 exec, 1", f"ds_add_u32 {va}, {vb}", "s_mov_b64 exec, -1"])
    order = [0, 4, 1, 5, 2, 6, 3, 7]
    for i in range(NI):
        L0 = NL + 8 * i
        def perm(ee, k):
            rho = ee & 3; t = k >> 1
            n0 = 4 * t + ((rho + 2 * (k & 1)) & 3); n1 = 4 * t + ((rho + 2 * (k & 1) + 1) & 3)
            return f"v_perm_b32 v{T+4*ee+k}, v{slot(L0+n1)+(ee>>1)}, v{slot(L0+n0)+(ee>>1)}, {sSelHi if ee & 1 else sSelLo}"
        def mf(ee):
            ac = vr(ACC + 4 * (ee >> 2))
            return f"v_mfma_f32_16x16x32_bf16 {ac}, {vr(T+4*ee)}, {vr(PV_+4*(ee&3))}, {ac if (i or (ee & 3)) else 0}"
        ins = [f"v_mov_b32_dpp {vY0}, v{SPK+i} row_ror:12 {DPPF}",
               f"v_perm_b32 {vX0}, {vY0}, v{SPK+i}, {sSelLo}", f"v_perm_b32 {vX1}, {vY0}, v{SPK+i}, {sSelHi}"]
        for rho in range(4):
            bm = f"row_mask:0xf bank_mask:{1 << rho:#x}"
            ins += [f"v_mov_b32_dpp v{PV_+4*rho+0}, {vX0} quad_perm:[0,1,2,3] {bm}", f"v_mov_b32_dpp v{PV_+4*rho+1}, {vX0} row_ror:8 {bm}",
                    f"v_mov_b32_dpp v{PV_+4*rho+2}, {vX1} quad_perm:[0,1,2,3] {bm}", f"v_mov_b32_dpp v{PV_+4*rho+3}, {vX1} row_ror:8 {bm}"]
        task(-1, [], ins[:11]); task(-1, [], ins[11:])
        task(L0+3, [], [perm(ee, k) for ee in range(4) for k in range(2)])
        task(L0+3, [L0, L0+1, L0+2, L0+3], [perm(ee, k) for ee in range(4, 8) for k in range(2)])
        ins = []
        for idx, ee in enumerate(order):
            ins += [perm(ee, 2), perm(ee, 3)]
            if idx >= 1: ins.append(mf(order[idx - 1]))
        ins.append(mf(order[7]))
        task(L0+7, [], ins[:11]); task(L0+7, [L0+4, L0+5, L0+6, L0+7], ins[11:])

    def setup_misc():
        common(); common2()
        e(f"v_lshl_add_u32 {vVs}, v5, 12, {vVo}"); e(f"v_add_u32 {vVo2}, 0x4000, {vVs}")
        e(f"s_mov_b32 s38, {KV_BYTES}"); e("s_mov_b32 s39, 0x20000")
        e(f"s_mov_b32 {sScale}, 0x3db504f3")
        e(f"s_mov_b32 {sL2E}, 0x3fb8aa3b")
        e(f"v_and_b32 {vMSa}, 3, {vLane}"); e(f"v_lshlrev_b32 {vMSa}, 3, {vMSa}")
        e(f"s_lshl_b32 {sT[0]}, {sW}, 5"); e(f"s_add_u32 {sT[0]}, {sT[0]}, {L_MS}"); e(f"v_add_u32 {vMSa}, {sT[0]}, {vMSa}")
        e(f"v_and_b32 {va}, 3, {vLane}"); e(f"v_lshlrev_b32 {va}, 8, {va}")
        e(f"v_lshrrev_b32 {vb}, 4, {vLane}"); e(f"v_lshlrev_b32 {vb}, 6, {vb}")
        e(f"s_mov_b32 {sT[0]}, {L_Q}")
        e(f"v_add3_u32 {va}, {va}, {vb}, {sT[0]}")
        e(f"v_bfe_u32 {vb}, {vLane}, 2, 2")
        for m in range(4):
            e(f"v_subrev_u32 {vc}, {m}, {vb}"); e(f"v_and_b32 {vc}, 3, {vc}")
            e(f"v_lshl_add_u32 v{T+m}, {vc}, 4, {va}")
        e(f"s_lshl_b32 {sT[0]}, {sW}, 11"); e(f"s_add_u32 {sT[0]}, {sT[0]}, {L_ACC}")
        e(f"v_add_u32 v92, {sT[0]}, {vVo}")
        e(f"s_mov_b32 {sFF}, {FF[0]}")
        for r in (1, 2, 3): e(f"s_cmp_eq_u32 {sRole}, {r}"); e(f"s_cselect_b32 {sFF}, {FF[r]}, {sFF}")
        e(f"s_cmp_ge_u32 {sC}, {32 - 8 * opts.get('np', 2)}"); e(f"s_cselect_b32 {sT[0]}, {opts.get('ffq', 0x48)}, 0"); e(f"s_or_b32 {sFF}, {sFF}, {sT[0]}")
        e("s_waitcnt lgkmcnt(0)")
        e(f"s_mov_b32 s36, s{sV}"); e(f"s_mov_b32 s37, s{sV+1}")
        e(f"v_mov_b32 v94, {L_FLAG}"); e(f"v_cmp_eq_u32 vcc, 0, {vLane}"); e("v_cndmask_b32 v95, 0, 1, vcc"); e(f"v_mov_b32 {vS0}, 0"); e(f"v_mov_b32 {vS1}, 0")
    def emit_task(t):
        for x in t["ins"]:
            if opts.get("nocomp") and (x.startswith("v_perm") or x.startswith("v_mfma") or "_dpp" in x): continue
            e(x)
        return len(t["ins"])
    ti = 0; freed = set()
    for s in range(2 * NL):
        if s == W0:
            setup_misc()
            e("s_barrier")
        if s == RING:
            stamp(1)
            lds_wait("L_qw", 0, 1, va, vb)
            for m in range(4): e(f"ds_read_b128 {vr(BQ+4*m)}, v{T+m}")
            stamp(2)
            e("s_waitcnt lgkmcnt(0)")
        if s >= RING:
            while (s - RING) not in freed:
                assert tasks[ti]["need"] <= s - 1 - W
                emit_task(tasks[ti]); freed.update(tasks[ti]["frees"]); ti += 1
        if s >= ENDS: e(f"s_waitcnt vmcnt({WHI-1})")
        elif s >= 8:
            e(f"s_waitcnt vmcnt({WHI-1})")
            e(f"s_cmp_eq_u32 {sLev}, 2"); e(f"s_cbranch_scc1 L_go{s}")
            A.opt(f"s_waitcnt vmcnt({W0-1})")
            A.opt(f"s_cmp_eq_u32 {sLev}, 1"); A.opt(f"s_cbranch_scc1 L_go{s}")
            A.opt(f"s_waitcnt vmcnt({WLO-1})")
            A.label(f"L_go{s}")
        elif s >= W0: e(f"s_waitcnt vmcnt({W0-1})")
        if debug and s == 4: e("s_memrealtime s[70:71]")
        if debug and s == W0: e("s_memrealtime s[72:73]")
        issue(s)
        if s == opts.get("qstart", 24): e("ds_add_u32 v94, v95 offset:36")
        SG = opts.get("sg", 180); CA, GA = opts.get("cka", (88, 120))
        if s in (SG, CA, GA, opts.get("spub", 152), opts.get("prerd", 252) or -1): e("ds_add_u32 v94, v95 offset:20")
        CP = opts.get("cper", 4)
        if (s % 8 == 7 or (s >= GA and s % CP == CP - 1)) and s + 1 < ENDS:
            dyn = s >= GA
            if dyn:
                e("s_waitcnt lgkmcnt(0)")
                e(f"v_readfirstlane_b32 {sHi}, {vS0}"); e(f"v_readfirstlane_b32 {sLo}, {vS1}")
                e(f"ds_read_b64 v[{M+4}:{M+5}], v94 offset:24")
            e(f"s_bitcmp1_b32 {sFF}, {(s+1)//8}"); e(f"s_cselect_b32 {sLev}, 2, 1")
            if dyn:
                e(f"s_cmpk_gt_i32 {sHi}, {s+CP//2}"); e(f"s_cselect_b32 {sLev}, 2, {sLev}")
                e(f"s_cmpk_gt_i32 {sLo}, {s+CP//2}"); e(f"s_cselect_b32 {sLev}, 0, {sLev}")
        if s >= RING:
            spent = 0
            while ti < len(tasks) and tasks[ti]["need"] <= s - W and (spent == 0 or spent + len(tasks[ti]["ins"]) <= BUDGET):
                spent += emit_task(tasks[ti]); freed.update(tasks[ti]["frees"]); ti += 1
        if debug and s == NL: e("s_memrealtime s[74:75]")
    landed = 2 * NL - 1 - W
    while ti < len(tasks):
        if tasks[ti]["need"] > landed:
            landed = tasks[ti]["need"]; e(f"s_waitcnt vmcnt({2*NL-1-landed})")
        emit_task(tasks[ti]); ti += 1
    stamp(3)
    e(f"ds_write_b128 v92, {vr(ACC)}"); e(f"ds_write_b128 v92, {vr(ACC+4)} offset:1024")
    e("s_waitcnt lgkmcnt(0)")
    e("s_barrier")
    stamp(4)
    e(f"s_cmp_eq_u32 {sRole}, 1"); e("s_cbranch_scc1 L_st1")
    e(f"s_cmp_eq_u32 {sRole}, 2"); e("s_cbranch_scc1 L_st2")
    e("s_branch L_fin")

    def poll(lbl, loads, regs, sleep=0):
        A.label(lbl)
        timeout()
        if sleep: e(f"s_sleep {sleep}")
        for l in loads: e(l)
        regs = list(regs)
        n = len(loads)
        for li in range(n):
            e(f"s_waitcnt vmcnt({n-1-li})")
            r = regs[4*li:4*li+4]
            for k in range(4): e(f"v_xor_b32 v{r[k]}, {sTB[k]}, v{r[k]}")
            if li == 0: e(f"v_or_b32 {va}, v{r[0]}, v{r[1]}"); e(f"v_or_b32 {vb}, v{r[2]}, v{r[3]}")
            else: e(f"v_or3_b32 {va}, {va}, v{r[0]}, v{r[1]}"); e(f"v_or3_b32 {vb}, {vb}, v{r[2]}, v{r[3]}")
        e(f"v_bitop3_b32 {va}, {va}, {vb}, {vMask} bitop3:0x54")
        e(f"v_cmp_ne_u32 vcc, 0, {va}")
        e(f"s_cbranch_vccnz {lbl}")
    MK = 8
    def mpoll_init(n):
        for k in range(n): e(f"s_mov_b64 s[{MK+2*k}:{MK+2*k+1}], -1")
    def mpoll(lbl, loads, regs):
        n = len(loads); regs = list(regs)
        A.label(lbl)
        timeout()
        if debug: e("s_mov_b32 s74, s98"); e("s_memrealtime s[98:99]")
        for k in range(n):
            e(f"s_mov_b64 exec, s[{MK+2*k}:{MK+2*k+1}]"); e(f"s_cbranch_execz {lbl}_0k{k}")
            e(loads[k])
            A.label(f"{lbl}_0k{k}")
        A.label(lbl + "_w")
        e("s_mov_b64 s[6:7], 0")
        e("s_waitcnt vmcnt(0) lgkmcnt(0)" if debug else "s_waitcnt vmcnt(0)")
        for k in range(n):
            e(f"s_mov_b64 exec, s[{MK+2*k}:{MK+2*k+1}]"); e(f"s_cbranch_execz {lbl}_1k{k}")
            r = regs[4*k:4*k+4]
            for j in range(4): e(f"v_xor_b32 v{r[j]}, {sTB[j]}, v{r[j]}")
            e(f"v_or3_b32 {va}, v{r[0]}, v{r[1]}, v{r[2]}"); e(f"v_bitop3_b32 {va}, {va}, v{r[3]}, {vMask} bitop3:0x54")
            e(f"v_cmp_ne_u32 s[{MK+2*k}:{MK+2*k+1}], 0, {va}")
            e(f"s_or_b64 s[6:7], s[6:7], s[{MK+2*k}:{MK+2*k+1}]")
            A.label(f"{lbl}_1k{k}")
        e("s_cmp_eq_u64 s[6:7], 0"); e(f"s_cbranch_scc0 {lbl}")
        e("s_mov_b64 exec, -1")
        A.fence()
    def tag4(b):
        for k in range(4): e(f"v_and_or_b32 v{b+k}, v{b+k}, {vMask}, {sTB[k]}")
    def get_tag():
        e(f"v_mov_b32 {va}, {L_FLAG+16}"); e(f"ds_read_b32 {va}, {va}"); e(f"v_mov_b32 {vMask}, 0xffffff00")
        e("s_waitcnt lgkmcnt(0)")
        e(f"v_readfirstlane_b32 {sTag}, {va}")
        for k in range(4): e(f"s_bfe_u32 {sTB[k]}, {sTag}, {(8 << 16) | (8 * k):#x}")
    def wfrag(dst, raw, nload, ldsoff):
        e(f"s_mul_i32 {sT[0]}, {sW}, {WPW}"); e(f"v_add_u32 {va}, {sT[0]}, {vVo}")
        for n in range(nload): e(f"ds_read_b128 {vr(raw+4*n)}, {va} offset:{ldsoff + 1024*n}")
        e("s_waitcnt lgkmcnt(0)")
        wperm(dst, raw, nload)
    def wperm(dst, raw, nload):
        h = nload // 2
        for ee in range(8):
            for k in range(h):
                e(f"v_perm_b32 v{dst+h*ee+k}, v{raw+4*(2*k+1)+(ee>>1)}, v{raw+4*(2*k)+(ee>>1)}, {sSelHi if ee & 1 else sSelLo}")
    def pk(a, b): e(f"v_pk_add_f32 v[{a}:{a+1}], v[{a}:{a+1}], v[{b}:{b+1}]")
    def add4(a, b): pk(a, b); pk(a + 2, b + 2)
    F1 = 128; RAW = 192; G = 12; DD = 160; F2 = 224
    def svc_join(lbl):
        e(f"s_cmp_lt_u32 {sW}, 4"); e(f"s_cbranch_scc1 {lbl}")
        e("s_call_b64 s[66:67], L_publish")
        A.label(lbl)

    def gu_fold():
        for k in range(4):
            e(f"v_add_f32_dpp v{12+k}, v{DD+4*k+1}, v{DD+4*k} row_ror:8 row_mask:0xf bank_mask:0x3")
        for k in range(4):
            e(f"v_add_f32_dpp v{12+k}, v{DD+4*(k+4)}, v{DD+4*(k+4)+1} row_ror:8 row_mask:0xf bank_mask:0xc")
    def rowsum(b):
        e(f"v_permlane32_swap_b32 v{b}, v{b+2}"); e(f"v_permlane32_swap_b32 v{b+1}, v{b+3}")
        pk(b, b + 2)
        e(f"v_permlane16_swap_b32 v{b}, v{b+1}"); e(f"v_add_f32 v{b}, v{b}, v{b+1}")
    def afrag(src, extra=()):
        e(f"v_mov_b32_dpp v53, {src} row_ror:14 {DPPF}")
        e(f"v_cvt_pk_bf16_f32 v52, {src}, v53")
        for x in extra: e(x)
        for k in (1, 2, 3): e(f"v_mov_b32_dpp v{52+k}, v52 row_ror:{16-4*k} {DPPF}")
    A.label("L_st1")
    e(f"v_lshrrev_b32 {vc}, 4, {vLane}"); e(f"v_lshlrev_b32 {vc}, 11, {vc}")
    e(f"v_and_b32 {vd}, 15, {vLane}"); e(f"v_lshl_add_u32 {vc}, {vd}, 4, {vc}")
    s1G, s1C = (sIdx, sG) if opts.get("s1swap", False) else (sG, sIdx)
    e(f"s_lshl_b32 {sT[0]}, {s1G}, 16"); e(f"s_add_u32 {sT[0]}, {sT[0]}, {WS_PART}")
    e(f"s_lshl_b32 {sT[1]}, {sW}, 8"); e(f"s_add_u32 {sT[0]}, {sT[0]}, {sT[1]}")
    if opts.get("s1rot", True):
        e(f"s_lshl_b32 {sT[1]}, {s1C}, 13"); e(f"s_add_u32 {sT[0]}, {sT[0]}, {sT[1]}")
    e(f"v_add_u32 v44, {sT[0]}, {vc}")
    for it in range(1, 8): e(f"v_xor_b32 v{44+it}, {4*PREC*it}, v44")
    ld1 = [f"global_load_dwordx4 {vr(G+4*it)}, v{44+it}, {sp(sWS)} sc1" for it in range(8)]
    e(f"s_cmp_lt_u32 {sW}, 4"); e("s_cbranch_scc0 L_s1a")
    e("s_barrier")
    for l in ld1: e(l)
    A.label("L_s1a")
    get_tag()
    wfrag(F1, RAW, 8, 0)
    e(f"s_lshl_b32 {sT[0]}, {sW}, 8"); e(f"s_add_u32 {sT[0]}, {sT[0]}, {L_RED}")
    e(f"v_and_b32 {vY0}, 7, {vLane}"); e(f"v_lshlrev_b32 {vY0}, 5, {vY0}"); e(f"v_and_b32 {vd}, 8, {vLane}"); e(f"v_lshl_add_u32 {vY0}, {vd}, 1, {vY0}"); e(f"v_add_u32 {vY0}, {sT[0]}, {vY0}")
    e(f"v_add_u32 {vY1}, {L_RED}, {vVo}")
    e(f"s_lshl_b32 {sT[0]}, {s1G}, 11"); e(f"s_lshl_b32 {sT[1]}, {s1C}, 8"); e(f"s_add_u32 {sT[0]}, {sT[0]}, {sT[1]}"); e(f"s_add_u32 {sT[0]}, {sT[0]}, {WS_A1}")
    e(f"v_add_u32 {vS0}, {sT[0]}, {vVo}")
    mpoll_init(8)
    e(f"s_cmp_lt_u32 {sW}, 4"); e("s_cbranch_scc1 L_poll1_w")
    e("s_call_b64 s[66:67], L_publish")
    mpoll("L_poll1", ld1, range(12, 44))
    stamp(6)
    add4(12, 16); add4(20, 24); add4(28, 32); add4(36, 40); add4(12, 20); add4(28, 36); add4(12, 28)
    rowsum(12)
    afrag("v12")
    for ee in range(8): e(f"v_mfma_f32_16x16x32_bf16 {vr(DD+4*ee)}, v[52:55], {vr(F1+4*ee)}, 0")
    gu_fold()
    e("s_mov_b64 exec, 0xffff")
    e(f"ds_write_b128 {vY0}, v[12:15]")
    e("s_waitcnt lgkmcnt(0)")
    e("s_barrier")
    e(f"s_cmp_eq_u32 {sW}, 0"); e("s_cbranch_scc0 L_fin")
    for w in range(8): e(f"ds_read_b128 {vr(12+4*w)}, {vY1} offset:{256*w}")
    for w in range(0, 8, 2):
        e(f"s_waitcnt lgkmcnt({6-w})")
        add4(12 + 4*w, 16 + 4*w)
        if w in (2, 6): add4(12 + 4*(w-2), 12 + 4*w)
    add4(12, 28)
    tag4(12)
    e(f"global_store_dwordx4 {vS0}, v[12:15], {sp(sWS)} sc1")
    stamp(7)
    e("s_branch L_fin")

    LATE = opts.get("latedown", True)
    def down_addr():
        e(f"v_lshrrev_b32 v8, 4, {vLane}"); e("v_lshlrev_b32 v8, 10, v8")
        e(f"v_and_b32 v7, 15, {vLane}"); e("v_lshl_add_u32 v8, v7, 4, v8")
        e(f"s_lshl_b32 {sT[2]}, {sIdx}, 15"); e(f"s_and_b32 {sT[3]}, {sW}, 3"); e(f"s_lshl_b32 {sT[3]}, {sT[3]}, 8"); e(f"s_add_u32 {sT[2]}, {sT[2]}, {sT[3]}")
        e(f"s_add_u32 {sT[2]}, {sT[2]}, 4096"); e(f"v_add_u32 v8, {sT[2]}, v8")
        for k in range(1, 4): e(f"v_add_u32 v{8+k}, {8192*k}, v8")
    def down_loads():
        for ep in range(8):
            e(f"global_load_dwordx4 {vr(RAW+4*ep)}, v{8+(ep>>1)}, {sp(sWD)} offset:{4096*(ep&1) - 4096} {opts.get('lpol', 'nt')}")
    def gu_addr(sw):
        e(f"v_lshrrev_b32 v5, 4, {vLane}"); e(f"v_bfe_u32 v6, {vLane}, 3, 1"); e("v_lshl_add_u32 v5, v6, 2, v5")
        e(f"s_lshl_b32 {sT[2]}, {sw}, 6"); e(f"v_add_u32 v5, {sT[2]}, v5")
        e("v_mul_u32_u24 v5, 3584, v5")
        e(f"v_and_b32 v6, 3, {vLane}"); e("v_lshlrev_b32 v6, 4, v6")
        e(f"s_lshl_b32 {sT[2]}, {sIdx}, 6"); e(f"v_add3_u32 v5, v5, v6, {sT[2]}")
        e(f"v_and_b32 v6, 4, {vLane}"); e("v_cmp_eq_u32 vcc, 0, v6")
        e(f"v_mov_b32 v6, s{sWU}"); e(f"v_mov_b32 v4, s{sWG}"); e("v_cndmask_b32 v6, v6, v4, vcc")
        e(f"v_mov_b32 v7, s{sWU+1}"); e(f"v_mov_b32 v4, s{sWG+1}"); e("v_cndmask_b32 v7, v7, v4, vcc")
        e("v_add_co_u32 v6, vcc, v6, v5"); e("v_addc_co_u32 v7, vcc, 0, v7, vcc")
    NLATE = opts.get("nlate", 4)
    A.label("L_st2")
    def gu_loads():
        for ep in range(8):
            e(f"global_load_dwordx4 {vr(96+4*ep)}, v[6:7], off {opts.get('lpol', 'nt')}")
            if ep < 7: e(f"v_add_co_u32 v6, vcc, {3584*8}, v6"); e("v_addc_co_u32 v7, vcc, 0, v7, vcc")
    e(f"s_cmp_lt_u32 {sW}, 4"); e("s_cbranch_scc0 L_s2a")
    if NLATE > 4: gu_addr(sW)
    e("s_barrier")
    if NLATE > 4:
        e(f"s_cmp_lt_u32 {sW}, {8 - NLATE}"); e("s_cbranch_scc1 L_s2a")
        gu_loads()
    A.label("L_s2a")
    get_tag()
    e(f"v_and_b32 {vc}, 15, {vLane}")
    e(f"s_lshl_b32 {sT[0]}, {sW}, 4"); e(f"v_add_u32 {vc}, {sT[0]}, {vc}")
    e(f"v_lshrrev_b32 {vf}, 4, {vLane}"); e(f"v_lshl_add_u32 {vd}, {vc}, 2, {vf}"); e(f"v_lshlrev_b32 {vd}, 1, {vd}")
    e(f"global_load_ushort v28, {vd}, {sp(sX)}")
    wfrag(F1, RAW, 8, 0)
    e(f"v_lshlrev_b32 {vd}, 11, {vf}")
    e(f"v_lshl_add_u32 v36, {vc}, 4, {vd}"); e(f"v_add_u32 v36, {WS_A1}, v36")
    e(f"v_add_u32 v37, 8192, v36")
    e(f"s_lshl_b32 {sT[0]}, {sW}, 3"); e(f"s_add_u32 {sT[0]}, {sT[0]}, {L_STAT}"); e(f"v_mov_b32 v40, {sT[0]}")
    e(f"v_bfe_u32 v41, {vLane}, 1, 3"); e("v_lshlrev_b32 v41, 3, v41"); e(f"v_add_u32 v41, {L_STAT}, v41")
    e(f"v_mov_b32 v30, {L_STAT}")
    e(f"s_lshl_b32 {sT[0]}, {sW}, 8"); e(f"s_add_u32 {sT[0]}, {sT[0]}, {L_RED}")
    e(f"v_and_b32 v42, 7, {vLane}"); e("v_lshlrev_b32 v42, 5, v42"); e(f"v_and_b32 {vd}, 8, {vLane}"); e(f"v_lshl_add_u32 v42, {vd}, 1, v42"); e(f"v_add_u32 v42, {sT[0]}, v42")
    e(f"v_add_u32 v43, {L_RED}, {vVo}")
    e(f"s_lshl_b32 {sT[0]}, {sIdx}, 11"); e(f"s_and_b32 {sT[1]}, {sW}, 3"); e(f"s_lshl_b32 {sT[1]}, {sT[1]}, 9"); e(f"s_add_u32 {sT[0]}, {sT[0]}, {sT[1]}"); e(f"s_add_u32 {sT[0]}, {sT[0]}, {WS_D2}")
    e(f"v_and_b32 {vS0}, 15, {vLane}"); e(f"v_lshlrev_b32 {vS0}, 4, {vS0}"); e(f"v_lshrrev_b32 {vd}, 5, {vLane}"); e(f"v_lshlrev_b32 {vd}, 8, {vd}"); e(f"v_add3_u32 {vS0}, {vS0}, {vd}, {sT[0]}")
    e("s_waitcnt vmcnt(0)")
    e("v_lshlrev_b32 v32, 16, v28")
    if NLATE > 4:
        e(f"s_cmp_lt_u32 {sW}, {8 - NLATE}"); e("s_cbranch_scc1 L_j2")
        e(f"s_cmp_lt_u32 {sW}, 4"); e("s_cbranch_scc1 L_j2b")
    else:
        e(f"s_cmp_lt_u32 {sW}, 4"); e("s_cbranch_scc1 L_j2")
    down_addr()
    gu_addr(sW)
    e("s_call_b64 s[66:67], L_publish")
    if NLATE:
        e(f"s_cmp_lt_u32 {sW}, {8 - NLATE}"); e("s_cbranch_scc1 L_j2a")
        gu_loads()
        down_loads()
        e("s_waitcnt vmcnt(8)")
        A.label("L_j2b")
        wperm(F1, 96, 8)
        e("s_branch L_j2")
        A.label("L_j2a")
    down_loads()
    A.label("L_j2")
    for k in range(4): e(f"v_mov_b32 v{52+k}, 0x3f803f80")
    for ee in range(8): e(f"v_mfma_f32_16x16x32_bf16 {vr(DD+4*ee)}, v[52:55], {vr(F1+4*ee)}, 0")
    gu_fold()
    e("s_mov_b64 exec, 0xffff"); e("ds_write_b128 v42, v[12:15] offset:2048"); e("s_mov_b64 exec, -1")
    e("s_waitcnt lgkmcnt(0)")
    e("s_barrier")
    CS = 64
    e(f"s_cmp_lt_u32 {sW}, 4"); e("s_cbranch_scc1 L_poll2")
    e(f"ds_read_b128 {vr(CS)}, v43 offset:2048"); e(f"ds_read_b128 {vr(CS+4)}, v43 offset:{2048+1024}")
    e("s_waitcnt lgkmcnt(0)")
    add4(CS, CS + 4); rowsum(CS)
    e("s_waitcnt vmcnt(0)")
    wperm(F2, RAW, 8)
    stamp(2)
    poll("L_poll2", [f"global_load_dwordx4 {vr(G+4*it)}, v{36+it}, {sp(sWS)} sc1" for it in range(2)], range(12, 20))
    stamp(6)
    add4(12, 16)
    rowsum(12)
    def rnd4(b, t):
        e(f"v_cvt_pk_bf16_f32 v{t}, v{b}, v{b+1}"); e(f"v_cvt_pk_bf16_f32 v{t+1}, v{b+2}, v{b+3}")
        e(f"v_lshlrev_b32 v{b}, 16, v{t}"); e(f"v_and_b32 v{b+1}, 0xffff0000, v{t}")
        e(f"v_lshlrev_b32 v{b+2}, 16, v{t+1}"); e(f"v_and_b32 v{b+3}, 0xffff0000, v{t+1}")
    e("v_cvt_pk_bf16_f32 v12, v12, v12"); e("v_lshlrev_b32 v12, 16, v12"); e("v_add_f32 v12, v32, v12")
    afrag("v12", ["v_lshlrev_b32 v20, 16, v52"])
    e(f"v_readfirstlane_b32 {sT[2]}, v20")
    st = [f"v_subrev_f32 v20, {sT[2]}, v20", "v_mul_f32 v21, v20, v20",
          "v_permlane32_swap_b32 v20, v21", "v_add_f32 v20, v20, v21", "v_mov_b32 v21, v20",
          "v_permlane16_swap_b32 v21, v20", "v_add_f32 v20, v20, v21"]
    st += [f"v_add_f32_dpp v20, v20, v20 row_ror:{k} {DPPF}" for k in (8, 4, 2, 1)]
    st += [f"v_readlane_b32 {sT[3]}, v20, 32", "v_mul_f32 v21, 0x3c800000, v20", f"v_add_f32 v22, {sT[2]}, v21", f"v_fma_f32 v23, -v21, v20, {sT[3]}"]
    cuts = [0, 2, 5, 7, 8, 9, 10, 11, len(st)]
    for ee in range(8):
        e(f"v_mfma_f32_16x16x32_bf16 {vr(DD+4*ee)}, v[52:55], {vr(F1+4*ee)}, 0")
        for x in st[cuts[ee]:cuts[ee+1]]: e(x)
    gu_fold()
    e("s_mov_b64 exec, 0xffff")
    e("ds_write_b64 v40, v[22:23]")
    e("ds_write_b128 v42, v[12:15]")
    e("s_mov_b64 exec, -1")
    e("s_waitcnt lgkmcnt(0)")
    e("s_barrier")
    e(f"s_cmp_lt_u32 {sW}, 4"); e("s_cbranch_scc1 L_fin")
    e("ds_read_b64 v[20:21], v41"); e("ds_read_b32 v22, v30")
    e("ds_read_b128 v[12:15], v43"); e("ds_read_b128 v[16:19], v43 offset:1024")
    e("s_waitcnt lgkmcnt(2)")
    e("v_sub_f32 v20, v20, v22"); e("v_mul_f32 v23, 0x42800000, v20"); e("v_fmac_f32 v21, v23, v20")
    e(f"v_add_f32_dpp v20, v20, v20 row_ror:8 {DPPF}")
    e("s_waitcnt lgkmcnt(0)")
    e(f"v_add_f32_dpp v21, v21, v21 row_ror:8 {DPPF}")
    pk(12, 16)
    e(f"v_add_f32_dpp v20, v20, v20 row_ror:4 {DPPF}")
    pk(14, 18)
    e(f"v_add_f32_dpp v21, v21, v21 row_ror:4 {DPPF}")
    e(f"v_add_f32_dpp v20, v20, v20 row_ror:2 {DPPF}")
    e("v_permlane32_swap_b32 v12, v14")
    e(f"v_add_f32_dpp v21, v21, v21 row_ror:2 {DPPF}")
    e("v_permlane32_swap_b32 v13, v15")
    e("v_mul_f32 v23, 0x41000000, v20"); e("v_fma_f32 v21, -v23, v20, v21"); e("v_fmac_f32 v22, 0x3e000000, v20"); e("v_mul_f32 v21, 0x3b000000, v21")
    e("v_cvt_pk_bf16_f32 v23, v22, v21"); e("v_and_b32 v21, 0xffff0000, v23"); e("v_add_f32 v21, 0x3727c5ac, v21")
    e("v_cvt_pk_bf16_f32 v24, v21, v21"); e("v_lshlrev_b32 v21, 16, v24"); e("v_sqrt_f32 v21, v21")
    pk(12, 14)
    e("v_cvt_pk_bf16_f32 v24, v21, v21"); e("v_lshlrev_b32 v21, 16, v24"); e("v_rcp_f32 v21, v21")
    e("v_permlane16_swap_b32 v12, v13"); e("v_lshlrev_b32 v22, 16, v23"); e("v_add_f32 v12, v12, v13")
    e(f"v_fma_f32 v12, -v22, v{CS}, v12"); e("v_mul_f32 v12, v21, v12")
    e("v_cvt_pk_bf16_f32 v12, v12, v12"); e("v_lshlrev_b32 v12, 16, v12")
    e(f"v_mul_f32_dpp v12, v12, v12 row_ror:8 {DPPF}")
    e(f"v_mov_b32_dpp v53, v12 row_ror:15 {DPPF}")
    e("v_cvt_pk_bf16_f32 v52, v12, v53")
    for k in (1, 2, 3): e(f"v_mov_b32_dpp v{52+k}, v52 row_ror:{16-2*k} {DPPF}")
    for ee in range(8): e(f"v_mfma_f32_16x16x32_bf16 {vr(DD+4*ee)}, v[52:55], {vr(F2+4*ee)}, 0")
    for k in range(4): e(f"v_and_or_b32 v{12+k}, v{DD+4*k}, {vMask}, {sTB[k]}")
    e("s_mov_b32 exec_lo, 0"); e("s_mov_b32 exec_hi, 0xffff")
    for k in range(4): e(f"v_and_or_b32 v{12+k}, v{DD+4*(k+4)}, {vMask}, {sTB[k]}")
    e("s_mov_b32 exec_lo, 0xffff")
    e(f"global_store_dwordx4 {vS0}, v[12:15], {sp(sWS)} sc1")
    e("s_mov_b64 exec, -1")
    stamp(7)
    e("s_branch L_fin")
    def ln_finish(vm, vv, t):
        e(f"v_cvt_pk_bf16_f32 {t}, {vm}, {vv}")
        e(f"v_lshlrev_b32 {vm}, 16, {t}"); e(f"v_and_b32 {vv}, 0xffff0000, {t}")
        e(f"v_add_f32 {vv}, 0x3727c5ac, {vv}")
        e(f"v_cvt_pk_bf16_f32 {t}, {vv}, {vv}"); e(f"v_lshlrev_b32 {vv}, 16, {t}")
        e(f"v_sqrt_f32 {vv}, {vv}")
        e(f"v_cvt_pk_bf16_f32 {t}, {vv}, {vv}"); e(f"v_lshlrev_b32 {vv}, 16, {t}")
        e(f"v_rcp_f32 {vv}, {vv}")

    A.label("L_st3")
    get_tag()
    e(f"s_lshr_b32 {sT[1]}, {sIdx}, 2"); e(f"s_lshl_b32 {sT[1]}, {sT[1]}, 7"); e(f"s_and_b32 {sT[0]}, {sIdx}, 1"); e(f"s_lshl_b32 {sT[0]}, {sT[0]}, 6"); e(f"s_add_u32 {sT[1]}, {sT[1]}, {sT[0]}")
    e(f"s_and_b32 {sT[0]}, {sIdx}, 2"); e(f"s_lshl_b32 {sT[0]}, {sT[0]}, 1"); e(f"s_add_u32 {sT[1]}, {sT[1]}, {sT[0]}")
    e(f"v_and_b32 {vc}, 7, {vLane}"); e(f"v_lshlrev_b32 v45, 3, {vc}"); e(f"v_add_u32 v45, {sT[1]}, v45")
    e(f"v_lshrrev_b32 {vf}, 4, {vLane}"); e(f"v_add_lshl_u32 {vS0}, v45, {vf}, 1")
    e(f"global_load_ushort v60, {vS0}, {sp(sX)}")
    e(f"v_lshrrev_b32 {vd}, 3, {vLane}"); e(f"v_lshlrev_b32 {vd}, 11, {vd}")
    e(f"v_lshl_add_u32 v44, v45, 2, {vd}"); e(f"v_add_u32 v44, {WS_A1}, v44")
    e(f"v_lshl_add_u32 {vd}, {vc}, 4, {vd}")
    e(f"s_lshl_b32 {sT[0]}, {sIdx}, 7"); e(f"v_add_u32 {vd}, {sT[0]}, {vd}")
    for it in range(7): e(f"v_add_u32 v{46+it}, {WS_D2 + 16384*it}, {vd}")
    e("s_barrier")
    e("s_barrier")
    e(f"v_mov_b32 v61, {sTag}"); e("v_mov_b32 v62, 0")
    def red4(b):
        e(f"v_permlane32_swap_b32 v{b}, v{b+2}"); e(f"v_permlane32_swap_b32 v{b+1}, v{b+3}")
        e(f"v_add_f32 v{b}, v{b}, v{b+2}"); e(f"v_add_f32 v{b+1}, v{b+1}, v{b+3}")
        e(f"v_permlane16_swap_b32 v{b}, v{b+1}"); e(f"v_add_f32 v{b}, v{b}, v{b+1}")
        e(f"v_add_f32_dpp v{b}, v{b}, v{b} row_ror:8 {DPPF}")
    poll("L_poll3a", [f"global_load_dwordx4 v[12:15], v44, {sp(sWS)} sc1"], range(12, 16))
    red4(12)
    e("v_cvt_pk_bf16_f32 v12, v12, v12"); e("v_lshlrev_b32 v12, 16, v12"); e("v_lshlrev_b32 v60, 16, v60")
    e("v_add_f32 v60, v60, v12"); e("v_cvt_pk_bf16_f32 v60, v60, v60"); e("v_lshlrev_b32 v60, 16, v60")
    stamp(6)
    if opts.get("m3", False): mpoll_init(7)
    (mpoll if opts.get("m3", False) else poll)("L_poll3b", [f"global_load_dwordx4 {vr(12+4*it)}, v{46+it}, {sp(sWS)} sc1" for it in range(7)], range(12, 40))
    for a, b in ((12, 16), (20, 24), (28, 32), (12, 20), (28, 36), (12, 28)): add4(a, b)
    red4(12)
    e("v_cvt_pk_bf16_f32 v12, v12, v12"); e("v_lshlrev_b32 v12, 16, v12")
    e("v_add_f32 v12, v60, v12")
    if opts.get("probe"):
        lo, hi = opts["probe"]
        e("s_memrealtime s[82:83]"); e("s_waitcnt lgkmcnt(0)"); e("s_sub_u32 s82, s82, s80")
        e(f"s_sub_u32 s83, s82, {lo}"); e(f"s_cmp_lt_u32 s83, {hi - lo}"); e("s_cbranch_scc1 L_pok")
        for _ in range(16): e("s_sleep 127")
        A.label("L_pok")
    e("v_cvt_pk_bf16_f32 v12, v12, v12")
    e("s_mov_b32 exec_lo, 0x00ff00ff"); e("s_mov_b32 exec_hi, 0x00ff00ff")
    e(f"global_store_short {vS0}, v12, {sp(sOUT)}")
    e(f"s_cmp_eq_u32 {sIdx}, 0"); e("s_cbranch_scc0 L_noep")
    e("s_mov_b64 exec, 1")
    e(f"global_store_dword v62, v61, {sp(sWS)}")
    A.label("L_noep")
    e("s_mov_b64 exec, -1")
    stamp(7)

    A.label("L_fin")
    if debug:
        e("s_mov_b64 exec, -1")
        e("s_waitcnt vmcnt(0) lgkmcnt(0)")
        e("s_memrealtime s[96:97]"); e("s_memtime s[6:7]")
        e("s_waitcnt lgkmcnt(0)")
        e("s_sub_u32 s6, s6, s100"); e("v_mov_b32 v18, s6")
        e(f"s_lshl_b32 {sT[0]}, {sId}, 3"); e(f"s_add_u32 {sT[0]}, {sT[0]}, {sW}"); e(f"s_lshl_b32 {sT[0]}, {sT[0]}, 6"); e(f"s_add_u32 {sT[0]}, {sT[0]}, {WS_STAMP}")
        e(f"v_mov_b32 v20, {sT[0]}")
        for i in range(9): e(f"v_mov_b32 v{4+i}, s{80+2*i}")
        e("s_getreg_b32 s52, hwreg(HW_REG_XCC_ID)"); e("v_mov_b32 v13, s52"); e("v_mov_b32 v14, s70"); e("v_mov_b32 v15, s72"); e("v_mov_b32 v16, s74"); e("v_mov_b32 v17, s98"); e("v_mov_b32 v19, s73")
        e("s_mov_b64 exec, 1")
        for i in range(4): e(f"global_store_dwordx4 v20, v[{4+4*i}:{7+4*i}], {sp(sWS)} offset:{16*i}")
    A.label("L_end")
    e("s_endpgm")

    A.label("L_publish")
    e(f"v_and_b32 {va}, 3, {vLane}"); e(f"v_lshlrev_b32 {va}, 3, {va}"); e(f"v_add_u32 {va}, {L_MS}, {va}")
    for w in range(4): e(f"ds_read_b32 v{56+2*w}, {va} offset:{32*w}")
    e(f"ds_read_b64 v[64:65], {va} offset:{L_GS - L_MS}")
    e(f"v_mov_b32 {vb}, {L_FLAG+40}"); e(f"ds_read_b32 {vb}, {vb}")
    e(f"s_and_b32 {sT[0]}, {sW}, 1"); e(f"s_lshl_b32 {sT[0]}, {sT[0]}, 10")
    e(f"s_lshl_b32 {sT[1]}, {sId}, 11"); e(f"s_add_u32 {sT[1]}, {sT[1]}, {WS_PART}"); e(f"s_add_u32 {sT[1]}, {sT[1]}, {sT[0]}")
    e(f"s_add_u32 {sT[0]}, {sT[0]}, {L_ACC}")
    e("s_waitcnt lgkmcnt(0)")
    e(f"v_readfirstlane_b32 {sT[2]}, {vb}")
    for w in range(4): e(f"v_sub_f32 v{56+2*w}, v{56+2*w}, v64")
    for w in range(4): e(f"v_exp_f32 v{56+2*w}, v{56+2*w}")
    for w in range(4): e(f"v_mul_f32 v{56+2*w}, v{56+2*w}, v65")
    for w in range(4): e(f"v_mov_b32 v{57+2*w}, v{56+2*w}")
    e(f"v_add_u32 {va}, {sT[0]}, {vVo}"); e(f"v_add_u32 {vb}, {sT[1]}, {vVo}")
    if opts.get("prerd", 252):
        e(f"s_cmp_gt_u32 {sW}, 5"); e("s_cbranch_scc1 L_nopre")
        e(f"s_cmp_eq_u32 {sT[2]}, 0"); e("s_cbranch_scc0 L_nopre")
        lds_wait("L_pw", 20, 17, "v12", "v13", sleep=4)
        e(f"global_load_dwordx4 v[12:15], {vb}, {sp(sWS)} {opts.get('prepol', 'nt')}")
        e("s_waitcnt vmcnt(0)")
        A.label("L_nopre")
    e("s_barrier")
    stamp(4)
    e(f"s_cmp_gt_u32 {sW}, 5"); e("s_cbranch_scc1 L_pubret")
    for w in range(4): e(f"ds_read_b128 {vr(12+4*w)}, {va} offset:{2048*w}")
    for w in range(4):
        e(f"s_waitcnt lgkmcnt({3-w})")
        for r in (0, 2):
            if w == 0: e(f"v_pk_mul_f32 v[{12+r}:{13+r}], v[{12+r}:{13+r}], v[56:57]")
            else: e(f"v_pk_fma_f32 v[{12+r}:{13+r}], v[{12+4*w+r}:{13+4*w+r}], v[{56+2*w}:{57+2*w}], v[{12+r}:{13+r}]")
    tag4(12)
    e(f"s_cmp_eq_u32 {sT[2]}, 0"); e("s_cbranch_scc1 L_publ")
    e(f"global_store_dwordx4 {vb}, v[12:15], {sp(sWS)} sc1"); e("s_branch L_pubd")
    A.label("L_publ")
    e(f"global_store_dwordx4 {vb}, v[12:15], {sp(sWS)}")
    A.label("L_pubd")
    stamp(5)
    A.label("L_pubret")
    e("s_barrier")
    e("s_setpc_b64 s[66:67]")
    A.fence()

    def tag_from(v):
        e(f"v_readfirstlane_b32 {sTag}, {v}")
        e(f"s_add_u32 {sTag}, {sTag}, 0x01010101")
        for k in range(4): e(f"s_bfe_u32 {sTB[k]}, {sTag}, {(8 << 16) | (8 * k):#x}")
    NP = opts.get("np", 2); C0 = 32 - 8 * NP
    DW = opts.get("dmawin", 1)
    def thr(): e(f"s_waitcnt vmcnt({DW-1})")
    A.label("L_sv4")
    if opts.get("touch", False):
        e(f"s_cmp_eq_u32 {sW}, 7"); e("s_cbranch_scc0 L_notouch")
        e(f"v_lshlrev_b32 v5, 16, {vLane}"); e(f"s_lshl_b32 {sT[0]}, s2, 19"); e(f"v_add_u32 v5, {sT[0]}, v5")
        e("s_mov_b64 exec, 0xff")
        e(f"global_load_dword v6, v5, {sp(sV)} nt")
        e("s_mov_b64 exec, 1")
        e(f"global_load_dword v7, v9, {sp(sOUT)} nt")
        e("s_mov_b64 exec, -1")
        e("s_waitcnt vmcnt(0)")
        A.label("L_notouch")
    if opts.get("dmaq", False): lds_wait("L_dq", 0, 1, va, vb, sleep=8)
    A.label("L_down")
    A.label("L_nodown")
    ND = opts.get("ndma", 3)
    if ND < 4: e(f"s_cmp_eq_u32 {sW}, 4"); e("s_cbranch_scc1 L_stats")
    if ND == 2: e(f"s_cmp_eq_u32 {sW}, 5"); e("s_cbranch_scc1 L_wdone")
    e(f"s_sub_u32 {sWW}, {sW}, {8 - ND}")
    if opts.get("nodma"): e("s_branch L_wdone")
    e(f"s_cmp_eq_u32 {sRole}, 1"); e("s_cbranch_scc0 L_now1")
    e(f"s_mov_b32 s40, s{sWO}"); e(f"s_mov_b32 s41, s{sWO+1}"); e(f"s_mov_b32 s42, {4096*1024}"); e("s_mov_b32 s43, 0x20000")
    e(f"v_bfe_u32 v5, {vLane}, 3, 1"); e("v_lshlrev_b32 v5, 17, v5")
    e(f"v_lshrrev_b32 v6, 4, {vLane}"); e("v_lshlrev_b32 v6, 13, v6")
    e(f"v_and_b32 v7, 7, {vLane}"); e("v_lshlrev_b32 v7, 4, v7")
    e("v_add3_u32 v5, v5, v6, v7")
    A.label("L_dma1")
    e(f"s_mul_i32 {sT[1]}, {sWW}, {WPW}")
    e(f"s_lshl_b32 {sT[2]}, {s1G}, 9")
    e(f"s_and_b32 {sT[3]}, {sWW}, 3"); e(f"s_lshl_b32 {sT[3]}, {sT[3]}, 5"); e(f"s_add_u32 {sT[2]}, {sT[2]}, {sT[3]}")
    e(f"s_and_b32 {sT[3]}, {sWW}, 4"); e(f"s_add_u32 {sT[2]}, {sT[2]}, {sT[3]}")
    e(f"s_lshl_b32 {sT[2]}, {sT[2]}, 10")
    e(f"s_lshl_b32 {sT[3]}, {s1C}, 7"); e(f"s_add_u32 {sT[2]}, {sT[2]}, {sT[3]}")
    if opts.get("worot", True):
        e(f"s_add_u32 {sT[3]}, {sG}, {sWW}"); e(f"s_and_b32 {sT[3]}, {sT[3]}, 3"); e(f"s_lshl_b32 {sT[3]}, {sT[3]}, 10")
        e(f"s_add_u32 {sT[2]}, {sT[2]}, {sT[3]}"); e(f"s_lshl_b32 {sT[3]}, {sT[3]}, 1"); e(f"s_add_u32 {sT[1]}, {sT[1]}, {sT[3]}")
    for ep in range(8):
        e(f"s_xor_b32 {sT[3]}, {sT[2]}, {(256*(ep&1) + (ep>>1))*1024}")
        e(f"s_xor_b32 m0, {sT[1]}, {ep*1024}")
        e(f"s_waitcnt vmcnt({opts.get('wowin', 4) - 1})")
        if not opts.get("nowo"): e(f"buffer_load_dwordx4 v5, {srdW}, {sT[3]} offen nt lds")
    e(f"s_add_u32 {sWW}, {sWW}, {ND}"); e(f"s_cmp_lt_u32 {sWW}, 8"); e("s_cbranch_scc1 L_dma1")
    e("s_branch L_wdone")
    A.label("L_now1")
    e(f"s_cmp_eq_u32 {sRole}, 2"); e("s_cbranch_scc0 L_wdone")
    e(f"s_cmp_lt_u32 {sWW}, {8 - NLATE}"); e("s_cbranch_scc0 L_wdone")
    gu_addr(sWW)
    A.label("L_dma2")
    e(f"s_mul_i32 {sT[1]}, {sWW}, {WPW}")
    for ep in range(8):
        e(f"s_add_u32 m0, {sT[1]}, {ep*1024}")
        thr()
        e(f"global_load_lds_dwordx4 v[6:7], off {opts.get('gupol', 'nt')}")
        e(f"v_add_co_u32 v6, vcc, {3584*8 if ep < 7 else 3584*(64*ND-56)}, v6"); e("v_addc_co_u32 v7, vcc, 0, v7, vcc")
    e(f"s_add_u32 {sWW}, {sWW}, {ND}"); e(f"s_cmp_lt_u32 {sWW}, {8 - NLATE}"); e("s_cbranch_scc1 L_dma2")
    A.label("L_wdone")
    e("s_waitcnt vmcnt(0)")
    e(f"v_mov_b32 {va}, {L_FLAG+12}"); e(f"v_mov_b32 {vb}, 1")
    e("s_mov_b64 exec, 1"); e(f"ds_add_u32 {va}, {vb}"); e("s_mov_b64 exec, -1")
    stamp(1)
    if ND == 4: e(f"s_cmp_eq_u32 {sW}, 4"); e("s_cbranch_scc1 L_stats")
    A.label("L_svc2")
    lds_wait("L_dw", 12, max(3, ND), va, vb, sleep=16)
    lds_wait("L_sq", 8, 1, va, vb, sleep=16)
    e(f"s_cmp_eq_u32 {sRole}, 1"); e("s_cbranch_scc1 L_st1")
    e(f"s_cmp_eq_u32 {sRole}, 2"); e("s_cbranch_scc1 L_st2")
    e(f"s_cmp_eq_u32 {sRole}, 3"); e("s_cbranch_scc0 L_svc3")
    e(f"s_cmp_ge_u32 {sW}, 6"); e("s_cbranch_scc1 L_st3")
    A.label("L_svc3")
    PF = opts.get("pf", 0)
    if PF: e(f"s_cmp_ge_u32 {sW}, 6"); e("s_cbranch_scc1 L_help")
    get_tag()
    e("s_call_b64 s[66:67], L_publish")
    e("s_branch L_fin")
    if PF:
        A.label("L_help")
        e(f"s_sub_u32 {sT[4]}, {sC}, 16")
        e(f"v_lshrrev_b32 v5, 3, {vLane}"); e(f"s_lshl_b32 {sT[0]}, {sT[4]}, 5"); e(f"v_add_u32 v5, {sT[0]}, v5"); e("v_mul_u32_u24 v5, 3584, v5")
        e(f"v_and_b32 v6, 7, {vLane}"); e("v_lshl_add_u32 v5, v6, 6, v5")
        e(f"s_mul_i32 {sT[0]}, {sG}, 448"); e(f"s_and_b32 {sT[0]}, {sT[0]}, 0xffffff80"); e(f"v_add_u32 v5, {sT[0]}, v5")
        for k in range(1, 4): e(f"v_add_u32 v{5+k}, {8*3584*k}, v5")
        e(f"s_cmp_eq_u32 {sW}, 6"); e(f"s_cselect_b32 s6, s{sWG}, s{sWU}"); e(f"s_cselect_b32 s7, s{sWG+1}, s{sWU+1}")
        e(f"s_mul_i32 {sT[0]}, {sG}, {224*1024}"); e(f"s_mul_i32 {sT[1]}, {sT[4]}, 14336"); e(f"s_add_u32 {sT[0]}, {sT[0]}, {sT[1]}")
        e(f"s_and_b32 {sT[1]}, {sW}, 1"); e(f"s_mul_i32 {sT[1]}, {sT[1]}, 7168"); e(f"s_add_u32 {sT[0]}, {sT[0]}, {sT[1]}")
        e(f"v_lshlrev_b32 v9, 6, {vLane}"); e(f"v_add_u32 v9, {sT[0]}, v9")
        if PF == 2: lds_wait("L_hw", 20, 17, va, vb, sleep=4)
        else: e("s_barrier"); e("s_barrier")
        PP = opts.get("pfpol", "nt")
        for k in range(4): e(f"global_load_dword v{12+k}, v{5+k}, s[6:7] {PP}")
        e(f"global_load_dword v16, v9, {sp(sWD)} {PP}"); e(f"global_load_dword v17, v9, {sp(sWD)} offset:3072 {PP}")
        e("s_branch L_fin")

    A.label("L_stats")
    SG = opts.get("sg", 180); CA, GA = opts.get("cka", (88, 120)); SP = opts.get("spub", 152)
    GH = float(opts.get('gh', 0.32)); GL = float(opts.get('gl', 0.25))
    e(f"v_mov_b32 v24, {L_FLAG}")
    def control(base, lag, sub=None, GH=GH, GL=GL):
        e(f"v_mov_b32 v28, {float(base)}")
        if sub: e(f"v_sub_f32 v28, v28, {sub}")
        e(f"v_fmac_f32 v28, {GH}, {lag}")
        e(f"v_mov_b32 v29, {float(base)}"); e(f"v_fmac_f32 v29, {-GL}, {lag}")
        e(f"v_cmp_lt_f32 vcc, 0, {lag}"); e("v_cndmask_b32 v28, 0, v28, vcc"); e("v_cndmask_b32 v29, v29, 0, vcc")
        e("v_cvt_i32_f32 v26, v28"); e("v_cvt_i32_f32 v27, v29")
        if not opts.get("noctl"): e("ds_write_b64 v24, v[26:27] offset:24")
    e("s_getreg_b32 s71, hwreg(HW_REG_XCC_ID, 0, 4)")
    def ck_pub(k):
        e("s_memrealtime s[68:69]")
        e(f"s_lshl_b32 {sT[0]}, {sId}, 3"); e(f"s_add_u32 {sT[0]}, {sT[0]}, {WS_CK + 2048*k}"); e(f"v_mov_b32 v5, {sT[0]}"); e(f"v_mov_b32 v33, {sTag}")
        e("s_waitcnt lgkmcnt(0)"); e("s_lshl_b32 s68, s68, 4"); e("s_or_b32 s68, s68, s71"); e("v_mov_b32 v32, s68")
        e("s_mov_b64 exec, 1"); e(f"global_store_dwordx2 v5, v[32:33], {sp(sWS)} sc1"); e("s_mov_b64 exec, -1")
    def ck_load(k):
        e(f"v_lshlrev_b32 v6, 5, {vLane}"); e(f"v_add_u32 v6, {WS_CK + 2048*k}, v6")
        e(f"global_load_dwordx4 v[32:35], v6, {sp(sWS)} sc1"); e(f"global_load_dwordx4 v[36:39], v6, {sp(sWS)} offset:16 sc1")
    def ck_lag(bias):
        e(f"v_mov_b32 v40, {opts.get('miss', -400) * 16}")
        for k in range(4):
            e(f"v_sub_u32 v{32+2*k}, s68, v{32+2*k}"); e(f"v_cmp_eq_u32 vcc, {sTag}, v{33+2*k}"); e(f"v_cndmask_b32 v{32+2*k}, v40, v{32+2*k}, vcc")
        e("v_add3_u32 v32, v32, v34, v36"); e("v_add_u32 v32, v32, v38"); e("v_cvt_f32_i32 v32, v32")
        e(f"v_add_f32_dpp v32, v32, v32 quad_perm:[1,0,3,2] {DPPF}"); e(f"v_add_f32_dpp v32, v32, v32 quad_perm:[2,3,0,1] {DPPF}")
        for x in xlane("add", "v32", "v33"): e(x)
        e(f"v_mov_b32 v19, {float(bias)}"); e("v_fmac_f32 v19, 0x39800000, v32")
    lds_wait("L_ca", 20, 4, va, vb, sleep=4)
    ck_pub(0)
    lds_wait("L_ga", 20, 5, va, vb, sleep=8)
    ck_load(0)
    e("s_waitcnt vmcnt(0)")
    e("v_or3_b32 v41, v32, v34, v36"); e("v_or_b32 v41, v41, v38"); e("v_and_b32 v42, v32, v34"); e("v_and_b32 v43, v36, v38"); e("v_and_b32 v42, v42, v43")
    e("v_xor_b32 v41, s71, v41"); e("v_bitop3_b32 v41, v41, v42, s71 bitop3:0xf6"); e("v_and_b32 v41, 15, v41")
    for k in range(4): e(f"v_bitop3_b32 v41, v41, v{33+2*k}, {sTag} bitop3:0xf6")
    e("v_cmp_ne_u32 vcc, 0, v41")
    e(f"s_lshl_b32 {sT[0]}, {sG}, 3"); e(f"s_lshr_b64 vcc, vcc, {sT[0]}"); e("s_and_b32 s70, vcc_lo, 0xff")
    if opts.get("nolocal"): e("s_mov_b32 s70, 1")
    e("v_mov_b32 v41, s70"); e("ds_write_b32 v24, v41 offset:40")
    ck_lag(opts.get('abias', 0.0))
    control(GA + 10, "v19")
    e(f"v_subrev_f32 v30, {float(SP)}, v28"); e(f"v_mov_b32 v31, {float(SG + 10 - SP)}"); e("v_med3_f32 v30, v30, 0, v31")
    lds_wait("L_sw", 4, 4, va, vb, sleep=4)
    e(f"v_and_b32 {vc}, 3, {vLane}"); e(f"v_lshlrev_b32 {va}, 3, {vc}"); e(f"v_add_u32 {va}, {L_MS}, {va}")
    for w in range(4): e(f"ds_read_b64 v[{12+2*w}:{13+2*w}], {va} offset:{32*w}")
    e("s_waitcnt lgkmcnt(0)")
    e("v_max3_f32 v20, v12, v14, v16"); e("v_max_f32 v20, v20, v18")
    for w in range(4): e(f"v_sub_f32 v{12+2*w}, v{12+2*w}, v20")
    for w in range(4): e(f"v_exp_f32 v{12+2*w}, v{12+2*w}")
    e("v_mul_f32 v22, v12, v13")
    for w in range(1, 4): e(f"v_fmac_f32 v22, v{12+2*w}, v{13+2*w}")
    e(f"v_mov_b32 v21, {sTag}"); e(f"v_mov_b32 v23, {sTag}")
    e(f"s_lshl_b32 {sT[0]}, {sId}, 6"); e(f"s_add_u32 {sT[0]}, {sT[0]}, {WS_ST}"); e(f"v_add_u32 v5, {sT[0]}, {vVo}")
    e("s_mov_b64 exec, 0xf")
    e("s_cmp_eq_u32 s70, 0"); e("s_cbranch_scc1 L_stl")
    e(f"global_store_dwordx4 v5, v[20:23], {sp(sWS)} sc1"); e("s_branch L_std")
    A.label("L_stl")
    e(f"global_store_dwordx4 v5, v[20:23], {sp(sWS)}")
    A.label("L_std")
    e("s_mov_b64 exec, -1")
    lds_wait("L_cb", 20, 12, va, vb, sleep=4)
    ck_pub(1)
    e(f"s_lshl_b32 {sT[0]}, {sG}, 11"); e(f"s_add_u32 {sT[0]}, {sT[0]}, {WS_ST}"); e(f"v_add_u32 v5, {sT[0]}, {vVo}")
    lds_wait("L_sg", 20, 13, va, vb, sleep=8)
    ck_load(1)
    e("s_waitcnt vmcnt(0)")
    ck_lag(opts.get('lbias', 20))
    if opts.get("r2bias", 40):
        e(f"s_cmp_eq_u32 {sRole}, 2"); e(f"s_cselect_b32 {sT[0]}, {opts.get('r2bias', 40)}, 0"); e(f"v_cvt_f32_i32 v25, {sT[0]}"); e("v_add_f32 v19, v19, v25")
    control(SG + 10, "v19", "v30", float(opts.get("gh2", GH)), float(opts.get("gl2", GL)))
    if debug: e("v_cvt_i32_f32 v19, v19"); e("v_readfirstlane_b32 s73, v19")
    A.label("L_spoll")
    timeout()
    e(f"global_load_dwordx4 v[12:15], v5, {sp(sWS)} sc1"); e(f"global_load_dwordx4 v[16:19], v5, {sp(sWS)} offset:1024 sc1")
    e("s_waitcnt vmcnt(0)")
    e(f"v_xor_b32 v13, {sTag}, v13")
    for r in (15, 17, 19): e(f"v_bitop3_b32 v13, v13, v{r}, {sTag} bitop3:0xf6")
    e("v_cmp_ne_u32 vcc, 0, v13")
    e("s_cbranch_vccz L_sgot")
    e(f"s_sleep {opts.get('ssleep', 32)}"); e("s_branch L_spoll")
    A.label("L_sgot")
    e("v_max_f32 v20, v12, v16")
    for x in xlane("max", "v20", "v21"): e(x)
    e("v_sub_f32 v12, v12, v20"); e("v_sub_f32 v16, v16, v20"); e("v_exp_f32 v12, v12"); e("v_exp_f32 v16, v16")
    e("v_mul_f32 v21, v12, v14"); e("v_fmac_f32 v21, v16, v18")
    for x in xlane("add", "v21", "v22"): e(x)
    e("v_rcp_f32 v21, v21")
    e(f"v_lshlrev_b32 {va}, 3, {vc}"); e(f"v_add_u32 {va}, {L_GS}, {va}")
    e(f"ds_write_b64 {va}, v[20:21]")
    e(f"v_mov_b32 {va}, {L_FLAG+8}"); e(f"v_mov_b32 {vb}, 1")
    e(f"ds_write_b32 {va}, {vb}")
    if debug: e("s_memrealtime s[98:99]")
    e("s_branch L_svc2")

    main_lines = A.lines; A.lines = []; A.fence()
    A.label("L_service")
    common()
    e("v_mov_b32 v8, 0"); e("v_mov_b32 v9, 0"); e("v_mov_b32 v10, 0"); e("v_mov_b32 v11, 0")
    e(f"v_mov_b32 v64, {L_FLAG}")
    e(f"s_cmp_eq_u32 {sW}, 4"); e("s_cbranch_scc0 L_sv1")
    e("ds_write_b128 v64, v[8:11]"); e("ds_write_b128 v64, v[8:11] offset:16"); e("ds_write_b128 v64, v[8:11] offset:32")
    A.label("L_sv1")
    if opts.get("cpre", True):
        e("s_getpc_b64 s[6:7]")
        e(f"v_lshl_add_u32 v6, v5, 11, {vVo}")
        e("v_add_u32 v6, 0xffffe000, v6")
        e("global_load_dwordx4 v[56:59], v6, s[6:7]"); e("global_load_dwordx4 v[60:63], v6, s[6:7] offset:1024")
    e(f"s_cmp_ge_u32 {sC}, {C0}"); e("s_cbranch_scc1 L_qprod")
    common2()
    e("s_waitcnt lgkmcnt(0)")
    e("s_barrier")
    e(f"s_cmp_eq_u32 {sW}, 4"); e("s_cbranch_scc0 L_sv4")
    e(f"global_load_dword v10, v9, {sp(sWS)} sc1")
    e("s_waitcnt vmcnt(0)")
    tag_from("v10")
    e("s_branch L_qget")
    A.label("L_qprod")
    e("s_setprio 3")
    WQ = 128; XR = 12; XF = 20; QA = 36; XA = 66
    RW = 512 // NP // 4; NPR = RW // 16
    e(f"s_and_b32 {sT[5]}, {sC}, 7"); e(f"s_lshl_b32 {sQP}, {sG}, 3"); e(f"s_add_u32 {sQP}, {sQP}, {sT[5]}")
    e(f"s_sub_u32 {sT[4]}, {sC}, {C0}"); e(f"s_lshr_b32 {sT[4]}, {sT[4]}, 3")
    e(f"s_lshl_b32 {sT[3]}, {sT[4]}, 2"); e(f"s_add_u32 {sT[3]}, {sT[3]}, {sW}"); e(f"s_sub_u32 {sT[3]}, {sT[3]}, 4"); e(f"s_mul_i32 {sT[3]}, {sT[3]}, {RW}")
    e(f"v_lshrrev_b32 v5, 3, {vLane}"); e("v_lshlrev_b32 v6, 2, v5")
    e(f"s_lshl_b32 {sT[0]}, {sT[3]}, 1"); e(f"v_add_u32 v6, {sT[0]}, v6")
    e("v_lshlrev_b32 v7, 14, v5"); e(f"v_and_b32 v4, 7, {vLane}"); e("v_lshl_add_u32 v7, v4, 4, v7")
    e(f"s_lshl_b32 {sT[0]}, {sT[3]}, 13"); e(f"s_lshl_b32 {sT[1]}, {sQP}, 7"); e(f"s_add_u32 {sT[0]}, {sT[0]}, {sT[1]}"); e(f"v_add_u32 v7, {sT[0]}, v7")
    e("s_waitcnt lgkmcnt(0)")
    e(f"global_load_dwordx4 {vr(XA)}, {vVo}, {sp(sX)}")
    for k in range(NPR): e(f"global_load_dword v{XR+k}, v6, {sp(sX)} offset:{32*k}")
    e(f"global_load_dword v10, v9, {sp(sWS)} sc1")
    for i in range(2 * NPR):
        e(f"global_load_dwordx4 {vr(WQ+4*i)}, v7, {sp(sWQ)} {opts.get('wqpol', 'nt')}")
        if i < 2 * NPR - 1: e(f"v_add_u32 v7, {0x2000 if i % 2 == 0 else 0x1e000}, v7")
    e("s_barrier")
    common2()
    e(f"s_waitcnt vmcnt({3*NPR + 1})")
    for k in range(4):
        e(f"v_lshlrev_b32 v{44+2*k}, 16, v{XA+k}"); e(f"v_and_b32 v{45+2*k}, 0xffff0000, v{XA+k}")
    def wsum(r, tmp):
        for s in (8, 4, 2, 1): e(f"v_add_f32_dpp {r}, {r}, {r} row_ror:{s} {DPPF}")
        e(f"v_mov_b32 {tmp}, {r}"); e(f"v_permlane16_swap_b32 {tmp}, {r}"); e(f"v_add_f32 {r}, {tmp}, {r}")
        e(f"v_mov_b32 {tmp}, {r}"); e(f"v_permlane32_swap_b32 {tmp}, {r}"); e(f"v_add_f32 {r}, {tmp}, {r}")
    e("v_pk_add_f32 v[52:53], v[44:45], v[46:47]"); e("v_pk_add_f32 v[54:55], v[48:49], v[50:51]"); pk(52, 54)
    e(f"v_add_f32 {va}, v52, v53")
    wsum(va, vb)
    e(f"v_mul_f32 {va}, 0x3b000000, {va}")
    for k in range(8): e(f"v_sub_f32 v{44+k}, v{44+k}, {va}")
    e(f"v_mul_f32 {vc}, v44, v44"); e(f"v_mul_f32 {vd}, v45, v45")
    for k in range(2, 8): e(f"v_fmac_f32 {(vc, vd)[k&1]}, v{44+k}, v{44+k}")
    e(f"v_add_f32 {vc}, {vc}, {vd}")
    wsum(vc, vb)
    e(f"v_mul_f32 {vc}, 0x3b000000, {vc}")
    ln_finish(va, vc, vb)
    e(f"s_waitcnt vmcnt({2*NPR + 1})")
    for k in range(NPR):
        e(f"v_lshlrev_b32 v{XF+2*k}, 16, v{XR+k}"); e(f"v_and_b32 v{XF+2*k+1}, 0xffff0000, v{XR+k}")
    for k in range(2*NPR): e(f"v_sub_f32 v{XF+k}, v{XF+k}, {va}")
    for k in range(NPR): e(f"v_cvt_pk_bf16_f32 v{XR+k}, v{XF+2*k}, v{XF+2*k+1}")
    for k in range(NPR):
        e(f"v_lshlrev_b32 v{XF+2*k}, 16, v{XR+k}"); e(f"v_and_b32 v{XF+2*k+1}, 0xffff0000, v{XR+k}")
    for k in range(2*NPR): e(f"v_mul_f32 v{XF+k}, {vc}, v{XF+k}")
    for k in range(NPR): e(f"v_cvt_pk_bf16_f32 v{XR+k}, v{XF+2*k}, v{XF+2*k+1}")
    for k in range(8): e(f"v_mov_b32 v{QA+k}, 0")
    e(f"v_lshrrev_b32 v5, 4, {vLane}"); e("v_lshlrev_b32 v5, 3, v5"); e("v_lshl_add_u32 v5, v4, 5, v5")
    e(f"s_lshl_b32 {sT[0]}, {sW}, 8"); e(f"s_add_u32 {sT[0]}, {sT[0]}, {L_QP - 1024}"); e(f"v_add_u32 v5, {sT[0]}, v5")
    for p in range(NPR):
        e(f"s_waitcnt vmcnt({2*NPR - 2 - 2*p})")
        for ee in range(8):
            e(f"v_perm_b32 v{44+ee}, v{WQ+4*(2*p+1)+(ee>>1)}, v{WQ+4*(2*p)+(ee>>1)}, {sSelHi if ee & 1 else sSelLo}")
        for ee in range(8): e(f"v_dot2c_f32_bf16 v{QA+ee}, v{44+ee}, v{XR+p}")
    if debug: e("s_memrealtime s[70:71]")
    for o in (0, 1):
        e(f"v_permlane32_swap_b32 v{QA+o}, v{QA+4+o}"); e(f"v_permlane32_swap_b32 v{QA+2+o}, v{QA+6+o}")
    for o in (0, 1):
        e(f"v_add_f32 v{QA+o}, v{QA+o}, v{QA+4+o}"); e(f"v_add_f32 v{QA+2+o}, v{QA+2+o}, v{QA+6+o}")
    for o in (0, 1): e(f"v_permlane16_swap_b32 v{QA+o}, v{QA+2+o}")
    for o in (0, 1): e(f"v_add_f32 v{QA+o}, v{QA+o}, v{QA+2+o}")
    for o in (0, 1): e(f"v_add_f32_dpp v{QA+o}, v{QA+o}, v{QA+o} row_ror:8 {DPPF}")
    e(f"ds_write_b64 v5, v[{QA}:{QA+1}]")
    e("v_mov_b32 v44, 1")
    e("s_mov_b64 exec, 1"); e("ds_add_u32 v64, v44 offset:32"); e("s_mov_b64 exec, -1")
    e(f"s_cmp_eq_u32 {sW}, 4"); e("s_cbranch_scc1 L_qp4")
    e("s_setprio 0")
    e("s_branch L_sv4")
    A.label("L_qp4")
    tag_from("v10")
    if NP == 1:
        e(f"s_lshl_b32 {sT[1]}, {sQP}, 8"); e(f"s_add_u32 {sT[1]}, {sT[1]}, {WS_Q}"); e(f"v_add_u32 v6, {sT[1]}, {vVo}")
        e(f"v_add_u32 v5, {L_QP}, {vVo}")
        lds_wait("L_qpw", 32, 4, va, vb, sleep=0)
        e("s_mov_b64 exec, 0xffff")
        for v in range(4): e(f"ds_read_b128 {vr(44+4*v)}, v5 offset:{256*v}")
        e("s_waitcnt lgkmcnt(0)")
        add4(44, 48); add4(52, 56); add4(44, 52)
        e("v_cvt_pk_bf16_f32 v44, v44, v45"); e("v_cvt_pk_bf16_f32 v46, v46, v47")
    else:
        e(f"s_mul_i32 {sT[1]}, {sG}, {NP}"); e(f"s_add_u32 {sT[1]}, {sT[1]}, {sT[4]}"); e(f"s_lshl_b32 {sT[1]}, {sT[1]}, 3"); e(f"s_add_u32 {sT[1]}, {sT[1]}, {sT[5]}")
        e(f"s_lshl_b32 {sT[1]}, {sT[1]}, 9"); e(f"s_add_u32 {sT[1]}, {sT[1]}, {WS_Q}"); e(f"v_add_u32 v6, {sT[1]}, {vVo}")
        e(f"v_lshlrev_b32 v5, 3, {vLane}"); e(f"v_add_u32 v5, {L_QP}, v5")
        lds_wait("L_qpw", 32, 4, va, vb, sleep=0)
        e("s_mov_b32 exec_hi, 0")
        for v in range(4): e(f"ds_read_b64 v[{48+2*v}:{49+2*v}], v5 offset:{256*v}")
        e("s_waitcnt lgkmcnt(0)")
        pk(48, 50); pk(52, 54)
        e("v_add_f32 v44, v48, v52"); e("v_add_f32 v46, v49, v53")
    e(f"v_mov_b32 v45, {sTag}"); e(f"v_mov_b32 v47, {sTag}")
    e(f"global_store_dwordx4 v6, v[44:47], {sp(sWS)} sc1")
    e("s_mov_b64 exec, -1")
    e("s_setprio 0")
    A.label("L_qget")
    NLD = 2 if NP == 1 else 4 * NP
    e(f"s_mul_i32 {sT[0]}, {sG}, {NLD*1024}"); e(f"s_add_u32 {sT[0]}, {sT[0]}, {WS_Q + 4096}")
    e(f"v_add_u32 v5, {sT[0]}, {vVo}"); e("v_add_u32 v7, 0x2000, v5")
    e(f"v_lshlrev_b32 v6, {3 if NP == 1 else 2}, {vLane}"); e(f"v_add_u32 v6, {L_Q}, v6")
    e(f"v_mov_b32 v52, {sTag}"); e("ds_write_b32 v64, v52 offset:16")
    if opts.get("qstart", 24): lds_wait("L_qs", 36, 1, va, vb, sleep=4)
    e(f"s_mov_b32 {sT[5]}, 0")
    A.label("L_qpoll")
    timeout()
    for k in range(NLD):
        e(f"s_bitcmp1_b32 {sT[5]}, {k}"); e(f"s_cbranch_scc1 L_qk{k}")
        e(f"global_load_dwordx4 {vr(128+4*k)}, {'v5' if k < 8 else 'v7'}, {sp(sWS)} offset:{1024*(k&7) - 4096} sc1")
        A.label(f"L_qk{k}")
    e("s_waitcnt vmcnt(0)")
    e(f"s_mov_b32 {sT[5]}, 0")
    for k in range(NLD):
        e(f"v_xor_b32 {va}, {sTag}, v{129+4*k}"); e(f"v_bitop3_b32 {va}, {va}, v{131+4*k}, {sTag} bitop3:0xf6")
        e(f"v_cmp_ne_u32 vcc, 0, {va}"); e("s_cmp_eq_u64 vcc, 0"); e(f"s_cselect_b32 {sT[0]}, {1 << k}, 0"); e(f"s_or_b32 {sT[5]}, {sT[5]}, {sT[0]}")
    e(f"s_cmp_eq_u32 {sT[5]}, {(1 << NLD) - 1}"); e("s_cbranch_scc1 L_qgot")
    e(f"s_sleep {opts.get('qsleep', 8)}"); e("s_branch L_qpoll")
    A.label("L_qgot")
    if NP == 1:
        for h in range(2):
            e(f"v_mov_b32 v{129+4*h}, v{130+4*h}"); e(f"ds_write_b64 v6, v[{128+4*h}:{129+4*h}] offset:{512*h}")
    else:
        for m in range(4):
            for o in (0, 2):
                r = 128 + 4*m + o
                e(f"v_add_f32 v{r}, v{r}, v{r+16}")
                if NP == 4: e(f"v_add_f32 v{r+32}, v{r+32}, v{r+48}"); e(f"v_add_f32 v{r}, v{r}, v{r+32}")
            e(f"v_cvt_pk_bf16_f32 v{128+4*m}, v{128+4*m}, v{130+4*m}")
            e(f"ds_write_b32 v6, v{128+4*m} offset:{256*m}")
    e("v_mov_b32 v48, 1"); e("ds_write_b32 v64, v48")
    if debug: e("s_memrealtime s[72:73]")
    e("s_branch L_down")

    head = A.lines; A.lines = main_lines
    k = A.lines.index("@@SERVICE_HEAD@@"); A.lines[k:k+1] = head
    A.raw('.section .rodata,"a"'); A.raw(".p2align 6"); A.raw(f".amdhsa_kernel {NAME}")
    for l in ["next_free_vgpr 256", "next_free_sgpr 102", "accum_offset 256", "group_segment_fixed_size 0", "kernarg_size 96",
              "user_sgpr_count 2", "user_sgpr_kernarg_segment_ptr 1", "system_sgpr_workgroup_id_x 1", "float_denorm_mode_32 3"]:
        A.raw("  .amdhsa_" + l)
    A.raw(".end_amdhsa_kernel")
    return A.text()

if __name__ == "__main__":
    dbg = "--debug" in sys.argv
    sys.stdout.write(gen(debug=dbg))
```

```python
import sys
sys.path.insert(0, "work")
from asmlib import Asm

NAME = "sequential_preLN__gqa_block_cached__glu_gated_bilinear__decode_kernel"

WS_EPOCH = 0
WS_Q = 0xE0000
WS_ST = 0x8000
WS_CK = 0xC000
WS_PART = 0x10000
PREC = 2048
WS_A1 = 0xA0000
WS_D2 = 0xB0000
WS_STAMP = 0x800000
WPW = 8 * 1024
L_Q = 8 * WPW
L_ACC = L_Q + 1024
L_RED = L_ACC + 8192
L_STAT = L_RED + 4096
L_MS = L_STAT + 64
L_GS = L_MS + 128
L_QP = L_RED
L_FLAG = L_GS + 32
L_TOTAL = 98304

KV_BYTES = 128 << 20

def gen(debug=False, opts=None):
    opts = opts or {}
    A = Asm(); e = A
    def stamp(i):
        if debug: e(f"s_memrealtime s[{80+2*i}:{81+2*i}]")
    sX, sK, sV, sWQ, sWO, sWG, sWU, sWD, sOUT, sDBG, sWS = 8, 10, 12, 14, 16, 20, 22, 24, 26, 28, 30
    def sp(n): return f"s[{n}:{n+1}]"
    sW = "s3"; sG = "s4"; sC = "s5"
    srdK = "s[32:35]"; srdV = "s[36:39]"; srdW = "s[40:43]"
    sScale, sL2E, sSelLo, sSelHi = "s44", "s45", "s46", "s47"
    sOff = "s48"; sId = "s49"; sWW = "s50"
    sT = ["s52", "s53", "s54", "s55", "s56", "s57", "s58", "s59"]
    sTag = "s60"; sRole = "s61"; sIdx = "s62"; sTO = "s64"
    vLane = "v1"; vKo = "v2"; vVo = "v3"
    ACC = 4; BQ = 12; PV_ = 12; SPK = 28; T = 44; M = 76
    vX0, vX1, vY0, vY1, vS0, vS1, vML, vL, va, vb, vc, vd, vMSa, vf = [f"v{M+i}" for i in range(14)]
    vKo2 = "v90"; vVo2 = "v91"; vMask = "v93"
    RING = opts.get("ring", 40); RBASE = 256 - 4 * RING
    assert RBASE >= 96
    W0 = opts.get("win", 5); BUDGET = opts.get("budget", 18)
    WHI = opts.get("whi", 7); WLO = opts.get("wlo", 4)
    FF = opts.get("ff", [0, 0x00001110, 0x00000492, 0])
    ENDS = opts.get("ends", 232)
    CKP = opts.get("ckp", [])
    W = WHI
    sFF = "s51"; sQP = "s63"; sLev = "s65"; sHi = "s66"; sLo = "s67"
    sTB = ["s76", "s77", "s78", "s79"]
    def vr(a, n=4): return f"v[{a}:{a+n-1}]"
    DPPF = "row_mask:0xf bank_mask:0xf"
    def timeout():
        e(f"s_sub_u32 {sTO}, {sTO}, 1"); e("s_cbranch_scc1 L_end")
    def lds_wait(lbl, off, val, vaddr, vtmp, sleep=1):
        e(f"v_mov_b32 {vaddr}, {L_FLAG + off}")
        A.label(lbl)
        e(f"ds_read_b32 {vtmp}, {vaddr}")
        timeout()
        e("s_waitcnt lgkmcnt(0)")
        e(f"v_readfirstlane_b32 {sT[0]}, {vtmp}")
        e(f"s_cmp_ge_u32 {sT[0]}, {val}"); e(f"s_cbranch_scc1 {lbl}_go")
        e(f"s_sleep {sleep}"); e(f"s_branch {lbl}")
        A.label(lbl + "_go")

    A.raw(f"; @launch grid=(256,1,1) block=(512,1,1) lds={L_TOTAL}")
    A.raw('.amdgcn_target "amdgcn-amd-amdhsa--gfx950"')
    A.raw(".text"); A.raw(f".globl {NAME}"); A.raw(".p2align 8"); A.raw(f".type {NAME},@function"); A.label(NAME)
    e("s_load_dwordx2 s[32:33], s[0:1], 8")
    stamp(0)
    e("v_cmp_lt_u32 vcc, 0xff, v0")
    e(f"v_and_b32 {vKo}, 3, v0"); e(f"v_lshlrev_b32 {vKo}, 4, {vKo}"); e("v_and_b32 v5, 48, v0"); e(f"v_lshl_or_b32 {vKo}, v5, 2, {vKo}")
    e("s_cbranch_vccnz L_service")
    e("v_and_b32 v5, 0xcc, v0"); e(f"v_lshl_or_b32 {vKo}, v5, 6, {vKo}")
    e(f"s_mul_i32 {sOff}, s2, 0x01010000"); e(f"s_and_b32 {sOff}, {sOff}, 0x07e00000")
    e(f"s_lshr_b32 s6, {sOff}, 4")
    if opts.get("exact", False): e("s_and_b32 s6, s6, 0x1e0000")
    e(f"s_xor_b32 {sOff}, {sOff}, s6")
    e("s_and_b32 s6, s2, 24"); e(f"v_lshl_or_b32 {vKo}, s6, 11, {vKo}")
    e("s_lshl_b32 s34, 1, 27"); e("s_lshl_b32 s35, 1, 17")
    e("s_waitcnt lgkmcnt(0)")
    for n in range(4): e(f"buffer_load_dwordx4 {vr(RBASE+4*n)}, {vKo}, {srdK}, {sOff} offen offset:{n*1024} {opts.get('kvpol', 'nt')}")
    e("s_branch L_stream")
    def common():
        e("s_load_dwordx16 s[8:23], s[0:1], 0")
        e("s_load_dwordx8 s[24:31], s[0:1], 64")
        if opts.get("probe"): e("s_memrealtime s[80:81]")
        if debug: e("s_memtime s[100:101]")
        e(f"v_lshrrev_b32 v5, 6, v0"); e(f"v_and_b32 {vLane}, 63, v0")
        e(f"v_readfirstlane_b32 {sW}, v5")
        e(f"s_and_b32 {sG}, s2, 7"); e(f"s_lshr_b32 {sC}, s2, 3")
        e(f"s_lshl_b32 {sId}, {sG}, 5"); e(f"s_add_u32 {sId}, {sId}, {sC}")
        e(f"v_lshlrev_b32 {vVo}, 4, {vLane}")
    def common2():
        e(f"s_mov_b32 {sSelLo}, 0x05040100"); e(f"s_mov_b32 {sSelHi}, 0x07060302")
        e(f"s_mov_b32 {sTO}, 0x400000")
        roles()
    def roles():
        e(f"s_mov_b32 {sRole}, 0"); e(f"s_mov_b32 {sIdx}, 0")
        e(f"s_lshl_b32 {sT[0]}, {sG}, 1"); e(f"s_add_u32 {sT[0]}, {sT[0]}, {sW}"); e(f"s_sub_u32 {sT[0]}, {sT[0]}, 6")
        e(f"s_cmp_lt_u32 {sC}, 16"); e(f"s_cselect_b32 {sRole}, 3, {sRole}"); e(f"s_cselect_b32 {sIdx}, {sT[0]}, {sIdx}")
        if opts.get("xmap", False):
            e(f"s_lshl_b32 {sT[0]}, {sC}, 3"); e(f"s_add_u32 {sT[0]}, {sT[0]}, {sG}"); e(f"s_sub_u32 {sT[0]}, {sT[0]}, 64")
        else:
            e(f"s_mul_i32 {sT[0]}, {sG}, 7"); e(f"s_add_u32 {sT[0]}, {sT[0]}, {sC}"); e(f"s_sub_u32 {sT[0]}, {sT[0]}, 8")
        e(f"s_cmp_lt_u32 {sC}, 15"); e(f"s_cselect_b32 {sRole}, 2, {sRole}"); e(f"s_cselect_b32 {sIdx}, {sT[0]}, {sIdx}")
        e(f"s_cmp_lt_u32 {sC}, 8"); e(f"s_cselect_b32 {sRole}, 1, {sRole}"); e(f"s_cselect_b32 {sIdx}, {sC}, {sIdx}")
    A.raw("@@SERVICE_HEAD@@")

    A.label("L_stream")
    e("s_cmpk_ge_u32 s2, 256"); e("s_cbranch_scc1 L_end")
    e(f"s_and_b32 s7, {sOff}, 0x07e00000"); e(f"s_and_b32 {sOff}, {sOff}, 0x1fffff")
    e(f"v_add_u32 {vKo}, s7, {vKo}")
    e(f"v_add_u32 {vKo2}, 0x10000, {vKo}")
    vVs = "v0"
    NI = 16; NL = 8 * NI
    def slot(idx): return RBASE + 4 * (idx % RING)
    def issue(s):
        n = s & 7
        if s < 4: return
        if n == 0 and s: e(f"s_add_u32 {sOff}, {sOff}, 0x20000"); e(f"s_bitset0_b32 {sOff}, 21")
        if s < NL: e(f"buffer_load_dwordx4 {vr(slot(s))}, {vKo if n < 4 else vKo2}, {srdK}, {sOff} offen offset:{(n%4)*1024} {opts.get('kvpol', 'nt')}")
        else: e(f"buffer_load_dwordx4 {vr(slot(s))}, {vVs if n < 4 else vVo2}, {srdV}, {sOff} offen offset:{(n%4)*1024} {opts.get('kvpol', 'nt')}")
    tasks = []
    def task(need, frees, ins): tasks.append(dict(need=need, frees=frees, ins=ins))
    def xlane(op, r, tmp):
        return [f"v_{op}_f32_dpp {r}, {r}, {r} row_ror:8 {DPPF}", f"v_{op}_f32_dpp {r}, {r}, {r} row_ror:4 {DPPF}",
                f"v_mov_b32 {tmp}, {r}", f"v_permlane16_swap_b32 {tmp}, {r}", f"v_{op}_f32 {r}, {tmp}, {r}",
                f"v_mov_b32 {tmp}, {r}", f"v_permlane32_swap_b32 {tmp}, {r}", f"v_{op}_f32 {r}, {tmp}, {r}"]
    for i in range(NI):
        for n in range(8):
            task(8*i+n, [8*i+n], [f"v_mfma_f32_16x16x32_bf16 {vr(T+4*n)}, {vr(slot(8*i+n))}, {vr(BQ+4*(n&3))}, 0"])
        for t in range(2):
            ins = []
            for m in range(4):
                X = (vX0, vX1)[t]; Y = (vY0, vY1)[t]; D = T + 4 * (4*t+m)
                ins.append(f"v_add_f32_dpp {Y}, v{D+3}, v{D+1} row_ror:8 row_mask:0xf bank_mask:{1 << ((m+1)&3):#x}")
                ins.append(f"v_add_f32_dpp {X}, v{D+2}, v{D} row_ror:8 row_mask:0xf bank_mask:{1 << m:#x}")
            task(-1, [], ins)
        task(-1, [], [f"v_add_f32_dpp {vX0}, {vY0}, {vX0} row_ror:12 {DPPF}", f"v_add_f32_dpp {vX1}, {vY1}, {vX1} row_ror:12 {DPPF}",
                      f"v_cvt_pk_bf16_f32 {vY0}, {vX0}, {vX1}",
                      f"v_lshlrev_b32 {vX0}, 16, {vY0}", f"v_and_b32 {vX1}, 0xffff0000, {vY0}",
                      f"v_mul_f32 {vX0}, {sScale}, {vX0}", f"v_mul_f32 {vX1}, {sScale}, {vX1}",
                      f"v_cvt_pk_bf16_f32 v{SPK+i}, {vX0}, {vX1}",
                      f"v_lshlrev_b32 {vX0}, 16, v{SPK+i}", f"v_and_b32 {vX1}, 0xffff0000, v{SPK+i}",
                      (f"v_max_f32 {vML}, {vX0}, {vX1}" if i == 0 else f"v_max3_f32 {vML}, {vML}, {vX0}, {vX1}")])
    task(-1, [], xlane("max", vML, vb) + [f"v_mul_f32 {vML}, {sL2E}, {vML}"])
    task(-1, [], [f"v_mov_b32 v{PV_+k}, 0" for k in range(16)])
    for i in range(0, NI, 2):
        ins = []
        tmp = [(vX0, vX1), (vY0, vY1)]
        for k in range(2):
            a, b = tmp[k]; ins += [f"v_lshlrev_b32 {a}, 16, v{SPK+i+k}", f"v_and_b32 {b}, 0xffff0000, v{SPK+i+k}"]
        for k in range(2):
            a, b = tmp[k]; ins += [f"v_fma_f32 {a}, {a}, {sL2E}, -{vML}", f"v_fma_f32 {b}, {b}, {sL2E}, -{vML}"]
        for k in range(2):
            a, b = tmp[k]; ins += [f"v_exp_f32 {a}, {a}", f"v_exp_f32 {b}, {b}"]
        ins += [f"v_add_f32 {va}, {vX0}, {vX1}", f"v_cvt_pk_bf16_f32 v{SPK+i}, {vX0}, {vX1}", f"v_add_f32 {vb}, {vY0}, {vY1}", f"v_cvt_pk_bf16_f32 v{SPK+i+1}, {vY0}, {vY1}"]
        ins += [f"v_add_f32 {vL}, {va}, {vb}"] if i == 0 else [f"v_add_f32 {va}, {va}, {vb}", f"v_add_f32 {vL}, {vL}, {va}"]
        task(-1, [], ins)
    task(-1, [], xlane("add", vL, vb) + [f"ds_write_b64 {vMSa}, v[{M+6}:{M+7}]", f"v_mov_b32 {va}, {L_FLAG+4}", f"v_mov_b32 {vb}, 1",
                                         "s_mov_b64 exec, 1", f"ds_add_u32 {va}, {vb}", "s_mov_b64 exec, -1"])
    order = [0, 4, 1, 5, 2, 6, 3, 7]
    for i in range(NI):
        L0 = NL + 8 * i
        def perm(ee, k):
            rho = ee & 3; t = k >> 1
            n0 = 4 * t + ((rho + 2 * (k & 1)) & 3); n1 = 4 * t + ((rho + 2 * (k & 1) + 1) & 3)
            return f"v_perm_b32 v{T+4*ee+k}, v{slot(L0+n1)+(ee>>1)}, v{slot(L0+n0)+(ee>>1)}, {sSelHi if ee & 1 else sSelLo}"
        def mf(ee):
            ac = vr(ACC + 4 * (ee >> 2))
            return f"v_mfma_f32_16x16x32_bf16 {ac}, {vr(T+4*ee)}, {vr(PV_+4*(ee&3))}, {ac if (i or (ee & 3)) else 0}"
        ins = [f"v_mov_b32_dpp {vY0}, v{SPK+i} row_ror:12 {DPPF}",
               f"v_perm_b32 {vX0}, {vY0}, v{SPK+i}, {sSelLo}", f"v_perm_b32 {vX1}, {vY0}, v{SPK+i}, {sSelHi}"]
        for rho in range(4):
            bm = f"row_mask:0xf bank_mask:{1 << rho:#x}"
            ins += [f"v_mov_b32_dpp v{PV_+4*rho+0}, {vX0} quad_perm:[0,1,2,3] {bm}", f"v_mov_b32_dpp v{PV_+4*rho+1}, {vX0} row_ror:8 {bm}",
                    f"v_mov_b32_dpp v{PV_+4*rho+2}, {vX1} quad_perm:[0,1,2,3] {bm}", f"v_mov_b32_dpp v{PV_+4*rho+3}, {vX1} row_ror:8 {bm}"]
        task(-1, [], ins[:11]); task(-1, [], ins[11:])
        task(L0+3, [], [perm(ee, k) for ee in range(4) for k in range(2)])
        task(L0+3, [L0, L0+1, L0+2, L0+3], [perm(ee, k) for ee in range(4, 8) for k in range(2)])
        ins = []
        for idx, ee in enumerate(order):
            ins += [perm(ee, 2), perm(ee, 3)]
            if idx >= 1: ins.append(mf(order[idx - 1]))
        ins.append(mf(order[7]))
        task(L0+7, [], ins[:11]); task(L0+7, [L0+4, L0+5, L0+6, L0+7], ins[11:])

    def setup_misc():
        common(); common2()
        e(f"v_and_b32 {vVs}, 0xfffff000, {vKo}"); e(f"v_add_u32 {vVs}, {vVs}, {vVo}"); e(f"v_add_u32 {vVo2}, 0x10000, {vVs}")
        e(f"s_mov_b32 s38, {KV_BYTES}"); e("s_mov_b32 s39, 0x20000")
        e(f"s_mov_b32 {sScale}, 0x3db504f3")
        e(f"s_mov_b32 {sL2E}, 0x3fb8aa3b")
        e(f"v_and_b32 {vMSa}, 3, {vLane}"); e(f"v_lshlrev_b32 {vMSa}, 3, {vMSa}")
        e(f"s_lshl_b32 {sT[0]}, {sW}, 5"); e(f"s_add_u32 {sT[0]}, {sT[0]}, {L_MS}"); e(f"v_add_u32 {vMSa}, {sT[0]}, {vMSa}")
        e(f"v_and_b32 {va}, 3, {vLane}"); e(f"v_lshlrev_b32 {va}, 8, {va}")
        e(f"v_lshrrev_b32 {vb}, 4, {vLane}"); e(f"v_lshlrev_b32 {vb}, 6, {vb}")
        e(f"s_mov_b32 {sT[0]}, {L_Q}")
        e(f"v_add3_u32 {va}, {va}, {vb}, {sT[0]}")
        e(f"v_bfe_u32 {vb}, {vLane}, 2, 2")
        for m in range(4):
            e(f"v_subrev_u32 {vc}, {m}, {vb}"); e(f"v_and_b32 {vc}, 3, {vc}")
            e(f"v_lshl_add_u32 v{T+m}, {vc}, 4, {va}")
        e(f"s_lshl_b32 {sT[0]}, {sW}, 11"); e(f"s_add_u32 {sT[0]}, {sT[0]}, {L_ACC}")
        e(f"v_add_u32 v92, {sT[0]}, {vVo}")
        e(f"s_mov_b32 {sFF}, {FF[0]}")
        for r in (1, 2, 3): e(f"s_cmp_eq_u32 {sRole}, {r}"); e(f"s_cselect_b32 {sFF}, {FF[r]}, {sFF}")
        e(f"s_cmp_ge_u32 {sC}, {32 - 8 * opts.get('np', 2)}"); e(f"s_cselect_b32 {sT[0]}, {opts.get('ffq', 0x48)}, 0"); e(f"s_or_b32 {sFF}, {sFF}, {sT[0]}")
        e("s_waitcnt lgkmcnt(0)")
        e(f"s_mov_b32 s36, s{sV}"); e(f"s_mov_b32 s37, s{sV+1}")
        e(f"v_mov_b32 v94, {L_FLAG}"); e(f"v_cmp_eq_u32 vcc, 0, {vLane}"); e("v_cndmask_b32 v95, 0, 1, vcc"); e(f"v_mov_b32 {vS0}, 0"); e(f"v_mov_b32 {vS1}, 0")
    def emit_task(t):
        for x in t["ins"]:
            if opts.get("nocomp") and (x.startswith("v_perm") or x.startswith("v_mfma") or "_dpp" in x): continue
            e(x)
        return len(t["ins"])
    ti = 0; freed = set()
    for s in range(2 * NL):
        if s == W0:
            setup_misc()
            e("s_barrier")
        if s == RING:
            stamp(1)
            lds_wait("L_qw", 0, 1, va, vb)
            for m in range(4): e(f"ds_read_b128 {vr(BQ+4*m)}, v{T+m}")
            stamp(2)
            e("s_waitcnt lgkmcnt(0)")
        if s >= RING:
            while (s - RING) not in freed:
                assert tasks[ti]["need"] <= s - 1 - W
                emit_task(tasks[ti]); freed.update(tasks[ti]["frees"]); ti += 1
        if s >= ENDS: e(f"s_waitcnt vmcnt({WHI-1})")
        elif s >= 8:
            e(f"s_waitcnt vmcnt({WHI-1})")
            e(f"s_cmp_eq_u32 {sLev}, 2"); e(f"s_cbranch_scc1 L_go{s}")
            A.opt(f"s_waitcnt vmcnt({W0-1})")
            A.opt(f"s_cmp_eq_u32 {sLev}, 1"); A.opt(f"s_cbranch_scc1 L_go{s}")
            A.opt(f"s_waitcnt vmcnt({WLO-1})")
            A.label(f"L_go{s}")
        elif s >= W0: e(f"s_waitcnt vmcnt({W0-1})")
        if debug and s == 4: e("s_memrealtime s[70:71]")
        if debug and s == W0: e("s_memrealtime s[72:73]")
        issue(s)
        if s == opts.get("qstart", 24): e("ds_add_u32 v94, v95 offset:36")
        SG = opts.get("sg", 180); CA, GA = opts.get("cka", (88, 120))
        if s in (SG, CA, GA, opts.get("spub", 152), opts.get("prerd", 0) or -1): e("ds_add_u32 v94, v95 offset:20")
        CP = opts.get("cper", 4)
        if (s % 8 == 7 or (s >= GA and s % CP == CP - 1)) and s + 1 < ENDS:
            dyn = s >= GA
            if dyn:
                e("s_waitcnt lgkmcnt(0)")
                e(f"v_readfirstlane_b32 {sHi}, {vS0}"); e(f"v_readfirstlane_b32 {sLo}, {vS1}")
                e(f"ds_read_b64 v[{M+4}:{M+5}], v94 offset:24")
            e(f"s_bitcmp1_b32 {sFF}, {(s+1)//8}"); e(f"s_cselect_b32 {sLev}, 2, 1")
            if dyn:
                e(f"s_cmpk_gt_i32 {sHi}, {s+CP//2}"); e(f"s_cselect_b32 {sLev}, 2, {sLev}")
                e(f"s_cmpk_gt_i32 {sLo}, {s+CP//2}"); e(f"s_cselect_b32 {sLev}, 0, {sLev}")
        if s >= RING:
            spent = 0
            while ti < len(tasks) and tasks[ti]["need"] <= s - W and (spent == 0 or spent + len(tasks[ti]["ins"]) <= BUDGET):
                spent += emit_task(tasks[ti]); freed.update(tasks[ti]["frees"]); ti += 1
        if debug and s == NL: e("s_memrealtime s[74:75]")
    landed = 2 * NL - 1 - W
    while ti < len(tasks):
        if tasks[ti]["need"] > landed:
            landed = tasks[ti]["need"]; e(f"s_waitcnt vmcnt({2*NL-1-landed})")
        emit_task(tasks[ti]); ti += 1
    stamp(3)
    e(f"ds_write_b128 v92, {vr(ACC)}"); e(f"ds_write_b128 v92, {vr(ACC+4)} offset:1024")
    e("s_waitcnt lgkmcnt(0)")
    e("s_barrier")
    stamp(4)
    e(f"s_cmp_eq_u32 {sRole}, 1"); e("s_cbranch_scc1 L_st1")
    e(f"s_cmp_eq_u32 {sRole}, 2"); e("s_cbranch_scc1 L_st2")
    e("s_branch L_fin")

    def poll(lbl, loads, regs, sleep=0):
        A.label(lbl)
        timeout()
        if sleep: e(f"s_sleep {sleep}")
        for l in loads: e(l)
        regs = list(regs)
        n = len(loads)
        for li in range(n):
            e(f"s_waitcnt vmcnt({n-1-li})")
            r = regs[4*li:4*li+4]
            for k in range(4): e(f"v_xor_b32 v{r[k]}, {sTB[k]}, v{r[k]}")
            if li == 0: e(f"v_or_b32 {va}, v{r[0]}, v{r[1]}"); e(f"v_or_b32 {vb}, v{r[2]}, v{r[3]}")
            else: e(f"v_or3_b32 {va}, {va}, v{r[0]}, v{r[1]}"); e(f"v_or3_b32 {vb}, {vb}, v{r[2]}, v{r[3]}")
        e(f"v_bitop3_b32 {va}, {va}, {vb}, {vMask} bitop3:0x54")
        e(f"v_cmp_ne_u32 vcc, 0, {va}")
        e(f"s_cbranch_vccnz {lbl}")
    MK = 8
    def mpoll_init(n):
        for k in range(n): e(f"s_mov_b64 s[{MK+2*k}:{MK+2*k+1}], -1")
    def mpoll(lbl, loads, regs):
        n = len(loads); regs = list(regs)
        A.label(lbl)
        timeout()
        if debug: e("s_mov_b32 s74, s98"); e("s_memrealtime s[98:99]")
        for k in range(n):
            e(f"s_mov_b64 exec, s[{MK+2*k}:{MK+2*k+1}]"); e(f"s_cbranch_execz {lbl}_0k{k}")
            e(loads[k])
            A.label(f"{lbl}_0k{k}")
        A.label(lbl + "_w")
        e("s_mov_b64 s[6:7], 0")
        e("s_waitcnt vmcnt(0) lgkmcnt(0)" if debug else "s_waitcnt vmcnt(0)")
        for k in range(n):
            e(f"s_mov_b64 exec, s[{MK+2*k}:{MK+2*k+1}]"); e(f"s_cbranch_execz {lbl}_1k{k}")
            r = regs[4*k:4*k+4]
            for j in range(4): e(f"v_xor_b32 v{r[j]}, {sTB[j]}, v{r[j]}")
            e(f"v_or3_b32 {va}, v{r[0]}, v{r[1]}, v{r[2]}"); e(f"v_bitop3_b32 {va}, {va}, v{r[3]}, {vMask} bitop3:0x54")
            e(f"v_cmp_ne_u32 s[{MK+2*k}:{MK+2*k+1}], 0, {va}")
            e(f"s_or_b64 s[6:7], s[6:7], s[{MK+2*k}:{MK+2*k+1}]")
            A.label(f"{lbl}_1k{k}")
        e("s_cmp_eq_u64 s[6:7], 0"); e(f"s_cbranch_scc0 {lbl}")
        e("s_mov_b64 exec, -1")
        A.fence()
    def tag4(b):
        for k in range(4): e(f"v_and_or_b32 v{b+k}, v{b+k}, {vMask}, {sTB[k]}")
    def get_tag():
        e(f"v_mov_b32 {va}, {L_FLAG+16}"); e(f"ds_read_b32 {va}, {va}"); e(f"v_mov_b32 {vMask}, 0xffffff00")
        e("s_waitcnt lgkmcnt(0)")
        e(f"v_readfirstlane_b32 {sTag}, {va}")
        for k in range(4): e(f"s_bfe_u32 {sTB[k]}, {sTag}, {(8 << 16) | (8 * k):#x}")
    def wfrag(dst, raw, nload, ldsoff):
        e(f"s_mul_i32 {sT[0]}, {sW}, {WPW}"); e(f"v_add_u32 {va}, {sT[0]}, {vVo}")
        for n in range(nload): e(f"ds_read_b128 {vr(raw+4*n)}, {va} offset:{ldsoff + 1024*n}")
        e("s_waitcnt lgkmcnt(0)")
        wperm(dst, raw, nload)
    def wperm(dst, raw, nload):
        h = nload // 2
        for ee in range(8):
            for k in range(h):
                e(f"v_perm_b32 v{dst+h*ee+k}, v{raw+4*(2*k+1)+(ee>>1)}, v{raw+4*(2*k)+(ee>>1)}, {sSelHi if ee & 1 else sSelLo}")
    def pk(a, b): e(f"v_pk_add_f32 v[{a}:{a+1}], v[{a}:{a+1}], v[{b}:{b+1}]")
    def add4(a, b): pk(a, b); pk(a + 2, b + 2)
    F1 = 128; RAW = 192; G = 12; DD = 160; F2 = 224
    def svc_join(lbl):
        e(f"s_cmp_lt_u32 {sW}, 4"); e(f"s_cbranch_scc1 {lbl}")
        e("s_call_b64 s[66:67], L_publish")
        A.label(lbl)

    def gu_fold():
        for k in range(4):
            e(f"v_add_f32_dpp v{12+k}, v{DD+4*k+1}, v{DD+4*k} row_ror:8 row_mask:0xf bank_mask:0x3")
        for k in range(4):
            e(f"v_add_f32_dpp v{12+k}, v{DD+4*(k+4)}, v{DD+4*(k+4)+1} row_ror:8 row_mask:0xf bank_mask:0xc")
    def rowsum(b):
        e(f"v_permlane32_swap_b32 v{b}, v{b+2}"); e(f"v_permlane32_swap_b32 v{b+1}, v{b+3}")
        pk(b, b + 2)
        e(f"v_permlane16_swap_b32 v{b}, v{b+1}"); e(f"v_add_f32 v{b}, v{b}, v{b+1}")
    def afrag(src, extra=()):
        e(f"v_mov_b32_dpp v53, {src} row_ror:14 {DPPF}")
        e(f"v_cvt_pk_bf16_f32 v52, {src}, v53")
        for x in extra: e(x)
        for k in (1, 2, 3): e(f"v_mov_b32_dpp v{52+k}, v52 row_ror:{16-4*k} {DPPF}")
    A.label("L_st1")
    e(f"v_lshrrev_b32 {vc}, 4, {vLane}"); e(f"v_lshlrev_b32 {vc}, 11, {vc}")
    e(f"v_and_b32 {vd}, 15, {vLane}"); e(f"v_lshl_add_u32 {vc}, {vd}, 4, {vc}")
    s1G, s1C = (sIdx, sG) if opts.get("s1swap", False) else (sG, sIdx)
    e(f"s_lshl_b32 {sT[0]}, {s1G}, 16"); e(f"s_add_u32 {sT[0]}, {sT[0]}, {WS_PART}")
    e(f"s_lshl_b32 {sT[1]}, {sW}, 8"); e(f"s_add_u32 {sT[0]}, {sT[0]}, {sT[1]}")
    if opts.get("s1rot", True):
        e(f"s_lshl_b32 {sT[1]}, {s1C}, 13"); e(f"s_add_u32 {sT[0]}, {sT[0]}, {sT[1]}")
    e(f"v_add_u32 v44, {sT[0]}, {vc}")
    for it in range(1, 8): e(f"v_xor_b32 v{44+it}, {4*PREC*it}, v44")
    ld1 = [f"global_load_dwordx4 {vr(G+4*it)}, v{44+it}, {sp(sWS)} sc1" for it in range(8)]
    e(f"s_cmp_lt_u32 {sW}, 4"); e("s_cbranch_scc0 L_s1a")
    e("s_barrier")
    for l in ld1: e(l)
    A.label("L_s1a")
    get_tag()
    wfrag(F1, RAW, 8, 0)
    e(f"s_lshl_b32 {sT[0]}, {sW}, 8"); e(f"s_add_u32 {sT[0]}, {sT[0]}, {L_RED}")
    e(f"v_and_b32 {vY0}, 7, {vLane}"); e(f"v_lshlrev_b32 {vY0}, 5, {vY0}"); e(f"v_and_b32 {vd}, 8, {vLane}"); e(f"v_lshl_add_u32 {vY0}, {vd}, 1, {vY0}"); e(f"v_add_u32 {vY0}, {sT[0]}, {vY0}")
    e(f"v_add_u32 {vY1}, {L_RED}, {vVo}")
    e(f"s_lshl_b32 {sT[0]}, {s1G}, 11"); e(f"s_lshl_b32 {sT[1]}, {s1C}, 8"); e(f"s_add_u32 {sT[0]}, {sT[0]}, {sT[1]}"); e(f"s_add_u32 {sT[0]}, {sT[0]}, {WS_A1}")
    e(f"v_add_u32 {vS0}, {sT[0]}, {vVo}")
    mpoll_init(8)
    e(f"s_cmp_lt_u32 {sW}, 4"); e("s_cbranch_scc1 L_poll1_w")
    e("s_call_b64 s[66:67], L_publish")
    mpoll("L_poll1", ld1, range(12, 44))
    stamp(6)
    add4(12, 16); add4(20, 24); add4(28, 32); add4(36, 40); add4(12, 20); add4(28, 36); add4(12, 28)
    rowsum(12)
    afrag("v12")
    for ee in range(8): e(f"v_mfma_f32_16x16x32_bf16 {vr(DD+4*ee)}, v[52:55], {vr(F1+4*ee)}, 0")
    gu_fold()
    e("s_mov_b64 exec, 0xffff")
    e(f"ds_write_b128 {vY0}, v[12:15]")
    e("s_waitcnt lgkmcnt(0)")
    e("s_barrier")
    e(f"s_cmp_eq_u32 {sW}, 0"); e("s_cbranch_scc0 L_fin")
    for w in range(8): e(f"ds_read_b128 {vr(12+4*w)}, {vY1} offset:{256*w}")
    for w in range(0, 8, 2):
        e(f"s_waitcnt lgkmcnt({6-w})")
        add4(12 + 4*w, 16 + 4*w)
        if w in (2, 6): add4(12 + 4*(w-2), 12 + 4*w)
    add4(12, 28)
    tag4(12)
    e(f"global_store_dwordx4 {vS0}, v[12:15], {sp(sWS)} sc1")
    stamp(7)
    e("s_branch L_fin")

    LATE = opts.get("latedown", True)
    def down_addr():
        e(f"v_lshrrev_b32 v8, 4, {vLane}"); e("v_lshlrev_b32 v8, 10, v8")
        e(f"v_and_b32 v7, 15, {vLane}"); e("v_lshl_add_u32 v8, v7, 4, v8")
        e(f"s_lshl_b32 {sT[2]}, {sIdx}, 15"); e(f"s_and_b32 {sT[3]}, {sW}, 3"); e(f"s_lshl_b32 {sT[3]}, {sT[3]}, 8"); e(f"s_add_u32 {sT[2]}, {sT[2]}, {sT[3]}")
        e(f"s_add_u32 {sT[2]}, {sT[2]}, 4096"); e(f"v_add_u32 v8, {sT[2]}, v8")
        for k in range(1, 4): e(f"v_add_u32 v{8+k}, {8192*k}, v8")
    def down_loads():
        for ep in range(8):
            e(f"global_load_dwordx4 {vr(RAW+4*ep)}, v{8+(ep>>1)}, {sp(sWD)} offset:{4096*(ep&1) - 4096} {opts.get('lpol', 'nt')}")
    def gu_addr(sw):
        e(f"v_lshrrev_b32 v5, 4, {vLane}"); e(f"v_bfe_u32 v6, {vLane}, 3, 1"); e("v_lshl_add_u32 v5, v6, 2, v5")
        e(f"s_lshl_b32 {sT[2]}, {sw}, 6"); e(f"v_add_u32 v5, {sT[2]}, v5")
        e("v_mul_u32_u24 v5, 3584, v5")
        e(f"v_and_b32 v6, 3, {vLane}"); e("v_lshlrev_b32 v6, 4, v6")
        e(f"s_lshl_b32 {sT[2]}, {sIdx}, 6"); e(f"v_add3_u32 v5, v5, v6, {sT[2]}")
        e(f"v_and_b32 v6, 4, {vLane}"); e("v_cmp_eq_u32 vcc, 0, v6")
        e(f"v_mov_b32 v6, s{sWU}"); e(f"v_mov_b32 v4, s{sWG}"); e("v_cndmask_b32 v6, v6, v4, vcc")
        e(f"v_mov_b32 v7, s{sWU+1}"); e(f"v_mov_b32 v4, s{sWG+1}"); e("v_cndmask_b32 v7, v7, v4, vcc")
        e("v_add_co_u32 v6, vcc, v6, v5"); e("v_addc_co_u32 v7, vcc, 0, v7, vcc")
    NLATE = opts.get("nlate", 4)
    A.label("L_st2")
    def gu_loads():
        for ep in range(8):
            e(f"global_load_dwordx4 {vr(96+4*ep)}, v[6:7], off {opts.get('lpol', 'nt')}")
            if ep < 7: e(f"v_add_co_u32 v6, vcc, {3584*8}, v6"); e("v_addc_co_u32 v7, vcc, 0, v7, vcc")
    e(f"s_cmp_lt_u32 {sW}, 4"); e("s_cbranch_scc0 L_s2a")
    if NLATE > 4: gu_addr(sW)
    e("s_barrier")
    if NLATE > 4:
        e(f"s_cmp_lt_u32 {sW}, {8 - NLATE}"); e("s_cbranch_scc1 L_s2a")
        gu_loads()
    A.label("L_s2a")
    get_tag()
    e(f"v_and_b32 {vc}, 15, {vLane}")
    e(f"s_lshl_b32 {sT[0]}, {sW}, 4"); e(f"v_add_u32 {vc}, {sT[0]}, {vc}")
    e(f"v_lshrrev_b32 {vf}, 4, {vLane}"); e(f"v_lshl_add_u32 {vd}, {vc}, 2, {vf}"); e(f"v_lshlrev_b32 {vd}, 1, {vd}")
    e(f"global_load_ushort v28, {vd}, {sp(sX)}")
    wfrag(F1, RAW, 8, 0)
    e(f"v_lshlrev_b32 {vd}, 11, {vf}")
    e(f"v_lshl_add_u32 v36, {vc}, 4, {vd}"); e(f"v_add_u32 v36, {WS_A1}, v36")
    e(f"v_add_u32 v37, 8192, v36")
    e(f"s_lshl_b32 {sT[0]}, {sW}, 3"); e(f"s_add_u32 {sT[0]}, {sT[0]}, {L_STAT}"); e(f"v_mov_b32 v40, {sT[0]}")
    e(f"v_bfe_u32 v41, {vLane}, 1, 3"); e("v_lshlrev_b32 v41, 3, v41"); e(f"v_add_u32 v41, {L_STAT}, v41")
    e(f"v_mov_b32 v30, {L_STAT}")
    e(f"s_lshl_b32 {sT[0]}, {sW}, 8"); e(f"s_add_u32 {sT[0]}, {sT[0]}, {L_RED}")
    e(f"v_and_b32 v42, 7, {vLane}"); e("v_lshlrev_b32 v42, 5, v42"); e(f"v_and_b32 {vd}, 8, {vLane}"); e(f"v_lshl_add_u32 v42, {vd}, 1, v42"); e(f"v_add_u32 v42, {sT[0]}, v42")
    e(f"v_add_u32 v43, {L_RED}, {vVo}")
    e(f"s_lshl_b32 {sT[0]}, {sIdx}, 11"); e(f"s_and_b32 {sT[1]}, {sW}, 3"); e(f"s_lshl_b32 {sT[1]}, {sT[1]}, 9"); e(f"s_add_u32 {sT[0]}, {sT[0]}, {sT[1]}"); e(f"s_add_u32 {sT[0]}, {sT[0]}, {WS_D2}")
    e(f"v_and_b32 {vS0}, 15, {vLane}"); e(f"v_lshlrev_b32 {vS0}, 4, {vS0}"); e(f"v_lshrrev_b32 {vd}, 5, {vLane}"); e(f"v_lshlrev_b32 {vd}, 8, {vd}"); e(f"v_add3_u32 {vS0}, {vS0}, {vd}, {sT[0]}")
    e("s_waitcnt vmcnt(0)")
    e("v_lshlrev_b32 v32, 16, v28")
    if NLATE > 4:
        e(f"s_cmp_lt_u32 {sW}, {8 - NLATE}"); e("s_cbranch_scc1 L_j2")
        e(f"s_cmp_lt_u32 {sW}, 4"); e("s_cbranch_scc1 L_j2b")
    else:
        e(f"s_cmp_lt_u32 {sW}, 4"); e("s_cbranch_scc1 L_j2")
    down_addr()
    gu_addr(sW)
    e("s_call_b64 s[66:67], L_publish")
    if NLATE:
        e(f"s_cmp_lt_u32 {sW}, {8 - NLATE}"); e("s_cbranch_scc1 L_j2a")
        gu_loads()
        down_loads()
        e("s_waitcnt vmcnt(8)")
        A.label("L_j2b")
        wperm(F1, 96, 8)
        e("s_branch L_j2")
        A.label("L_j2a")
    down_loads()
    A.label("L_j2")
    for k in range(4): e(f"v_mov_b32 v{52+k}, 0x3f803f80")
    for ee in range(8): e(f"v_mfma_f32_16x16x32_bf16 {vr(DD+4*ee)}, v[52:55], {vr(F1+4*ee)}, 0")
    gu_fold()
    e("s_mov_b64 exec, 0xffff"); e("ds_write_b128 v42, v[12:15] offset:2048"); e("s_mov_b64 exec, -1")
    e("s_waitcnt lgkmcnt(0)")
    e("s_barrier")
    CS = 64
    e(f"s_cmp_lt_u32 {sW}, 4"); e("s_cbranch_scc1 L_poll2")
    e(f"ds_read_b128 {vr(CS)}, v43 offset:2048"); e(f"ds_read_b128 {vr(CS+4)}, v43 offset:{2048+1024}")
    e("s_waitcnt lgkmcnt(0)")
    add4(CS, CS + 4); rowsum(CS)
    e("s_waitcnt vmcnt(0)")
    wperm(F2, RAW, 8)
    stamp(2)
    poll("L_poll2", [f"global_load_dwordx4 {vr(G+4*it)}, v{36+it}, {sp(sWS)} sc1" for it in range(2)], range(12, 20))
    stamp(6)
    add4(12, 16)
    rowsum(12)
    def rnd4(b, t):
        e(f"v_cvt_pk_bf16_f32 v{t}, v{b}, v{b+1}"); e(f"v_cvt_pk_bf16_f32 v{t+1}, v{b+2}, v{b+3}")
        e(f"v_lshlrev_b32 v{b}, 16, v{t}"); e(f"v_and_b32 v{b+1}, 0xffff0000, v{t}")
        e(f"v_lshlrev_b32 v{b+2}, 16, v{t+1}"); e(f"v_and_b32 v{b+3}, 0xffff0000, v{t+1}")
    e("v_cvt_pk_bf16_f32 v12, v12, v12"); e("v_lshlrev_b32 v12, 16, v12"); e("v_add_f32 v12, v32, v12")
    afrag("v12", ["v_lshlrev_b32 v20, 16, v52"])
    e(f"v_readfirstlane_b32 {sT[2]}, v20")
    st = [f"v_subrev_f32 v20, {sT[2]}, v20", "v_mul_f32 v21, v20, v20",
          "v_permlane32_swap_b32 v20, v21", "v_add_f32 v20, v20, v21", "v_mov_b32 v21, v20",
          "v_permlane16_swap_b32 v21, v20", "v_add_f32 v20, v20, v21"]
    st += [f"v_add_f32_dpp v20, v20, v20 row_ror:{k} {DPPF}" for k in (8, 4, 2, 1)]
    st += [f"v_readlane_b32 {sT[3]}, v20, 32", "v_mul_f32 v21, 0x3c800000, v20", f"v_add_f32 v22, {sT[2]}, v21", f"v_fma_f32 v23, -v21, v20, {sT[3]}"]
    cuts = [0, 2, 5, 7, 8, 9, 10, 11, len(st)]
    for ee in range(8):
        e(f"v_mfma_f32_16x16x32_bf16 {vr(DD+4*ee)}, v[52:55], {vr(F1+4*ee)}, 0")
        for x in st[cuts[ee]:cuts[ee+1]]: e(x)
    gu_fold()
    e("s_mov_b64 exec, 0xffff")
    e("ds_write_b64 v40, v[22:23]")
    e("ds_write_b128 v42, v[12:15]")
    e("s_mov_b64 exec, -1")
    e("s_waitcnt lgkmcnt(0)")
    e("s_barrier")
    e(f"s_cmp_lt_u32 {sW}, 4"); e("s_cbranch_scc1 L_fin")
    e("ds_read_b64 v[20:21], v41"); e("ds_read_b32 v22, v30")
    e("ds_read_b128 v[12:15], v43"); e("ds_read_b128 v[16:19], v43 offset:1024")
    e("s_waitcnt lgkmcnt(2)")
    e("v_sub_f32 v20, v20, v22"); e("v_mul_f32 v23, 0x42800000, v20"); e("v_fmac_f32 v21, v23, v20")
    e(f"v_add_f32_dpp v20, v20, v20 row_ror:8 {DPPF}")
    e("s_waitcnt lgkmcnt(0)")
    e(f"v_add_f32_dpp v21, v21, v21 row_ror:8 {DPPF}")
    pk(12, 16)
    e(f"v_add_f32_dpp v20, v20, v20 row_ror:4 {DPPF}")
    pk(14, 18)
    e(f"v_add_f32_dpp v21, v21, v21 row_ror:4 {DPPF}")
    e(f"v_add_f32_dpp v20, v20, v20 row_ror:2 {DPPF}")
    e("v_permlane32_swap_b32 v12, v14")
    e(f"v_add_f32_dpp v21, v21, v21 row_ror:2 {DPPF}")
    e("v_permlane32_swap_b32 v13, v15")
    e("v_mul_f32 v23, 0x41000000, v20"); e("v_fma_f32 v21, -v23, v20, v21"); e("v_fmac_f32 v22, 0x3e000000, v20"); e("v_mul_f32 v21, 0x3b000000, v21")
    e("v_cvt_pk_bf16_f32 v23, v22, v21"); e("v_and_b32 v21, 0xffff0000, v23"); e("v_add_f32 v21, 0x3727c5ac, v21")
    e("v_cvt_pk_bf16_f32 v24, v21, v21"); e("v_lshlrev_b32 v21, 16, v24"); e("v_sqrt_f32 v21, v21")
    pk(12, 14)
    e("v_cvt_pk_bf16_f32 v24, v21, v21"); e("v_lshlrev_b32 v21, 16, v24"); e("v_rcp_f32 v21, v21")
    e("v_permlane16_swap_b32 v12, v13"); e("v_lshlrev_b32 v22, 16, v23"); e("v_add_f32 v12, v12, v13")
    e(f"v_fma_f32 v12, -v22, v{CS}, v12"); e("v_mul_f32 v12, v21, v12")
    e("v_cvt_pk_bf16_f32 v12, v12, v12"); e("v_lshlrev_b32 v12, 16, v12")
    e(f"v_mul_f32_dpp v12, v12, v12 row_ror:8 {DPPF}")
    e(f"v_mov_b32_dpp v53, v12 row_ror:15 {DPPF}")
    e("v_cvt_pk_bf16_f32 v52, v12, v53")
    for k in (1, 2, 3): e(f"v_mov_b32_dpp v{52+k}, v52 row_ror:{16-2*k} {DPPF}")
    for ee in range(8): e(f"v_mfma_f32_16x16x32_bf16 {vr(DD+4*ee)}, v[52:55], {vr(F2+4*ee)}, 0")
    for k in range(4): e(f"v_and_or_b32 v{12+k}, v{DD+4*k}, {vMask}, {sTB[k]}")
    e("s_mov_b32 exec_lo, 0"); e("s_mov_b32 exec_hi, 0xffff")
    for k in range(4): e(f"v_and_or_b32 v{12+k}, v{DD+4*(k+4)}, {vMask}, {sTB[k]}")
    e("s_mov_b32 exec_lo, 0xffff")
    e(f"global_store_dwordx4 {vS0}, v[12:15], {sp(sWS)} sc1")
    e("s_mov_b64 exec, -1")
    stamp(7)
    e("s_branch L_fin")
    def ln_finish(vm, vv, t):
        e(f"v_cvt_pk_bf16_f32 {t}, {vm}, {vv}")
        e(f"v_lshlrev_b32 {vm}, 16, {t}"); e(f"v_and_b32 {vv}, 0xffff0000, {t}")
        e(f"v_add_f32 {vv}, 0x3727c5ac, {vv}")
        e(f"v_cvt_pk_bf16_f32 {t}, {vv}, {vv}"); e(f"v_lshlrev_b32 {vv}, 16, {t}")
        e(f"v_sqrt_f32 {vv}, {vv}")
        e(f"v_cvt_pk_bf16_f32 {t}, {vv}, {vv}"); e(f"v_lshlrev_b32 {vv}, 16, {t}")
        e(f"v_rcp_f32 {vv}, {vv}")

    A.label("L_st3")
    get_tag()
    e(f"s_lshr_b32 {sT[1]}, {sIdx}, 2"); e(f"s_lshl_b32 {sT[1]}, {sT[1]}, 7"); e(f"s_and_b32 {sT[0]}, {sIdx}, 1"); e(f"s_lshl_b32 {sT[0]}, {sT[0]}, 6"); e(f"s_add_u32 {sT[1]}, {sT[1]}, {sT[0]}")
    e(f"s_and_b32 {sT[0]}, {sIdx}, 2"); e(f"s_lshl_b32 {sT[0]}, {sT[0]}, 1"); e(f"s_add_u32 {sT[1]}, {sT[1]}, {sT[0]}")
    e(f"v_and_b32 {vc}, 7, {vLane}"); e(f"v_lshlrev_b32 v45, 3, {vc}"); e(f"v_add_u32 v45, {sT[1]}, v45")
    e(f"v_lshrrev_b32 {vf}, 4, {vLane}"); e(f"v_add_lshl_u32 {vS0}, v45, {vf}, 1")
    e(f"global_load_ushort v60, {vS0}, {sp(sX)}")
    e(f"v_lshrrev_b32 {vd}, 3, {vLane}"); e(f"v_lshlrev_b32 {vd}, 11, {vd}")
    e(f"v_lshl_add_u32 v44, v45, 2, {vd}"); e(f"v_add_u32 v44, {WS_A1}, v44")
    e(f"v_lshl_add_u32 {vd}, {vc}, 4, {vd}")
    e(f"s_lshl_b32 {sT[0]}, {sIdx}, 7"); e(f"v_add_u32 {vd}, {sT[0]}, {vd}")
    for it in range(7): e(f"v_add_u32 v{46+it}, {WS_D2 + 16384*it}, {vd}")
    e("s_barrier")
    e("s_barrier")
    e(f"v_mov_b32 v61, {sTag}"); e("v_mov_b32 v62, 0")
    def red4(b):
        e(f"v_permlane32_swap_b32 v{b}, v{b+2}"); e(f"v_permlane32_swap_b32 v{b+1}, v{b+3}")
        e(f"v_add_f32 v{b}, v{b}, v{b+2}"); e(f"v_add_f32 v{b+1}, v{b+1}, v{b+3}")
        e(f"v_permlane16_swap_b32 v{b}, v{b+1}"); e(f"v_add_f32 v{b}, v{b}, v{b+1}")
        e(f"v_add_f32_dpp v{b}, v{b}, v{b} row_ror:8 {DPPF}")
    poll("L_poll3a", [f"global_load_dwordx4 v[12:15], v44, {sp(sWS)} sc1"], range(12, 16))
    red4(12)
    e("v_cvt_pk_bf16_f32 v12, v12, v12"); e("v_lshlrev_b32 v12, 16, v12"); e("v_lshlrev_b32 v60, 16, v60")
    e("v_add_f32 v60, v60, v12"); e("v_cvt_pk_bf16_f32 v60, v60, v60"); e("v_lshlrev_b32 v60, 16, v60")
    stamp(6)
    if opts.get("m3", False): mpoll_init(7)
    (mpoll if opts.get("m3", False) else poll)("L_poll3b", [f"global_load_dwordx4 {vr(12+4*it)}, v{46+it}, {sp(sWS)} sc1" for it in range(7)], range(12, 40))
    for a, b in ((12, 16), (20, 24), (28, 32), (12, 20), (28, 36), (12, 28)): add4(a, b)
    red4(12)
    e("v_cvt_pk_bf16_f32 v12, v12, v12"); e("v_lshlrev_b32 v12, 16, v12")
    e("v_add_f32 v12, v60, v12")
    if opts.get("probe"):
        lo, hi = opts["probe"]
        e("s_memrealtime s[82:83]"); e("s_waitcnt lgkmcnt(0)"); e("s_sub_u32 s82, s82, s80")
        e(f"s_sub_u32 s83, s82, {lo}"); e(f"s_cmp_lt_u32 s83, {hi - lo}"); e("s_cbranch_scc1 L_pok")
        for _ in range(16): e("s_sleep 127")
        A.label("L_pok")
    e("v_cvt_pk_bf16_f32 v12, v12, v12")
    e("s_mov_b32 exec_lo, 0x00ff00ff"); e("s_mov_b32 exec_hi, 0x00ff00ff")
    e(f"global_store_short {vS0}, v12, {sp(sOUT)}")
    e(f"s_cmp_eq_u32 {sIdx}, 0"); e("s_cbranch_scc0 L_noep")
    e("s_mov_b64 exec, 1")
    e(f"global_store_dword v62, v61, {sp(sWS)}")
    A.label("L_noep")
    e("s_mov_b64 exec, -1")
    stamp(7)

    A.label("L_fin")
    if debug:
        e("s_mov_b64 exec, -1")
        e("s_waitcnt vmcnt(0) lgkmcnt(0)")
        e("s_memrealtime s[96:97]"); e("s_memtime s[6:7]")
        e("s_waitcnt lgkmcnt(0)")
        e("s_sub_u32 s6, s6, s100"); e("v_mov_b32 v18, s6")
        e(f"s_lshl_b32 {sT[0]}, {sId}, 3"); e(f"s_add_u32 {sT[0]}, {sT[0]}, {sW}"); e(f"s_lshl_b32 {sT[0]}, {sT[0]}, 6"); e(f"s_add_u32 {sT[0]}, {sT[0]}, {WS_STAMP}")
        e(f"v_mov_b32 v20, {sT[0]}")
        for i in range(9): e(f"v_mov_b32 v{4+i}, s{80+2*i}")
        e("s_getreg_b32 s52, hwreg(HW_REG_XCC_ID)"); e("v_mov_b32 v13, s52"); e("v_mov_b32 v14, s70"); e("v_mov_b32 v15, s72"); e("v_mov_b32 v16, s74"); e("v_mov_b32 v17, s98"); e("v_mov_b32 v19, s73")
        e("s_mov_b64 exec, 1")
        for i in range(4): e(f"global_store_dwordx4 v20, v[{4+4*i}:{7+4*i}], {sp(sWS)} offset:{16*i}")
    A.label("L_end")
    e("s_endpgm")

    A.label("L_publish")
    e(f"v_and_b32 {va}, 3, {vLane}"); e(f"v_lshlrev_b32 {va}, 3, {va}"); e(f"v_add_u32 {va}, {L_MS}, {va}")
    for w in range(4): e(f"ds_read_b32 v{56+2*w}, {va} offset:{32*w}")
    e(f"ds_read_b64 v[64:65], {va} offset:{L_GS - L_MS}")
    e(f"v_mov_b32 {vb}, {L_FLAG+40}"); e(f"ds_read_b32 {vb}, {vb}")
    e(f"s_and_b32 {sT[0]}, {sW}, 1"); e(f"s_lshl_b32 {sT[0]}, {sT[0]}, 10")
    e(f"s_lshl_b32 {sT[1]}, {sId}, 11"); e(f"s_add_u32 {sT[1]}, {sT[1]}, {WS_PART}"); e(f"s_add_u32 {sT[1]}, {sT[1]}, {sT[0]}")
    e(f"s_add_u32 {sT[0]}, {sT[0]}, {L_ACC}")
    e("s_waitcnt lgkmcnt(0)")
    e(f"v_readfirstlane_b32 {sT[2]}, {vb}")
    for w in range(4): e(f"v_sub_f32 v{56+2*w}, v{56+2*w}, v64")
    for w in range(4): e(f"v_exp_f32 v{56+2*w}, v{56+2*w}")
    for w in range(4): e(f"v_mul_f32 v{56+2*w}, v{56+2*w}, v65")
    for w in range(4): e(f"v_mov_b32 v{57+2*w}, v{56+2*w}")
    e(f"v_add_u32 {va}, {sT[0]}, {vVo}"); e(f"v_add_u32 {vb}, {sT[1]}, {vVo}")
    if opts.get("prerd", 0):
        e(f"s_cmp_gt_u32 {sW}, 5"); e("s_cbranch_scc1 L_nopre")
        e(f"s_cmp_eq_u32 {sT[2]}, 0"); e("s_cbranch_scc0 L_nopre")
        lds_wait("L_pw", 20, 17, "v12", "v13", sleep=4)
        e(f"global_load_dwordx4 v[12:15], {vb}, {sp(sWS)} {opts.get('prepol', 'nt')}")
        e("s_waitcnt vmcnt(0)")
        A.label("L_nopre")
    e("s_barrier")
    stamp(4)
    e(f"s_cmp_gt_u32 {sW}, 5"); e("s_cbranch_scc1 L_pubret")
    for w in range(4): e(f"ds_read_b128 {vr(12+4*w)}, {va} offset:{2048*w}")
    for w in range(4):
        e(f"s_waitcnt lgkmcnt({3-w})")
        for r in (0, 2):
            if w == 0: e(f"v_pk_mul_f32 v[{12+r}:{13+r}], v[{12+r}:{13+r}], v[56:57]")
            else: e(f"v_pk_fma_f32 v[{12+r}:{13+r}], v[{12+4*w+r}:{13+4*w+r}], v[{56+2*w}:{57+2*w}], v[{12+r}:{13+r}]")
    tag4(12)
    e(f"s_cmp_eq_u32 {sT[2]}, 0"); e("s_cbranch_scc1 L_publ")
    e(f"global_store_dwordx4 {vb}, v[12:15], {sp(sWS)} sc1"); e("s_branch L_pubd")
    A.label("L_publ")
    e(f"global_store_dwordx4 {vb}, v[12:15], {sp(sWS)}")
    A.label("L_pubd")
    stamp(5)
    A.label("L_pubret")
    e("s_barrier")
    e("s_setpc_b64 s[66:67]")
    A.fence()

    def tag_from(v):
        e(f"v_readfirstlane_b32 {sTag}, {v}")
        e(f"s_add_u32 {sTag}, {sTag}, 0x01010101")
        for k in range(4): e(f"s_bfe_u32 {sTB[k]}, {sTag}, {(8 << 16) | (8 * k):#x}")
    NP = opts.get("np", 2); C0 = 32 - 8 * NP
    DW = opts.get("dmawin", 1)
    def thr(): e(f"s_waitcnt vmcnt({DW-1})")
    A.label("L_sv4")
    if opts.get("pre0"):
        e(f"s_cmp_lt_u32 {sW}, 6"); e("s_cbranch_scc1 L_nopre0")
        e(f"s_lshl_b32 {sT[0]}, {sId}, 1"); e(f"s_add_u32 {sT[0]}, {sT[0]}, {sW}"); e(f"s_lshl_b32 {sT[0]}, {sT[0]}, 10"); e(f"s_add_u32 {sT[0]}, {sT[0]}, {WS_PART - 6144}")
        e(f"v_add_u32 v5, {sT[0]}, {vVo}")
        e(f"global_load_dwordx4 v[56:59], v5, {sp(sWS)}")
        A.label("L_nopre0")
    if opts.get("touch", False):
        e(f"s_cmp_eq_u32 {sW}, 7"); e("s_cbranch_scc0 L_notouch")
        e(f"v_lshlrev_b32 v5, 16, {vLane}"); e(f"s_lshl_b32 {sT[0]}, s2, 19"); e(f"v_add_u32 v5, {sT[0]}, v5")
        e("s_mov_b64 exec, 0xff")
        e(f"global_load_dword v6, v5, {sp(sV)} nt")
        e("s_mov_b64 exec, 1")
        e(f"global_load_dword v7, v9, {sp(sOUT)} nt")
        e("s_mov_b64 exec, -1")
        e("s_waitcnt vmcnt(0)")
        A.label("L_notouch")
    if opts.get("dmaq", False): lds_wait("L_dq", 0, 1, va, vb, sleep=8)
    A.label("L_down")
    A.label("L_nodown")
    ND = opts.get("ndma", 3)
    if ND < 4: e(f"s_cmp_eq_u32 {sW}, 4"); e("s_cbranch_scc1 L_stats")
    if ND == 2: e(f"s_cmp_eq_u32 {sW}, 5"); e("s_cbranch_scc1 L_wdone")
    e(f"s_sub_u32 {sWW}, {sW}, {8 - ND}")
    if opts.get("nodma"): e("s_branch L_wdone")
    e(f"s_cmp_eq_u32 {sRole}, 1"); e("s_cbranch_scc0 L_now1")
    e(f"s_mov_b32 s40, s{sWO}"); e(f"s_mov_b32 s41, s{sWO+1}"); e(f"s_mov_b32 s42, {4096*1024}"); e("s_mov_b32 s43, 0x20000")
    e(f"v_bfe_u32 v5, {vLane}, 3, 1"); e("v_lshlrev_b32 v5, 17, v5")
    e(f"v_lshrrev_b32 v6, 4, {vLane}"); e("v_lshlrev_b32 v6, 13, v6")
    e(f"v_and_b32 v7, 7, {vLane}"); e("v_lshlrev_b32 v7, 4, v7")
    e("v_add3_u32 v5, v5, v6, v7")
    A.label("L_dma1")
    e(f"s_mul_i32 {sT[1]}, {sWW}, {WPW}")
    e(f"s_lshl_b32 {sT[2]}, {s1G}, 9")
    e(f"s_and_b32 {sT[3]}, {sWW}, 3"); e(f"s_lshl_b32 {sT[3]}, {sT[3]}, 5"); e(f"s_add_u32 {sT[2]}, {sT[2]}, {sT[3]}")
    e(f"s_and_b32 {sT[3]}, {sWW}, 4"); e(f"s_add_u32 {sT[2]}, {sT[2]}, {sT[3]}")
    e(f"s_lshl_b32 {sT[2]}, {sT[2]}, 10")
    e(f"s_lshl_b32 {sT[3]}, {s1C}, 7"); e(f"s_add_u32 {sT[2]}, {sT[2]}, {sT[3]}")
    if opts.get("worot", True):
        e(f"s_add_u32 {sT[3]}, {sG}, {sWW}"); e(f"s_and_b32 {sT[3]}, {sT[3]}, 3"); e(f"s_lshl_b32 {sT[3]}, {sT[3]}, 10")
        e(f"s_add_u32 {sT[2]}, {sT[2]}, {sT[3]}"); e(f"s_lshl_b32 {sT[3]}, {sT[3]}, 1"); e(f"s_add_u32 {sT[1]}, {sT[1]}, {sT[3]}")
    for ep in range(8):
        e(f"s_xor_b32 {sT[3]}, {sT[2]}, {(256*(ep&1) + (ep>>1))*1024}")
        e(f"s_xor_b32 m0, {sT[1]}, {ep*1024}")
        e(f"s_waitcnt vmcnt({opts.get('wowin', 4) - 1})")
        if not opts.get("nowo"): e(f"buffer_load_dwordx4 v5, {srdW}, {sT[3]} offen nt lds")
    e(f"s_add_u32 {sWW}, {sWW}, {ND}"); e(f"s_cmp_lt_u32 {sWW}, 8"); e("s_cbranch_scc1 L_dma1")
    e("s_branch L_wdone")
    A.label("L_now1")
    e(f"s_cmp_eq_u32 {sRole}, 2"); e("s_cbranch_scc0 L_wdone")
    e(f"s_cmp_lt_u32 {sWW}, {8 - NLATE}"); e("s_cbranch_scc0 L_wdone")
    gu_addr(sWW)
    A.label("L_dma2")
    e(f"s_mul_i32 {sT[1]}, {sWW}, {WPW}")
    for ep in range(8):
        e(f"s_add_u32 m0, {sT[1]}, {ep*1024}")
        thr()
        e(f"global_load_lds_dwordx4 v[6:7], off {opts.get('gupol', 'nt')}")
        e(f"v_add_co_u32 v6, vcc, {3584*8 if ep < 7 else 3584*(64*ND-56)}, v6"); e("v_addc_co_u32 v7, vcc, 0, v7, vcc")
    e(f"s_add_u32 {sWW}, {sWW}, {ND}"); e(f"s_cmp_lt_u32 {sWW}, {8 - NLATE}"); e("s_cbranch_scc1 L_dma2")
    A.label("L_wdone")
    e("s_waitcnt vmcnt(0)")
    e(f"v_mov_b32 {va}, {L_FLAG+12}"); e(f"v_mov_b32 {vb}, 1")
    e("s_mov_b64 exec, 1"); e(f"ds_add_u32 {va}, {vb}"); e("s_mov_b64 exec, -1")
    stamp(1)
    if ND == 4: e(f"s_cmp_eq_u32 {sW}, 4"); e("s_cbranch_scc1 L_stats")
    A.label("L_svc2")
    lds_wait("L_dw", 12, max(3, ND), va, vb, sleep=16)
    lds_wait("L_sq", 8, 1, va, vb, sleep=16)
    e(f"s_cmp_eq_u32 {sRole}, 1"); e("s_cbranch_scc1 L_st1")
    e(f"s_cmp_eq_u32 {sRole}, 2"); e("s_cbranch_scc1 L_st2")
    e(f"s_cmp_eq_u32 {sRole}, 3"); e("s_cbranch_scc0 L_svc3")
    e(f"s_cmp_ge_u32 {sW}, 6"); e("s_cbranch_scc1 L_st3")
    A.label("L_svc3")
    PF = opts.get("pf", 0)
    if PF: e(f"s_cmp_ge_u32 {sW}, 6"); e("s_cbranch_scc1 L_help")
    get_tag()
    e("s_call_b64 s[66:67], L_publish")
    e("s_branch L_fin")
    if PF:
        A.label("L_help")
        e(f"s_sub_u32 {sT[4]}, {sC}, 16")
        e(f"v_lshrrev_b32 v5, 3, {vLane}"); e(f"s_lshl_b32 {sT[0]}, {sT[4]}, 5"); e(f"v_add_u32 v5, {sT[0]}, v5"); e("v_mul_u32_u24 v5, 3584, v5")
        e(f"v_and_b32 v6, 7, {vLane}"); e("v_lshl_add_u32 v5, v6, 6, v5")
        e(f"s_mul_i32 {sT[0]}, {sG}, 448"); e(f"s_and_b32 {sT[0]}, {sT[0]}, 0xffffff80"); e(f"v_add_u32 v5, {sT[0]}, v5")
        for k in range(1, 4): e(f"v_add_u32 v{5+k}, {8*3584*k}, v5")
        e(f"s_cmp_eq_u32 {sW}, 6"); e(f"s_cselect_b32 s6, s{sWG}, s{sWU}"); e(f"s_cselect_b32 s7, s{sWG+1}, s{sWU+1}")
        e(f"s_mul_i32 {sT[0]}, {sG}, {224*1024}"); e(f"s_mul_i32 {sT[1]}, {sT[4]}, 14336"); e(f"s_add_u32 {sT[0]}, {sT[0]}, {sT[1]}")
        e(f"s_and_b32 {sT[1]}, {sW}, 1"); e(f"s_mul_i32 {sT[1]}, {sT[1]}, 7168"); e(f"s_add_u32 {sT[0]}, {sT[0]}, {sT[1]}")
        e(f"v_lshlrev_b32 v9, 6, {vLane}"); e(f"v_add_u32 v9, {sT[0]}, v9")
        if PF == 2: lds_wait("L_hw", 20, 17, va, vb, sleep=4)
        else: e("s_barrier"); e("s_barrier")
        PP = opts.get("pfpol", "nt")
        for k in range(4): e(f"global_load_dword v{12+k}, v{5+k}, s[6:7] {PP}")
        e(f"global_load_dword v16, v9, {sp(sWD)} {PP}"); e(f"global_load_dword v17, v9, {sp(sWD)} offset:3072 {PP}")
        e("s_branch L_fin")

    A.label("L_stats")
    SG = opts.get("sg", 180); CA, GA = opts.get("cka", (88, 120)); SP = opts.get("spub", 152)
    GH = float(opts.get('gh', 0.32)); GL = float(opts.get('gl', 0.25))
    e(f"v_mov_b32 v24, {L_FLAG}")
    def control(base, lag, sub=None, GH=GH, GL=GL):
        e(f"v_mov_b32 v28, {float(base)}")
        if sub: e(f"v_sub_f32 v28, v28, {sub}")
        e(f"v_fmac_f32 v28, {GH}, {lag}")
        e(f"v_mov_b32 v29, {float(base)}"); e(f"v_fmac_f32 v29, {-GL}, {lag}")
        e(f"v_cmp_lt_f32 vcc, 0, {lag}"); e("v_cndmask_b32 v28, 0, v28, vcc"); e("v_cndmask_b32 v29, v29, 0, vcc")
        e("v_cvt_i32_f32 v26, v28"); e("v_cvt_i32_f32 v27, v29")
        if not opts.get("noctl"): e("ds_write_b64 v24, v[26:27] offset:24")
    e("s_getreg_b32 s71, hwreg(HW_REG_XCC_ID, 0, 4)")
    def ck_pub(k):
        e("s_memrealtime s[68:69]")
        e(f"s_lshl_b32 {sT[0]}, {sId}, 3"); e(f"s_add_u32 {sT[0]}, {sT[0]}, {WS_CK + 2048*k}"); e(f"v_mov_b32 v5, {sT[0]}"); e(f"v_mov_b32 v33, {sTag}")
        e("s_waitcnt lgkmcnt(0)"); e("s_lshl_b32 s68, s68, 4"); e("s_or_b32 s68, s68, s71"); e("v_mov_b32 v32, s68")
        e("s_mov_b64 exec, 1"); e(f"global_store_dwordx2 v5, v[32:33], {sp(sWS)} sc1"); e("s_mov_b64 exec, -1")
    def ck_load(k):
        e(f"v_lshlrev_b32 v6, 5, {vLane}"); e(f"v_add_u32 v6, {WS_CK + 2048*k}, v6")
        e(f"global_load_dwordx4 v[32:35], v6, {sp(sWS)} sc1"); e(f"global_load_dwordx4 v[36:39], v6, {sp(sWS)} offset:16 sc1")
    def ck_lag(bias):
        e(f"v_mov_b32 v40, {opts.get('miss', -400) * 16}")
        for k in range(4):
            e(f"v_sub_u32 v{32+2*k}, s68, v{32+2*k}"); e(f"v_cmp_eq_u32 vcc, {sTag}, v{33+2*k}"); e(f"v_cndmask_b32 v{32+2*k}, v40, v{32+2*k}, vcc")
        e("v_add3_u32 v32, v32, v34, v36"); e("v_add_u32 v32, v32, v38"); e("v_cvt_f32_i32 v32, v32")
        e(f"v_add_f32_dpp v32, v32, v32 quad_perm:[1,0,3,2] {DPPF}"); e(f"v_add_f32_dpp v32, v32, v32 quad_perm:[2,3,0,1] {DPPF}")
        for x in xlane("add", "v32", "v33"): e(x)
        e(f"v_mov_b32 v19, {float(bias)}"); e("v_fmac_f32 v19, 0x39800000, v32")
    lds_wait("L_ca", 20, 4, va, vb, sleep=4)
    ck_pub(0)
    lds_wait("L_ga", 20, 5, va, vb, sleep=8)
    ck_load(0)
    e("s_waitcnt vmcnt(0)")
    e("v_or3_b32 v41, v32, v34, v36"); e("v_or_b32 v41, v41, v38"); e("v_and_b32 v42, v32, v34"); e("v_and_b32 v43, v36, v38"); e("v_and_b32 v42, v42, v43")
    e("v_xor_b32 v41, s71, v41"); e("v_bitop3_b32 v41, v41, v42, s71 bitop3:0xf6"); e("v_and_b32 v41, 15, v41")
    for k in range(4): e(f"v_bitop3_b32 v41, v41, v{33+2*k}, {sTag} bitop3:0xf6")
    e("v_cmp_ne_u32 vcc, 0, v41")
    e(f"s_lshl_b32 {sT[0]}, {sG}, 3"); e(f"s_lshr_b64 vcc, vcc, {sT[0]}"); e("s_and_b32 s70, vcc_lo, 0xff")
    if opts.get("nolocal"): e("s_mov_b32 s70, 1")
    e("v_mov_b32 v41, s70"); e("ds_write_b32 v24, v41 offset:40")
    ck_lag(opts.get('abias', 0.0))
    control(GA + 10, "v19")
    e(f"v_subrev_f32 v30, {float(SP)}, v28"); e(f"v_mov_b32 v31, {float(SG + 10 - SP)}"); e("v_med3_f32 v30, v30, 0, v31")
    lds_wait("L_sw", 4, 4, va, vb, sleep=4)
    e(f"v_and_b32 {vc}, 3, {vLane}"); e(f"v_lshlrev_b32 {va}, 3, {vc}"); e(f"v_add_u32 {va}, {L_MS}, {va}")
    for w in range(4): e(f"ds_read_b64 v[{12+2*w}:{13+2*w}], {va} offset:{32*w}")
    e("s_waitcnt lgkmcnt(0)")
    e("v_max3_f32 v20, v12, v14, v16"); e("v_max_f32 v20, v20, v18")
    for w in range(4): e(f"v_sub_f32 v{12+2*w}, v{12+2*w}, v20")
    for w in range(4): e(f"v_exp_f32 v{12+2*w}, v{12+2*w}")
    e("v_mul_f32 v22, v12, v13")
    for w in range(1, 4): e(f"v_fmac_f32 v22, v{12+2*w}, v{13+2*w}")
    e(f"v_mov_b32 v21, {sTag}"); e(f"v_mov_b32 v23, {sTag}")
    e(f"s_lshl_b32 {sT[0]}, {sId}, 6"); e(f"s_add_u32 {sT[0]}, {sT[0]}, {WS_ST}"); e(f"v_add_u32 v5, {sT[0]}, {vVo}")
    e("s_mov_b64 exec, 0xf")
    e("s_cmp_eq_u32 s70, 0"); e("s_cbranch_scc1 L_stl")
    e(f"global_store_dwordx4 v5, v[20:23], {sp(sWS)} sc1"); e("s_branch L_std")
    A.label("L_stl")
    e(f"global_store_dwordx4 v5, v[20:23], {sp(sWS)}")
    A.label("L_std")
    e("s_mov_b64 exec, -1")
    lds_wait("L_cb", 20, 12, va, vb, sleep=4)
    ck_pub(1)
    e(f"s_lshl_b32 {sT[0]}, {sG}, 11"); e(f"s_add_u32 {sT[0]}, {sT[0]}, {WS_ST}"); e(f"v_add_u32 v5, {sT[0]}, {vVo}")
    lds_wait("L_sg", 20, 13, va, vb, sleep=8)
    ck_load(1)
    e("s_waitcnt vmcnt(0)")
    ck_lag(opts.get('lbias', 20))
    if opts.get("r2bias", 40):
        e(f"s_cmp_eq_u32 {sRole}, 2"); e(f"s_cselect_b32 {sT[0]}, {opts.get('r2bias', 40)}, 0"); e(f"v_cvt_f32_i32 v25, {sT[0]}"); e("v_add_f32 v19, v19, v25")
    control(SG + 10, "v19", "v30", float(opts.get("gh2", GH)), float(opts.get("gl2", GL)))
    if debug: e("v_cvt_i32_f32 v19, v19"); e("v_readfirstlane_b32 s73, v19")
    A.label("L_spoll")
    timeout()
    e(f"global_load_dwordx4 v[12:15], v5, {sp(sWS)} sc1"); e(f"global_load_dwordx4 v[16:19], v5, {sp(sWS)} offset:1024 sc1")
    e("s_waitcnt vmcnt(0)")
    e(f"v_xor_b32 v13, {sTag}, v13")
    for r in (15, 17, 19): e(f"v_bitop3_b32 v13, v13, v{r}, {sTag} bitop3:0xf6")
    e("v_cmp_ne_u32 vcc, 0, v13")
    e("s_cbranch_vccz L_sgot")
    e(f"s_sleep {opts.get('ssleep', 32)}"); e("s_branch L_spoll")
    A.label("L_sgot")
    e("v_max_f32 v20, v12, v16")
    for x in xlane("max", "v20", "v21"): e(x)
    e("v_sub_f32 v12, v12, v20"); e("v_sub_f32 v16, v16, v20"); e("v_exp_f32 v12, v12"); e("v_exp_f32 v16, v16")
    e("v_mul_f32 v21, v12, v14"); e("v_fmac_f32 v21, v16, v18")
    for x in xlane("add", "v21", "v22"): e(x)
    e("v_rcp_f32 v21, v21")
    e(f"v_lshlrev_b32 {va}, 3, {vc}"); e(f"v_add_u32 {va}, {L_GS}, {va}")
    e(f"ds_write_b64 {va}, v[20:21]")
    e(f"v_mov_b32 {va}, {L_FLAG+8}"); e(f"v_mov_b32 {vb}, 1")
    e(f"ds_write_b32 {va}, {vb}")
    if debug: e("s_memrealtime s[98:99]")
    e("s_branch L_svc2")

    main_lines = A.lines; A.lines = []; A.fence()
    A.label("L_service")
    e("s_cmpk_ge_u32 s2, 256"); e("s_cbranch_scc1 L_end")
    common()
    e("v_mov_b32 v8, 0"); e("v_mov_b32 v9, 0"); e("v_mov_b32 v10, 0"); e("v_mov_b32 v11, 0")
    e(f"v_mov_b32 v64, {L_FLAG}")
    e(f"s_cmp_eq_u32 {sW}, 4"); e("s_cbranch_scc0 L_sv1")
    e("ds_write_b128 v64, v[8:11]"); e("ds_write_b128 v64, v[8:11] offset:16"); e("ds_write_b128 v64, v[8:11] offset:32")
    A.label("L_sv1")
    if opts.get("cpre", True):
        e("s_getpc_b64 s[6:7]")
        e(f"v_lshl_add_u32 v6, v5, 11, {vVo}")
        e("v_add_u32 v6, 0xffffe000, v6")
        e("global_load_dwordx4 v[56:59], v6, s[6:7]"); e("global_load_dwordx4 v[60:63], v6, s[6:7] offset:1024")
    e(f"s_cmp_ge_u32 {sC}, {C0}"); e("s_cbranch_scc1 L_qprod")
    common2()
    e("s_waitcnt lgkmcnt(0)")
    e("s_barrier")
    e(f"s_cmp_eq_u32 {sW}, 4"); e("s_cbranch_scc0 L_sv4")
    e(f"global_load_dword v10, v9, {sp(sWS)} sc1")
    e("s_waitcnt vmcnt(0)")
    tag_from("v10")
    e("s_branch L_qget")
    A.label("L_qprod")
    e("s_setprio 3")
    WQ = 128; XR = 12; XF = 20; QA = 36; XA = 66
    RW = 512 // NP // 4; NPR = RW // 16
    e(f"s_and_b32 {sT[5]}, {sC}, 7"); e(f"s_lshl_b32 {sQP}, {sG}, 3"); e(f"s_add_u32 {sQP}, {sQP}, {sT[5]}")
    e(f"s_sub_u32 {sT[4]}, {sC}, {C0}"); e(f"s_lshr_b32 {sT[4]}, {sT[4]}, 3")
    e(f"s_lshl_b32 {sT[3]}, {sT[4]}, 2"); e(f"s_add_u32 {sT[3]}, {sT[3]}, {sW}"); e(f"s_sub_u32 {sT[3]}, {sT[3]}, 4"); e(f"s_mul_i32 {sT[3]}, {sT[3]}, {RW}")
    e(f"v_lshrrev_b32 v5, 3, {vLane}"); e("v_lshlrev_b32 v6, 2, v5")
    e(f"s_lshl_b32 {sT[0]}, {sT[3]}, 1"); e(f"v_add_u32 v6, {sT[0]}, v6")
    e("v_lshlrev_b32 v7, 14, v5"); e(f"v_and_b32 v4, 7, {vLane}"); e("v_lshl_add_u32 v7, v4, 4, v7")
    e(f"s_lshl_b32 {sT[0]}, {sT[3]}, 13"); e(f"s_lshl_b32 {sT[1]}, {sQP}, 7"); e(f"s_add_u32 {sT[0]}, {sT[0]}, {sT[1]}"); e(f"v_add_u32 v7, {sT[0]}, v7")
    e("s_waitcnt lgkmcnt(0)")
    e(f"global_load_dwordx4 {vr(XA)}, {vVo}, {sp(sX)}")
    for k in range(NPR): e(f"global_load_dword v{XR+k}, v6, {sp(sX)} offset:{32*k}")
    e(f"global_load_dword v10, v9, {sp(sWS)} sc1")
    for i in range(2 * NPR):
        e(f"global_load_dwordx4 {vr(WQ+4*i)}, v7, {sp(sWQ)} {opts.get('wqpol', 'nt')}")
        if i < 2 * NPR - 1: e(f"v_add_u32 v7, {0x2000 if i % 2 == 0 else 0x1e000}, v7")
    e("s_barrier")
    common2()
    e(f"s_waitcnt vmcnt({3*NPR + 1})")
    for k in range(4):
        e(f"v_lshlrev_b32 v{44+2*k}, 16, v{XA+k}"); e(f"v_and_b32 v{45+2*k}, 0xffff0000, v{XA+k}")
    def wsum(r, tmp):
        for s in (8, 4, 2, 1): e(f"v_add_f32_dpp {r}, {r}, {r} row_ror:{s} {DPPF}")
        e(f"v_mov_b32 {tmp}, {r}"); e(f"v_permlane16_swap_b32 {tmp}, {r}"); e(f"v_add_f32 {r}, {tmp}, {r}")
        e(f"v_mov_b32 {tmp}, {r}"); e(f"v_permlane32_swap_b32 {tmp}, {r}"); e(f"v_add_f32 {r}, {tmp}, {r}")
    e("v_pk_add_f32 v[52:53], v[44:45], v[46:47]"); e("v_pk_add_f32 v[54:55], v[48:49], v[50:51]"); pk(52, 54)
    e(f"v_add_f32 {va}, v52, v53")
    wsum(va, vb)
    e(f"v_mul_f32 {va}, 0x3b000000, {va}")
    for k in range(8): e(f"v_sub_f32 v{44+k}, v{44+k}, {va}")
    e(f"v_mul_f32 {vc}, v44, v44"); e(f"v_mul_f32 {vd}, v45, v45")
    for k in range(2, 8): e(f"v_fmac_f32 {(vc, vd)[k&1]}, v{44+k}, v{44+k}")
    e(f"v_add_f32 {vc}, {vc}, {vd}")
    wsum(vc, vb)
    e(f"v_mul_f32 {vc}, 0x3b000000, {vc}")
    ln_finish(va, vc, vb)
    e(f"s_waitcnt vmcnt({2*NPR + 1})")
    for k in range(NPR):
        e(f"v_lshlrev_b32 v{XF+2*k}, 16, v{XR+k}"); e(f"v_and_b32 v{XF+2*k+1}, 0xffff0000, v{XR+k}")
    for k in range(2*NPR): e(f"v_sub_f32 v{XF+k}, v{XF+k}, {va}")
    for k in range(NPR): e(f"v_cvt_pk_bf16_f32 v{XR+k}, v{XF+2*k}, v{XF+2*k+1}")
    for k in range(NPR):
        e(f"v_lshlrev_b32 v{XF+2*k}, 16, v{XR+k}"); e(f"v_and_b32 v{XF+2*k+1}, 0xffff0000, v{XR+k}")
    for k in range(2*NPR): e(f"v_mul_f32 v{XF+k}, {vc}, v{XF+k}")
    for k in range(NPR): e(f"v_cvt_pk_bf16_f32 v{XR+k}, v{XF+2*k}, v{XF+2*k+1}")
    for k in range(8): e(f"v_mov_b32 v{QA+k}, 0")
    e(f"v_lshrrev_b32 v5, 4, {vLane}"); e("v_lshlrev_b32 v5, 3, v5"); e("v_lshl_add_u32 v5, v4, 5, v5")
    e(f"s_lshl_b32 {sT[0]}, {sW}, 8"); e(f"s_add_u32 {sT[0]}, {sT[0]}, {L_QP - 1024}"); e(f"v_add_u32 v5, {sT[0]}, v5")
    for p in range(NPR):
        e(f"s_waitcnt vmcnt({2*NPR - 2 - 2*p})")
        for ee in range(8):
            e(f"v_perm_b32 v{44+ee}, v{WQ+4*(2*p+1)+(ee>>1)}, v{WQ+4*(2*p)+(ee>>1)}, {sSelHi if ee & 1 else sSelLo}")
        for ee in range(8): e(f"v_dot2c_f32_bf16 v{QA+ee}, v{44+ee}, v{XR+p}")
    if debug: e("s_memrealtime s[70:71]")
    for o in (0, 1):
        e(f"v_permlane32_swap_b32 v{QA+o}, v{QA+4+o}"); e(f"v_permlane32_swap_b32 v{QA+2+o}, v{QA+6+o}")
    for o in (0, 1):
        e(f"v_add_f32 v{QA+o}, v{QA+o}, v{QA+4+o}"); e(f"v_add_f32 v{QA+2+o}, v{QA+2+o}, v{QA+6+o}")
    for o in (0, 1): e(f"v_permlane16_swap_b32 v{QA+o}, v{QA+2+o}")
    for o in (0, 1): e(f"v_add_f32 v{QA+o}, v{QA+o}, v{QA+2+o}")
    for o in (0, 1): e(f"v_add_f32_dpp v{QA+o}, v{QA+o}, v{QA+o} row_ror:8 {DPPF}")
    e(f"ds_write_b64 v5, v[{QA}:{QA+1}]")
    e("v_mov_b32 v44, 1")
    e("s_mov_b64 exec, 1"); e("ds_add_u32 v64, v44 offset:32"); e("s_mov_b64 exec, -1")
    e(f"s_cmp_eq_u32 {sW}, 4"); e("s_cbranch_scc1 L_qp4")
    e("s_setprio 0")
    e("s_branch L_sv4")
    A.label("L_qp4")
    tag_from("v10")
    if NP == 1:
        e(f"s_lshl_b32 {sT[1]}, {sQP}, 8"); e(f"s_add_u32 {sT[1]}, {sT[1]}, {WS_Q}"); e(f"v_add_u32 v6, {sT[1]}, {vVo}")
        e(f"v_add_u32 v5, {L_QP}, {vVo}")
        lds_wait("L_qpw", 32, 4, va, vb, sleep=0)
        e("s_mov_b64 exec, 0xffff")
        for v in range(4): e(f"ds_read_b128 {vr(44+4*v)}, v5 offset:{256*v}")
        e("s_waitcnt lgkmcnt(0)")
        add4(44, 48); add4(52, 56); add4(44, 52)
        e("v_cvt_pk_bf16_f32 v44, v44, v45"); e("v_cvt_pk_bf16_f32 v46, v46, v47")
    else:
        e(f"s_mul_i32 {sT[1]}, {sG}, {NP}"); e(f"s_add_u32 {sT[1]}, {sT[1]}, {sT[4]}"); e(f"s_lshl_b32 {sT[1]}, {sT[1]}, 3"); e(f"s_add_u32 {sT[1]}, {sT[1]}, {sT[5]}")
        e(f"s_lshl_b32 {sT[1]}, {sT[1]}, 9"); e(f"s_add_u32 {sT[1]}, {sT[1]}, {WS_Q}"); e(f"v_add_u32 v6, {sT[1]}, {vVo}")
        e(f"v_lshlrev_b32 v5, 3, {vLane}"); e(f"v_add_u32 v5, {L_QP}, v5")
        lds_wait("L_qpw", 32, 4, va, vb, sleep=0)
        e("s_mov_b32 exec_hi, 0")
        for v in range(4): e(f"ds_read_b64 v[{48+2*v}:{49+2*v}], v5 offset:{256*v}")
        e("s_waitcnt lgkmcnt(0)")
        pk(48, 50); pk(52, 54)
        e("v_add_f32 v44, v48, v52"); e("v_add_f32 v46, v49, v53")
    e(f"v_mov_b32 v45, {sTag}"); e(f"v_mov_b32 v47, {sTag}")
    e(f"global_store_dwordx4 v6, v[44:47], {sp(sWS)} sc1")
    e("s_mov_b64 exec, -1")
    e("s_setprio 0")
    A.label("L_qget")
    NLD = 2 if NP == 1 else 4 * NP
    e(f"s_mul_i32 {sT[0]}, {sG}, {NLD*1024}"); e(f"s_add_u32 {sT[0]}, {sT[0]}, {WS_Q + 4096}")
    e(f"v_add_u32 v5, {sT[0]}, {vVo}"); e("v_add_u32 v7, 0x2000, v5")
    e(f"v_lshlrev_b32 v6, {3 if NP == 1 else 2}, {vLane}"); e(f"v_add_u32 v6, {L_Q}, v6")
    e(f"v_mov_b32 v52, {sTag}"); e("ds_write_b32 v64, v52 offset:16")
    if opts.get("qstart", 24): lds_wait("L_qs", 36, 1, va, vb, sleep=4)
    e(f"s_mov_b32 {sT[5]}, 0")
    A.label("L_qpoll")
    timeout()
    for k in range(NLD):
        e(f"s_bitcmp1_b32 {sT[5]}, {k}"); e(f"s_cbranch_scc1 L_qk{k}")
        e(f"global_load_dwordx4 {vr(128+4*k)}, {'v5' if k < 8 else 'v7'}, {sp(sWS)} offset:{1024*(k&7) - 4096} sc1")
        A.label(f"L_qk{k}")
    e("s_waitcnt vmcnt(0)")
    e(f"s_mov_b32 {sT[5]}, 0")
    for k in range(NLD):
        e(f"v_xor_b32 {va}, {sTag}, v{129+4*k}"); e(f"v_bitop3_b32 {va}, {va}, v{131+4*k}, {sTag} bitop3:0xf6")
        e(f"v_cmp_ne_u32 vcc, 0, {va}"); e("s_cmp_eq_u64 vcc, 0"); e(f"s_cselect_b32 {sT[0]}, {1 << k}, 0"); e(f"s_or_b32 {sT[5]}, {sT[5]}, {sT[0]}")
    e(f"s_cmp_eq_u32 {sT[5]}, {(1 << NLD) - 1}"); e("s_cbranch_scc1 L_qgot")
    e(f"s_sleep {opts.get('qsleep', 8)}"); e("s_branch L_qpoll")
    A.label("L_qgot")
    if NP == 1:
        for h in range(2):
            e(f"v_mov_b32 v{129+4*h}, v{130+4*h}"); e(f"ds_write_b64 v6, v[{128+4*h}:{129+4*h}] offset:{512*h}")
    else:
        for m in range(4):
            for o in (0, 2):
                r = 128 + 4*m + o
                e(f"v_add_f32 v{r}, v{r}, v{r+16}")
                if NP == 4: e(f"v_add_f32 v{r+32}, v{r+32}, v{r+48}"); e(f"v_add_f32 v{r}, v{r}, v{r+32}")
            e(f"v_cvt_pk_bf16_f32 v{128+4*m}, v{128+4*m}, v{130+4*m}")
            e(f"ds_write_b32 v6, v{128+4*m} offset:{256*m}")
    e("v_mov_b32 v48, 1"); e("ds_write_b32 v64, v48")
    if debug: e("s_memrealtime s[72:73]")
    e("s_branch L_down")

    head = A.lines; A.lines = main_lines
    k = A.lines.index("@@SERVICE_HEAD@@"); A.lines[k:k+1] = head
    A.raw('.section .rodata,"a"'); A.raw(".p2align 6"); A.raw(f".amdhsa_kernel {NAME}")
    for l in ["next_free_vgpr 256", "next_free_sgpr 102", "accum_offset 256", "group_segment_fixed_size 0", "kernarg_size 96",
              "user_sgpr_count 2", "user_sgpr_kernarg_segment_ptr 1", "system_sgpr_workgroup_id_x 1", "float_denorm_mode_32 3"]:
        A.raw("  .amdhsa_" + l)
    A.raw(".end_amdhsa_kernel")
    return A.text()

if __name__ == "__main__":
    dbg = "--debug" in sys.argv
    sys.stdout.write(gen(debug=dbg))
```

```python
import sys
sys.path.insert(0, "work")
from asmlib import Asm

NAME = "sequential_preLN__gqa_block_cached__glu_gated_bilinear__decode_kernel"

WS_EPOCH = 0
WS_Q = 0xE0000
WS_ST = 0x8000
WS_CK = 0xC000
WS_PART = 0x10000
PREC = 2048
WS_A1 = 0xA0000
WS_D2 = 0xB0000
WS_STAMP = 0x800000
WPW = 8 * 1024
L_Q = 8 * WPW
L_ACC = L_Q + 1024
L_RED = L_ACC + 8192
L_STAT = L_RED + 4096
L_MS = L_STAT + 64
L_GS = L_MS + 128
L_QP = L_RED
L_FLAG = L_GS + 32
L_TOTAL = 98304

KV_BYTES = 128 << 20

HEADER = """
Kernarg (96 bytes, pointers only): 0 A_x, 8 K cache, 16 V cache, 24 wq, 32 wo, 40 B_x (unused), 48 w_gate, 56 w_up,
64 w_down, 72 out, 80 debug (unused), 88 workspace.

One persistent launch, 256 workgroups (one per CU) x 8 waves.  Workgroup wg: kv head g = wg & 7, c = wg >> 3.
 waves 0-3 stream 2048 keys: all K first (QK^T by MFMA, score roundings as in the reference), then all V (PV by MFMA),
           through a 40-slot register ring with a small window of loads in flight (unrolled, generated schedule).
 waves 4-7 are service waves: LayerNorm + q projection (c >= 16), q all-gather, weight staging, softmax statistics
           exchange, progress checkpoints (a workgroup that runs late widens its load window, an early one narrows it)
           and the publication of the workgroup's partial output.
 tail:     c < 8: combine + wo slice;  8 <= c < 15: residual, LayerNorm, gate/up/down slice;  c == 15: final sum.
Hand-offs go through the workspace and carry a per-launch tag (workspace word 0 + 0x01010101, written back at the end),
so nothing depends on what the workspace held before.  Stores are write-through unless the checkpoint records show that
every workgroup of the head group runs on the same die as the writer.  Every spin is bounded.
Generated by a script of my own (register allocation, schedule and wait states included).
"""

def gen(debug=False, opts=None):
    opts = opts or {}
    A = Asm(); e = A
    def stamp(i):
        if debug: e(f"s_memrealtime s[{80+2*i}:{81+2*i}]")
    sX, sK, sV, sWQ, sWO, sWG, sWU, sWD, sOUT, sDBG, sWS = 8, 10, 12, 14, 16, 20, 22, 24, 26, 28, 30
    def sp(n): return f"s[{n}:{n+1}]"
    sW = "s3"; sG = "s4"; sC = "s5"
    srdK = "s[32:35]"; srdV = "s[36:39]"; srdW = "s[40:43]"
    sScale, sL2E, sSelLo, sSelHi = "s44", "s45", "s46", "s47"
    sOff = "s48"; sId = "s49"; sWW = "s50"
    sT = ["s52", "s53", "s54", "s55", "s56", "s57", "s58", "s59"]
    sTag = "s60"; sRole = "s61"; sIdx = "s62"; sTO = "s64"
    vLane = "v1"; vKo = "v2"; vVo = "v3"
    ACC = 4; BQ = 12; PV_ = 12; SPK = 28; T = 44; M = 76
    vX0, vX1, vY0, vY1, vS0, vS1, vML, vL, va, vb, vc, vd, vMSa, vf = [f"v{M+i}" for i in range(14)]
    vKo2 = "v90"; vVo2 = "v91"; vMask = "v93"
    RING = opts.get("ring", 40); RBASE = 256 - 4 * RING
    assert RBASE >= 96
    W0 = opts.get("win", 5); BUDGET = opts.get("budget", 18)
    WHI = opts.get("whi", 7); WLO = opts.get("wlo", 4)
    FF = opts.get("ff", [0, 0x00001110, 0x00000092, 0])
    ENDS = opts.get("ends", 232)
    CKP = opts.get("ckp", [])
    W = WHI
    sFF = "s51"; sQP = "s63"; sLev = "s65"; sHi = "s66"; sLo = "s67"
    sTB = ["s76", "s77", "s78", "s79"]
    def vr(a, n=4): return f"v[{a}:{a+n-1}]"
    DPPF = "row_mask:0xf bank_mask:0xf"
    def timeout():
        e(f"s_sub_u32 {sTO}, {sTO}, 1"); e("s_cbranch_scc1 L_end")
    def lds_wait(lbl, off, val, vaddr, vtmp, sleep=1):
        e(f"v_mov_b32 {vaddr}, {L_FLAG + off}")
        A.label(lbl)
        e(f"ds_read_b32 {vtmp}, {vaddr}")
        timeout()
        e("s_waitcnt lgkmcnt(0)")
        e(f"v_readfirstlane_b32 {sT[0]}, {vtmp}")
        e(f"s_cmp_ge_u32 {sT[0]}, {val}"); e(f"s_cbranch_scc1 {lbl}_go")
        e(f"s_sleep {sleep}"); e(f"s_branch {lbl}")
        A.label(lbl + "_go")

    for l in HEADER.strip("\n").split("\n"): A.raw(("; " + l).rstrip())
    A.raw(f"; @launch grid=(256,1,1) block=(512,1,1) lds={L_TOTAL}")
    A.raw('.amdgcn_target "amdgcn-amd-amdhsa--gfx950"')
    A.raw(".text"); A.raw(f".globl {NAME}"); A.raw(".p2align 8"); A.raw(f".type {NAME},@function"); A.label(NAME)
    e("s_load_dwordx2 s[32:33], s[0:1], 8")
    stamp(0)
    e("v_cmp_lt_u32 vcc, 0xff, v0")
    e(f"v_and_b32 {vKo}, 3, v0"); e(f"v_lshlrev_b32 {vKo}, 4, {vKo}"); e("v_and_b32 v5, 48, v0"); e(f"v_lshl_or_b32 {vKo}, v5, 2, {vKo}")
    e("s_cbranch_vccnz L_service")
    e("v_and_b32 v5, 0xcc, v0"); e(f"v_lshl_or_b32 {vKo}, v5, 6, {vKo}")
    e(f"s_mul_i32 {sOff}, s2, 0x01010000"); e(f"s_and_b32 {sOff}, {sOff}, 0x07e00000")
    e(f"s_lshr_b32 s6, {sOff}, 4")
    if opts.get("exact", False): e("s_and_b32 s6, s6, 0x1e0000")
    e(f"s_xor_b32 {sOff}, {sOff}, s6")
    e("s_and_b32 s6, s2, 24"); e(f"v_lshl_or_b32 {vKo}, s6, 11, {vKo}")
    e("s_lshl_b32 s34, 1, 27"); e("s_lshl_b32 s35, 1, 17")
    e("s_waitcnt lgkmcnt(0)")
    for n in range(4): e(f"buffer_load_dwordx4 {vr(RBASE+4*n)}, {vKo}, {srdK}, {sOff} offen offset:{n*1024} {opts.get('kvpol', 'nt')}")
    e("s_branch L_stream")
    def common():
        e("s_load_dwordx16 s[8:23], s[0:1], 0")
        e("s_load_dwordx8 s[24:31], s[0:1], 64")
        if opts.get("probe"): e("s_memrealtime s[80:81]")
        if debug: e("s_memtime s[100:101]")
        e(f"v_lshrrev_b32 v5, 6, v0"); e(f"v_and_b32 {vLane}, 63, v0")
        e(f"v_readfirstlane_b32 {sW}, v5")
        e(f"s_and_b32 {sG}, s2, 7"); e(f"s_lshr_b32 {sC}, s2, 3")
        e(f"s_lshl_b32 {sId}, {sG}, 5"); e(f"s_add_u32 {sId}, {sId}, {sC}")
        e(f"v_lshlrev_b32 {vVo}, 4, {vLane}")
    def common2():
        e(f"s_mov_b32 {sSelLo}, 0x05040100"); e(f"s_mov_b32 {sSelHi}, 0x07060302")
        e(f"s_mov_b32 {sTO}, 0x400000")
        roles()
    def roles():
        e(f"s_mov_b32 {sRole}, 0"); e(f"s_mov_b32 {sIdx}, 0")
        e(f"s_lshl_b32 {sT[0]}, {sG}, 1"); e(f"s_add_u32 {sT[0]}, {sT[0]}, {sW}"); e(f"s_sub_u32 {sT[0]}, {sT[0]}, 6")
        e(f"s_cmp_lt_u32 {sC}, 16"); e(f"s_cselect_b32 {sRole}, 3, {sRole}"); e(f"s_cselect_b32 {sIdx}, {sT[0]}, {sIdx}")
        if opts.get("xmap", False):
            e(f"s_lshl_b32 {sT[0]}, {sC}, 3"); e(f"s_add_u32 {sT[0]}, {sT[0]}, {sG}"); e(f"s_sub_u32 {sT[0]}, {sT[0]}, 64")
        else:
            e(f"s_mul_i32 {sT[0]}, {sG}, 7"); e(f"s_add_u32 {sT[0]}, {sT[0]}, {sC}"); e(f"s_sub_u32 {sT[0]}, {sT[0]}, 8")
        e(f"s_cmp_lt_u32 {sC}, 15"); e(f"s_cselect_b32 {sRole}, 2, {sRole}"); e(f"s_cselect_b32 {sIdx}, {sT[0]}, {sIdx}")
        e(f"s_cmp_lt_u32 {sC}, 8"); e(f"s_cselect_b32 {sRole}, 1, {sRole}"); e(f"s_cselect_b32 {sIdx}, {sC}, {sIdx}")
    A.raw("@@SERVICE_HEAD@@")

    A.label("L_stream")
    e("s_cmpk_ge_u32 s2, 256"); e("s_cbranch_scc1 L_end")
    e(f"s_and_b32 s7, {sOff}, 0x07e00000"); e(f"s_and_b32 {sOff}, {sOff}, 0x1fffff")
    e(f"v_add_u32 {vKo}, s7, {vKo}")
    e(f"v_add_u32 {vKo2}, 0x10000, {vKo}")
    vVs = "v0"
    NI = 16; NL = 8 * NI
    def slot(idx): return RBASE + 4 * (idx % RING)
    LR = opts.get("lrot", False)
    sQ = ["s40", "s41", "s42", "s43"]; sXq = ["s6", "s7", "s50", "s63"]
    def issue(s):
        n = s & 7
        if s >= 4:
            so, im = (sQ[n & 3], 0) if LR and (s % NL) >= 8 else (sOff, (n & 3) * 1024)
            if s < NL: e(f"buffer_load_dwordx4 {vr(slot(s))}, {vKo if n < 4 else vKo2}, {srdK}, {so} offen offset:{im} {opts.get('kvpol', 'nt')}")
            else: e(f"buffer_load_dwordx4 {vr(slot(s))}, {vVs if n < 4 else vVo2}, {srdV}, {so} offen offset:{im} {opts.get('kvpol', 'nt')}")
        if n == 7 and s + 1 < 2 * NL:
            e(f"s_add_u32 {sOff}, {sOff}, 0x20000"); e(f"s_bitset0_b32 {sOff}, 21")
            if LR and s + 1 != NL:
                for q in range(4): e(f"s_or_b32 {sQ[q]}, {sOff}, {sXq[q]}")
    tasks = []
    def task(need, frees, ins): tasks.append(dict(need=need, frees=frees, ins=ins))
    def xlane(op, r, tmp):
        return [f"v_{op}_f32_dpp {r}, {r}, {r} row_ror:8 {DPPF}", f"v_{op}_f32_dpp {r}, {r}, {r} row_ror:4 {DPPF}",
                f"v_mov_b32 {tmp}, {r}", f"v_permlane16_swap_b32 {tmp}, {r}", f"v_{op}_f32 {r}, {tmp}, {r}",
                f"v_mov_b32 {tmp}, {r}", f"v_permlane32_swap_b32 {tmp}, {r}", f"v_{op}_f32 {r}, {tmp}, {r}"]
    for i in range(NI):
        for n in range(8):
            task(8*i+n, [8*i+n], [f"v_mfma_f32_16x16x32_bf16 {vr(T+4*n)}, {vr(slot(8*i+n))}, {vr(BQ+4*(n&3))}, 0"])
        for t in range(2):
            ins = []
            for m in range(4):
                X = (vX0, vX1)[t]; Y = (vY0, vY1)[t]; D = T + 4 * (4*t+m)
                ins.append(f"v_add_f32_dpp {Y}, v{D+3}, v{D+1} row_ror:8 row_mask:0xf bank_mask:{1 << ((m+1)&3):#x}")
                ins.append(f"v_add_f32_dpp {X}, v{D+2}, v{D} row_ror:8 row_mask:0xf bank_mask:{1 << m:#x}")
            task(-1, [], ins)
        task(-1, [], [f"v_add_f32_dpp {vX0}, {vY0}, {vX0} row_ror:12 {DPPF}", f"v_add_f32_dpp {vX1}, {vY1}, {vX1} row_ror:12 {DPPF}",
                      f"v_cvt_pk_bf16_f32 {vY0}, {vX0}, {vX1}",
                      f"v_lshlrev_b32 {vX0}, 16, {vY0}", f"v_and_b32 {vX1}, 0xffff0000, {vY0}",
                      f"v_mul_f32 {vX0}, {sScale}, {vX0}", f"v_mul_f32 {vX1}, {sScale}, {vX1}",
                      f"v_cvt_pk_bf16_f32 v{SPK+i}, {vX0}, {vX1}",
                      f"v_lshlrev_b32 {vX0}, 16, v{SPK+i}", f"v_and_b32 {vX1}, 0xffff0000, v{SPK+i}",
                      (f"v_max_f32 {vML}, {vX0}, {vX1}" if i == 0 else f"v_max3_f32 {vML}, {vML}, {vX0}, {vX1}")])
    task(-1, [], xlane("max", vML, vb) + [f"v_mul_f32 {vML}, {sL2E}, {vML}"])
    task(-1, [], [f"v_mov_b32 v{PV_+k}, 0" for k in range(16)])
    for i in range(0, NI, 2):
        ins = []
        tmp = [(vX0, vX1), (vY0, vY1)]
        for k in range(2):
            a, b = tmp[k]; ins += [f"v_lshlrev_b32 {a}, 16, v{SPK+i+k}", f"v_and_b32 {b}, 0xffff0000, v{SPK+i+k}"]
        for k in range(2):
            a, b = tmp[k]; ins += [f"v_fma_f32 {a}, {a}, {sL2E}, -{vML}", f"v_fma_f32 {b}, {b}, {sL2E}, -{vML}"]
        for k in range(2):
            a, b = tmp[k]; ins += [f"v_exp_f32 {a}, {a}", f"v_exp_f32 {b}, {b}"]
        ins += [f"v_add_f32 {va}, {vX0}, {vX1}", f"v_cvt_pk_bf16_f32 v{SPK+i}, {vX0}, {vX1}", f"v_add_f32 {vb}, {vY0}, {vY1}", f"v_cvt_pk_bf16_f32 v{SPK+i+1}, {vY0}, {vY1}"]
        ins += [f"v_add_f32 {vL}, {va}, {vb}"] if i == 0 else [f"v_add_f32 {va}, {va}, {vb}", f"v_add_f32 {vL}, {vL}, {va}"]
        task(-1, [], ins)
    task(-1, [], xlane("add", vL, vb) + [f"ds_write_b64 {vMSa}, v[{M+6}:{M+7}]", f"v_mov_b32 {va}, {L_FLAG+4}", f"v_mov_b32 {vb}, 1",
                                         "s_mov_b64 exec, 1", f"ds_add_u32 {va}, {vb}", "s_mov_b64 exec, -1"])
    order = [0, 4, 1, 5, 2, 6, 3, 7]
    for i in range(NI):
        L0 = NL + 8 * i
        def perm(ee, k):
            rho = ee & 3; t = k >> 1
            n0 = 4 * t + ((rho + 2 * (k & 1)) & 3); n1 = 4 * t + ((rho + 2 * (k & 1) + 1) & 3)
            return f"v_perm_b32 v{T+4*ee+k}, v{slot(L0+n1)+(ee>>1)}, v{slot(L0+n0)+(ee>>1)}, {sSelHi if ee & 1 else sSelLo}"
        def mf(ee):
            ac = vr(ACC + 4 * (ee >> 2))
            return f"v_mfma_f32_16x16x32_bf16 {ac}, {vr(T+4*ee)}, {vr(PV_+4*(ee&3))}, {ac if (i or (ee & 3)) else 0}"
        ins = [f"v_mov_b32_dpp {vY0}, v{SPK+i} row_ror:12 {DPPF}",
               f"v_perm_b32 {vX0}, {vY0}, v{SPK+i}, {sSelLo}", f"v_perm_b32 {vX1}, {vY0}, v{SPK+i}, {sSelHi}"]
        for rho in range(4):
            bm = f"row_mask:0xf bank_mask:{1 << rho:#x}"
            ins += [f"v_mov_b32_dpp v{PV_+4*rho+0}, {vX0} quad_perm:[0,1,2,3] {bm}", f"v_mov_b32_dpp v{PV_+4*rho+1}, {vX0} row_ror:8 {bm}",
                    f"v_mov_b32_dpp v{PV_+4*rho+2}, {vX1} quad_perm:[0,1,2,3] {bm}", f"v_mov_b32_dpp v{PV_+4*rho+3}, {vX1} row_ror:8 {bm}"]
        task(-1, [], ins[:11]); task(-1, [], ins[11:])
        task(L0+3, [], [perm(ee, k) for ee in range(4) for k in range(2)])
        task(L0+3, [L0, L0+1, L0+2, L0+3], [perm(ee, k) for ee in range(4, 8) for k in range(2)])
        ins = []
        for idx, ee in enumerate(order):
            ins += [perm(ee, 2), perm(ee, 3)]
            if idx >= 1: ins.append(mf(order[idx - 1]))
        ins.append(mf(order[7]))
        task(L0+7, [], ins[:11]); task(L0+7, [L0+4, L0+5, L0+6, L0+7], ins[11:])

    def setup_misc():
        common(); common2()
        e(f"v_and_b32 {vVs}, 0xfffff000, {vKo}"); e(f"v_add_u32 {vVs}, {vVs}, {vVo}"); e(f"v_add_u32 {vVo2}, 0x10000, {vVs}")
        e(f"s_mov_b32 s38, {KV_BYTES}"); e("s_mov_b32 s39, 0x20000")
        for q in range(4): e(f"s_xor_b32 {sXq[q]}, {sW}, {q}"); e(f"s_lshl_b32 {sXq[q]}, {sXq[q]}, 10")
        e(f"s_mov_b32 {sScale}, 0x3db504f3")
        e(f"s_mov_b32 {sL2E}, 0x3fb8aa3b")
        e(f"v_and_b32 {vMSa}, 3, {vLane}"); e(f"v_lshlrev_b32 {vMSa}, 3, {vMSa}")
        e(f"s_lshl_b32 {sT[0]}, {sW}, 5"); e(f"s_add_u32 {sT[0]}, {sT[0]}, {L_MS}"); e(f"v_add_u32 {vMSa}, {sT[0]}, {vMSa}")
        e(f"v_and_b32 {va}, 3, {vLane}"); e(f"v_lshlrev_b32 {va}, 8, {va}")
        e(f"v_lshrrev_b32 {vb}, 4, {vLane}"); e(f"v_lshlrev_b32 {vb}, 6, {vb}")
        e(f"s_mov_b32 {sT[0]}, {L_Q}")
        e(f"v_add3_u32 {va}, {va}, {vb}, {sT[0]}")
        e(f"v_bfe_u32 {vb}, {vLane}, 2, 2")
        for m in range(4):
            e(f"v_subrev_u32 {vc}, {m}, {vb}"); e(f"v_and_b32 {vc}, 3, {vc}")
            e(f"v_lshl_add_u32 v{T+m}, {vc}, 4, {va}")
        e(f"s_lshl_b32 {sT[0]}, {sW}, 11"); e(f"s_add_u32 {sT[0]}, {sT[0]}, {L_ACC}")
        e(f"v_add_u32 v92, {sT[0]}, {vVo}")
        e(f"s_mov_b32 {sFF}, {FF[0]}")
        for r in (1, 2, 3): e(f"s_cmp_eq_u32 {sRole}, {r}"); e(f"s_cselect_b32 {sFF}, {FF[r]}, {sFF}")
        e(f"s_cmp_ge_u32 {sC}, {32 - 8 * opts.get('np', 2)}"); e(f"s_cselect_b32 {sT[0]}, {opts.get('ffq', 0x48)}, 0"); e(f"s_or_b32 {sFF}, {sFF}, {sT[0]}")
        e("s_waitcnt lgkmcnt(0)")
        e(f"s_mov_b32 s36, s{sV}"); e(f"s_mov_b32 s37, s{sV+1}")
        e(f"v_mov_b32 v94, {L_FLAG}"); e(f"v_cmp_eq_u32 vcc, 0, {vLane}"); e("v_cndmask_b32 v95, 0, 1, vcc"); e(f"v_mov_b32 {vS0}, 0"); e(f"v_mov_b32 {vS1}, 0")
    def emit_task(t):
        for x in t["ins"]:
            if opts.get("nocomp") and (x.startswith("v_perm") or x.startswith("v_mfma") or "_dpp" in x): continue
            e(x)
        return len(t["ins"])
    ti = 0; freed = set()
    IW = opts.get("iw", 0); iwk = [0]
    for s in range(2 * NL):
        if s == W0:
            setup_misc()
            e("s_barrier")
        if s == RING:
            stamp(1)
            lds_wait("L_qw", 0, 1, va, vb)
            for m in range(4): e(f"ds_read_b128 {vr(BQ+4*m)}, v{T+m}")
            stamp(2)
            e("s_waitcnt lgkmcnt(0)")
        if s >= RING:
            while (s - RING) not in freed:
                assert tasks[ti]["need"] <= s - 1 - W
                emit_task(tasks[ti]); freed.update(tasks[ti]["frees"]); ti += 1
        if s >= ENDS: e(f"s_waitcnt vmcnt({WHI-1})")
        elif s >= 8:
            e(f"s_waitcnt vmcnt({WHI-1})")
            e(f"s_cmp_eq_u32 {sLev}, 2"); e(f"s_cbranch_scc1 L_go{s}")
            A.opt(f"s_waitcnt vmcnt({W0-1})")
            A.opt(f"s_cmp_eq_u32 {sLev}, 1"); A.opt(f"s_cbranch_scc1 L_go{s}")
            A.opt(f"s_waitcnt vmcnt({WLO-1})")
            A.label(f"L_go{s}")
        elif s >= W0: e(f"s_waitcnt vmcnt({W0-1})")
        if debug and s == 4: e("s_memrealtime s[70:71]")
        if debug and s == W0: e("s_memrealtime s[72:73]")
        issue(s)
        if s == opts.get("qstart", 24): e("ds_add_u32 v94, v95 offset:36")
        SG = opts.get("sg", 180); CA, GA = opts.get("cka", (88, 120))
        if s in (SG, CA, GA, opts.get("spub", 152), opts.get("prerd", 0) or -1): e("ds_add_u32 v94, v95 offset:20")
        CP = opts.get("cper", 4)
        if (s % 8 == 7 or (s >= GA and s % CP == CP - 1)) and s + 1 < ENDS:
            dyn = s >= GA
            if dyn:
                e("s_waitcnt lgkmcnt(0)")
                e(f"v_readfirstlane_b32 {sHi}, {vS0}"); e(f"v_readfirstlane_b32 {sLo}, {vS1}")
                if IW and s >= IW + CP: e(f"v_readfirstlane_b32 {sT[6]}, {vf}")
                e(f"ds_read_b64 v[{M+4}:{M+5}], v94 offset:24")
                if IW and s >= IW: e(f"ds_add_rtn_u32 {vf}, v94, v95 offset:44"); iwk[0] += 1
            e(f"s_bitcmp1_b32 {sFF}, {(s+1)//8}"); e(f"s_cselect_b32 {sLev}, 2, 1")
            if dyn:
                e(f"s_cmpk_gt_i32 {sHi}, {s+CP//2}"); e(f"s_cselect_b32 {sLev}, 2, {sLev}")
                e(f"s_cmpk_gt_i32 {sLo}, {s+CP//2}"); e(f"s_cselect_b32 {sLev}, 0, {sLev}")
                if IW and s >= IW + CP:
                    e(f"s_cmpk_ge_u32 {sT[6]}, {4*(iwk[0]-2) + 3}"); e(f"s_addc_u32 {sLev}, {sLev}, 0"); e(f"s_min_u32 {sLev}, {sLev}, 2")
                    if opts.get("iwdown"):
                        e(f"s_cmpk_le_u32 {sT[6]}, {4*(iwk[0]-2)}"); e(f"s_subb_u32 {sLev}, {sLev}, 0"); e(f"s_max_i32 {sLev}, {sLev}, 0")
        if s >= RING:
            spent = 0
            while ti < len(tasks) and tasks[ti]["need"] <= s - W and (spent == 0 or spent + len(tasks[ti]["ins"]) <= BUDGET):
                spent += emit_task(tasks[ti]); freed.update(tasks[ti]["frees"]); ti += 1
        if debug and s == NL: e("s_memrealtime s[74:75]")
    landed = 2 * NL - 1 - W
    while ti < len(tasks):
        if tasks[ti]["need"] > landed:
            landed = tasks[ti]["need"]; e(f"s_waitcnt vmcnt({2*NL-1-landed})")
        emit_task(tasks[ti]); ti += 1
    stamp(3)
    e(f"ds_write_b128 v92, {vr(ACC)}"); e(f"ds_write_b128 v92, {vr(ACC+4)} offset:1024")
    e("s_waitcnt lgkmcnt(0)")
    e("s_barrier")
    stamp(4)
    e(f"s_cmp_eq_u32 {sRole}, 1"); e("s_cbranch_scc1 L_st1")
    e(f"s_cmp_eq_u32 {sRole}, 2"); e("s_cbranch_scc1 L_st2")
    e("s_branch L_fin")

    def poll(lbl, loads, regs, sleep=0):
        A.label(lbl)
        timeout()
        if sleep: e(f"s_sleep {sleep}")
        for l in loads: e(l)
        regs = list(regs)
        n = len(loads)
        for li in range(n):
            e(f"s_waitcnt vmcnt({n-1-li})")
            r = regs[4*li:4*li+4]
            for k in range(4): e(f"v_xor_b32 v{r[k]}, {sTB[k]}, v{r[k]}")
            if li == 0: e(f"v_or_b32 {va}, v{r[0]}, v{r[1]}"); e(f"v_or_b32 {vb}, v{r[2]}, v{r[3]}")
            else: e(f"v_or3_b32 {va}, {va}, v{r[0]}, v{r[1]}"); e(f"v_or3_b32 {vb}, {vb}, v{r[2]}, v{r[3]}")
        e(f"v_bitop3_b32 {va}, {va}, {vb}, {vMask} bitop3:0x54")
        e(f"v_cmp_ne_u32 vcc, 0, {va}")
        e(f"s_cbranch_vccnz {lbl}")
    MK = 8
    def mpoll_init(n):
        for k in range(n): e(f"s_mov_b64 s[{MK+2*k}:{MK+2*k+1}], -1")
    def mpoll(lbl, loads, regs):
        n = len(loads); regs = list(regs)
        A.label(lbl)
        timeout()
        if debug: e("s_mov_b32 s74, s98"); e("s_memrealtime s[98:99]")
        for k in range(n):
            e(f"s_mov_b64 exec, s[{MK+2*k}:{MK+2*k+1}]"); e(f"s_cbranch_execz {lbl}_0k{k}")
            e(loads[k])
            A.label(f"{lbl}_0k{k}")
        A.label(lbl + "_w")
        e("s_mov_b64 s[6:7], 0")
        e("s_waitcnt vmcnt(0) lgkmcnt(0)" if debug else "s_waitcnt vmcnt(0)")
        for k in range(n):
            e(f"s_mov_b64 exec, s[{MK+2*k}:{MK+2*k+1}]"); e(f"s_cbranch_execz {lbl}_1k{k}")
            r = regs[4*k:4*k+4]
            for j in range(4): e(f"v_xor_b32 v{r[j]}, {sTB[j]}, v{r[j]}")
            e(f"v_or3_b32 {va}, v{r[0]}, v{r[1]}, v{r[2]}"); e(f"v_bitop3_b32 {va}, {va}, v{r[3]}, {vMask} bitop3:0x54")
            e(f"v_cmp_ne_u32 s[{MK+2*k}:{MK+2*k+1}], 0, {va}")
            e(f"s_or_b64 s[6:7], s[6:7], s[{MK+2*k}:{MK+2*k+1}]")
            A.label(f"{lbl}_1k{k}")
        e("s_cmp_eq_u64 s[6:7], 0"); e(f"s_cbranch_scc0 {lbl}")
        e("s_mov_b64 exec, -1")
        A.fence()
    def tag4(b):
        for k in range(4): e(f"v_and_or_b32 v{b+k}, v{b+k}, {vMask}, {sTB[k]}")
    def get_tag():
        e(f"v_mov_b32 {va}, {L_FLAG+16}"); e(f"ds_read_b32 {va}, {va}"); e(f"v_mov_b32 {vMask}, 0xffffff00")
        e("s_waitcnt lgkmcnt(0)")
        e(f"v_readfirstlane_b32 {sTag}, {va}")
        for k in range(4): e(f"s_bfe_u32 {sTB[k]}, {sTag}, {(8 << 16) | (8 * k):#x}")
    def wfrag(dst, raw, nload, ldsoff):
        e(f"s_mul_i32 {sT[0]}, {sW}, {WPW}"); e(f"v_add_u32 {va}, {sT[0]}, {vVo}")
        for n in range(nload): e(f"ds_read_b128 {vr(raw+4*n)}, {va} offset:{ldsoff + 1024*n}")
        e("s_waitcnt lgkmcnt(0)")
        wperm(dst, raw, nload)
    def wperm(dst, raw, nload):
        h = nload // 2
        for ee in range(8):
            for k in range(h):
                e(f"v_perm_b32 v{dst+h*ee+k}, v{raw+4*(2*k+1)+(ee>>1)}, v{raw+4*(2*k)+(ee>>1)}, {sSelHi if ee & 1 else sSelLo}")
    def pk(a, b): e(f"v_pk_add_f32 v[{a}:{a+1}], v[{a}:{a+1}], v[{b}:{b+1}]")
    def add4(a, b): pk(a, b); pk(a + 2, b + 2)
    F1 = 128; RAW = 192; G = 12; DD = 160; F2 = 224
    def svc_join(lbl):
        e(f"s_cmp_lt_u32 {sW}, 4"); e(f"s_cbranch_scc1 {lbl}")
        e("s_call_b64 s[66:67], L_publish")
        A.label(lbl)

    def gu_fold():
        for k in range(4):
            e(f"v_add_f32_dpp v{12+k}, v{DD+4*k+1}, v{DD+4*k} row_ror:8 row_mask:0xf bank_mask:0x3")
        for k in range(4):
            e(f"v_add_f32_dpp v{12+k}, v{DD+4*(k+4)}, v{DD+4*(k+4)+1} row_ror:8 row_mask:0xf bank_mask:0xc")
    def rowsum(b):
        e(f"v_permlane32_swap_b32 v{b}, v{b+2}"); e(f"v_permlane32_swap_b32 v{b+1}, v{b+3}")
        pk(b, b + 2)
        e(f"v_permlane16_swap_b32 v{b}, v{b+1}"); e(f"v_add_f32 v{b}, v{b}, v{b+1}")
    def afrag(src, extra=()):
        e(f"v_mov_b32_dpp v53, {src} row_ror:14 {DPPF}")
        e(f"v_cvt_pk_bf16_f32 v52, {src}, v53")
        for x in extra: e(x)
        for k in (1, 2, 3): e(f"v_mov_b32_dpp v{52+k}, v52 row_ror:{16-4*k} {DPPF}")
    A.label("L_st1")
    e(f"v_lshrrev_b32 {vc}, 4, {vLane}"); e(f"v_lshlrev_b32 {vc}, 11, {vc}")
    e(f"v_and_b32 {vd}, 15, {vLane}"); e(f"v_lshl_add_u32 {vc}, {vd}, 4, {vc}")
    s1G, s1C = (sIdx, sG) if opts.get("s1swap", False) else (sG, sIdx)
    e(f"s_lshl_b32 {sT[0]}, {s1G}, 16"); e(f"s_add_u32 {sT[0]}, {sT[0]}, {WS_PART}")
    e(f"s_lshl_b32 {sT[1]}, {sW}, 8"); e(f"s_add_u32 {sT[0]}, {sT[0]}, {sT[1]}")
    if opts.get("s1rot", True):
        e(f"s_lshl_b32 {sT[1]}, {s1C}, 13"); e(f"s_add_u32 {sT[0]}, {sT[0]}, {sT[1]}")
    e(f"v_add_u32 v44, {sT[0]}, {vc}")
    for it in range(1, 8): e(f"v_xor_b32 v{44+it}, {4*PREC*it}, v44")
    ld1 = [f"global_load_dwordx4 {vr(G+4*it)}, v{44+it}, {sp(sWS)} sc1" for it in range(8)]
    e(f"s_cmp_lt_u32 {sW}, 4"); e("s_cbranch_scc0 L_s1a")
    e("s_barrier")
    for l in ld1: e(l)
    A.label("L_s1a")
    get_tag()
    wfrag(F1, RAW, 8, 0)
    e(f"s_lshl_b32 {sT[0]}, {sW}, 8"); e(f"s_add_u32 {sT[0]}, {sT[0]}, {L_RED}")
    e(f"v_and_b32 {vY0}, 7, {vLane}"); e(f"v_lshlrev_b32 {vY0}, 5, {vY0}"); e(f"v_and_b32 {vd}, 8, {vLane}"); e(f"v_lshl_add_u32 {vY0}, {vd}, 1, {vY0}"); e(f"v_add_u32 {vY0}, {sT[0]}, {vY0}")
    e(f"v_add_u32 {vY1}, {L_RED}, {vVo}")
    e(f"s_lshl_b32 {sT[0]}, {s1G}, 11"); e(f"s_lshl_b32 {sT[1]}, {s1C}, 8"); e(f"s_add_u32 {sT[0]}, {sT[0]}, {sT[1]}"); e(f"s_add_u32 {sT[0]}, {sT[0]}, {WS_A1}")
    e(f"v_add_u32 {vS0}, {sT[0]}, {vVo}")
    mpoll_init(8)
    e(f"s_cmp_lt_u32 {sW}, 4"); e("s_cbranch_scc1 L_poll1_w")
    e("s_call_b64 s[66:67], L_publish")
    mpoll("L_poll1", ld1, range(12, 44))
    stamp(6)
    add4(12, 16); add4(20, 24); add4(28, 32); add4(36, 40); add4(12, 20); add4(28, 36); add4(12, 28)
    rowsum(12)
    afrag("v12")
    for ee in range(8): e(f"v_mfma_f32_16x16x32_bf16 {vr(DD+4*ee)}, v[52:55], {vr(F1+4*ee)}, 0")
    gu_fold()
    e("s_mov_b64 exec, 0xffff")
    e(f"ds_write_b128 {vY0}, v[12:15]")
    e("s_waitcnt lgkmcnt(0)")
    e("s_barrier")
    if opts.get("wbl2"):
        e(f"s_cmp_eq_u32 {sW}, 1"); e("s_cbranch_scc0 L_nowb"); e(f"s_cmp_eq_u32 {sC}, 0"); e("s_cbranch_scc0 L_nowb")
        e("buffer_wbl2 sc1"); e("s_branch L_fin")
        A.label("L_nowb")
    e(f"s_cmp_eq_u32 {sW}, 0"); e("s_cbranch_scc0 L_fin")
    for w in range(8): e(f"ds_read_b128 {vr(12+4*w)}, {vY1} offset:{256*w}")
    for w in range(0, 8, 2):
        e(f"s_waitcnt lgkmcnt({6-w})")
        add4(12 + 4*w, 16 + 4*w)
        if w in (2, 6): add4(12 + 4*(w-2), 12 + 4*w)
    add4(12, 28)
    tag4(12)
    e(f"global_store_dwordx4 {vS0}, v[12:15], {sp(sWS)} sc1")
    stamp(7)
    e("s_branch L_fin")

    LATE = opts.get("latedown", True)
    def down_addr():
        e(f"v_lshrrev_b32 v8, 4, {vLane}"); e("v_lshlrev_b32 v8, 10, v8")
        e(f"v_and_b32 v7, 15, {vLane}"); e("v_lshl_add_u32 v8, v7, 4, v8")
        e(f"s_lshl_b32 {sT[2]}, {sIdx}, 15"); e(f"s_and_b32 {sT[3]}, {sW}, 3"); e(f"s_lshl_b32 {sT[3]}, {sT[3]}, 8"); e(f"s_add_u32 {sT[2]}, {sT[2]}, {sT[3]}")
        e(f"s_add_u32 {sT[2]}, {sT[2]}, 4096"); e(f"v_add_u32 v8, {sT[2]}, v8")
        for k in range(1, 4): e(f"v_add_u32 v{8+k}, {8192*k}, v8")
    def down_loads():
        for ep in range(8):
            e(f"global_load_dwordx4 {vr(RAW+4*ep)}, v{8+(ep>>1)}, {sp(sWD)} offset:{4096*(ep&1) - 4096} {opts.get('lpol', 'nt')}")
    def gu_addr(sw):
        e(f"v_lshrrev_b32 v5, 4, {vLane}"); e(f"v_bfe_u32 v6, {vLane}, 3, 1"); e("v_lshl_add_u32 v5, v6, 2, v5")
        e(f"s_lshl_b32 {sT[2]}, {sw}, 6"); e(f"v_add_u32 v5, {sT[2]}, v5")
        e("v_mul_u32_u24 v5, 3584, v5")
        e(f"v_and_b32 v6, 3, {vLane}"); e("v_lshlrev_b32 v6, 4, v6")
        e(f"s_lshl_b32 {sT[2]}, {sIdx}, 6"); e(f"v_add3_u32 v5, v5, v6, {sT[2]}")
        e(f"v_and_b32 v6, 4, {vLane}"); e("v_cmp_eq_u32 vcc, 0, v6")
        e(f"v_mov_b32 v6, s{sWU}"); e(f"v_mov_b32 v4, s{sWG}"); e("v_cndmask_b32 v6, v6, v4, vcc")
        e(f"v_mov_b32 v7, s{sWU+1}"); e(f"v_mov_b32 v4, s{sWG+1}"); e("v_cndmask_b32 v7, v7, v4, vcc")
        e("v_add_co_u32 v6, vcc, v6, v5"); e("v_addc_co_u32 v7, vcc, 0, v7, vcc")
    NLATE = opts.get("nlate", 5)
    A.label("L_st2")
    def gu_loads():
        for ep in range(8):
            e(f"global_load_dwordx4 {vr(96+4*ep)}, v[6:7], off {opts.get('lpol', 'nt')}")
            if ep < 7: e(f"v_add_co_u32 v6, vcc, {3584*8}, v6"); e("v_addc_co_u32 v7, vcc, 0, v7, vcc")
    e(f"s_cmp_lt_u32 {sW}, 4"); e("s_cbranch_scc0 L_s2a")
    if NLATE > 4: gu_addr(sW)
    e("s_barrier")
    if NLATE > 4:
        e(f"s_cmp_lt_u32 {sW}, {8 - NLATE}"); e("s_cbranch_scc1 L_s2a")
        gu_loads()
    A.label("L_s2a")
    get_tag()
    e(f"v_and_b32 {vc}, 15, {vLane}")
    e(f"s_lshl_b32 {sT[0]}, {sW}, 4"); e(f"v_add_u32 {vc}, {sT[0]}, {vc}")
    e(f"v_lshrrev_b32 {vf}, 4, {vLane}"); e(f"v_lshl_add_u32 {vd}, {vc}, 2, {vf}"); e(f"v_lshlrev_b32 {vd}, 1, {vd}")
    e(f"global_load_ushort v28, {vd}, {sp(sX)}")
    wfrag(F1, RAW, 8, 0)
    e(f"v_lshlrev_b32 {vd}, 11, {vf}")
    e(f"v_lshl_add_u32 v36, {vc}, 4, {vd}"); e(f"v_add_u32 v36, {WS_A1}, v36")
    e(f"v_add_u32 v37, 8192, v36")
    e(f"s_lshl_b32 {sT[0]}, {sW}, 3"); e(f"s_add_u32 {sT[0]}, {sT[0]}, {L_STAT}"); e(f"v_mov_b32 v40, {sT[0]}")
    e(f"v_bfe_u32 v41, {vLane}, 1, 3"); e("v_lshlrev_b32 v41, 3, v41"); e(f"v_add_u32 v41, {L_STAT}, v41")
    e(f"v_mov_b32 v30, {L_STAT}")
    e(f"s_lshl_b32 {sT[0]}, {sW}, 8"); e(f"s_add_u32 {sT[0]}, {sT[0]}, {L_RED}")
    e(f"v_and_b32 v42, 7, {vLane}"); e("v_lshlrev_b32 v42, 5, v42"); e(f"v_and_b32 {vd}, 8, {vLane}"); e(f"v_lshl_add_u32 v42, {vd}, 1, v42"); e(f"v_add_u32 v42, {sT[0]}, v42")
    e(f"v_add_u32 v43, {L_RED}, {vVo}")
    e(f"s_lshl_b32 {sT[0]}, {sIdx}, 11"); e(f"s_and_b32 {sT[1]}, {sW}, 3"); e(f"s_lshl_b32 {sT[1]}, {sT[1]}, 9"); e(f"s_add_u32 {sT[0]}, {sT[0]}, {sT[1]}"); e(f"s_add_u32 {sT[0]}, {sT[0]}, {WS_D2}")
    e(f"v_and_b32 {vS0}, 15, {vLane}"); e(f"v_lshlrev_b32 {vS0}, 4, {vS0}"); e(f"v_lshrrev_b32 {vd}, 5, {vLane}"); e(f"v_lshlrev_b32 {vd}, 8, {vd}"); e(f"v_add3_u32 {vS0}, {vS0}, {vd}, {sT[0]}")
    e("s_waitcnt vmcnt(0)")
    e("v_lshlrev_b32 v32, 16, v28")
    if NLATE > 4:
        e(f"s_cmp_lt_u32 {sW}, {8 - NLATE}"); e("s_cbranch_scc1 L_j2")
        e(f"s_cmp_lt_u32 {sW}, 4"); e("s_cbranch_scc1 L_j2b")
    else:
        e(f"s_cmp_lt_u32 {sW}, 4"); e("s_cbranch_scc1 L_j2")
    down_addr()
    gu_addr(sW)
    e("s_call_b64 s[66:67], L_publish")
    if NLATE:
        e(f"s_cmp_lt_u32 {sW}, {8 - NLATE}"); e("s_cbranch_scc1 L_j2a")
        gu_loads()
        down_loads()
        e("s_waitcnt vmcnt(8)")
        A.label("L_j2b")
        wperm(F1, 96, 8)
        e("s_branch L_j2")
        A.label("L_j2a")
    down_loads()
    A.label("L_j2")
    for k in range(4): e(f"v_mov_b32 v{52+k}, 0x3f803f80")
    for ee in range(8): e(f"v_mfma_f32_16x16x32_bf16 {vr(DD+4*ee)}, v[52:55], {vr(F1+4*ee)}, 0")
    gu_fold()
    e("s_mov_b64 exec, 0xffff"); e("ds_write_b128 v42, v[12:15] offset:2048"); e("s_mov_b64 exec, -1")
    e("s_waitcnt lgkmcnt(0)")
    e("s_barrier")
    CS = 64
    e(f"s_cmp_lt_u32 {sW}, 4"); e("s_cbranch_scc1 L_poll2")
    e(f"ds_read_b128 {vr(CS)}, v43 offset:2048"); e(f"ds_read_b128 {vr(CS+4)}, v43 offset:{2048+1024}")
    e("s_waitcnt lgkmcnt(0)")
    add4(CS, CS + 4); rowsum(CS)
    e("s_waitcnt vmcnt(0)")
    wperm(F2, RAW, 8)
    stamp(2)
    poll("L_poll2", [f"global_load_dwordx4 {vr(G+4*it)}, v{36+it}, {sp(sWS)} sc1" for it in range(2)], range(12, 20))
    stamp(6)
    add4(12, 16)
    rowsum(12)
    def rnd4(b, t):
        e(f"v_cvt_pk_bf16_f32 v{t}, v{b}, v{b+1}"); e(f"v_cvt_pk_bf16_f32 v{t+1}, v{b+2}, v{b+3}")
        e(f"v_lshlrev_b32 v{b}, 16, v{t}"); e(f"v_and_b32 v{b+1}, 0xffff0000, v{t}")
        e(f"v_lshlrev_b32 v{b+2}, 16, v{t+1}"); e(f"v_and_b32 v{b+3}, 0xffff0000, v{t+1}")
    e("v_cvt_pk_bf16_f32 v12, v12, v12"); e("v_lshlrev_b32 v12, 16, v12"); e("v_add_f32 v12, v32, v12")
    afrag("v12", ["v_lshlrev_b32 v20, 16, v52"])
    e(f"v_readfirstlane_b32 {sT[2]}, v20")
    st = [f"v_subrev_f32 v20, {sT[2]}, v20", "v_mul_f32 v21, v20, v20",
          "v_permlane32_swap_b32 v20, v21", "v_add_f32 v20, v20, v21", "v_mov_b32 v21, v20",
          "v_permlane16_swap_b32 v21, v20", "v_add_f32 v20, v20, v21"]
    st += [f"v_add_f32_dpp v20, v20, v20 row_ror:{k} {DPPF}" for k in (8, 4, 2, 1)]
    st += [f"v_readlane_b32 {sT[3]}, v20, 32", "v_mul_f32 v21, 0x3c800000, v20", f"v_add_f32 v22, {sT[2]}, v21", f"v_fma_f32 v23, -v21, v20, {sT[3]}"]
    cuts = [0, 2, 5, 7, 8, 9, 10, 11, len(st)]
    for ee in range(8):
        e(f"v_mfma_f32_16x16x32_bf16 {vr(DD+4*ee)}, v[52:55], {vr(F1+4*ee)}, 0")
        for x in st[cuts[ee]:cuts[ee+1]]: e(x)
    gu_fold()
    e("s_mov_b64 exec, 0xffff")
    e("ds_write_b64 v40, v[22:23]")
    e("ds_write_b128 v42, v[12:15]")
    e("s_mov_b64 exec, -1")
    e("s_waitcnt lgkmcnt(0)")
    e("s_barrier")
    e(f"s_cmp_lt_u32 {sW}, 4"); e("s_cbranch_scc1 L_fin")
    e("ds_read_b64 v[20:21], v41"); e("ds_read_b32 v22, v30")
    e("ds_read_b128 v[12:15], v43"); e("ds_read_b128 v[16:19], v43 offset:1024")
    e("s_waitcnt lgkmcnt(2)")
    e("v_sub_f32 v20, v20, v22"); e("v_mul_f32 v23, 0x42800000, v20"); e("v_fmac_f32 v21, v23, v20")
    e(f"v_add_f32_dpp v20, v20, v20 row_ror:8 {DPPF}")
    e("s_waitcnt lgkmcnt(0)")
    e(f"v_add_f32_dpp v21, v21, v21 row_ror:8 {DPPF}")
    pk(12, 16)
    e(f"v_add_f32_dpp v20, v20, v20 row_ror:4 {DPPF}")
    pk(14, 18)
    e(f"v_add_f32_dpp v21, v21, v21 row_ror:4 {DPPF}")
    e(f"v_add_f32_dpp v20, v20, v20 row_ror:2 {DPPF}")
    e("v_permlane32_swap_b32 v12, v14")
    e(f"v_add_f32_dpp v21, v21, v21 row_ror:2 {DPPF}")
    e("v_permlane32_swap_b32 v13, v15")
    e("v_mul_f32 v23, 0x41000000, v20"); e("v_fma_f32 v21, -v23, v20, v21"); e("v_fmac_f32 v22, 0x3e000000, v20"); e("v_mul_f32 v21, 0x3b000000, v21")
    e("v_cvt_pk_bf16_f32 v23, v22, v21"); e("v_and_b32 v21, 0xffff0000, v23"); e("v_add_f32 v21, 0x3727c5ac, v21")
    e("v_cvt_pk_bf16_f32 v24, v21, v21"); e("v_lshlrev_b32 v21, 16, v24"); e("v_sqrt_f32 v21, v21")
    pk(12, 14)
    e("v_cvt_pk_bf16_f32 v24, v21, v21"); e("v_lshlrev_b32 v21, 16, v24"); e("v_rcp_f32 v21, v21")
    e("v_permlane16_swap_b32 v12, v13"); e("v_lshlrev_b32 v22, 16, v23"); e("v_add_f32 v12, v12, v13")
    e(f"v_fma_f32 v12, -v22, v{CS}, v12"); e("v_mul_f32 v12, v21, v12")
    e("v_cvt_pk_bf16_f32 v12, v12, v12"); e("v_lshlrev_b32 v12, 16, v12")
    e(f"v_mul_f32_dpp v12, v12, v12 row_ror:8 {DPPF}")
    e(f"v_mov_b32_dpp v53, v12 row_ror:15 {DPPF}")
    e("v_cvt_pk_bf16_f32 v52, v12, v53")
    for k in (1, 2, 3): e(f"v_mov_b32_dpp v{52+k}, v52 row_ror:{16-2*k} {DPPF}")
    for ee in range(8): e(f"v_mfma_f32_16x16x32_bf16 {vr(DD+4*ee)}, v[52:55], {vr(F2+4*ee)}, 0")
    for k in range(4): e(f"v_and_or_b32 v{12+k}, v{DD+4*k}, {vMask}, {sTB[k]}")
    e("s_mov_b32 exec_lo, 0"); e("s_mov_b32 exec_hi, 0xffff")
    for k in range(4): e(f"v_and_or_b32 v{12+k}, v{DD+4*(k+4)}, {vMask}, {sTB[k]}")
    e("s_mov_b32 exec_lo, 0xffff")
    e(f"global_store_dwordx4 {vS0}, v[12:15], {sp(sWS)} sc1")
    e("s_mov_b64 exec, -1")
    stamp(7)
    e("s_branch L_fin")
    def ln_finish(vm, vv, t):
        e(f"v_cvt_pk_bf16_f32 {t}, {vm}, {vv}")
        e(f"v_lshlrev_b32 {vm}, 16, {t}"); e(f"v_and_b32 {vv}, 0xffff0000, {t}")
        e(f"v_add_f32 {vv}, 0x3727c5ac, {vv}")
        e(f"v_cvt_pk_bf16_f32 {t}, {vv}, {vv}"); e(f"v_lshlrev_b32 {vv}, 16, {t}")
        e(f"v_sqrt_f32 {vv}, {vv}")
        e(f"v_cvt_pk_bf16_f32 {t}, {vv}, {vv}"); e(f"v_lshlrev_b32 {vv}, 16, {t}")
        e(f"v_rcp_f32 {vv}, {vv}")

    A.label("L_st3")
    get_tag()
    e(f"s_lshr_b32 {sT[1]}, {sIdx}, 2"); e(f"s_lshl_b32 {sT[1]}, {sT[1]}, 7"); e(f"s_and_b32 {sT[0]}, {sIdx}, 1"); e(f"s_lshl_b32 {sT[0]}, {sT[0]}, 6"); e(f"s_add_u32 {sT[1]}, {sT[1]}, {sT[0]}")
    e(f"s_and_b32 {sT[0]}, {sIdx}, 2"); e(f"s_lshl_b32 {sT[0]}, {sT[0]}, 1"); e(f"s_add_u32 {sT[1]}, {sT[1]}, {sT[0]}")
    e(f"v_and_b32 {vc}, 7, {vLane}"); e(f"v_lshlrev_b32 v45, 3, {vc}"); e(f"v_add_u32 v45, {sT[1]}, v45")
    e(f"v_lshrrev_b32 {vf}, 4, {vLane}"); e(f"v_add_lshl_u32 {vS0}, v45, {vf}, 1")
    e(f"global_load_ushort v60, {vS0}, {sp(sX)}")
    e(f"v_lshrrev_b32 {vd}, 3, {vLane}"); e(f"v_lshlrev_b32 {vd}, 11, {vd}")
    e(f"v_lshl_add_u32 v44, v45, 2, {vd}"); e(f"v_add_u32 v44, {WS_A1}, v44")
    e(f"v_lshl_add_u32 {vd}, {vc}, 4, {vd}")
    e(f"s_lshl_b32 {sT[0]}, {sIdx}, 7"); e(f"v_add_u32 {vd}, {sT[0]}, {vd}")
    for it in range(7): e(f"v_add_u32 v{46+it}, {WS_D2 + 16384*it}, {vd}")
    e("s_barrier")
    e("s_barrier")
    e(f"v_mov_b32 v61, {sTag}"); e("v_mov_b32 v62, 0")
    def red4(b):
        e(f"v_permlane32_swap_b32 v{b}, v{b+2}"); e(f"v_permlane32_swap_b32 v{b+1}, v{b+3}")
        e(f"v_add_f32 v{b}, v{b}, v{b+2}"); e(f"v_add_f32 v{b+1}, v{b+1}, v{b+3}")
        e(f"v_permlane16_swap_b32 v{b}, v{b+1}"); e(f"v_add_f32 v{b}, v{b}, v{b+1}")
        e(f"v_add_f32_dpp v{b}, v{b}, v{b} row_ror:8 {DPPF}")
    poll("L_poll3a", [f"global_load_dwordx4 v[12:15], v44, {sp(sWS)} sc1"], range(12, 16))
    red4(12)
    e("v_cvt_pk_bf16_f32 v12, v12, v12"); e("v_lshlrev_b32 v12, 16, v12"); e("v_lshlrev_b32 v60, 16, v60")
    e("v_add_f32 v60, v60, v12"); e("v_cvt_pk_bf16_f32 v60, v60, v60"); e("v_lshlrev_b32 v60, 16, v60")
    stamp(6)
    if opts.get("m3", False): mpoll_init(7)
    (mpoll if opts.get("m3", False) else poll)("L_poll3b", [f"global_load_dwordx4 {vr(12+4*it)}, v{46+it}, {sp(sWS)} sc1" for it in range(7)], range(12, 40))
    for a, b in ((12, 16), (20, 24), (28, 32), (12, 20), (28, 36), (12, 28)): add4(a, b)
    red4(12)
    e("v_cvt_pk_bf16_f32 v12, v12, v12"); e("v_lshlrev_b32 v12, 16, v12")
    e("v_add_f32 v12, v60, v12")
    if opts.get("probe"):
        lo, hi = opts["probe"]
        e("s_memrealtime s[82:83]"); e("s_waitcnt lgkmcnt(0)"); e("s_sub_u32 s82, s82, s80")
        e(f"s_sub_u32 s83, s82, {lo}"); e(f"s_cmp_lt_u32 s83, {hi - lo}"); e("s_cbranch_scc1 L_pok")
        for _ in range(16): e("s_sleep 127")
        A.label("L_pok")
    e("v_cvt_pk_bf16_f32 v12, v12, v12")
    e("s_mov_b32 exec_lo, 0x00ff00ff"); e("s_mov_b32 exec_hi, 0x00ff00ff")
    e(f"global_store_short {vS0}, v12, {sp(sOUT)} {opts.get('opol', '')}")
    e(f"s_cmp_eq_u32 {sIdx}, 0"); e("s_cbranch_scc0 L_noep")
    e("s_mov_b64 exec, 1")
    e(f"global_store_dword v62, v61, {sp(sWS)} {opts.get('opol', '')}")
    A.label("L_noep")
    e("s_mov_b64 exec, -1")
    stamp(7)

    A.label("L_fin")
    if debug:
        e("s_mov_b64 exec, -1")
        e("s_waitcnt vmcnt(0) lgkmcnt(0)")
        e("s_memrealtime s[96:97]"); e("s_memtime s[6:7]")
        e("s_waitcnt lgkmcnt(0)")
        e("s_sub_u32 s6, s6, s100"); e("v_mov_b32 v18, s6")
        e(f"s_lshl_b32 {sT[0]}, {sId}, 3"); e(f"s_add_u32 {sT[0]}, {sT[0]}, {sW}"); e(f"s_lshl_b32 {sT[0]}, {sT[0]}, 6"); e(f"s_add_u32 {sT[0]}, {sT[0]}, {WS_STAMP}")
        e(f"v_mov_b32 v20, {sT[0]}")
        for i in range(9): e(f"v_mov_b32 v{4+i}, s{80+2*i}")
        e("s_getreg_b32 s52, hwreg(HW_REG_XCC_ID)"); e("v_mov_b32 v13, s52"); e("v_mov_b32 v14, s70"); e("v_mov_b32 v15, s72"); e("v_mov_b32 v16, s74"); e("v_mov_b32 v17, s98"); e("v_mov_b32 v19, s73")
        e("s_mov_b64 exec, 1")
        for i in range(4): e(f"global_store_dwordx4 v20, v[{4+4*i}:{7+4*i}], {sp(sWS)} offset:{16*i}")
    A.label("L_end")
    e("s_endpgm")

    A.label("L_publish")
    e(f"v_and_b32 {va}, 3, {vLane}"); e(f"v_lshlrev_b32 {va}, 3, {va}"); e(f"v_add_u32 {va}, {L_MS}, {va}")
    for w in range(4): e(f"ds_read_b32 v{56+2*w}, {va} offset:{32*w}")
    e(f"ds_read_b64 v[64:65], {va} offset:{L_GS - L_MS}")
    e(f"v_mov_b32 {vb}, {L_FLAG+40}"); e(f"ds_read_b32 {vb}, {vb}")
    e(f"s_and_b32 {sT[0]}, {sW}, 1"); e(f"s_lshl_b32 {sT[0]}, {sT[0]}, 10")
    e(f"s_lshl_b32 {sT[1]}, {sId}, 11"); e(f"s_add_u32 {sT[1]}, {sT[1]}, {WS_PART}"); e(f"s_add_u32 {sT[1]}, {sT[1]}, {sT[0]}")
    e(f"s_add_u32 {sT[0]}, {sT[0]}, {L_ACC}")
    e("s_waitcnt lgkmcnt(0)")
    e(f"v_readfirstlane_b32 {sT[2]}, {vb}")
    for w in range(4): e(f"v_sub_f32 v{56+2*w}, v{56+2*w}, v64")
    for w in range(4): e(f"v_exp_f32 v{56+2*w}, v{56+2*w}")
    for w in range(4): e(f"v_mul_f32 v{56+2*w}, v{56+2*w}, v65")
    for w in range(4): e(f"v_mov_b32 v{57+2*w}, v{56+2*w}")
    e(f"v_add_u32 {va}, {sT[0]}, {vVo}"); e(f"v_add_u32 {vb}, {sT[1]}, {vVo}")
    if opts.get("prerd", 0):
        e(f"s_cmp_gt_u32 {sW}, 5"); e("s_cbranch_scc1 L_nopre")
        e(f"s_cmp_eq_u32 {sT[2]}, 0"); e("s_cbranch_scc0 L_nopre")
        lds_wait("L_pw", 20, 17, "v12", "v13", sleep=4)
        e(f"global_load_dwordx4 v[12:15], {vb}, {sp(sWS)} {opts.get('prepol', 'nt')}")
        e("s_waitcnt vmcnt(0)")
        A.label("L_nopre")
    e("s_barrier")
    stamp(4)
    e(f"s_cmp_gt_u32 {sW}, 5"); e("s_cbranch_scc1 L_pubret")
    for w in range(4): e(f"ds_read_b128 {vr(12+4*w)}, {va} offset:{2048*w}")
    for w in range(4):
        e(f"s_waitcnt lgkmcnt({3-w})")
        for r in (0, 2):
            if w == 0: e(f"v_pk_mul_f32 v[{12+r}:{13+r}], v[{12+r}:{13+r}], v[56:57]")
            else: e(f"v_pk_fma_f32 v[{12+r}:{13+r}], v[{12+4*w+r}:{13+4*w+r}], v[{56+2*w}:{57+2*w}], v[{12+r}:{13+r}]")
    tag4(12)
    e(f"s_cmp_eq_u32 {sT[2]}, 0"); e("s_cbranch_scc1 L_publ")
    e(f"global_store_dwordx4 {vb}, v[12:15], {sp(sWS)} sc1"); e("s_branch L_pubd")
    A.label("L_publ")
    e(f"global_store_dwordx4 {vb}, v[12:15], {sp(sWS)}")
    A.label("L_pubd")
    stamp(5)
    A.label("L_pubret")
    e("s_barrier")
    e("s_setpc_b64 s[66:67]")
    A.fence()

    def tag_from(v):
        e(f"v_readfirstlane_b32 {sTag}, {v}")
        e(f"s_add_u32 {sTag}, {sTag}, 0x01010101")
        for k in range(4): e(f"s_bfe_u32 {sTB[k]}, {sTag}, {(8 << 16) | (8 * k):#x}")
    NP = opts.get("np", 2); C0 = 32 - 8 * NP
    DW = opts.get("dmawin", 1)
    def thr(): e(f"s_waitcnt vmcnt({DW-1})")
    A.label("L_sv4")
    if opts.get("pre0"):
        e(f"s_cmp_lt_u32 {sW}, 6"); e("s_cbranch_scc1 L_nopre0")
        e(f"s_lshl_b32 {sT[0]}, {sId}, 1"); e(f"s_add_u32 {sT[0]}, {sT[0]}, {sW}"); e(f"s_lshl_b32 {sT[0]}, {sT[0]}, 10"); e(f"s_add_u32 {sT[0]}, {sT[0]}, {WS_PART - 6144}")
        e(f"v_add_u32 v5, {sT[0]}, {vVo}")
        e(f"global_load_dwordx4 v[56:59], v5, {sp(sWS)}")
        A.label("L_nopre0")
    if opts.get("touch", False):
        e(f"s_cmp_eq_u32 {sW}, 7"); e("s_cbranch_scc0 L_notouch")
        e(f"v_lshlrev_b32 v5, 16, {vLane}"); e(f"s_lshl_b32 {sT[0]}, s2, 19"); e(f"v_add_u32 v5, {sT[0]}, v5")
        e("s_mov_b64 exec, 0xff")
        e(f"global_load_dword v6, v5, {sp(sV)} nt")
        e("s_mov_b64 exec, 1")
        e(f"global_load_dword v7, v9, {sp(sOUT)} nt")
        e("s_mov_b64 exec, -1")
        e("s_waitcnt vmcnt(0)")
        A.label("L_notouch")
    if opts.get("dmaq", False): lds_wait("L_dq", 0, 1, va, vb, sleep=8)
    A.label("L_down")
    A.label("L_nodown")
    ND = opts.get("ndma", 3)
    if ND < 4: e(f"s_cmp_eq_u32 {sW}, 4"); e("s_cbranch_scc1 L_stats")
    if ND == 2: e(f"s_cmp_eq_u32 {sW}, 5"); e("s_cbranch_scc1 L_wdone")
    e(f"s_sub_u32 {sWW}, {sW}, {8 - ND}")
    if opts.get("nodma"): e("s_branch L_wdone")
    e(f"s_cmp_eq_u32 {sRole}, 1"); e("s_cbranch_scc0 L_now1")
    e(f"s_mov_b32 s40, s{sWO}"); e(f"s_mov_b32 s41, s{sWO+1}"); e(f"s_mov_b32 s42, {4096*1024}"); e("s_mov_b32 s43, 0x20000")
    e(f"v_bfe_u32 v5, {vLane}, 3, 1"); e("v_lshlrev_b32 v5, 17, v5")
    e(f"v_lshrrev_b32 v6, 4, {vLane}"); e("v_lshlrev_b32 v6, 13, v6")
    e(f"v_and_b32 v7, 7, {vLane}"); e("v_lshlrev_b32 v7, 4, v7")
    e("v_add3_u32 v5, v5, v6, v7")
    A.label("L_dma1")
    e(f"s_mul_i32 {sT[1]}, {sWW}, {WPW}")
    e(f"s_lshl_b32 {sT[2]}, {s1G}, 9")
    e(f"s_and_b32 {sT[3]}, {sWW}, 3"); e(f"s_lshl_b32 {sT[3]}, {sT[3]}, 5"); e(f"s_add_u32 {sT[2]}, {sT[2]}, {sT[3]}")
    e(f"s_and_b32 {sT[3]}, {sWW}, 4"); e(f"s_add_u32 {sT[2]}, {sT[2]}, {sT[3]}")
    e(f"s_lshl_b32 {sT[2]}, {sT[2]}, 10")
    e(f"s_lshl_b32 {sT[3]}, {s1C}, 7"); e(f"s_add_u32 {sT[2]}, {sT[2]}, {sT[3]}")
    if opts.get("worot", True):
        e(f"s_add_u32 {sT[3]}, {sG}, {sWW}"); e(f"s_and_b32 {sT[3]}, {sT[3]}, 3"); e(f"s_lshl_b32 {sT[3]}, {sT[3]}, 10")
        e(f"s_add_u32 {sT[2]}, {sT[2]}, {sT[3]}"); e(f"s_lshl_b32 {sT[3]}, {sT[3]}, 1"); e(f"s_add_u32 {sT[1]}, {sT[1]}, {sT[3]}")
    for ep in range(8):
        e(f"s_xor_b32 {sT[3]}, {sT[2]}, {(256*(ep&1) + (ep>>1))*1024}")
        e(f"s_xor_b32 m0, {sT[1]}, {ep*1024}")
        e(f"s_waitcnt vmcnt({opts.get('wowin', 4) - 1})")
        if not opts.get("nowo"): e(f"buffer_load_dwordx4 v5, {srdW}, {sT[3]} offen nt lds")
    e(f"s_add_u32 {sWW}, {sWW}, {ND}"); e(f"s_cmp_lt_u32 {sWW}, 8"); e("s_cbranch_scc1 L_dma1")
    e("s_branch L_wdone")
    A.label("L_now1")
    e(f"s_cmp_eq_u32 {sRole}, 2"); e("s_cbranch_scc0 L_wdone")
    e(f"s_cmp_lt_u32 {sWW}, {8 - NLATE}"); e("s_cbranch_scc0 L_wdone")
    gu_addr(sWW)
    A.label("L_dma2")
    e(f"s_mul_i32 {sT[1]}, {sWW}, {WPW}")
    for ep in range(8):
        e(f"s_add_u32 m0, {sT[1]}, {ep*1024}")
        thr()
        e(f"global_load_lds_dwordx4 v[6:7], off {opts.get('gupol', 'nt')}")
        e(f"v_add_co_u32 v6, vcc, {3584*8 if ep < 7 else 3584*(64*ND-56)}, v6"); e("v_addc_co_u32 v7, vcc, 0, v7, vcc")
    e(f"s_add_u32 {sWW}, {sWW}, {ND}"); e(f"s_cmp_lt_u32 {sWW}, {8 - NLATE}"); e("s_cbranch_scc1 L_dma2")
    A.label("L_wdone")
    e("s_waitcnt vmcnt(0)")
    e(f"v_mov_b32 {va}, {L_FLAG+12}"); e(f"v_mov_b32 {vb}, 1")
    e("s_mov_b64 exec, 1"); e(f"ds_add_u32 {va}, {vb}"); e("s_mov_b64 exec, -1")
    stamp(1)
    if ND == 4: e(f"s_cmp_eq_u32 {sW}, 4"); e("s_cbranch_scc1 L_stats")
    A.label("L_svc2")
    lds_wait("L_dw", 12, max(3, ND), va, vb, sleep=16)
    lds_wait("L_sq", 8, 1, va, vb, sleep=16)
    e(f"s_cmp_eq_u32 {sRole}, 1"); e("s_cbranch_scc1 L_st1")
    e(f"s_cmp_eq_u32 {sRole}, 2"); e("s_cbranch_scc1 L_st2")
    e(f"s_cmp_eq_u32 {sRole}, 3"); e("s_cbranch_scc0 L_svc3")
    e(f"s_cmp_ge_u32 {sW}, 6"); e("s_cbranch_scc1 L_st3")
    A.label("L_svc3")
    PF = opts.get("pf", 0)
    if PF: e(f"s_cmp_ge_u32 {sW}, 6"); e("s_cbranch_scc1 L_help")
    get_tag()
    e("s_call_b64 s[66:67], L_publish")
    e("s_branch L_fin")
    if PF:
        A.label("L_help")
        e(f"s_sub_u32 {sT[4]}, {sC}, 16")
        e(f"v_lshrrev_b32 v5, 3, {vLane}"); e(f"s_lshl_b32 {sT[0]}, {sT[4]}, 5"); e(f"v_add_u32 v5, {sT[0]}, v5"); e("v_mul_u32_u24 v5, 3584, v5")
        e(f"v_and_b32 v6, 7, {vLane}"); e("v_lshl_add_u32 v5, v6, 6, v5")
        e(f"s_mul_i32 {sT[0]}, {sG}, 448"); e(f"s_and_b32 {sT[0]}, {sT[0]}, 0xffffff80"); e(f"v_add_u32 v5, {sT[0]}, v5")
        for k in range(1, 4): e(f"v_add_u32 v{5+k}, {8*3584*k}, v5")
        e(f"s_cmp_eq_u32 {sW}, 6"); e(f"s_cselect_b32 s6, s{sWG}, s{sWU}"); e(f"s_cselect_b32 s7, s{sWG+1}, s{sWU+1}")
        e(f"s_mul_i32 {sT[0]}, {sG}, {224*1024}"); e(f"s_mul_i32 {sT[1]}, {sT[4]}, 14336"); e(f"s_add_u32 {sT[0]}, {sT[0]}, {sT[1]}")
        e(f"s_and_b32 {sT[1]}, {sW}, 1"); e(f"s_mul_i32 {sT[1]}, {sT[1]}, 7168"); e(f"s_add_u32 {sT[0]}, {sT[0]}, {sT[1]}")
        e(f"v_lshlrev_b32 v9, 6, {vLane}"); e(f"v_add_u32 v9, {sT[0]}, v9")
        if PF == 2: lds_wait("L_hw", 20, 17, va, vb, sleep=4)
        else: e("s_barrier"); e("s_barrier")
        PP = opts.get("pfpol", "nt")
        for k in range(4): e(f"global_load_dword v{12+k}, v{5+k}, s[6:7] {PP}")
        e(f"global_load_dword v16, v9, {sp(sWD)} {PP}"); e(f"global_load_dword v17, v9, {sp(sWD)} offset:3072 {PP}")
        e("s_branch L_fin")

    A.label("L_stats")
    SG = opts.get("sg", 180); CA, GA = opts.get("cka", (88, 120)); SP = opts.get("spub", 152)
    GH = float(opts.get('gh', 0.32)); GL = float(opts.get('gl', 0.25))
    e(f"v_mov_b32 v24, {L_FLAG}")
    def control(base, lag, sub=None, GH=GH, GL=GL):
        e(f"v_mov_b32 v28, {float(base)}")
        if sub: e(f"v_sub_f32 v28, v28, {sub}")
        e(f"v_fmac_f32 v28, {GH}, {lag}")
        e(f"v_mov_b32 v29, {float(base)}"); e(f"v_fmac_f32 v29, {-GL}, {lag}")
        e(f"v_cmp_lt_f32 vcc, 0, {lag}"); e("v_cndmask_b32 v28, 0, v28, vcc"); e("v_cndmask_b32 v29, v29, 0, vcc")
        e("v_cvt_i32_f32 v26, v28"); e("v_cvt_i32_f32 v27, v29")
        if not opts.get("noctl"): e("ds_write_b64 v24, v[26:27] offset:24")
    e("s_getreg_b32 s71, hwreg(HW_REG_XCC_ID, 0, 4)")
    def ck_pub(k):
        e("s_memrealtime s[68:69]")
        e(f"s_lshl_b32 {sT[0]}, {sId}, 3"); e(f"s_add_u32 {sT[0]}, {sT[0]}, {WS_CK + 2048*k}"); e(f"v_mov_b32 v5, {sT[0]}"); e(f"v_mov_b32 v33, {sTag}")
        e("s_waitcnt lgkmcnt(0)"); e("s_lshl_b32 s68, s68, 4"); e("s_or_b32 s68, s68, s71"); e("v_mov_b32 v32, s68")
        e("s_mov_b64 exec, 1"); e(f"global_store_dwordx2 v5, v[32:33], {sp(sWS)} sc1"); e("s_mov_b64 exec, -1")
    def ck_load(k):
        e(f"v_lshlrev_b32 v6, 5, {vLane}"); e(f"v_add_u32 v6, {WS_CK + 2048*k}, v6")
        e(f"global_load_dwordx4 v[32:35], v6, {sp(sWS)} sc1"); e(f"global_load_dwordx4 v[36:39], v6, {sp(sWS)} offset:16 sc1")
    def ck_lag(bias):
        e(f"v_mov_b32 v40, {opts.get('miss', -400) * 16}")
        for k in range(4):
            e(f"v_sub_u32 v{32+2*k}, s68, v{32+2*k}"); e(f"v_cmp_eq_u32 vcc, {sTag}, v{33+2*k}"); e(f"v_cndmask_b32 v{32+2*k}, v40, v{32+2*k}, vcc")
        e("v_add3_u32 v32, v32, v34, v36"); e("v_add_u32 v32, v32, v38"); e("v_cvt_f32_i32 v32, v32")
        e(f"v_add_f32_dpp v32, v32, v32 quad_perm:[1,0,3,2] {DPPF}"); e(f"v_add_f32_dpp v32, v32, v32 quad_perm:[2,3,0,1] {DPPF}")
        for x in xlane("add", "v32", "v33"): e(x)
        e(f"v_mov_b32 v19, {float(bias)}"); e("v_fmac_f32 v19, 0x39800000, v32")
    lds_wait("L_ca", 20, 4, va, vb, sleep=4)
    ck_pub(0)
    lds_wait("L_ga", 20, 5, va, vb, sleep=8)
    ck_load(0)
    e("s_waitcnt vmcnt(0)")
    e("v_or3_b32 v41, v32, v34, v36"); e("v_or_b32 v41, v41, v38"); e("v_and_b32 v42, v32, v34"); e("v_and_b32 v43, v36, v38"); e("v_and_b32 v42, v42, v43")
    e("v_xor_b32 v41, s71, v41"); e("v_bitop3_b32 v41, v41, v42, s71 bitop3:0xf6"); e("v_and_b32 v41, 15, v41")
    for k in range(4): e(f"v_bitop3_b32 v41, v41, v{33+2*k}, {sTag} bitop3:0xf6")
    e("v_cmp_ne_u32 vcc, 0, v41")
    e(f"s_lshl_b32 {sT[0]}, {sG}, 3"); e(f"s_lshr_b64 vcc, vcc, {sT[0]}"); e("s_and_b32 s70, vcc_lo, 0xff")
    if opts.get("nolocal"): e("s_mov_b32 s70, 1")
    e("v_mov_b32 v41, s70"); e("ds_write_b32 v24, v41 offset:40")
    ck_lag(opts.get('abias', 0.0))
    if opts.get("r2a"):
        e(f"s_cmp_eq_u32 {sRole}, 2"); e(f"s_cselect_b32 {sT[0]}, {opts['r2a']}, 0"); e(f"v_cvt_f32_i32 v25, {sT[0]}"); e("v_add_f32 v19, v19, v25")
    control(GA + 10, "v19")
    e(f"v_subrev_f32 v30, {float(SP)}, v28"); e(f"v_mov_b32 v31, {float(SG + 10 - SP)}"); e("v_med3_f32 v30, v30, 0, v31")
    lds_wait("L_sw", 4, 4, va, vb, sleep=4)
    e(f"v_and_b32 {vc}, 3, {vLane}"); e(f"v_lshlrev_b32 {va}, 3, {vc}"); e(f"v_add_u32 {va}, {L_MS}, {va}")
    for w in range(4): e(f"ds_read_b64 v[{12+2*w}:{13+2*w}], {va} offset:{32*w}")
    e("s_waitcnt lgkmcnt(0)")
    e("v_max3_f32 v20, v12, v14, v16"); e("v_max_f32 v20, v20, v18")
    for w in range(4): e(f"v_sub_f32 v{12+2*w}, v{12+2*w}, v20")
    for w in range(4): e(f"v_exp_f32 v{12+2*w}, v{12+2*w}")
    e("v_mul_f32 v22, v12, v13")
    for w in range(1, 4): e(f"v_fmac_f32 v22, v{12+2*w}, v{13+2*w}")
    e(f"v_mov_b32 v21, {sTag}"); e(f"v_mov_b32 v23, {sTag}")
    e(f"s_lshl_b32 {sT[0]}, {sId}, 6"); e(f"s_add_u32 {sT[0]}, {sT[0]}, {WS_ST}"); e(f"v_add_u32 v5, {sT[0]}, {vVo}")
    e("s_mov_b64 exec, 0xf")
    e("s_cmp_eq_u32 s70, 0"); e("s_cbranch_scc1 L_stl")
    e(f"global_store_dwordx4 v5, v[20:23], {sp(sWS)} sc1"); e("s_branch L_std")
    A.label("L_stl")
    e(f"global_store_dwordx4 v5, v[20:23], {sp(sWS)}")
    A.label("L_std")
    e("s_mov_b64 exec, -1")
    lds_wait("L_cb", 20, 12, va, vb, sleep=4)
    ck_pub(1)
    e(f"s_lshl_b32 {sT[0]}, {sG}, 11"); e(f"s_add_u32 {sT[0]}, {sT[0]}, {WS_ST}"); e(f"v_add_u32 v5, {sT[0]}, {vVo}")
    lds_wait("L_sg", 20, 13, va, vb, sleep=8)
    ck_load(1)
    e("s_waitcnt vmcnt(0)")
    ck_lag(opts.get('lbias', 20))
    if opts.get("r2bias", 80):
        e(f"s_cmp_eq_u32 {sRole}, 2"); e(f"s_cselect_b32 {sT[0]}, {opts.get('r2bias', 80)}, 0"); e(f"s_cmp_eq_u32 {sRole}, 1"); e(f"s_cselect_b32 {sT[0]}, {opts.get('r1bias', 0)}, {sT[0]}"); e(f"v_cvt_f32_i32 v25, {sT[0]}"); e("v_add_f32 v19, v19, v25")
    control(SG + 10, "v19", "v30", float(opts.get("gh2", GH)), float(opts.get("gl2", GL)))
    if debug: e("v_cvt_i32_f32 v19, v19"); e("v_readfirstlane_b32 s73, v19")
    A.label("L_spoll")
    timeout()
    e(f"global_load_dwordx4 v[12:15], v5, {sp(sWS)} sc1"); e(f"global_load_dwordx4 v[16:19], v5, {sp(sWS)} offset:1024 sc1")
    e("s_waitcnt vmcnt(0)")
    e(f"v_xor_b32 v13, {sTag}, v13")
    for r in (15, 17, 19): e(f"v_bitop3_b32 v13, v13, v{r}, {sTag} bitop3:0xf6")
    e("v_cmp_ne_u32 vcc, 0, v13")
    e("s_cbranch_vccz L_sgot")
    e(f"s_sleep {opts.get('ssleep', 32)}"); e("s_branch L_spoll")
    A.label("L_sgot")
    e("v_max_f32 v20, v12, v16")
    for x in xlane("max", "v20", "v21"): e(x)
    e("v_sub_f32 v12, v12, v20"); e("v_sub_f32 v16, v16, v20"); e("v_exp_f32 v12, v12"); e("v_exp_f32 v16, v16")
    e("v_mul_f32 v21, v12, v14"); e("v_fmac_f32 v21, v16, v18")
    for x in xlane("add", "v21", "v22"): e(x)
    e("v_rcp_f32 v21, v21")
    e(f"v_lshlrev_b32 {va}, 3, {vc}"); e(f"v_add_u32 {va}, {L_GS}, {va}")
    e(f"ds_write_b64 {va}, v[20:21]")
    e(f"v_mov_b32 {va}, {L_FLAG+8}"); e(f"v_mov_b32 {vb}, 1")
    e(f"ds_write_b32 {va}, {vb}")
    if debug: e("s_memrealtime s[98:99]")
    e("s_branch L_svc2")

    main_lines = A.lines; A.lines = []; A.fence()
    A.label("L_service")
    e("s_cmpk_ge_u32 s2, 256"); e("s_cbranch_scc1 L_end")
    common()
    e("v_mov_b32 v8, 0"); e("v_mov_b32 v9, 0"); e("v_mov_b32 v10, 0"); e("v_mov_b32 v11, 0")
    e(f"v_mov_b32 v64, {L_FLAG}")
    e(f"s_cmp_eq_u32 {sW}, 4"); e("s_cbranch_scc0 L_sv1")
    e("ds_write_b128 v64, v[8:11]"); e("ds_write_b128 v64, v[8:11] offset:16"); e("ds_write_b128 v64, v[8:11] offset:32")
    A.label("L_sv1")
    if opts.get("cpre", True):
        e("s_getpc_b64 s[6:7]")
        e(f"v_lshl_add_u32 v6, v5, 11, {vVo}")
        e("v_add_u32 v6, 0xffffe000, v6")
        e("global_load_dwordx4 v[56:59], v6, s[6:7]"); e("global_load_dwordx4 v[60:63], v6, s[6:7] offset:1024")
    e(f"s_cmp_ge_u32 {sC}, {C0}"); e("s_cbranch_scc1 L_qprod")
    common2()
    e("s_waitcnt lgkmcnt(0)")
    e("s_barrier")
    e(f"s_cmp_eq_u32 {sW}, 4"); e("s_cbranch_scc0 L_sv4")
    e(f"global_load_dword v10, v9, {sp(sWS)} sc1")
    e("s_waitcnt vmcnt(0)")
    tag_from("v10")
    e("s_branch L_qget")
    A.label("L_qprod")
    e("s_setprio 3")
    WQ = 128; XR = 12; XF = 20; QA = 36; XA = 66
    RW = 512 // NP // 4; NPR = RW // 16
    e(f"s_and_b32 {sT[5]}, {sC}, 7"); e(f"s_lshl_b32 {sQP}, {sG}, 3"); e(f"s_add_u32 {sQP}, {sQP}, {sT[5]}")
    e(f"s_sub_u32 {sT[4]}, {sC}, {C0}"); e(f"s_lshr_b32 {sT[4]}, {sT[4]}, 3")
    e(f"s_lshl_b32 {sT[3]}, {sT[4]}, 2"); e(f"s_add_u32 {sT[3]}, {sT[3]}, {sW}"); e(f"s_sub_u32 {sT[3]}, {sT[3]}, 4"); e(f"s_mul_i32 {sT[3]}, {sT[3]}, {RW}")
    e(f"v_lshrrev_b32 v5, 3, {vLane}"); e("v_lshlrev_b32 v6, 2, v5")
    e(f"s_lshl_b32 {sT[0]}, {sT[3]}, 1"); e(f"v_add_u32 v6, {sT[0]}, v6")
    e("v_lshlrev_b32 v7, 14, v5"); e(f"v_and_b32 v4, 7, {vLane}"); e("v_lshl_add_u32 v7, v4, 4, v7")
    e(f"s_lshl_b32 {sT[0]}, {sT[3]}, 13"); e(f"s_lshl_b32 {sT[1]}, {sQP}, 7"); e(f"s_add_u32 {sT[0]}, {sT[0]}, {sT[1]}"); e(f"v_add_u32 v7, {sT[0]}, v7")
    e("s_waitcnt lgkmcnt(0)")
    e(f"global_load_dwordx4 {vr(XA)}, {vVo}, {sp(sX)}")
    for k in range(NPR): e(f"global_load_dword v{XR+k}, v6, {sp(sX)} offset:{32*k}")
    e(f"global_load_dword v10, v9, {sp(sWS)} sc1")
    for i in range(2 * NPR):
        e(f"global_load_dwordx4 {vr(WQ+4*i)}, v7, {sp(sWQ)} {opts.get('wqpol', 'nt')}")
        if i < 2 * NPR - 1: e(f"v_add_u32 v7, {0x2000 if i % 2 == 0 else 0x1e000}, v7")
    e("s_barrier")
    common2()
    e(f"s_waitcnt vmcnt({3*NPR + 1})")
    for k in range(4):
        e(f"v_lshlrev_b32 v{44+2*k}, 16, v{XA+k}"); e(f"v_and_b32 v{45+2*k}, 0xffff0000, v{XA+k}")
    def wsum(r, tmp):
        for s in (8, 4, 2, 1): e(f"v_add_f32_dpp {r}, {r}, {r} row_ror:{s} {DPPF}")
        e(f"v_mov_b32 {tmp}, {r}"); e(f"v_permlane16_swap_b32 {tmp}, {r}"); e(f"v_add_f32 {r}, {tmp}, {r}")
        e(f"v_mov_b32 {tmp}, {r}"); e(f"v_permlane32_swap_b32 {tmp}, {r}"); e(f"v_add_f32 {r}, {tmp}, {r}")
    e("v_pk_add_f32 v[52:53], v[44:45], v[46:47]"); e("v_pk_add_f32 v[54:55], v[48:49], v[50:51]"); pk(52, 54)
    e(f"v_add_f32 {va}, v52, v53")
    wsum(va, vb)
    e(f"v_mul_f32 {va}, 0x3b000000, {va}")
    for k in range(8): e(f"v_sub_f32 v{44+k}, v{44+k}, {va}")
    e(f"v_mul_f32 {vc}, v44, v44"); e(f"v_mul_f32 {vd}, v45, v45")
    for k in range(2, 8): e(f"v_fmac_f32 {(vc, vd)[k&1]}, v{44+k}, v{44+k}")
    e(f"v_add_f32 {vc}, {vc}, {vd}")
    wsum(vc, vb)
    e(f"v_mul_f32 {vc}, 0x3b000000, {vc}")
    ln_finish(va, vc, vb)
    e(f"s_waitcnt vmcnt({2*NPR + 1})")
    for k in range(NPR):
        e(f"v_lshlrev_b32 v{XF+2*k}, 16, v{XR+k}"); e(f"v_and_b32 v{XF+2*k+1}, 0xffff0000, v{XR+k}")
    for k in range(2*NPR): e(f"v_sub_f32 v{XF+k}, v{XF+k}, {va}")
    for k in range(NPR): e(f"v_cvt_pk_bf16_f32 v{XR+k}, v{XF+2*k}, v{XF+2*k+1}")
    for k in range(NPR):
        e(f"v_lshlrev_b32 v{XF+2*k}, 16, v{XR+k}"); e(f"v_and_b32 v{XF+2*k+1}, 0xffff0000, v{XR+k}")
    for k in range(2*NPR): e(f"v_mul_f32 v{XF+k}, {vc}, v{XF+k}")
    for k in range(NPR): e(f"v_cvt_pk_bf16_f32 v{XR+k}, v{XF+2*k}, v{XF+2*k+1}")
    for k in range(8): e(f"v_mov_b32 v{QA+k}, 0")
    e(f"v_lshrrev_b32 v5, 4, {vLane}"); e("v_lshlrev_b32 v5, 3, v5"); e("v_lshl_add_u32 v5, v4, 5, v5")
    e(f"s_lshl_b32 {sT[0]}, {sW}, 8"); e(f"s_add_u32 {sT[0]}, {sT[0]}, {L_QP - 1024}"); e(f"v_add_u32 v5, {sT[0]}, v5")
    for p in range(NPR):
        e(f"s_waitcnt vmcnt({2*NPR - 2 - 2*p})")
        for ee in range(8):
            e(f"v_perm_b32 v{44+ee}, v{WQ+4*(2*p+1)+(ee>>1)}, v{WQ+4*(2*p)+(ee>>1)}, {sSelHi if ee & 1 else sSelLo}")
        for ee in range(8): e(f"v_dot2c_f32_bf16 v{QA+ee}, v{44+ee}, v{XR+p}")
    if debug: e("s_memrealtime s[70:71]")
    for o in (0, 1):
        e(f"v_permlane32_swap_b32 v{QA+o}, v{QA+4+o}"); e(f"v_permlane32_swap_b32 v{QA+2+o}, v{QA+6+o}")
    for o in (0, 1):
        e(f"v_add_f32 v{QA+o}, v{QA+o}, v{QA+4+o}"); e(f"v_add_f32 v{QA+2+o}, v{QA+2+o}, v{QA+6+o}")
    for o in (0, 1): e(f"v_permlane16_swap_b32 v{QA+o}, v{QA+2+o}")
    for o in (0, 1): e(f"v_add_f32 v{QA+o}, v{QA+o}, v{QA+2+o}")
    for o in (0, 1): e(f"v_add_f32_dpp v{QA+o}, v{QA+o}, v{QA+o} row_ror:8 {DPPF}")
    e(f"ds_write_b64 v5, v[{QA}:{QA+1}]")
    e("v_mov_b32 v44, 1")
    e("s_mov_b64 exec, 1"); e("ds_add_u32 v64, v44 offset:32"); e("s_mov_b64 exec, -1")
    e(f"s_cmp_eq_u32 {sW}, 4"); e("s_cbranch_scc1 L_qp4")
    e("s_setprio 0")
    e("s_branch L_sv4")
    A.label("L_qp4")
    tag_from("v10")
    if NP == 1:
        e(f"s_lshl_b32 {sT[1]}, {sQP}, 8"); e(f"s_add_u32 {sT[1]}, {sT[1]}, {WS_Q}"); e(f"v_add_u32 v6, {sT[1]}, {vVo}")
        e(f"v_add_u32 v5, {L_QP}, {vVo}")
        lds_wait("L_qpw", 32, 4, va, vb, sleep=0)
        e("s_mov_b64 exec, 0xffff")
        for v in range(4): e(f"ds_read_b128 {vr(44+4*v)}, v5 offset:{256*v}")
        e("s_waitcnt lgkmcnt(0)")
        add4(44, 48); add4(52, 56); add4(44, 52)
        e("v_cvt_pk_bf16_f32 v44, v44, v45"); e("v_cvt_pk_bf16_f32 v46, v46, v47")
    else:
        e(f"s_mul_i32 {sT[1]}, {sG}, {NP}"); e(f"s_add_u32 {sT[1]}, {sT[1]}, {sT[4]}"); e(f"s_lshl_b32 {sT[1]}, {sT[1]}, 3"); e(f"s_add_u32 {sT[1]}, {sT[1]}, {sT[5]}")
        e(f"s_lshl_b32 {sT[1]}, {sT[1]}, 9"); e(f"s_add_u32 {sT[1]}, {sT[1]}, {WS_Q}"); e(f"v_add_u32 v6, {sT[1]}, {vVo}")
        e(f"v_lshlrev_b32 v5, 3, {vLane}"); e(f"v_add_u32 v5, {L_QP}, v5")
        lds_wait("L_qpw", 32, 4, va, vb, sleep=0)
        e("s_mov_b32 exec_hi, 0")
        for v in range(4): e(f"ds_read_b64 v[{48+2*v}:{49+2*v}], v5 offset:{256*v}")
        e("s_waitcnt lgkmcnt(0)")
        pk(48, 50); pk(52, 54)
        e("v_add_f32 v44, v48, v52"); e("v_add_f32 v46, v49, v53")
    e(f"v_mov_b32 v45, {sTag}"); e(f"v_mov_b32 v47, {sTag}")
    e(f"global_store_dwordx4 v6, v[44:47], {sp(sWS)} sc1")
    e("s_mov_b64 exec, -1")
    e("s_setprio 0")
    A.label("L_qget")
    NLD = 2 if NP == 1 else 4 * NP
    e(f"s_mul_i32 {sT[0]}, {sG}, {NLD*1024}"); e(f"s_add_u32 {sT[0]}, {sT[0]}, {WS_Q + 4096}")
    e(f"v_add_u32 v5, {sT[0]}, {vVo}"); e("v_add_u32 v7, 0x2000, v5")
    e(f"v_lshlrev_b32 v6, {3 if NP == 1 else 2}, {vLane}"); e(f"v_add_u32 v6, {L_Q}, v6")
    e(f"v_mov_b32 v52, {sTag}"); e("ds_write_b32 v64, v52 offset:16")
    if opts.get("qstart", 24): lds_wait("L_qs", 36, 1, va, vb, sleep=4)
    e(f"s_mov_b32 {sT[5]}, 0")
    A.label("L_qpoll")
    timeout()
    for k in range(NLD):
        e(f"s_bitcmp1_b32 {sT[5]}, {k}"); e(f"s_cbranch_scc1 L_qk{k}")
        e(f"global_load_dwordx4 {vr(128+4*k)}, {'v5' if k < 8 else 'v7'}, {sp(sWS)} offset:{1024*(k&7) - 4096} sc1")
        A.label(f"L_qk{k}")
    e("s_waitcnt vmcnt(0)")
    e(f"s_mov_b32 {sT[5]}, 0")
    for k in range(NLD):
        e(f"v_xor_b32 {va}, {sTag}, v{129+4*k}"); e(f"v_bitop3_b32 {va}, {va}, v{131+4*k}, {sTag} bitop3:0xf6")
        e(f"v_cmp_ne_u32 vcc, 0, {va}"); e("s_cmp_eq_u64 vcc, 0"); e(f"s_cselect_b32 {sT[0]}, {1 << k}, 0"); e(f"s_or_b32 {sT[5]}, {sT[5]}, {sT[0]}")
    e(f"s_cmp_eq_u32 {sT[5]}, {(1 << NLD) - 1}"); e("s_cbranch_scc1 L_qgot")
    e(f"s_sleep {opts.get('qsleep', 8)}"); e("s_branch L_qpoll")
    A.label("L_qgot")
    if NP == 1:
        for h in range(2):
            e(f"v_mov_b32 v{129+4*h}, v{130+4*h}"); e(f"ds_write_b64 v6, v[{128+4*h}:{129+4*h}] offset:{512*h}")
    else:
        for m in range(4):
            for o in (0, 2):
                r = 128 + 4*m + o
                e(f"v_add_f32 v{r}, v{r}, v{r+16}")
                if NP == 4: e(f"v_add_f32 v{r+32}, v{r+32}, v{r+48}"); e(f"v_add_f32 v{r}, v{r}, v{r+32}")
            e(f"v_cvt_pk_bf16_f32 v{128+4*m}, v{128+4*m}, v{130+4*m}")
            e(f"ds_write_b32 v6, v{128+4*m} offset:{256*m}")
    e("v_mov_b32 v48, 1"); e("ds_write_b32 v64, v48")
    if debug: e("s_memrealtime s[72:73]")
    e("s_branch L_down")

    head = A.lines; A.lines = main_lines
    k = A.lines.index("@@SERVICE_HEAD@@"); A.lines[k:k+1] = head
    A.raw('.section .rodata,"a"'); A.raw(".p2align 6"); A.raw(f".amdhsa_kernel {NAME}")
    for l in ["next_free_vgpr 256", "next_free_sgpr 102", "accum_offset 256", "group_segment_fixed_size 0", "kernarg_size 96",
              "user_sgpr_count 2", "user_sgpr_kernarg_segment_ptr 1", "system_sgpr_workgroup_id_x 1", "float_denorm_mode_32 3"]:
        A.raw("  .amdhsa_" + l)
    A.raw(".end_amdhsa_kernel")
    return A.text()

if __name__ == "__main__":
    dbg = "--debug" in sys.argv
    sys.stdout.write(gen(debug=dbg))
```

```python
import sys
sys.path.insert(0, "work")
from asmlib import Asm

NAME = "sequential_preLN__gqa_block_cached__glu_gated_bilinear__decode_kernel"

WS_EPOCH = 0
WS_Q = 0xE0000
WS_ST = 0x8000
WS_CK = 0xC000
WS_PART = 0x10000
PREC = 2048
WS_A1 = 0xA0000
WS_D2 = 0xB0000
WS_STAMP = 0x800000
WPW = 8 * 1024
L_Q = 8 * WPW
L_ACC = L_Q + 1024
L_RED = L_ACC + 8192
L_STAT = L_RED + 4096
L_MS = L_STAT + 64
L_GS = L_MS + 128
L_QP = L_RED
L_FLAG = L_GS + 32
L_TOTAL = 98304

KV_BYTES = 128 << 20

HEADER = """
Kernarg (96 bytes, pointers only): 0 A_x, 8 K cache, 16 V cache, 24 wq, 32 wo, 40 B_x (unused), 48 w_gate, 56 w_up,
64 w_down, 72 out, 80 debug (unused), 88 workspace.

One persistent launch, 256 workgroups (one per CU) x 8 waves.  Workgroup wg: kv head g = wg & 7, c = wg >> 3.
 waves 0-3 stream 2048 keys: all K first (QK^T by MFMA, score roundings as in the reference), then all V (PV by MFMA),
           through a 40-slot register ring with a small window of loads in flight (unrolled, generated schedule).
 waves 4-7 are service waves: LayerNorm + q projection (c >= 16), q all-gather, weight staging, softmax statistics
           exchange, progress checkpoints (a workgroup that runs late widens its load window, an early one narrows it)
           and the publication of the workgroup's partial output.
 tail:     c < 8: combine + wo slice;  8 <= c < 15: residual, LayerNorm, gate/up/down slice;  c == 15: final sum.
Hand-offs go through the workspace and carry a per-launch tag (workspace word 0 + 0x01010101, written back at the end),
so nothing depends on what the workspace held before.  Stores are write-through unless the checkpoint records show that
every workgroup of the head group runs on the same die as the writer.  Every spin is bounded.
Generated by a script of my own (register allocation, schedule and wait states included).
"""

def gen(debug=False, opts=None):
    opts = opts or {}
    A = Asm(); e = A
    def stamp(i):
        if debug: e(f"s_memrealtime s[{80+2*i}:{81+2*i}]")
    sX, sK, sV, sWQ, sWO, sWG, sWU, sWD, sOUT, sDBG, sWS = 8, 10, 12, 14, 16, 20, 22, 24, 26, 28, 30
    def sp(n): return f"s[{n}:{n+1}]"
    sW = "s3"; sG = "s4"; sC = "s5"
    srdK = "s[32:35]"; srdV = "s[36:39]"; srdW = "s[40:43]"
    sScale, sL2E, sSelLo, sSelHi = "s44", "s45", "s46", "s47"
    sOff = "s48"; sId = "s49"; sWW = "s50"
    sT = ["s52", "s53", "s54", "s55", "s56", "s57", "s58", "s59"]
    sTag = "s60"; sRole = "s61"; sIdx = "s62"; sTO = "s64"
    vLane = "v1"; vKo = "v2"; vVo = "v3"
    ACC = 4; BQ = 12; PV_ = 12; SPK = 28; T = 44; M = 76
    vX0, vX1, vY0, vY1, vS0, vS1, vML, vL, va, vb, vc, vd, vMSa, vf = [f"v{M+i}" for i in range(14)]
    vKo2 = "v90"; vVo2 = "v91"; vMask = "v93"
    RING = opts.get("ring", 40); RBASE = 256 - 4 * RING
    assert RBASE >= 96
    W0 = opts.get("win", 5); BUDGET = opts.get("budget", 18)
    WHI = opts.get("whi", 7); WLO = opts.get("wlo", 4)
    FF = opts.get("ff", [0, 0x00001110, 0x00000092, 0])
    ENDS = opts.get("ends", 232)
    CKP = opts.get("ckp", [])
    W = WHI
    sFF = "s51"; sQP = "s63"; sLev = "s65"; sHi = "s66"; sLo = "s67"
    sTB = ["s76", "s77", "s78", "s79"]
    def vr(a, n=4): return f"v[{a}:{a+n-1}]"
    DPPF = "row_mask:0xf bank_mask:0xf"
    def timeout():
        e(f"s_sub_u32 {sTO}, {sTO}, 1"); e("s_cbranch_scc1 L_end")
    def lds_wait(lbl, off, val, vaddr, vtmp, sleep=1):
        e(f"v_mov_b32 {vaddr}, {L_FLAG + off}")
        A.label(lbl)
        e(f"ds_read_b32 {vtmp}, {vaddr}")
        timeout()
        e("s_waitcnt lgkmcnt(0)")
        e(f"v_readfirstlane_b32 {sT[0]}, {vtmp}")
        e(f"s_cmp_ge_u32 {sT[0]}, {val}"); e(f"s_cbranch_scc1 {lbl}_go")
        e(f"s_sleep {sleep}"); e(f"s_branch {lbl}")
        A.label(lbl + "_go")

    for l in HEADER.strip("\n").split("\n"): A.raw(("; " + l).rstrip())
    A.raw(f"; @launch grid=(256,1,1) block=(512,1,1) lds={L_TOTAL}")
    A.raw('.amdgcn_target "amdgcn-amd-amdhsa--gfx950"')
    A.raw(".text"); A.raw(f".globl {NAME}"); A.raw(".p2align 8"); A.raw(f".type {NAME},@function"); A.label(NAME)
    e("s_load_dwordx2 s[32:33], s[0:1], 8")
    stamp(0)
    e("v_cmp_lt_u32 vcc, 0xff, v0")
    e(f"v_and_b32 {vKo}, 3, v0"); e(f"v_lshlrev_b32 {vKo}, 4, {vKo}"); e("v_and_b32 v5, 48, v0"); e(f"v_lshl_or_b32 {vKo}, v5, 2, {vKo}")
    e("s_cbranch_vccnz L_service")
    e("v_and_b32 v5, 0xcc, v0"); e(f"v_lshl_or_b32 {vKo}, v5, 6, {vKo}")
    e(f"s_mul_i32 {sOff}, s2, 0x01010000"); e(f"s_and_b32 {sOff}, {sOff}, 0x07e00000")
    e(f"s_lshr_b32 s6, {sOff}, 4")
    if opts.get("exact", False): e("s_and_b32 s6, s6, 0x1e0000")
    e(f"s_xor_b32 {sOff}, {sOff}, s6")
    e("s_and_b32 s6, s2, 24"); e(f"v_lshl_or_b32 {vKo}, s6, 11, {vKo}")
    e("s_lshl_b32 s34, 1, 27"); e("s_lshl_b32 s35, 1, 17")
    e("s_waitcnt lgkmcnt(0)")
    for n in range(4): e(f"buffer_load_dwordx4 {vr(RBASE+4*n)}, {vKo}, {srdK}, {sOff} offen offset:{n*1024} {opts.get('kvpol', 'nt')}")
    e("s_branch L_stream")
    def common():
        e("s_load_dwordx16 s[8:23], s[0:1], 0")
        e("s_load_dwordx8 s[24:31], s[0:1], 64")
        if opts.get("probe"): e("s_memrealtime s[80:81]")
        if debug: e("s_memtime s[100:101]")
        e(f"v_lshrrev_b32 v5, 6, v0"); e(f"v_and_b32 {vLane}, 63, v0")
        e(f"v_readfirstlane_b32 {sW}, v5")
        e(f"s_and_b32 {sG}, s2, 7"); e(f"s_lshr_b32 {sC}, s2, 3")
        e(f"s_lshl_b32 {sId}, {sG}, 5"); e(f"s_add_u32 {sId}, {sId}, {sC}")
        e(f"v_lshlrev_b32 {vVo}, 4, {vLane}")
    def common2():
        e(f"s_mov_b32 {sSelLo}, 0x05040100"); e(f"s_mov_b32 {sSelHi}, 0x07060302")
        e(f"s_mov_b32 {sTO}, 0x400000")
        roles()
    def roles():
        e(f"s_mov_b32 {sRole}, 0"); e(f"s_mov_b32 {sIdx}, 0")
        e(f"s_lshl_b32 {sT[0]}, {sG}, 1"); e(f"s_add_u32 {sT[0]}, {sT[0]}, {sW}"); e(f"s_sub_u32 {sT[0]}, {sT[0]}, 6")
        e(f"s_cmp_lt_u32 {sC}, 16"); e(f"s_cselect_b32 {sRole}, 3, {sRole}"); e(f"s_cselect_b32 {sIdx}, {sT[0]}, {sIdx}")
        if opts.get("xmap", False):
            e(f"s_lshl_b32 {sT[0]}, {sC}, 3"); e(f"s_add_u32 {sT[0]}, {sT[0]}, {sG}"); e(f"s_sub_u32 {sT[0]}, {sT[0]}, 64")
        else:
            e(f"s_mul_i32 {sT[0]}, {sG}, 7"); e(f"s_add_u32 {sT[0]}, {sT[0]}, {sC}"); e(f"s_sub_u32 {sT[0]}, {sT[0]}, 8")
        e(f"s_cmp_lt_u32 {sC}, 15"); e(f"s_cselect_b32 {sRole}, 2, {sRole}"); e(f"s_cselect_b32 {sIdx}, {sT[0]}, {sIdx}")
        e(f"s_cmp_lt_u32 {sC}, 8"); e(f"s_cselect_b32 {sRole}, 1, {sRole}"); e(f"s_cselect_b32 {sIdx}, {sC}, {sIdx}")
    A.raw("@@SERVICE_HEAD@@")

    A.label("L_stream")
    e("s_cmpk_ge_u32 s2, 256"); e("s_cbranch_scc1 L_end")
    e(f"s_and_b32 s7, {sOff}, 0x07e00000"); e(f"s_and_b32 {sOff}, {sOff}, 0x1fffff")
    e(f"v_add_u32 {vKo}, s7, {vKo}")
    e(f"v_add_u32 {vKo2}, 0x10000, {vKo}")
    vVs = "v0"
    NI = 16; NL = 8 * NI
    def slot(idx): return RBASE + 4 * (idx % RING)
    LR = opts.get("lrot", False)
    sQ = ["s40", "s41", "s42", "s43"]; sXq = ["s6", "s7", "s50", "s63"]
    def issue(s):
        n = s & 7
        if s >= 4:
            so, im = (sQ[n & 3], 0) if LR and (s % NL) >= 8 else (sOff, (n & 3) * 1024)
            if s < NL: e(f"buffer_load_dwordx4 {vr(slot(s))}, {vKo if n < 4 else vKo2}, {srdK}, {so} offen offset:{im} {opts.get('kvpol', 'nt')}")
            else: e(f"buffer_load_dwordx4 {vr(slot(s))}, {vVs if n < 4 else vVo2}, {srdV}, {so} offen offset:{im} {opts.get('kvpol', 'nt')}")
        if n == 7 and s + 1 < 2 * NL:
            e(f"s_add_u32 {sOff}, {sOff}, 0x20000"); e(f"s_bitset0_b32 {sOff}, 21")
            if LR and s + 1 != NL:
                for q in range(4): e(f"s_or_b32 {sQ[q]}, {sOff}, {sXq[q]}")
    tasks = []
    def task(need, frees, ins): tasks.append(dict(need=need, frees=frees, ins=ins))
    def xlane(op, r, tmp):
        return [f"v_{op}_f32_dpp {r}, {r}, {r} row_ror:8 {DPPF}", f"v_{op}_f32_dpp {r}, {r}, {r} row_ror:4 {DPPF}",
                f"v_mov_b32 {tmp}, {r}", f"v_permlane16_swap_b32 {tmp}, {r}", f"v_{op}_f32 {r}, {tmp}, {r}",
                f"v_mov_b32 {tmp}, {r}", f"v_permlane32_swap_b32 {tmp}, {r}", f"v_{op}_f32 {r}, {tmp}, {r}"]
    for i in range(NI):
        for n in range(8):
            task(8*i+n, [8*i+n], [f"v_mfma_f32_16x16x32_bf16 {vr(T+4*n)}, {vr(slot(8*i+n))}, {vr(BQ+4*(n&3))}, 0"])
        for t in range(2):
            ins = []
            for m in range(4):
                X = (vX0, vX1)[t]; Y = (vY0, vY1)[t]; D = T + 4 * (4*t+m)
                ins.append(f"v_add_f32_dpp {Y}, v{D+3}, v{D+1} row_ror:8 row_mask:0xf bank_mask:{1 << ((m+1)&3):#x}")
                ins.append(f"v_add_f32_dpp {X}, v{D+2}, v{D} row_ror:8 row_mask:0xf bank_mask:{1 << m:#x}")
            task(-1, [], ins)
        task(-1, [], [f"v_add_f32_dpp {vX0}, {vY0}, {vX0} row_ror:12 {DPPF}", f"v_add_f32_dpp {vX1}, {vY1}, {vX1} row_ror:12 {DPPF}",
                      f"v_cvt_pk_bf16_f32 {vY0}, {vX0}, {vX1}",
                      f"v_lshlrev_b32 {vX0}, 16, {vY0}", f"v_and_b32 {vX1}, 0xffff0000, {vY0}",
                      f"v_mul_f32 {vX0}, {sScale}, {vX0}", f"v_mul_f32 {vX1}, {sScale}, {vX1}",
                      f"v_cvt_pk_bf16_f32 v{SPK+i}, {vX0}, {vX1}",
                      f"v_lshlrev_b32 {vX0}, 16, v{SPK+i}", f"v_and_b32 {vX1}, 0xffff0000, v{SPK+i}",
                      (f"v_max_f32 {vML}, {vX0}, {vX1}" if i == 0 else f"v_max3_f32 {vML}, {vML}, {vX0}, {vX1}")])
    task(-1, [], xlane("max", vML, vb) + [f"v_mul_f32 {vML}, {sL2E}, {vML}"])
    task(-1, [], [f"v_mov_b32 v{PV_+k}, 0" for k in range(16)])
    for i in range(0, NI, 2):
        ins = []
        tmp = [(vX0, vX1), (vY0, vY1)]
        for k in range(2):
            a, b = tmp[k]; ins += [f"v_lshlrev_b32 {a}, 16, v{SPK+i+k}", f"v_and_b32 {b}, 0xffff0000, v{SPK+i+k}"]
        for k in range(2):
            a, b = tmp[k]; ins += [f"v_fma_f32 {a}, {a}, {sL2E}, -{vML}", f"v_fma_f32 {b}, {b}, {sL2E}, -{vML}"]
        for k in range(2):
            a, b = tmp[k]; ins += [f"v_exp_f32 {a}, {a}", f"v_exp_f32 {b}, {b}"]
        ins += [f"v_add_f32 {va}, {vX0}, {vX1}", f"v_cvt_pk_bf16_f32 v{SPK+i}, {vX0}, {vX1}", f"v_add_f32 {vb}, {vY0}, {vY1}", f"v_cvt_pk_bf16_f32 v{SPK+i+1}, {vY0}, {vY1}"]
        ins += [f"v_add_f32 {vL}, {va}, {vb}"] if i == 0 else [f"v_add_f32 {va}, {va}, {vb}", f"v_add_f32 {vL}, {vL}, {va}"]
        task(-1, [], ins)
    task(-1, [], xlane("add", vL, vb) + [f"ds_write_b64 {vMSa}, v[{M+6}:{M+7}]", f"v_mov_b32 {va}, {L_FLAG+4}", f"v_mov_b32 {vb}, 1",
                                         "s_mov_b64 exec, 1", f"ds_add_u32 {va}, {vb}", "s_mov_b64 exec, -1"])
    order = [0, 4, 1, 5, 2, 6, 3, 7]
    for i in range(NI):
        L0 = NL + 8 * i
        def perm(ee, k):
            rho = ee & 3; t = k >> 1
            n0 = 4 * t + ((rho + 2 * (k & 1)) & 3); n1 = 4 * t + ((rho + 2 * (k & 1) + 1) & 3)
            return f"v_perm_b32 v{T+4*ee+k}, v{slot(L0+n1)+(ee>>1)}, v{slot(L0+n0)+(ee>>1)}, {sSelHi if ee & 1 else sSelLo}"
        def mf(ee):
            ac = vr(ACC + 4 * (ee >> 2))
            return f"v_mfma_f32_16x16x32_bf16 {ac}, {vr(T+4*ee)}, {vr(PV_+4*(ee&3))}, {ac if (i or (ee & 3)) else 0}"
        ins = [f"v_mov_b32_dpp {vY0}, v{SPK+i} row_ror:12 {DPPF}",
               f"v_perm_b32 {vX0}, {vY0}, v{SPK+i}, {sSelLo}", f"v_perm_b32 {vX1}, {vY0}, v{SPK+i}, {sSelHi}"]
        for rho in range(4):
            bm = f"row_mask:0xf bank_mask:{1 << rho:#x}"
            ins += [f"v_mov_b32_dpp v{PV_+4*rho+0}, {vX0} quad_perm:[0,1,2,3] {bm}", f"v_mov_b32_dpp v{PV_+4*rho+1}, {vX0} row_ror:8 {bm}",
                    f"v_mov_b32_dpp v{PV_+4*rho+2}, {vX1} quad_perm:[0,1,2,3] {bm}", f"v_mov_b32_dpp v{PV_+4*rho+3}, {vX1} row_ror:8 {bm}"]
        task(-1, [], ins[:11]); task(-1, [], ins[11:])
        task(L0+3, [], [perm(ee, k) for ee in range(4) for k in range(2)])
        task(L0+3, [L0, L0+1, L0+2, L0+3], [perm(ee, k) for ee in range(4, 8) for k in range(2)])
        ins = []
        for idx, ee in enumerate(order):
            ins += [perm(ee, 2), perm(ee, 3)]
            if idx >= 1: ins.append(mf(order[idx - 1]))
        ins.append(mf(order[7]))
        task(L0+7, [], ins[:11]); task(L0+7, [L0+4, L0+5, L0+6, L0+7], ins[11:])

    def setup_misc():
        common(); common2()
        e(f"v_and_b32 {vVs}, 0xfffff000, {vKo}"); e(f"v_add_u32 {vVs}, {vVs}, {vVo}"); e(f"v_add_u32 {vVo2}, 0x10000, {vVs}")
        e(f"s_mov_b32 s38, {KV_BYTES}"); e("s_mov_b32 s39, 0x20000")
        for q in range(4): e(f"s_xor_b32 {sXq[q]}, {sW}, {q}"); e(f"s_lshl_b32 {sXq[q]}, {sXq[q]}, 10")
        e(f"s_mov_b32 {sScale}, 0x3db504f3")
        e(f"s_mov_b32 {sL2E}, 0x3fb8aa3b")
        e(f"v_and_b32 {vMSa}, 3, {vLane}"); e(f"v_lshlrev_b32 {vMSa}, 3, {vMSa}")
        e(f"s_lshl_b32 {sT[0]}, {sW}, 5"); e(f"s_add_u32 {sT[0]}, {sT[0]}, {L_MS}"); e(f"v_add_u32 {vMSa}, {sT[0]}, {vMSa}")
        e(f"v_and_b32 {va}, 3, {vLane}"); e(f"v_lshlrev_b32 {va}, 8, {va}")
        e(f"v_lshrrev_b32 {vb}, 4, {vLane}"); e(f"v_lshlrev_b32 {vb}, 6, {vb}")
        e(f"s_mov_b32 {sT[0]}, {L_Q}")
        e(f"v_add3_u32 {va}, {va}, {vb}, {sT[0]}")
        e(f"v_bfe_u32 {vb}, {vLane}, 2, 2")
        for m in range(4):
            e(f"v_subrev_u32 {vc}, {m}, {vb}"); e(f"v_and_b32 {vc}, 3, {vc}")
            e(f"v_lshl_add_u32 v{T+m}, {vc}, 4, {va}")
        e(f"s_lshl_b32 {sT[0]}, {sW}, 11"); e(f"s_add_u32 {sT[0]}, {sT[0]}, {L_ACC}")
        e(f"v_add_u32 v92, {sT[0]}, {vVo}")
        e(f"s_mov_b32 {sFF}, {FF[0]}")
        for r in (1, 2, 3): e(f"s_cmp_eq_u32 {sRole}, {r}"); e(f"s_cselect_b32 {sFF}, {FF[r]}, {sFF}")
        e(f"s_cmp_ge_u32 {sC}, {32 - 8 * opts.get('np', 2)}"); e(f"s_cselect_b32 {sT[0]}, {opts.get('ffq', 0x48)}, 0"); e(f"s_or_b32 {sFF}, {sFF}, {sT[0]}")
        e("s_waitcnt lgkmcnt(0)")
        e(f"s_mov_b32 s36, s{sV}"); e(f"s_mov_b32 s37, s{sV+1}")
        e(f"v_mov_b32 v94, {L_FLAG}"); e(f"v_cmp_eq_u32 vcc, 0, {vLane}"); e("v_cndmask_b32 v95, 0, 1, vcc"); e(f"v_mov_b32 {vS0}, 0"); e(f"v_mov_b32 {vS1}, 0")
    def emit_task(t):
        for x in t["ins"]:
            if opts.get("nocomp") and (x.startswith("v_perm") or x.startswith("v_mfma") or "_dpp" in x): continue
            e(x)
        return len(t["ins"])
    ti = 0; freed = set()
    IW = opts.get("iw", 0); iwk = [0]
    for s in range(2 * NL):
        if s == W0:
            setup_misc()
            e("s_barrier")
        if s == RING:
            stamp(1)
            lds_wait("L_qw", 0, 1, va, vb)
            for m in range(4): e(f"ds_read_b128 {vr(BQ+4*m)}, v{T+m}")
            stamp(2)
            e("s_waitcnt lgkmcnt(0)")
        if s >= RING:
            while (s - RING) not in freed:
                assert tasks[ti]["need"] <= s - 1 - W
                emit_task(tasks[ti]); freed.update(tasks[ti]["frees"]); ti += 1
        if s >= ENDS: e(f"s_waitcnt vmcnt({WHI-1})")
        elif s >= 8:
            e(f"s_waitcnt vmcnt({WHI-1})")
            e(f"s_cmp_eq_u32 {sLev}, 2"); e(f"s_cbranch_scc1 L_go{s}")
            A.opt(f"s_waitcnt vmcnt({W0-1})")
            A.opt(f"s_cmp_eq_u32 {sLev}, 1"); A.opt(f"s_cbranch_scc1 L_go{s}")
            A.opt(f"s_waitcnt vmcnt({WLO-1})")
            A.label(f"L_go{s}")
        elif s >= W0: e(f"s_waitcnt vmcnt({W0-1})")
        if debug and s == 4: e("s_memrealtime s[70:71]")
        if debug and s == W0: e("s_memrealtime s[72:73]")
        issue(s)
        if s == opts.get("qstart", 24): e("ds_add_u32 v94, v95 offset:36")
        SG = opts.get("sg", 180); CA, GA = opts.get("cka", (88, 120))
        if s in (SG, CA, GA, opts.get("spub", 152), opts.get("prerd", 0) or -1): e("ds_add_u32 v94, v95 offset:20")
        CP = opts.get("cper", 4)
        if (s % 8 == 7 or (s >= GA and s % CP == CP - 1)) and s + 1 < ENDS:
            dyn = s >= GA
            if dyn:
                e("s_waitcnt lgkmcnt(0)")
                e(f"v_readfirstlane_b32 {sHi}, {vS0}"); e(f"v_readfirstlane_b32 {sLo}, {vS1}")
                if IW and s >= IW + CP: e(f"v_readfirstlane_b32 {sT[6]}, {vf}")
                e(f"ds_read_b64 v[{M+4}:{M+5}], v94 offset:24")
                if IW and s >= IW: e(f"ds_add_rtn_u32 {vf}, v94, v95 offset:44"); iwk[0] += 1
            e(f"s_bitcmp1_b32 {sFF}, {(s+1)//8}"); e(f"s_cselect_b32 {sLev}, 2, 1")
            if dyn:
                e(f"s_cmpk_gt_i32 {sHi}, {s+CP//2}"); e(f"s_cselect_b32 {sLev}, 2, {sLev}")
                e(f"s_cmpk_gt_i32 {sLo}, {s+CP//2}"); e(f"s_cselect_b32 {sLev}, 0, {sLev}")
                if IW and s >= IW + CP:
                    e(f"s_cmpk_ge_u32 {sT[6]}, {4*(iwk[0]-2) + 3}"); e(f"s_addc_u32 {sLev}, {sLev}, 0"); e(f"s_min_u32 {sLev}, {sLev}, 2")
                    if opts.get("iwdown"):
                        e(f"s_cmpk_le_u32 {sT[6]}, {4*(iwk[0]-2)}"); e(f"s_subb_u32 {sLev}, {sLev}, 0"); e(f"s_max_i32 {sLev}, {sLev}, 0")
        if s >= RING:
            spent = 0
            while ti < len(tasks) and tasks[ti]["need"] <= s - W and (spent == 0 or spent + len(tasks[ti]["ins"]) <= BUDGET):
                spent += emit_task(tasks[ti]); freed.update(tasks[ti]["frees"]); ti += 1
        if debug and s == NL: e("s_memrealtime s[74:75]")
    landed = 2 * NL - 1 - W
    while ti < len(tasks):
        if tasks[ti]["need"] > landed:
            landed = tasks[ti]["need"]; e(f"s_waitcnt vmcnt({2*NL-1-landed})")
        emit_task(tasks[ti]); ti += 1
    stamp(3)
    e(f"ds_write_b128 v92, {vr(ACC)}"); e(f"ds_write_b128 v92, {vr(ACC+4)} offset:1024")
    e("s_waitcnt lgkmcnt(0)")
    e("s_barrier")
    stamp(4)
    e(f"s_cmp_eq_u32 {sRole}, 1"); e("s_cbranch_scc1 L_st1")
    e(f"s_cmp_eq_u32 {sRole}, 2"); e("s_cbranch_scc1 L_st2")
    e("s_branch L_fin")

    def poll(lbl, loads, regs, sleep=0):
        A.label(lbl)
        timeout()
        if sleep: e(f"s_sleep {sleep}")
        for l in loads: e(l)
        regs = list(regs)
        n = len(loads)
        for li in range(n):
            e(f"s_waitcnt vmcnt({n-1-li})")
            r = regs[4*li:4*li+4]
            for k in range(4): e(f"v_xor_b32 v{r[k]}, {sTB[k]}, v{r[k]}")
            if li == 0: e(f"v_or_b32 {va}, v{r[0]}, v{r[1]}"); e(f"v_or_b32 {vb}, v{r[2]}, v{r[3]}")
            else: e(f"v_or3_b32 {va}, {va}, v{r[0]}, v{r[1]}"); e(f"v_or3_b32 {vb}, {vb}, v{r[2]}, v{r[3]}")
        e(f"v_bitop3_b32 {va}, {va}, {vb}, {vMask} bitop3:0x54")
        e(f"v_cmp_ne_u32 vcc, 0, {va}")
        e(f"s_cbranch_vccnz {lbl}")
    MK = 8
    def mpoll_init(n):
        for k in range(n): e(f"s_mov_b64 s[{MK+2*k}:{MK+2*k+1}], -1")
    def mpoll(lbl, loads, regs):
        n = len(loads); regs = list(regs)
        A.label(lbl)
        timeout()
        if debug: e("s_mov_b32 s74, s98"); e("s_memrealtime s[98:99]")
        for k in range(n):
            e(f"s_mov_b64 exec, s[{MK+2*k}:{MK+2*k+1}]"); e(f"s_cbranch_execz {lbl}_0k{k}")
            e(loads[k])
            A.label(f"{lbl}_0k{k}")
        A.label(lbl + "_w")
        e("s_mov_b64 s[6:7], 0")
        e("s_waitcnt vmcnt(0) lgkmcnt(0)" if debug else "s_waitcnt vmcnt(0)")
        for k in range(n):
            e(f"s_mov_b64 exec, s[{MK+2*k}:{MK+2*k+1}]"); e(f"s_cbranch_execz {lbl}_1k{k}")
            r = regs[4*k:4*k+4]
            for j in range(4): e(f"v_xor_b32 v{r[j]}, {sTB[j]}, v{r[j]}")
            e(f"v_or3_b32 {va}, v{r[0]}, v{r[1]}, v{r[2]}"); e(f"v_bitop3_b32 {va}, {va}, v{r[3]}, {vMask} bitop3:0x54")
            e(f"v_cmp_ne_u32 s[{MK+2*k}:{MK+2*k+1}], 0, {va}")
            e(f"s_or_b64 s[6:7], s[6:7], s[{MK+2*k}:{MK+2*k+1}]")
            A.label(f"{lbl}_1k{k}")
        e("s_cmp_eq_u64 s[6:7], 0"); e(f"s_cbranch_scc0 {lbl}")
        e("s_mov_b64 exec, -1")
        A.fence()
    def tag4(b):
        for k in range(4): e(f"v_and_or_b32 v{b+k}, v{b+k}, {vMask}, {sTB[k]}")
    def get_tag():
        e(f"v_mov_b32 {va}, {L_FLAG+16}"); e(f"ds_read_b32 {va}, {va}"); e(f"v_mov_b32 {vMask}, 0xffffff00")
        e("s_waitcnt lgkmcnt(0)")
        e(f"v_readfirstlane_b32 {sTag}, {va}")
        for k in range(4): e(f"s_bfe_u32 {sTB[k]}, {sTag}, {(8 << 16) | (8 * k):#x}")
    def wfrag(dst, raw, nload, ldsoff):
        e(f"s_mul_i32 {sT[0]}, {sW}, {WPW}"); e(f"v_add_u32 {va}, {sT[0]}, {vVo}")
        for n in range(nload): e(f"ds_read_b128 {vr(raw+4*n)}, {va} offset:{ldsoff + 1024*n}")
        e("s_waitcnt lgkmcnt(0)")
        wperm(dst, raw, nload)
    def wperm(dst, raw, nload):
        h = nload // 2
        for ee in range(8):
            for k in range(h):
                e(f"v_perm_b32 v{dst+h*ee+k}, v{raw+4*(2*k+1)+(ee>>1)}, v{raw+4*(2*k)+(ee>>1)}, {sSelHi if ee & 1 else sSelLo}")
    def pk(a, b): e(f"v_pk_add_f32 v[{a}:{a+1}], v[{a}:{a+1}], v[{b}:{b+1}]")
    def add4(a, b): pk(a, b); pk(a + 2, b + 2)
    F1 = 128; RAW = 192; G = 12; DD = 160; F2 = 224
    def svc_join(lbl):
        e(f"s_cmp_lt_u32 {sW}, 4"); e(f"s_cbranch_scc1 {lbl}")
        e("s_call_b64 s[66:67], L_publish")
        A.label(lbl)

    def gu_fold():
        for k in range(4):
            e(f"v_add_f32_dpp v{12+k}, v{DD+4*k+1}, v{DD+4*k} row_ror:8 row_mask:0xf bank_mask:0x3")
        for k in range(4):
            e(f"v_add_f32_dpp v{12+k}, v{DD+4*(k+4)}, v{DD+4*(k+4)+1} row_ror:8 row_mask:0xf bank_mask:0xc")
    def rowsum(b):
        e(f"v_permlane32_swap_b32 v{b}, v{b+2}"); e(f"v_permlane32_swap_b32 v{b+1}, v{b+3}")
        pk(b, b + 2)
        e(f"v_permlane16_swap_b32 v{b}, v{b+1}"); e(f"v_add_f32 v{b}, v{b}, v{b+1}")
    def afrag(src, extra=()):
        e(f"v_mov_b32_dpp v53, {src} row_ror:14 {DPPF}")
        e(f"v_cvt_pk_bf16_f32 v52, {src}, v53")
        for x in extra: e(x)
        for k in (1, 2, 3): e(f"v_mov_b32_dpp v{52+k}, v52 row_ror:{16-4*k} {DPPF}")
    A.label("L_st1")
    e(f"v_lshrrev_b32 {vc}, 4, {vLane}"); e(f"v_lshlrev_b32 {vc}, 11, {vc}")
    e(f"v_and_b32 {vd}, 15, {vLane}"); e(f"v_lshl_add_u32 {vc}, {vd}, 4, {vc}")
    s1G, s1C = (sIdx, sG) if opts.get("s1swap", False) else (sG, sIdx)
    e(f"s_lshl_b32 {sT[0]}, {s1G}, 16"); e(f"s_add_u32 {sT[0]}, {sT[0]}, {WS_PART}")
    e(f"s_lshl_b32 {sT[1]}, {sW}, 8"); e(f"s_add_u32 {sT[0]}, {sT[0]}, {sT[1]}")
    if opts.get("s1rot", True):
        e(f"s_lshl_b32 {sT[1]}, {s1C}, 13"); e(f"s_add_u32 {sT[0]}, {sT[0]}, {sT[1]}")
    e(f"v_add_u32 v44, {sT[0]}, {vc}")
    for it in range(1, 8): e(f"v_xor_b32 v{44+it}, {4*PREC*it}, v44")
    ld1 = [f"global_load_dwordx4 {vr(G+4*it)}, v{44+it}, {sp(sWS)} sc1" for it in range(8)]
    e(f"s_cmp_lt_u32 {sW}, 4"); e("s_cbranch_scc0 L_s1a")
    e("s_barrier")
    for l in ld1: e(l)
    A.label("L_s1a")
    get_tag()
    if opts.get("wonat", True):
        e(f"v_bfe_u32 {va}, {vLane}, 3, 1"); e(f"v_lshlrev_b32 {va}, 14, {va}"); e(f"v_lshrrev_b32 {vb}, 4, {vLane}"); e(f"v_lshl_add_u32 {va}, {vb}, 10, {va}")
        e(f"v_and_b32 {vb}, 7, {vLane}"); e(f"v_lshl_add_u32 {va}, {vb}, 4, {va}")
        e(f"s_and_b32 {sT[0]}, {sW}, 3"); e(f"s_lshl_b32 {sT[0]}, {sT[0]}, 12"); e(f"s_and_b32 {sT[1]}, {sW}, 4"); e(f"s_lshl_b32 {sT[1]}, {sT[1]}, 7"); e(f"s_add_u32 {sT[0]}, {sT[0]}, {sT[1]}")
        e(f"v_add_u32 {va}, {sT[0]}, {va}")
        for n in range(8): e(f"ds_read_b128 {vr(RAW+4*n)}, {va} offset:{(256*(n&1) + (n>>1))*128}")
        e("s_waitcnt lgkmcnt(0)")
        wperm(F1, RAW, 8)
    else: wfrag(F1, RAW, 8, 0)
    e(f"s_lshl_b32 {sT[0]}, {sW}, 8"); e(f"s_add_u32 {sT[0]}, {sT[0]}, {L_RED}")
    e(f"v_and_b32 {vY0}, 7, {vLane}"); e(f"v_lshlrev_b32 {vY0}, 5, {vY0}"); e(f"v_and_b32 {vd}, 8, {vLane}"); e(f"v_lshl_add_u32 {vY0}, {vd}, 1, {vY0}"); e(f"v_add_u32 {vY0}, {sT[0]}, {vY0}")
    e(f"v_add_u32 {vY1}, {L_RED}, {vVo}")
    e(f"s_lshl_b32 {sT[0]}, {s1G}, 11"); e(f"s_lshl_b32 {sT[1]}, {s1C}, 8"); e(f"s_add_u32 {sT[0]}, {sT[0]}, {sT[1]}"); e(f"s_add_u32 {sT[0]}, {sT[0]}, {WS_A1}")
    e(f"v_add_u32 {vS0}, {sT[0]}, {vVo}")
    mpoll_init(8)
    e(f"s_cmp_lt_u32 {sW}, 4"); e("s_cbranch_scc1 L_poll1_w")
    e("s_call_b64 s[66:67], L_publish")
    mpoll("L_poll1", ld1, range(12, 44))
    stamp(6)
    add4(12, 16); add4(20, 24); add4(28, 32); add4(36, 40); add4(12, 20); add4(28, 36); add4(12, 28)
    rowsum(12)
    afrag("v12")
    for ee in range(8): e(f"v_mfma_f32_16x16x32_bf16 {vr(DD+4*ee)}, v[52:55], {vr(F1+4*ee)}, 0")
    gu_fold()
    e("s_mov_b64 exec, 0xffff")
    e(f"ds_write_b128 {vY0}, v[12:15]")
    e("s_waitcnt lgkmcnt(0)")
    e("s_barrier")
    if opts.get("wbl2"):
        e(f"s_cmp_eq_u32 {sW}, 1"); e("s_cbranch_scc0 L_nowb"); e(f"s_cmp_eq_u32 {sC}, 0"); e("s_cbranch_scc0 L_nowb")
        e("buffer_wbl2 sc1"); e("s_branch L_fin")
        A.label("L_nowb")
    e(f"s_cmp_eq_u32 {sW}, 0"); e("s_cbranch_scc0 L_fin")
    for w in range(8): e(f"ds_read_b128 {vr(12+4*w)}, {vY1} offset:{256*w}")
    for w in range(0, 8, 2):
        e(f"s_waitcnt lgkmcnt({6-w})")
        add4(12 + 4*w, 16 + 4*w)
        if w in (2, 6): add4(12 + 4*(w-2), 12 + 4*w)
    add4(12, 28)
    tag4(12)
    e(f"global_store_dwordx4 {vS0}, v[12:15], {sp(sWS)} sc1")
    stamp(7)
    e("s_branch L_fin")

    LATE = opts.get("latedown", True)
    def down_addr():
        e(f"v_lshrrev_b32 v8, 4, {vLane}"); e("v_lshlrev_b32 v8, 10, v8")
        e(f"v_and_b32 v7, 15, {vLane}"); e("v_lshl_add_u32 v8, v7, 4, v8")
        e(f"s_lshl_b32 {sT[2]}, {sIdx}, 15"); e(f"s_and_b32 {sT[3]}, {sW}, 3"); e(f"s_lshl_b32 {sT[3]}, {sT[3]}, 8"); e(f"s_add_u32 {sT[2]}, {sT[2]}, {sT[3]}")
        e(f"s_add_u32 {sT[2]}, {sT[2]}, 4096"); e(f"v_add_u32 v8, {sT[2]}, v8")
        for k in range(1, 4): e(f"v_add_u32 v{8+k}, {8192*k}, v8")
    def down_loads():
        for ep in range(8):
            e(f"global_load_dwordx4 {vr(RAW+4*ep)}, v{8+(ep>>1)}, {sp(sWD)} offset:{4096*(ep&1) - 4096} {opts.get('lpol', 'nt')}")
    def gu_addr(sw):
        e(f"v_lshrrev_b32 v5, 4, {vLane}"); e(f"v_bfe_u32 v6, {vLane}, 3, 1"); e("v_lshl_add_u32 v5, v6, 2, v5")
        e(f"s_lshl_b32 {sT[2]}, {sw}, 6"); e(f"v_add_u32 v5, {sT[2]}, v5")
        e("v_mul_u32_u24 v5, 3584, v5")
        e(f"v_and_b32 v6, 3, {vLane}"); e("v_lshlrev_b32 v6, 4, v6")
        e(f"s_lshl_b32 {sT[2]}, {sIdx}, 6"); e(f"v_add3_u32 v5, v5, v6, {sT[2]}")
        e(f"v_and_b32 v6, 4, {vLane}"); e("v_cmp_eq_u32 vcc, 0, v6")
        e(f"v_mov_b32 v6, s{sWU}"); e(f"v_mov_b32 v4, s{sWG}"); e("v_cndmask_b32 v6, v6, v4, vcc")
        e(f"v_mov_b32 v7, s{sWU+1}"); e(f"v_mov_b32 v4, s{sWG+1}"); e("v_cndmask_b32 v7, v7, v4, vcc")
        e("v_add_co_u32 v6, vcc, v6, v5"); e("v_addc_co_u32 v7, vcc, 0, v7, vcc")
    NLATE = opts.get("nlate", 5)
    A.label("L_st2")
    def gu_loads():
        for ep in range(8):
            e(f"global_load_dwordx4 {vr(96+4*ep)}, v[6:7], off {opts.get('lpol', 'nt')}")
            if ep < 7: e(f"v_add_co_u32 v6, vcc, {3584*8}, v6"); e("v_addc_co_u32 v7, vcc, 0, v7, vcc")
    e(f"s_cmp_lt_u32 {sW}, 4"); e("s_cbranch_scc0 L_s2a")
    if NLATE > 4: gu_addr(sW)
    e("s_barrier")
    if NLATE > 4:
        e(f"s_cmp_lt_u32 {sW}, {8 - NLATE}"); e("s_cbranch_scc1 L_s2a")
        gu_loads()
    A.label("L_s2a")
    get_tag()
    e(f"v_and_b32 {vc}, 15, {vLane}")
    e(f"s_lshl_b32 {sT[0]}, {sW}, 4"); e(f"v_add_u32 {vc}, {sT[0]}, {vc}")
    e(f"v_lshrrev_b32 {vf}, 4, {vLane}"); e(f"v_lshl_add_u32 {vd}, {vc}, 2, {vf}"); e(f"v_lshlrev_b32 {vd}, 1, {vd}")
    e(f"global_load_ushort v28, {vd}, {sp(sX)}")
    wfrag(F1, RAW, 8, 0)
    e(f"v_lshlrev_b32 {vd}, 11, {vf}")
    e(f"v_lshl_add_u32 v36, {vc}, 4, {vd}"); e(f"v_add_u32 v36, {WS_A1}, v36")
    e(f"v_add_u32 v37, 8192, v36")
    e(f"s_lshl_b32 {sT[0]}, {sW}, 3"); e(f"s_add_u32 {sT[0]}, {sT[0]}, {L_STAT}"); e(f"v_mov_b32 v40, {sT[0]}")
    e(f"v_bfe_u32 v41, {vLane}, 1, 3"); e("v_lshlrev_b32 v41, 3, v41"); e(f"v_add_u32 v41, {L_STAT}, v41")
    e(f"v_mov_b32 v30, {L_STAT}")
    e(f"s_lshl_b32 {sT[0]}, {sW}, 8"); e(f"s_add_u32 {sT[0]}, {sT[0]}, {L_RED}")
    e(f"v_and_b32 v42, 7, {vLane}"); e("v_lshlrev_b32 v42, 5, v42"); e(f"v_and_b32 {vd}, 8, {vLane}"); e(f"v_lshl_add_u32 v42, {vd}, 1, v42"); e(f"v_add_u32 v42, {sT[0]}, v42")
    e(f"v_add_u32 v43, {L_RED}, {vVo}")
    e(f"s_lshl_b32 {sT[0]}, {sIdx}, 11"); e(f"s_and_b32 {sT[1]}, {sW}, 3"); e(f"s_lshl_b32 {sT[1]}, {sT[1]}, 9"); e(f"s_add_u32 {sT[0]}, {sT[0]}, {sT[1]}"); e(f"s_add_u32 {sT[0]}, {sT[0]}, {WS_D2}")
    e(f"v_and_b32 {vS0}, 15, {vLane}"); e(f"v_lshlrev_b32 {vS0}, 4, {vS0}"); e(f"v_lshrrev_b32 {vd}, 5, {vLane}"); e(f"v_lshlrev_b32 {vd}, 8, {vd}"); e(f"v_add3_u32 {vS0}, {vS0}, {vd}, {sT[0]}")
    e("s_waitcnt vmcnt(0)")
    e("v_lshlrev_b32 v32, 16, v28")
    if NLATE > 4:
        e(f"s_cmp_lt_u32 {sW}, {8 - NLATE}"); e("s_cbranch_scc1 L_j2")
        e(f"s_cmp_lt_u32 {sW}, 4"); e("s_cbranch_scc1 L_j2b")
    else:
        e(f"s_cmp_lt_u32 {sW}, 4"); e("s_cbranch_scc1 L_j2")
    down_addr()
    gu_addr(sW)
    e("s_call_b64 s[66:67], L_publish")
    if NLATE:
        e(f"s_cmp_lt_u32 {sW}, {8 - NLATE}"); e("s_cbranch_scc1 L_j2a")
        gu_loads()
        down_loads()
        e("s_waitcnt vmcnt(8)")
        A.label("L_j2b")
        wperm(F1, 96, 8)
        e("s_branch L_j2")
        A.label("L_j2a")
    down_loads()
    A.label("L_j2")
    for k in range(4): e(f"v_mov_b32 v{52+k}, 0x3f803f80")
    for ee in range(8): e(f"v_mfma_f32_16x16x32_bf16 {vr(DD+4*ee)}, v[52:55], {vr(F1+4*ee)}, 0")
    gu_fold()
    e("s_mov_b64 exec, 0xffff"); e("ds_write_b128 v42, v[12:15] offset:2048"); e("s_mov_b64 exec, -1")
    e("s_waitcnt lgkmcnt(0)")
    e("s_barrier")
    CS = 64
    e(f"s_cmp_lt_u32 {sW}, 4"); e("s_cbranch_scc1 L_poll2")
    e(f"ds_read_b128 {vr(CS)}, v43 offset:2048"); e(f"ds_read_b128 {vr(CS+4)}, v43 offset:{2048+1024}")
    e("s_waitcnt lgkmcnt(0)")
    add4(CS, CS + 4); rowsum(CS)
    e("s_waitcnt vmcnt(0)")
    wperm(F2, RAW, 8)
    stamp(2)
    poll("L_poll2", [f"global_load_dwordx4 {vr(G+4*it)}, v{36+it}, {sp(sWS)} sc1" for it in range(2)], range(12, 20))
    stamp(6)
    add4(12, 16)
    rowsum(12)
    def rnd4(b, t):
        e(f"v_cvt_pk_bf16_f32 v{t}, v{b}, v{b+1}"); e(f"v_cvt_pk_bf16_f32 v{t+1}, v{b+2}, v{b+3}")
        e(f"v_lshlrev_b32 v{b}, 16, v{t}"); e(f"v_and_b32 v{b+1}, 0xffff0000, v{t}")
        e(f"v_lshlrev_b32 v{b+2}, 16, v{t+1}"); e(f"v_and_b32 v{b+3}, 0xffff0000, v{t+1}")
    e("v_cvt_pk_bf16_f32 v12, v12, v12"); e("v_lshlrev_b32 v12, 16, v12"); e("v_add_f32 v12, v32, v12")
    afrag("v12", ["v_lshlrev_b32 v20, 16, v52"])
    e(f"v_readfirstlane_b32 {sT[2]}, v20")
    st = [f"v_subrev_f32 v20, {sT[2]}, v20", "v_mul_f32 v21, v20, v20",
          "v_permlane32_swap_b32 v20, v21", "v_add_f32 v20, v20, v21", "v_mov_b32 v21, v20",
          "v_permlane16_swap_b32 v21, v20", "v_add_f32 v20, v20, v21"]
    st += [f"v_add_f32_dpp v20, v20, v20 row_ror:{k} {DPPF}" for k in (8, 4, 2, 1)]
    st += [f"v_readlane_b32 {sT[3]}, v20, 32", "v_mul_f32 v21, 0x3c800000, v20", f"v_add_f32 v22, {sT[2]}, v21", f"v_fma_f32 v23, -v21, v20, {sT[3]}"]
    cuts = [0, 2, 5, 7, 8, 9, 10, 11, len(st)]
    for ee in range(8):
        e(f"v_mfma_f32_16x16x32_bf16 {vr(DD+4*ee)}, v[52:55], {vr(F1+4*ee)}, 0")
        for x in st[cuts[ee]:cuts[ee+1]]: e(x)
    gu_fold()
    e("s_mov_b64 exec, 0xffff")
    e("ds_write_b64 v40, v[22:23]")
    e("ds_write_b128 v42, v[12:15]")
    e("s_mov_b64 exec, -1")
    e("s_waitcnt lgkmcnt(0)")
    e("s_barrier")
    e(f"s_cmp_lt_u32 {sW}, 4"); e("s_cbranch_scc1 L_fin")
    e("ds_read_b64 v[20:21], v41"); e("ds_read_b32 v22, v30")
    e("ds_read_b128 v[12:15], v43"); e("ds_read_b128 v[16:19], v43 offset:1024")
    e("s_waitcnt lgkmcnt(2)")
    e("v_sub_f32 v20, v20, v22"); e("v_mul_f32 v23, 0x42800000, v20"); e("v_fmac_f32 v21, v23, v20")
    e(f"v_add_f32_dpp v20, v20, v20 row_ror:8 {DPPF}")
    e("s_waitcnt lgkmcnt(0)")
    e(f"v_add_f32_dpp v21, v21, v21 row_ror:8 {DPPF}")
    pk(12, 16)
    e(f"v_add_f32_dpp v20, v20, v20 row_ror:4 {DPPF}")
    pk(14, 18)
    e(f"v_add_f32_dpp v21, v21, v21 row_ror:4 {DPPF}")
    e(f"v_add_f32_dpp v20, v20, v20 row_ror:2 {DPPF}")
    e("v_permlane32_swap_b32 v12, v14")
    e(f"v_add_f32_dpp v21, v21, v21 row_ror:2 {DPPF}")
    e("v_permlane32_swap_b32 v13, v15")
    e("v_mul_f32 v23, 0x41000000, v20"); e("v_fma_f32 v21, -v23, v20, v21"); e("v_fmac_f32 v22, 0x3e000000, v20"); e("v_mul_f32 v21, 0x3b000000, v21")
    e("v_cvt_pk_bf16_f32 v23, v22, v21"); e("v_and_b32 v21, 0xffff0000, v23"); e("v_add_f32 v21, 0x3727c5ac, v21")
    e("v_cvt_pk_bf16_f32 v24, v21, v21"); e("v_lshlrev_b32 v21, 16, v24"); e("v_sqrt_f32 v21, v21")
    pk(12, 14)
    e("v_cvt_pk_bf16_f32 v24, v21, v21"); e("v_lshlrev_b32 v21, 16, v24"); e("v_rcp_f32 v21, v21")
    e("v_permlane16_swap_b32 v12, v13"); e("v_lshlrev_b32 v22, 16, v23"); e("v_add_f32 v12, v12, v13")
    e(f"v_fma_f32 v12, -v22, v{CS}, v12"); e("v_mul_f32 v12, v21, v12")
    e("v_cvt_pk_bf16_f32 v12, v12, v12"); e("v_lshlrev_b32 v12, 16, v12")
    e(f"v_mul_f32_dpp v12, v12, v12 row_ror:8 {DPPF}")
    e(f"v_mov_b32_dpp v53, v12 row_ror:15 {DPPF}")
    e("v_cvt_pk_bf16_f32 v52, v12, v53")
    for k in (1, 2, 3): e(f"v_mov_b32_dpp v{52+k}, v52 row_ror:{16-2*k} {DPPF}")
    for ee in range(8): e(f"v_mfma_f32_16x16x32_bf16 {vr(DD+4*ee)}, v[52:55], {vr(F2+4*ee)}, 0")
    for k in range(4): e(f"v_and_or_b32 v{12+k}, v{DD+4*k}, {vMask}, {sTB[k]}")
    e("s_mov_b32 exec_lo, 0"); e("s_mov_b32 exec_hi, 0xffff")
    for k in range(4): e(f"v_and_or_b32 v{12+k}, v{DD+4*(k+4)}, {vMask}, {sTB[k]}")
    e("s_mov_b32 exec_lo, 0xffff")
    e(f"global_store_dwordx4 {vS0}, v[12:15], {sp(sWS)} sc1")
    e("s_mov_b64 exec, -1")
    stamp(7)
    e("s_branch L_fin")
    def ln_finish(vm, vv, t):
        e(f"v_cvt_pk_bf16_f32 {t}, {vm}, {vv}")
        e(f"v_lshlrev_b32 {vm}, 16, {t}"); e(f"v_and_b32 {vv}, 0xffff0000, {t}")
        e(f"v_add_f32 {vv}, 0x3727c5ac, {vv}")
        e(f"v_cvt_pk_bf16_f32 {t}, {vv}, {vv}"); e(f"v_lshlrev_b32 {vv}, 16, {t}")
        e(f"v_sqrt_f32 {vv}, {vv}")
        e(f"v_cvt_pk_bf16_f32 {t}, {vv}, {vv}"); e(f"v_lshlrev_b32 {vv}, 16, {t}")
        e(f"v_rcp_f32 {vv}, {vv}")

    A.label("L_st3")
    get_tag()
    e(f"s_lshr_b32 {sT[1]}, {sIdx}, 2"); e(f"s_lshl_b32 {sT[1]}, {sT[1]}, 7"); e(f"s_and_b32 {sT[0]}, {sIdx}, 1"); e(f"s_lshl_b32 {sT[0]}, {sT[0]}, 6"); e(f"s_add_u32 {sT[1]}, {sT[1]}, {sT[0]}")
    e(f"s_and_b32 {sT[0]}, {sIdx}, 2"); e(f"s_lshl_b32 {sT[0]}, {sT[0]}, 1"); e(f"s_add_u32 {sT[1]}, {sT[1]}, {sT[0]}")
    e(f"v_and_b32 {vc}, 7, {vLane}"); e(f"v_lshlrev_b32 v45, 3, {vc}"); e(f"v_add_u32 v45, {sT[1]}, v45")
    e(f"v_lshrrev_b32 {vf}, 4, {vLane}"); e(f"v_add_lshl_u32 {vS0}, v45, {vf}, 1")
    e(f"global_load_ushort v60, {vS0}, {sp(sX)}")
    e(f"v_lshrrev_b32 {vd}, 3, {vLane}"); e(f"v_lshlrev_b32 {vd}, 11, {vd}")
    e(f"v_lshl_add_u32 v44, v45, 2, {vd}"); e(f"v_add_u32 v44, {WS_A1}, v44")
    e(f"v_lshl_add_u32 {vd}, {vc}, 4, {vd}")
    e(f"s_lshl_b32 {sT[0]}, {sIdx}, 7"); e(f"v_add_u32 {vd}, {sT[0]}, {vd}")
    for it in range(7): e(f"v_add_u32 v{46+it}, {WS_D2 + 16384*it}, {vd}")
    e("s_barrier")
    e("s_barrier")
    e(f"v_mov_b32 v61, {sTag}"); e("v_mov_b32 v62, 0")
    def red4(b):
        e(f"v_permlane32_swap_b32 v{b}, v{b+2}"); e(f"v_permlane32_swap_b32 v{b+1}, v{b+3}")
        e(f"v_add_f32 v{b}, v{b}, v{b+2}"); e(f"v_add_f32 v{b+1}, v{b+1}, v{b+3}")
        e(f"v_permlane16_swap_b32 v{b}, v{b+1}"); e(f"v_add_f32 v{b}, v{b}, v{b+1}")
        e(f"v_add_f32_dpp v{b}, v{b}, v{b} row_ror:8 {DPPF}")
    poll("L_poll3a", [f"global_load_dwordx4 v[12:15], v44, {sp(sWS)} sc1"], range(12, 16))
    red4(12)
    e("v_cvt_pk_bf16_f32 v12, v12, v12"); e("v_lshlrev_b32 v12, 16, v12"); e("v_lshlrev_b32 v60, 16, v60")
    e("v_add_f32 v60, v60, v12"); e("v_cvt_pk_bf16_f32 v60, v60, v60"); e("v_lshlrev_b32 v60, 16, v60")
    stamp(6)
    if opts.get("m3", False): mpoll_init(7)
    (mpoll if opts.get("m3", False) else poll)("L_poll3b", [f"global_load_dwordx4 {vr(12+4*it)}, v{46+it}, {sp(sWS)} sc1" for it in range(7)], range(12, 40))
    for a, b in ((12, 16), (20, 24), (28, 32), (12, 20), (28, 36), (12, 28)): add4(a, b)
    red4(12)
    e("v_cvt_pk_bf16_f32 v12, v12, v12"); e("v_lshlrev_b32 v12, 16, v12")
    e("v_add_f32 v12, v60, v12")
    if opts.get("probe"):
        lo, hi = opts["probe"]
        e("s_memrealtime s[82:83]"); e("s_waitcnt lgkmcnt(0)"); e("s_sub_u32 s82, s82, s80")
        e(f"s_sub_u32 s83, s82, {lo}"); e(f"s_cmp_lt_u32 s83, {hi - lo}"); e("s_cbranch_scc1 L_pok")
        for _ in range(16): e("s_sleep 127")
        A.label("L_pok")
    e("v_cvt_pk_bf16_f32 v12, v12, v12")
    e("s_mov_b32 exec_lo, 0x00ff00ff"); e("s_mov_b32 exec_hi, 0x00ff00ff")
    e(f"global_store_short {vS0}, v12, {sp(sOUT)} {opts.get('opol', '')}")
    e(f"s_cmp_eq_u32 {sIdx}, 0"); e("s_cbranch_scc0 L_noep")
    e("s_mov_b64 exec, 1")
    e(f"global_store_dword v62, v61, {sp(sWS)} {opts.get('opol', '')}")
    A.label("L_noep")
    e("s_mov_b64 exec, -1")
    stamp(7)

    A.label("L_fin")
    if debug:
        e("s_mov_b64 exec, -1")
        e("s_waitcnt vmcnt(0) lgkmcnt(0)")
        e("s_memrealtime s[96:97]"); e("s_memtime s[6:7]")
        e("s_waitcnt lgkmcnt(0)")
        e("s_sub_u32 s6, s6, s100"); e("v_mov_b32 v18, s6")
        e(f"s_lshl_b32 {sT[0]}, {sId}, 3"); e(f"s_add_u32 {sT[0]}, {sT[0]}, {sW}"); e(f"s_lshl_b32 {sT[0]}, {sT[0]}, 6"); e(f"s_add_u32 {sT[0]}, {sT[0]}, {WS_STAMP}")
        e(f"v_mov_b32 v20, {sT[0]}")
        for i in range(9): e(f"v_mov_b32 v{4+i}, s{80+2*i}")
        e("s_getreg_b32 s52, hwreg(HW_REG_XCC_ID)"); e("v_mov_b32 v13, s52"); e("v_mov_b32 v14, s70"); e("v_mov_b32 v15, s72"); e("v_mov_b32 v16, s74"); e("v_mov_b32 v17, s98"); e("v_mov_b32 v19, s73")
        e("s_mov_b64 exec, 1")
        for i in range(4): e(f"global_store_dwordx4 v20, v[{4+4*i}:{7+4*i}], {sp(sWS)} offset:{16*i}")
    A.label("L_end")
    e("s_endpgm")

    A.label("L_publish")
    e(f"v_and_b32 {va}, 3, {vLane}"); e(f"v_lshlrev_b32 {va}, 3, {va}"); e(f"v_add_u32 {va}, {L_MS}, {va}")
    for w in range(4): e(f"ds_read_b32 v{56+2*w}, {va} offset:{32*w}")
    e(f"ds_read_b64 v[64:65], {va} offset:{L_GS - L_MS}")
    e(f"v_mov_b32 {vb}, {L_FLAG+40}"); e(f"ds_read_b32 {vb}, {vb}")
    e(f"s_and_b32 {sT[0]}, {sW}, 1"); e(f"s_lshl_b32 {sT[0]}, {sT[0]}, 10")
    e(f"s_lshl_b32 {sT[1]}, {sId}, 11"); e(f"s_add_u32 {sT[1]}, {sT[1]}, {WS_PART}"); e(f"s_add_u32 {sT[1]}, {sT[1]}, {sT[0]}")
    e(f"s_add_u32 {sT[0]}, {sT[0]}, {L_ACC}")
    e("s_waitcnt lgkmcnt(0)")
    e(f"v_readfirstlane_b32 {sT[2]}, {vb}")
    for w in range(4): e(f"v_sub_f32 v{56+2*w}, v{56+2*w}, v64")
    for w in range(4): e(f"v_exp_f32 v{56+2*w}, v{56+2*w}")
    for w in range(4): e(f"v_mul_f32 v{56+2*w}, v{56+2*w}, v65")
    for w in range(4): e(f"v_mov_b32 v{57+2*w}, v{56+2*w}")
    e(f"v_add_u32 {va}, {sT[0]}, {vVo}"); e(f"v_add_u32 {vb}, {sT[1]}, {vVo}")
    if opts.get("prerd", 0):
        e(f"s_cmp_gt_u32 {sW}, 5"); e("s_cbranch_scc1 L_nopre")
        e(f"s_cmp_eq_u32 {sT[2]}, 0"); e("s_cbranch_scc0 L_nopre")
        lds_wait("L_pw", 20, 17, "v12", "v13", sleep=4)
        e(f"global_load_dwordx4 v[12:15], {vb}, {sp(sWS)} {opts.get('prepol', 'nt')}")
        e("s_waitcnt vmcnt(0)")
        A.label("L_nopre")
    e("s_barrier")
    stamp(4)
    e(f"s_cmp_gt_u32 {sW}, 5"); e("s_cbranch_scc1 L_pubret")
    for w in range(4): e(f"ds_read_b128 {vr(12+4*w)}, {va} offset:{2048*w}")
    for w in range(4):
        e(f"s_waitcnt lgkmcnt({3-w})")
        for r in (0, 2):
            if w == 0: e(f"v_pk_mul_f32 v[{12+r}:{13+r}], v[{12+r}:{13+r}], v[56:57]")
            else: e(f"v_pk_fma_f32 v[{12+r}:{13+r}], v[{12+4*w+r}:{13+4*w+r}], v[{56+2*w}:{57+2*w}], v[{12+r}:{13+r}]")
    tag4(12)
    e(f"s_cmp_eq_u32 {sT[2]}, 0"); e("s_cbranch_scc1 L_publ")
    e(f"global_store_dwordx4 {vb}, v[12:15], {sp(sWS)} sc1"); e("s_branch L_pubd")
    A.label("L_publ")
    e(f"global_store_dwordx4 {vb}, v[12:15], {sp(sWS)}")
    A.label("L_pubd")
    stamp(5)
    A.label("L_pubret")
    e("s_barrier")
    e("s_setpc_b64 s[66:67]")
    A.fence()

    def tag_from(v):
        e(f"v_readfirstlane_b32 {sTag}, {v}")
        e(f"s_add_u32 {sTag}, {sTag}, 0x01010101")
        for k in range(4): e(f"s_bfe_u32 {sTB[k]}, {sTag}, {(8 << 16) | (8 * k):#x}")
    NP = opts.get("np", 2); C0 = 32 - 8 * NP
    DW = opts.get("dmawin", 1)
    def thr(): e(f"s_waitcnt vmcnt({DW-1})")
    A.label("L_sv4")
    if opts.get("pre0"):
        e(f"s_cmp_lt_u32 {sW}, 6"); e("s_cbranch_scc1 L_nopre0")
        e(f"s_lshl_b32 {sT[0]}, {sId}, 1"); e(f"s_add_u32 {sT[0]}, {sT[0]}, {sW}"); e(f"s_lshl_b32 {sT[0]}, {sT[0]}, 10"); e(f"s_add_u32 {sT[0]}, {sT[0]}, {WS_PART - 6144}")
        e(f"v_add_u32 v5, {sT[0]}, {vVo}")
        e(f"global_load_dwordx4 v[56:59], v5, {sp(sWS)}")
        A.label("L_nopre0")
    if opts.get("touch", False):
        e(f"s_cmp_eq_u32 {sW}, 7"); e("s_cbranch_scc0 L_notouch")
        e(f"v_lshlrev_b32 v5, 16, {vLane}"); e(f"s_lshl_b32 {sT[0]}, s2, 19"); e(f"v_add_u32 v5, {sT[0]}, v5")
        e("s_mov_b64 exec, 0xff")
        e(f"global_load_dword v6, v5, {sp(sV)} nt")
        e("s_mov_b64 exec, 1")
        e(f"global_load_dword v7, v9, {sp(sOUT)} nt")
        e("s_mov_b64 exec, -1")
        e("s_waitcnt vmcnt(0)")
        A.label("L_notouch")
    if opts.get("dmaq", False): lds_wait("L_dq", 0, 1, va, vb, sleep=8)
    A.label("L_down")
    A.label("L_nodown")
    ND = opts.get("ndma", 3)
    if ND < 4: e(f"s_cmp_eq_u32 {sW}, 4"); e("s_cbranch_scc1 L_stats")
    if ND == 2: e(f"s_cmp_eq_u32 {sW}, 5"); e("s_cbranch_scc1 L_wdone")
    e(f"s_sub_u32 {sWW}, {sW}, {8 - ND}")
    if opts.get("nodma"): e("s_branch L_wdone")
    e(f"s_cmp_eq_u32 {sRole}, 1"); e("s_cbranch_scc0 L_now1")
    e(f"s_mov_b32 s40, s{sWO}"); e(f"s_mov_b32 s41, s{sWO+1}"); e(f"s_mov_b32 s42, {4096*1024}"); e("s_mov_b32 s43, 0x20000")
    if opts.get("wonat", True):
        e(f"v_lshrrev_b32 v5, 3, {vLane}"); e("v_lshlrev_b32 v5, 10, v5")
        e(f"v_and_b32 v7, 7, {vLane}"); e("v_lshl_add_u32 v5, v7, 4, v5")
        e(f"s_lshl_b32 {sT[2]}, {s1G}, 19"); e(f"s_lshl_b32 {sT[3]}, {s1C}, 7"); e(f"s_add_u32 {sT[2]}, {sT[2]}, {sT[3]}")
        e(f"s_lshl_b32 {sT[3]}, {sWW}, 13"); e(f"s_add_u32 {sT[2]}, {sT[2]}, {sT[3]}"); e(f"s_lshl_b32 {sT[1]}, {sWW}, 10")
        A.label("L_dma1")
        e(f"s_mov_b32 m0, {sT[1]}")
        e(f"s_waitcnt vmcnt({opts.get('wowin', 4) - 1})")
        if not opts.get("nowo"): e(f"buffer_load_dwordx4 v5, {srdW}, {sT[2]} offen nt lds")
        e(f"s_add_u32 {sT[2]}, {sT[2]}, {ND*8192}"); e(f"s_add_u32 {sT[1]}, {sT[1]}, {ND*1024}")
        e(f"s_cmp_lt_u32 {sT[1]}, 65536"); e("s_cbranch_scc1 L_dma1")
    else:
        e(f"v_bfe_u32 v5, {vLane}, 3, 1"); e("v_lshlrev_b32 v5, 17, v5")
        e(f"v_lshrrev_b32 v6, 4, {vLane}"); e("v_lshlrev_b32 v6, 13, v6")
        e(f"v_and_b32 v7, 7, {vLane}"); e("v_lshlrev_b32 v7, 4, v7")
        e("v_add3_u32 v5, v5, v6, v7")
        A.label("L_dma1")
        e(f"s_mul_i32 {sT[1]}, {sWW}, {WPW}")
        e(f"s_lshl_b32 {sT[2]}, {s1G}, 9")
        e(f"s_and_b32 {sT[3]}, {sWW}, 3"); e(f"s_lshl_b32 {sT[3]}, {sT[3]}, 5"); e(f"s_add_u32 {sT[2]}, {sT[2]}, {sT[3]}")
        e(f"s_and_b32 {sT[3]}, {sWW}, 4"); e(f"s_add_u32 {sT[2]}, {sT[2]}, {sT[3]}")
        e(f"s_lshl_b32 {sT[2]}, {sT[2]}, 10")
        e(f"s_lshl_b32 {sT[3]}, {s1C}, 7"); e(f"s_add_u32 {sT[2]}, {sT[2]}, {sT[3]}")
        if opts.get("worot", True):
            e(f"s_add_u32 {sT[3]}, {sG}, {sWW}"); e(f"s_and_b32 {sT[3]}, {sT[3]}, 3"); e(f"s_lshl_b32 {sT[3]}, {sT[3]}, 10")
            e(f"s_add_u32 {sT[2]}, {sT[2]}, {sT[3]}"); e(f"s_lshl_b32 {sT[3]}, {sT[3]}, 1"); e(f"s_add_u32 {sT[1]}, {sT[1]}, {sT[3]}")
        for ep in range(8):
            e(f"s_xor_b32 {sT[3]}, {sT[2]}, {(256*(ep&1) + (ep>>1))*1024}")
            e(f"s_xor_b32 m0, {sT[1]}, {ep*1024}")
            e(f"s_waitcnt vmcnt({opts.get('wowin', 4) - 1})")
            if not opts.get("nowo"): e(f"buffer_load_dwordx4 v5, {srdW}, {sT[3]} offen nt lds")
        e(f"s_add_u32 {sWW}, {sWW}, {ND}"); e(f"s_cmp_lt_u32 {sWW}, 8"); e("s_cbranch_scc1 L_dma1")
    e("s_branch L_wdone")
    A.label("L_now1")
    e(f"s_cmp_eq_u32 {sRole}, 2"); e("s_cbranch_scc0 L_wdone")
    e(f"s_cmp_lt_u32 {sWW}, {8 - NLATE}"); e("s_cbranch_scc0 L_wdone")
    gu_addr(sWW)
    A.label("L_dma2")
    e(f"s_mul_i32 {sT[1]}, {sWW}, {WPW}")
    for ep in range(8):
        e(f"s_add_u32 m0, {sT[1]}, {ep*1024}")
        thr()
        e(f"global_load_lds_dwordx4 v[6:7], off {opts.get('gupol', 'nt')}")
        e(f"v_add_co_u32 v6, vcc, {3584*8 if ep < 7 else 3584*(64*ND-56)}, v6"); e("v_addc_co_u32 v7, vcc, 0, v7, vcc")
    e(f"s_add_u32 {sWW}, {sWW}, {ND}"); e(f"s_cmp_lt_u32 {sWW}, {8 - NLATE}"); e("s_cbranch_scc1 L_dma2")
    A.label("L_wdone")
    e("s_waitcnt vmcnt(0)")
    e(f"v_mov_b32 {va}, {L_FLAG+12}"); e(f"v_mov_b32 {vb}, 1")
    e("s_mov_b64 exec, 1"); e(f"ds_add_u32 {va}, {vb}"); e("s_mov_b64 exec, -1")
    stamp(1)
    if ND == 4: e(f"s_cmp_eq_u32 {sW}, 4"); e("s_cbranch_scc1 L_stats")
    A.label("L_svc2")
    lds_wait("L_dw", 12, max(3, ND), va, vb, sleep=16)
    lds_wait("L_sq", 8, 1, va, vb, sleep=16)
    e(f"s_cmp_eq_u32 {sRole}, 1"); e("s_cbranch_scc1 L_st1")
    e(f"s_cmp_eq_u32 {sRole}, 2"); e("s_cbranch_scc1 L_st2")
    e(f"s_cmp_eq_u32 {sRole}, 3"); e("s_cbranch_scc0 L_svc3")
    e(f"s_cmp_ge_u32 {sW}, 6"); e("s_cbranch_scc1 L_st3")
    A.label("L_svc3")
    PF = opts.get("pf", 0)
    if PF: e(f"s_cmp_ge_u32 {sW}, 6"); e("s_cbranch_scc1 L_help")
    get_tag()
    e("s_call_b64 s[66:67], L_publish")
    e("s_branch L_fin")
    if PF:
        A.label("L_help")
        e(f"s_sub_u32 {sT[4]}, {sC}, 16")
        e(f"v_lshrrev_b32 v5, 3, {vLane}"); e(f"s_lshl_b32 {sT[0]}, {sT[4]}, 5"); e(f"v_add_u32 v5, {sT[0]}, v5"); e("v_mul_u32_u24 v5, 3584, v5")
        e(f"v_and_b32 v6, 7, {vLane}"); e("v_lshl_add_u32 v5, v6, 6, v5")
        e(f"s_mul_i32 {sT[0]}, {sG}, 448"); e(f"s_and_b32 {sT[0]}, {sT[0]}, 0xffffff80"); e(f"v_add_u32 v5, {sT[0]}, v5")
        for k in range(1, 4): e(f"v_add_u32 v{5+k}, {8*3584*k}, v5")
        e(f"s_cmp_eq_u32 {sW}, 6"); e(f"s_cselect_b32 s6, s{sWG}, s{sWU}"); e(f"s_cselect_b32 s7, s{sWG+1}, s{sWU+1}")
        e(f"s_mul_i32 {sT[0]}, {sG}, {224*1024}"); e(f"s_mul_i32 {sT[1]}, {sT[4]}, 14336"); e(f"s_add_u32 {sT[0]}, {sT[0]}, {sT[1]}")
        e(f"s_and_b32 {sT[1]}, {sW}, 1"); e(f"s_mul_i32 {sT[1]}, {sT[1]}, 7168"); e(f"s_add_u32 {sT[0]}, {sT[0]}, {sT[1]}")
        e(f"v_lshlrev_b32 v9, 6, {vLane}"); e(f"v_add_u32 v9, {sT[0]}, v9")
        if PF == 2: lds_wait("L_hw", 20, 17, va, vb, sleep=4)
        else: e("s_barrier"); e("s_barrier")
        PP = opts.get("pfpol", "nt")
        for k in range(4): e(f"global_load_dword v{12+k}, v{5+k}, s[6:7] {PP}")
        e(f"global_load_dword v16, v9, {sp(sWD)} {PP}"); e(f"global_load_dword v17, v9, {sp(sWD)} offset:3072 {PP}")
        e("s_branch L_fin")

    A.label("L_stats")
    SG = opts.get("sg", 180); CA, GA = opts.get("cka", (88, 120)); SP = opts.get("spub", 152)
    GH = float(opts.get('gh', 0.32)); GL = float(opts.get('gl', 0.25))
    e(f"v_mov_b32 v24, {L_FLAG}")
    def control(base, lag, sub=None, GH=GH, GL=GL):
        e(f"v_mov_b32 v28, {float(base)}")
        if sub: e(f"v_sub_f32 v28, v28, {sub}")
        e(f"v_fmac_f32 v28, {GH}, {lag}")
        e(f"v_mov_b32 v29, {float(base)}"); e(f"v_fmac_f32 v29, {-GL}, {lag}")
        e(f"v_cmp_lt_f32 vcc, 0, {lag}"); e("v_cndmask_b32 v28, 0, v28, vcc"); e("v_cndmask_b32 v29, v29, 0, vcc")
        e("v_cvt_i32_f32 v26, v28"); e("v_cvt_i32_f32 v27, v29")
        if not opts.get("noctl"): e("ds_write_b64 v24, v[26:27] offset:24")
    e("s_getreg_b32 s71, hwreg(HW_REG_XCC_ID, 0, 4)")
    def ck_pub(k):
        e("s_memrealtime s[68:69]")
        e(f"s_lshl_b32 {sT[0]}, {sId}, 3"); e(f"s_add_u32 {sT[0]}, {sT[0]}, {WS_CK + 2048*k}"); e(f"v_mov_b32 v5, {sT[0]}"); e(f"v_mov_b32 v33, {sTag}")
        e("s_waitcnt lgkmcnt(0)"); e("s_lshl_b32 s68, s68, 4"); e("s_or_b32 s68, s68, s71"); e("v_mov_b32 v32, s68")
        e("s_mov_b64 exec, 1"); e(f"global_store_dwordx2 v5, v[32:33], {sp(sWS)} sc1"); e("s_mov_b64 exec, -1")
    def ck_load(k):
        e(f"v_lshlrev_b32 v6, 5, {vLane}"); e(f"v_add_u32 v6, {WS_CK + 2048*k}, v6")
        e(f"global_load_dwordx4 v[32:35], v6, {sp(sWS)} sc1"); e(f"global_load_dwordx4 v[36:39], v6, {sp(sWS)} offset:16 sc1")
    def ck_lag(bias):
        e(f"v_mov_b32 v40, {opts.get('miss', -400) * 16}")
        for k in range(4):
            e(f"v_sub_u32 v{32+2*k}, s68, v{32+2*k}"); e(f"v_cmp_eq_u32 vcc, {sTag}, v{33+2*k}"); e(f"v_cndmask_b32 v{32+2*k}, v40, v{32+2*k}, vcc")
        e("v_add3_u32 v32, v32, v34, v36"); e("v_add_u32 v32, v32, v38"); e("v_cvt_f32_i32 v32, v32")
        e(f"v_add_f32_dpp v32, v32, v32 quad_perm:[1,0,3,2] {DPPF}"); e(f"v_add_f32_dpp v32, v32, v32 quad_perm:[2,3,0,1] {DPPF}")
        for x in xlane("add", "v32", "v33"): e(x)
        e(f"v_mov_b32 v19, {float(bias)}"); e("v_fmac_f32 v19, 0x39800000, v32")
    lds_wait("L_ca", 20, 4, va, vb, sleep=4)
    ck_pub(0)
    lds_wait("L_ga", 20, 5, va, vb, sleep=8)
    ck_load(0)
    e("s_waitcnt vmcnt(0)")
    e("v_or3_b32 v41, v32, v34, v36"); e("v_or_b32 v41, v41, v38"); e("v_and_b32 v42, v32, v34"); e("v_and_b32 v43, v36, v38"); e("v_and_b32 v42, v42, v43")
    e("v_xor_b32 v41, s71, v41"); e("v_bitop3_b32 v41, v41, v42, s71 bitop3:0xf6"); e("v_and_b32 v41, 15, v41")
    for k in range(4): e(f"v_bitop3_b32 v41, v41, v{33+2*k}, {sTag} bitop3:0xf6")
    e("v_cmp_ne_u32 vcc, 0, v41")
    e(f"s_lshl_b32 {sT[0]}, {sG}, 3"); e(f"s_lshr_b64 vcc, vcc, {sT[0]}"); e("s_and_b32 s70, vcc_lo, 0xff")
    if opts.get("nolocal"): e("s_mov_b32 s70, 1")
    e("v_mov_b32 v41, s70"); e("ds_write_b32 v24, v41 offset:40")
    ck_lag(opts.get('abias', 0.0))
    if opts.get("r2a"):
        e(f"s_cmp_eq_u32 {sRole}, 2"); e(f"s_cselect_b32 {sT[0]}, {opts['r2a']}, 0"); e(f"v_cvt_f32_i32 v25, {sT[0]}"); e("v_add_f32 v19, v19, v25")
    control(GA + 10, "v19")
    e(f"v_subrev_f32 v30, {float(SP)}, v28"); e(f"v_mov_b32 v31, {float(SG + 10 - SP)}"); e("v_med3_f32 v30, v30, 0, v31")
    lds_wait("L_sw", 4, 4, va, vb, sleep=4)
    e(f"v_and_b32 {vc}, 3, {vLane}"); e(f"v_lshlrev_b32 {va}, 3, {vc}"); e(f"v_add_u32 {va}, {L_MS}, {va}")
    for w in range(4): e(f"ds_read_b64 v[{12+2*w}:{13+2*w}], {va} offset:{32*w}")
    e("s_waitcnt lgkmcnt(0)")
    e("v_max3_f32 v20, v12, v14, v16"); e("v_max_f32 v20, v20, v18")
    for w in range(4): e(f"v_sub_f32 v{12+2*w}, v{12+2*w}, v20")
    for w in range(4): e(f"v_exp_f32 v{12+2*w}, v{12+2*w}")
    e("v_mul_f32 v22, v12, v13")
    for w in range(1, 4): e(f"v_fmac_f32 v22, v{12+2*w}, v{13+2*w}")
    e(f"v_mov_b32 v21, {sTag}"); e(f"v_mov_b32 v23, {sTag}")
    e(f"s_lshl_b32 {sT[0]}, {sId}, 6"); e(f"s_add_u32 {sT[0]}, {sT[0]}, {WS_ST}"); e(f"v_add_u32 v5, {sT[0]}, {vVo}")
    e("s_mov_b64 exec, 0xf")
    e("s_cmp_eq_u32 s70, 0"); e("s_cbranch_scc1 L_stl")
    e(f"global_store_dwordx4 v5, v[20:23], {sp(sWS)} sc1"); e("s_branch L_std")
    A.label("L_stl")
    e(f"global_store_dwordx4 v5, v[20:23], {sp(sWS)}")
    A.label("L_std")
    e("s_mov_b64 exec, -1")
    lds_wait("L_cb", 20, 12, va, vb, sleep=4)
    ck_pub(1)
    e(f"s_lshl_b32 {sT[0]}, {sG}, 11"); e(f"s_add_u32 {sT[0]}, {sT[0]}, {WS_ST}"); e(f"v_add_u32 v5, {sT[0]}, {vVo}")
    lds_wait("L_sg", 20, 13, va, vb, sleep=8)
    ck_load(1)
    e("s_waitcnt vmcnt(0)")
    ck_lag(opts.get('lbias', 20))
    if opts.get("r2bias", 80):
        e(f"s_cmp_eq_u32 {sRole}, 2"); e(f"s_cselect_b32 {sT[0]}, {opts.get('r2bias', 80)}, 0"); e(f"s_cmp_eq_u32 {sRole}, 1"); e(f"s_cselect_b32 {sT[0]}, {opts.get('r1bias', 0)}, {sT[0]}"); e(f"v_cvt_f32_i32 v25, {sT[0]}"); e("v_add_f32 v19, v19, v25")
    control(SG + 10, "v19", "v30", float(opts.get("gh2", GH)), float(opts.get("gl2", GL)))
    if debug: e("v_cvt_i32_f32 v19, v19"); e("v_readfirstlane_b32 s73, v19")
    A.label("L_spoll")
    timeout()
    e(f"global_load_dwordx4 v[12:15], v5, {sp(sWS)} sc1"); e(f"global_load_dwordx4 v[16:19], v5, {sp(sWS)} offset:1024 sc1")
    e("s_waitcnt vmcnt(0)")
    e(f"v_xor_b32 v13, {sTag}, v13")
    for r in (15, 17, 19): e(f"v_bitop3_b32 v13, v13, v{r}, {sTag} bitop3:0xf6")
    e("v_cmp_ne_u32 vcc, 0, v13")
    e("s_cbranch_vccz L_sgot")
    e(f"s_sleep {opts.get('ssleep', 32)}"); e("s_branch L_spoll")
    A.label("L_sgot")
    e("v_max_f32 v20, v12, v16")
    for x in xlane("max", "v20", "v21"): e(x)
    e("v_sub_f32 v12, v12, v20"); e("v_sub_f32 v16, v16, v20"); e("v_exp_f32 v12, v12"); e("v_exp_f32 v16, v16")
    e("v_mul_f32 v21, v12, v14"); e("v_fmac_f32 v21, v16, v18")
    for x in xlane("add", "v21", "v22"): e(x)
    e("v_rcp_f32 v21, v21")
    e(f"v_lshlrev_b32 {va}, 3, {vc}"); e(f"v_add_u32 {va}, {L_GS}, {va}")
    e(f"ds_write_b64 {va}, v[20:21]")
    e(f"v_mov_b32 {va}, {L_FLAG+8}"); e(f"v_mov_b32 {vb}, 1")
    e(f"ds_write_b32 {va}, {vb}")
    if debug: e("s_memrealtime s[98:99]")
    e("s_branch L_svc2")

    main_lines = A.lines; A.lines = []; A.fence()
    A.label("L_service")
    e("s_cmpk_ge_u32 s2, 256"); e("s_cbranch_scc1 L_end")
    common()
    e("v_mov_b32 v8, 0"); e("v_mov_b32 v9, 0"); e("v_mov_b32 v10, 0"); e("v_mov_b32 v11, 0")
    e(f"v_mov_b32 v64, {L_FLAG}")
    e(f"s_cmp_eq_u32 {sW}, 4"); e("s_cbranch_scc0 L_sv1")
    e("ds_write_b128 v64, v[8:11]"); e("ds_write_b128 v64, v[8:11] offset:16"); e("ds_write_b128 v64, v[8:11] offset:32")
    A.label("L_sv1")
    if opts.get("cpre", True):
        e("s_getpc_b64 s[6:7]")
        e(f"v_lshl_add_u32 v6, v5, 11, {vVo}")
        e("v_add_u32 v6, 0xffffe000, v6")
        e("global_load_dwordx4 v[56:59], v6, s[6:7]"); e("global_load_dwordx4 v[60:63], v6, s[6:7] offset:1024")
    e(f"s_cmp_ge_u32 {sC}, {C0}"); e("s_cbranch_scc1 L_qprod")
    common2()
    e("s_waitcnt lgkmcnt(0)")
    e("s_barrier")
    e(f"s_cmp_eq_u32 {sW}, 4"); e("s_cbranch_scc0 L_sv4")
    e(f"global_load_dword v10, v9, {sp(sWS)} sc1")
    e("s_waitcnt vmcnt(0)")
    tag_from("v10")
    e("s_branch L_qget")
    A.label("L_qprod")
    e("s_setprio 3")
    WQ = 128; XR = 12; XF = 20; QA = 36; XA = 66
    RW = 512 // NP // 4; NPR = RW // 16
    e(f"s_and_b32 {sT[5]}, {sC}, 7"); e(f"s_lshl_b32 {sQP}, {sG}, 3"); e(f"s_add_u32 {sQP}, {sQP}, {sT[5]}")
    e(f"s_sub_u32 {sT[4]}, {sC}, {C0}"); e(f"s_lshr_b32 {sT[4]}, {sT[4]}, 3")
    e(f"s_lshl_b32 {sT[3]}, {sT[4]}, 2"); e(f"s_add_u32 {sT[3]}, {sT[3]}, {sW}"); e(f"s_sub_u32 {sT[3]}, {sT[3]}, 4"); e(f"s_mul_i32 {sT[3]}, {sT[3]}, {RW}")
    e(f"v_lshrrev_b32 v5, 3, {vLane}"); e("v_lshlrev_b32 v6, 2, v5")
    e(f"s_lshl_b32 {sT[0]}, {sT[3]}, 1"); e(f"v_add_u32 v6, {sT[0]}, v6")
    e("v_lshlrev_b32 v7, 14, v5"); e(f"v_and_b32 v4, 7, {vLane}"); e("v_lshl_add_u32 v7, v4, 4, v7")
    e(f"s_lshl_b32 {sT[0]}, {sT[3]}, 13"); e(f"s_lshl_b32 {sT[1]}, {sQP}, 7"); e(f"s_add_u32 {sT[0]}, {sT[0]}, {sT[1]}"); e(f"v_add_u32 v7, {sT[0]}, v7")
    e("s_waitcnt lgkmcnt(0)")
    e(f"global_load_dwordx4 {vr(XA)}, {vVo}, {sp(sX)}")
    for k in range(NPR): e(f"global_load_dword v{XR+k}, v6, {sp(sX)} offset:{32*k}")
    e(f"global_load_dword v10, v9, {sp(sWS)} sc1")
    for i in range(2 * NPR):
        e(f"global_load_dwordx4 {vr(WQ+4*i)}, v7, {sp(sWQ)} {opts.get('wqpol', 'nt')}")
        if i < 2 * NPR - 1: e(f"v_add_u32 v7, {0x2000 if i % 2 == 0 else 0x1e000}, v7")
    e("s_barrier")
    common2()
    e(f"s_waitcnt vmcnt({3*NPR + 1})")
    for k in range(4):
        e(f"v_lshlrev_b32 v{44+2*k}, 16, v{XA+k}"); e(f"v_and_b32 v{45+2*k}, 0xffff0000, v{XA+k}")
    def wsum(r, tmp):
        for s in (8, 4, 2, 1): e(f"v_add_f32_dpp {r}, {r}, {r} row_ror:{s} {DPPF}")
        e(f"v_mov_b32 {tmp}, {r}"); e(f"v_permlane16_swap_b32 {tmp}, {r}"); e(f"v_add_f32 {r}, {tmp}, {r}")
        e(f"v_mov_b32 {tmp}, {r}"); e(f"v_permlane32_swap_b32 {tmp}, {r}"); e(f"v_add_f32 {r}, {tmp}, {r}")
    e("v_pk_add_f32 v[52:53], v[44:45], v[46:47]"); e("v_pk_add_f32 v[54:55], v[48:49], v[50:51]"); pk(52, 54)
    e(f"v_add_f32 {va}, v52, v53")
    wsum(va, vb)
    e(f"v_mul_f32 {va}, 0x3b000000, {va}")
    for k in range(8): e(f"v_sub_f32 v{44+k}, v{44+k}, {va}")
    e(f"v_mul_f32 {vc}, v44, v44"); e(f"v_mul_f32 {vd}, v45, v45")
    for k in range(2, 8): e(f"v_fmac_f32 {(vc, vd)[k&1]}, v{44+k}, v{44+k}")
    e(f"v_add_f32 {vc}, {vc}, {vd}")
    wsum(vc, vb)
    e(f"v_mul_f32 {vc}, 0x3b000000, {vc}")
    ln_finish(va, vc, vb)
    e(f"s_waitcnt vmcnt({2*NPR + 1})")
    for k in range(NPR):
        e(f"v_lshlrev_b32 v{XF+2*k}, 16, v{XR+k}"); e(f"v_and_b32 v{XF+2*k+1}, 0xffff0000, v{XR+k}")
    for k in range(2*NPR): e(f"v_sub_f32 v{XF+k}, v{XF+k}, {va}")
    for k in range(NPR): e(f"v_cvt_pk_bf16_f32 v{XR+k}, v{XF+2*k}, v{XF+2*k+1}")
    for k in range(NPR):
        e(f"v_lshlrev_b32 v{XF+2*k}, 16, v{XR+k}"); e(f"v_and_b32 v{XF+2*k+1}, 0xffff0000, v{XR+k}")
    for k in range(2*NPR): e(f"v_mul_f32 v{XF+k}, {vc}, v{XF+k}")
    for k in range(NPR): e(f"v_cvt_pk_bf16_f32 v{XR+k}, v{XF+2*k}, v{XF+2*k+1}")
    for k in range(8): e(f"v_mov_b32 v{QA+k}, 0")
    e(f"v_lshrrev_b32 v5, 4, {vLane}"); e("v_lshlrev_b32 v5, 3, v5"); e("v_lshl_add_u32 v5, v4, 5, v5")
    e(f"s_lshl_b32 {sT[0]}, {sW}, 8"); e(f"s_add_u32 {sT[0]}, {sT[0]}, {L_QP - 1024}"); e(f"v_add_u32 v5, {sT[0]}, v5")
    for p in range(NPR):
        e(f"s_waitcnt vmcnt({2*NPR - 2 - 2*p})")
        for ee in range(8):
            e(f"v_perm_b32 v{44+ee}, v{WQ+4*(2*p+1)+(ee>>1)}, v{WQ+4*(2*p)+(ee>>1)}, {sSelHi if ee & 1 else sSelLo}")
        for ee in range(8): e(f"v_dot2c_f32_bf16 v{QA+ee}, v{44+ee}, v{XR+p}")
    if debug: e("s_memrealtime s[70:71]")
    for o in (0, 1):
        e(f"v_permlane32_swap_b32 v{QA+o}, v{QA+4+o}"); e(f"v_permlane32_swap_b32 v{QA+2+o}, v{QA+6+o}")
    for o in (0, 1):
        e(f"v_add_f32 v{QA+o}, v{QA+o}, v{QA+4+o}"); e(f"v_add_f32 v{QA+2+o}, v{QA+2+o}, v{QA+6+o}")
    for o in (0, 1): e(f"v_permlane16_swap_b32 v{QA+o}, v{QA+2+o}")
    for o in (0, 1): e(f"v_add_f32 v{QA+o}, v{QA+o}, v{QA+2+o}")
    for o in (0, 1): e(f"v_add_f32_dpp v{QA+o}, v{QA+o}, v{QA+o} row_ror:8 {DPPF}")
    e(f"ds_write_b64 v5, v[{QA}:{QA+1}]")
    e("v_mov_b32 v44, 1")
    e("s_mov_b64 exec, 1"); e("ds_add_u32 v64, v44 offset:32"); e("s_mov_b64 exec, -1")
    e(f"s_cmp_eq_u32 {sW}, 4"); e("s_cbranch_scc1 L_qp4")
    e("s_setprio 0")
    e("s_branch L_sv4")
    A.label("L_qp4")
    tag_from("v10")
    if NP == 1:
        e(f"s_lshl_b32 {sT[1]}, {sQP}, 8"); e(f"s_add_u32 {sT[1]}, {sT[1]}, {WS_Q}"); e(f"v_add_u32 v6, {sT[1]}, {vVo}")
        e(f"v_add_u32 v5, {L_QP}, {vVo}")
        lds_wait("L_qpw", 32, 4, va, vb, sleep=0)
        e("s_mov_b64 exec, 0xffff")
        for v in range(4): e(f"ds_read_b128 {vr(44+4*v)}, v5 offset:{256*v}")
        e("s_waitcnt lgkmcnt(0)")
        add4(44, 48); add4(52, 56); add4(44, 52)
        e("v_cvt_pk_bf16_f32 v44, v44, v45"); e("v_cvt_pk_bf16_f32 v46, v46, v47")
    else:
        e(f"s_mul_i32 {sT[1]}, {sG}, {NP}"); e(f"s_add_u32 {sT[1]}, {sT[1]}, {sT[4]}"); e(f"s_lshl_b32 {sT[1]}, {sT[1]}, 3"); e(f"s_add_u32 {sT[1]}, {sT[1]}, {sT[5]}")
        e(f"s_lshl_b32 {sT[1]}, {sT[1]}, 9"); e(f"s_add_u32 {sT[1]}, {sT[1]}, {WS_Q}"); e(f"v_add_u32 v6, {sT[1]}, {vVo}")
        e(f"v_lshlrev_b32 v5, 3, {vLane}"); e(f"v_add_u32 v5, {L_QP}, v5")
        lds_wait("L_qpw", 32, 4, va, vb, sleep=0)
        e("s_mov_b32 exec_hi, 0")
        for v in range(4): e(f"ds_read_b64 v[{48+2*v}:{49+2*v}], v5 offset:{256*v}")
        e("s_waitcnt lgkmcnt(0)")
        pk(48, 50); pk(52, 54)
        e("v_add_f32 v44, v48, v52"); e("v_add_f32 v46, v49, v53")
    e(f"v_mov_b32 v45, {sTag}"); e(f"v_mov_b32 v47, {sTag}")
    e(f"global_store_dwordx4 v6, v[44:47], {sp(sWS)} sc1")
    e("s_mov_b64 exec, -1")
    e("s_setprio 0")
    A.label("L_qget")
    NLD = 2 if NP == 1 else 4 * NP
    e(f"s_mul_i32 {sT[0]}, {sG}, {NLD*1024}"); e(f"s_add_u32 {sT[0]}, {sT[0]}, {WS_Q + 4096}")
    e(f"v_add_u32 v5, {sT[0]}, {vVo}"); e("v_add_u32 v7, 0x2000, v5")
    e(f"v_lshlrev_b32 v6, {3 if NP == 1 else 2}, {vLane}"); e(f"v_add_u32 v6, {L_Q}, v6")
    e(f"v_mov_b32 v52, {sTag}"); e("ds_write_b32 v64, v52 offset:16")
    if opts.get("qstart", 24): lds_wait("L_qs", 36, 1, va, vb, sleep=4)
    e(f"s_mov_b32 {sT[5]}, 0")
    A.label("L_qpoll")
    timeout()
    for k in range(NLD):
        e(f"s_bitcmp1_b32 {sT[5]}, {k}"); e(f"s_cbranch_scc1 L_qk{k}")
        e(f"global_load_dwordx4 {vr(128+4*k)}, {'v5' if k < 8 else 'v7'}, {sp(sWS)} offset:{1024*(k&7) - 4096} sc1")
        A.label(f"L_qk{k}")
    e("s_waitcnt vmcnt(0)")
    e(f"s_mov_b32 {sT[5]}, 0")
    for k in range(NLD):
        e(f"v_xor_b32 {va}, {sTag}, v{129+4*k}"); e(f"v_bitop3_b32 {va}, {va}, v{131+4*k}, {sTag} bitop3:0xf6")
        e(f"v_cmp_ne_u32 vcc, 0, {va}"); e("s_cmp_eq_u64 vcc, 0"); e(f"s_cselect_b32 {sT[0]}, {1 << k}, 0"); e(f"s_or_b32 {sT[5]}, {sT[5]}, {sT[0]}")
    e(f"s_cmp_eq_u32 {sT[5]}, {(1 << NLD) - 1}"); e("s_cbranch_scc1 L_qgot")
    e(f"s_sleep {opts.get('qsleep', 8)}"); e("s_branch L_qpoll")
    A.label("L_qgot")
    if NP == 1:
        for h in range(2):
            e(f"v_mov_b32 v{129+4*h}, v{130+4*h}"); e(f"ds_write_b64 v6, v[{128+4*h}:{129+4*h}] offset:{512*h}")
    else:
        for m in range(4):
            for o in (0, 2):
                r = 128 + 4*m + o
                e(f"v_add_f32 v{r}, v{r}, v{r+16}")
                if NP == 4: e(f"v_add_f32 v{r+32}, v{r+32}, v{r+48}"); e(f"v_add_f32 v{r}, v{r}, v{r+32}")
            e(f"v_cvt_pk_bf16_f32 v{128+4*m}, v{128+4*m}, v{130+4*m}")
            e(f"ds_write_b32 v6, v{128+4*m} offset:{256*m}")
    e("v_mov_b32 v48, 1"); e("ds_write_b32 v64, v48")
    if debug: e("s_memrealtime s[72:73]")
    e("s_branch L_down")

    head = A.lines; A.lines = main_lines
    k = A.lines.index("@@SERVICE_HEAD@@"); A.lines[k:k+1] = head
    A.raw('.section .rodata,"a"'); A.raw(".p2align 6"); A.raw(f".amdhsa_kernel {NAME}")
    for l in ["next_free_vgpr 256", "next_free_sgpr 102", "accum_offset 256", "group_segment_fixed_size 0", "kernarg_size 96",
              "user_sgpr_count 2", "user_sgpr_kernarg_segment_ptr 1", "system_sgpr_workgroup_id_x 1", "float_denorm_mode_32 3"]:
        A.raw("  .amdhsa_" + l)
    A.raw(".end_amdhsa_kernel")
    return A.text()

if __name__ == "__main__":
    dbg = "--debug" in sys.argv
    sys.stdout.write(gen(debug=dbg))
```

```python
import sys
sys.path.insert(0, "work")
from asmlib import Asm

NAME = "sequential_preLN__gqa_block_cached__glu_gated_bilinear__decode_kernel"

WS_EPOCH = 0
WS_Q = 0xE0000
WS_ST = 0x8000
WS_CK = 0xC000
WS_LCK = 0xD000
WS_PART = 0x10000
PREC = 2048
WS_A1 = 0xA0000
WS_D2 = 0xB0000
WS_STAMP = 0x800000
WPW = 8 * 1024
L_Q = 8 * WPW
L_ACC = L_Q + 1024
L_RED = L_ACC + 8192
L_STAT = L_RED + 4096
L_MS = L_STAT + 64
L_GS = L_MS + 128
L_QP = L_RED
L_FLAG = L_GS + 32
L_TOTAL = 98304

KV_BYTES = 128 << 20

LCK = [(206, 212)]
HEADER = """
Kernarg (96 bytes, pointers only): 0 A_x, 8 K cache, 16 V cache, 24 wq, 32 wo, 40 B_x (unused), 48 w_gate, 56 w_up,
64 w_down, 72 out, 80 debug (unused), 88 workspace.

One persistent launch, 256 workgroups (one per CU) x 8 waves.  Workgroup wg: kv head g = wg & 7, c = wg >> 3.
 waves 0-3 stream 2048 keys: all K first (QK^T by MFMA, score roundings as in the reference), then all V (PV by MFMA),
           through a 40-slot register ring with a small window of loads in flight (unrolled, generated schedule).
 waves 4-7 are service waves: LayerNorm + q projection (c >= 16), q all-gather, weight staging, softmax statistics
           exchange, progress checkpoints (a workgroup that runs late widens its load window, an early one narrows it)
           and the publication of the workgroup's partial output.
 tail:     c < 8 or c >= 24: combine + wo slice;  8 <= c < 15: residual, LayerNorm, gate/up/down slice;  c == 15: final sum.
Hand-offs go through the workspace and carry a per-launch tag (workspace word 0 + 0x01010101, written back at the end),
so nothing depends on what the workspace held before.  Stores are write-through unless the checkpoint records show that
every workgroup of the head group runs on the same die as the writer.  Every spin is bounded.
Generated by a script of my own (register allocation, schedule and wait states included).
"""

def gen(debug=False, opts=None):
    opts = opts or {}
    A = Asm(); e = A
    def stamp(i):
        if debug: e(f"s_memrealtime s[{80+2*i}:{81+2*i}]")
    sX, sK, sV, sWQ, sWO, sWG, sWU, sWD, sOUT, sDBG, sWS = 8, 10, 12, 14, 16, 20, 22, 24, 26, 28, 30
    def sp(n): return f"s[{n}:{n+1}]"
    sW = "s3"; sG = "s4"; sC = "s5"
    srdK = "s[32:35]"; srdV = "s[36:39]"; srdW = "s[40:43]"
    sScale, sL2E, sSelLo, sSelHi = "s44", "s45", "s46", "s47"
    sOff = "s48"; sId = "s49"; sWW = "s50"
    sT = ["s52", "s53", "s54", "s55", "s56", "s57", "s58", "s59"]
    sTag = "s60"; sRole = "s61"; sIdx = "s62"; sTO = "s64"
    vLane = "v1"; vKo = "v2"; vVo = "v3"
    ACC = 4; BQ = 12; PV_ = 12; SPK = 28; T = 44; M = 76
    vX0, vX1, vY0, vY1, vS0, vS1, vML, vL, va, vb, vc, vd, vMSa, vf = [f"v{M+i}" for i in range(14)]
    vKo2 = "v90"; vVo2 = "v91"; vMask = "v93"
    RING = opts.get("ring", 40); RBASE = 256 - 4 * RING
    assert RBASE >= 96
    W0 = opts.get("win", 5); BUDGET = opts.get("budget", 18)
    WHI = opts.get("whi", 7); WLO = opts.get("wlo", 4)
    FF = opts.get("ff", [0, 0x00000110, 0x00000092, 0])
    ENDS = opts.get("ends", 240)
    CKP = opts.get("ckp", [])
    W = WHI
    sFF = "s51"; sQP = "s63"; sLev = "s65"; sHi = "s66"; sLo = "s67"
    sTB = ["s76", "s77", "s78", "s79"]
    def vr(a, n=4): return f"v[{a}:{a+n-1}]"
    DPPF = "row_mask:0xf bank_mask:0xf"
    def timeout():
        e(f"s_sub_u32 {sTO}, {sTO}, 1"); e("s_cbranch_scc1 L_end")
    def lds_wait(lbl, off, val, vaddr, vtmp, sleep=1):
        e(f"v_mov_b32 {vaddr}, {L_FLAG + off}")
        A.label(lbl)
        e(f"ds_read_b32 {vtmp}, {vaddr}")
        timeout()
        e("s_waitcnt lgkmcnt(0)")
        e(f"v_readfirstlane_b32 {sT[0]}, {vtmp}")
        e(f"s_cmp_ge_u32 {sT[0]}, {val}"); e(f"s_cbranch_scc1 {lbl}_go")
        e(f"s_sleep {sleep}"); e(f"s_branch {lbl}")
        A.label(lbl + "_go")

    for l in HEADER.strip("\n").split("\n"): A.raw(("; " + l).rstrip())
    A.raw(f"; @launch grid=(256,1,1) block=(512,1,1) lds={L_TOTAL}")
    A.raw('.amdgcn_target "amdgcn-amd-amdhsa--gfx950"')
    A.raw(".text"); A.raw(f".globl {NAME}"); A.raw(".p2align 8"); A.raw(f".type {NAME},@function"); A.label(NAME)
    e("s_load_dwordx2 s[32:33], s[0:1], 8")
    stamp(0)
    e("v_cmp_lt_u32 vcc, 0xff, v0")
    e(f"v_and_b32 {vKo}, 3, v0"); e(f"v_lshlrev_b32 {vKo}, 4, {vKo}"); e("v_and_b32 v5, 48, v0"); e(f"v_lshl_or_b32 {vKo}, v5, 2, {vKo}")
    e("s_cbranch_vccnz L_service")
    e("v_and_b32 v5, 0xcc, v0"); e(f"v_lshl_or_b32 {vKo}, v5, 6, {vKo}")
    e(f"s_mul_i32 {sOff}, s2, 0x01010000"); e(f"s_and_b32 {sOff}, {sOff}, 0x07e00000")
    e(f"s_lshr_b32 s6, {sOff}, 4")
    if opts.get("exact", False): e("s_and_b32 s6, s6, 0x1e0000")
    e(f"s_xor_b32 {sOff}, {sOff}, s6")
    e("s_and_b32 s6, s2, 24"); e(f"v_lshl_or_b32 {vKo}, s6, 11, {vKo}")
    e("s_lshl_b32 s34, 1, 27"); e("s_lshl_b32 s35, 1, 17")
    e("s_waitcnt lgkmcnt(0)")
    for n in range(4): e(f"buffer_load_dwordx4 {vr(RBASE+4*n)}, {vKo}, {srdK}, {sOff} offen offset:{n*1024} {opts.get('kvpol', 'nt')}")
    e("s_branch L_stream")
    def common():
        e("s_load_dwordx16 s[8:23], s[0:1], 0")
        e("s_load_dwordx8 s[24:31], s[0:1], 64")
        if opts.get("probe"): e("s_memrealtime s[80:81]")
        if debug: e("s_memtime s[100:101]")
        e(f"v_lshrrev_b32 v5, 6, v0"); e(f"v_and_b32 {vLane}, 63, v0")
        e(f"v_readfirstlane_b32 {sW}, v5")
        e(f"s_and_b32 {sG}, s2, 7"); e(f"s_lshr_b32 {sC}, s2, 3")
        e(f"s_lshl_b32 {sId}, {sG}, 5"); e(f"s_add_u32 {sId}, {sId}, {sC}")
        e(f"v_lshlrev_b32 {vVo}, 4, {vLane}")
    def common2():
        e(f"s_mov_b32 {sSelLo}, 0x05040100"); e(f"s_mov_b32 {sSelHi}, 0x07060302")
        e(f"s_mov_b32 {sTO}, 0x400000")
        roles()
    def roles():
        e(f"s_mov_b32 {sRole}, 0"); e(f"s_mov_b32 {sIdx}, 0")
        e(f"s_lshl_b32 {sT[0]}, {sG}, 1"); e(f"s_add_u32 {sT[0]}, {sT[0]}, {sW}"); e(f"s_sub_u32 {sT[0]}, {sT[0]}, 6")
        e(f"s_cmp_lt_u32 {sC}, 16"); e(f"s_cselect_b32 {sRole}, 3, {sRole}"); e(f"s_cselect_b32 {sIdx}, {sT[0]}, {sIdx}")
        if opts.get("xmap", False):
            e(f"s_lshl_b32 {sT[0]}, {sC}, 3"); e(f"s_add_u32 {sT[0]}, {sT[0]}, {sG}"); e(f"s_sub_u32 {sT[0]}, {sT[0]}, 64")
        else:
            e(f"s_mul_i32 {sT[0]}, {sG}, 7"); e(f"s_add_u32 {sT[0]}, {sT[0]}, {sC}"); e(f"s_sub_u32 {sT[0]}, {sT[0]}, 8")
        e(f"s_cmp_lt_u32 {sC}, 15"); e(f"s_cselect_b32 {sRole}, 2, {sRole}"); e(f"s_cselect_b32 {sIdx}, {sT[0]}, {sIdx}")
        e(f"s_cmp_lt_u32 {sC}, 8"); e(f"s_cselect_b32 {sRole}, 1, {sRole}"); e(f"s_cselect_b32 {sIdx}, {sC}, {sIdx}")
        e(f"s_sub_u32 {sT[0]}, {sC}, 16"); e(f"s_cmp_ge_u32 {sC}, 24"); e(f"s_cselect_b32 {sRole}, 1, {sRole}"); e(f"s_cselect_b32 {sIdx}, {sT[0]}, {sIdx}")
    A.raw("@@SERVICE_HEAD@@")

    A.label("L_stream")
    e("s_cmpk_ge_u32 s2, 256"); e("s_cbranch_scc1 L_end")
    e(f"s_and_b32 s7, {sOff}, 0x07e00000"); e(f"s_and_b32 {sOff}, {sOff}, 0x1fffff")
    e(f"v_add_u32 {vKo}, s7, {vKo}")
    e(f"v_add_u32 {vKo2}, 0x10000, {vKo}")
    vVs = "v0"
    NI = 16; NL = 8 * NI
    def slot(idx): return RBASE + 4 * (idx % RING)
    LR = opts.get("lrot", False)
    sQ = ["s40", "s41", "s42", "s43"]; sXq = ["s6", "s7", "s50", "s63"]
    def issue(s):
        n = s & 7
        if s >= 4:
            so, im = (sQ[n & 3], 0) if LR and (s % NL) >= 8 else (sOff, (n & 3) * 1024)
            if s < NL: e(f"buffer_load_dwordx4 {vr(slot(s))}, {vKo if n < 4 else vKo2}, {srdK}, {so} offen offset:{im} {opts.get('kvpol', 'nt')}")
            else: e(f"buffer_load_dwordx4 {vr(slot(s))}, {vVs if n < 4 else vVo2}, {srdV}, {so} offen offset:{im} {opts.get('kvpol', 'nt')}")
        if n == 7 and s + 1 < 2 * NL:
            e(f"s_add_u32 {sOff}, {sOff}, 0x20000"); e(f"s_bitset0_b32 {sOff}, 21")
            if LR and s + 1 != NL:
                for q in range(4): e(f"s_or_b32 {sQ[q]}, {sOff}, {sXq[q]}")
    tasks = []
    def task(need, frees, ins): tasks.append(dict(need=need, frees=frees, ins=ins))
    def xlane(op, r, tmp):
        return [f"v_{op}_f32_dpp {r}, {r}, {r} row_ror:8 {DPPF}", f"v_{op}_f32_dpp {r}, {r}, {r} row_ror:4 {DPPF}",
                f"v_mov_b32 {tmp}, {r}", f"v_permlane16_swap_b32 {tmp}, {r}", f"v_{op}_f32 {r}, {tmp}, {r}",
                f"v_mov_b32 {tmp}, {r}", f"v_permlane32_swap_b32 {tmp}, {r}", f"v_{op}_f32 {r}, {tmp}, {r}"]
    for i in range(NI):
        for n in range(8):
            task(8*i+n, [8*i+n], [f"v_mfma_f32_16x16x32_bf16 {vr(T+4*n)}, {vr(slot(8*i+n))}, {vr(BQ+4*(n&3))}, 0"])
        for t in range(2):
            ins = []
            for m in range(4):
                X = (vX0, vX1)[t]; Y = (vY0, vY1)[t]; D = T + 4 * (4*t+m)
                ins.append(f"v_add_f32_dpp {Y}, v{D+3}, v{D+1} row_ror:8 row_mask:0xf bank_mask:{1 << ((m+1)&3):#x}")
                ins.append(f"v_add_f32_dpp {X}, v{D+2}, v{D} row_ror:8 row_mask:0xf bank_mask:{1 << m:#x}")
            task(-1, [], ins)
        task(-1, [], [f"v_add_f32_dpp {vX0}, {vY0}, {vX0} row_ror:12 {DPPF}", f"v_add_f32_dpp {vX1}, {vY1}, {vX1} row_ror:12 {DPPF}",
                      f"v_cvt_pk_bf16_f32 {vY0}, {vX0}, {vX1}",
                      f"v_lshlrev_b32 {vX0}, 16, {vY0}", f"v_and_b32 {vX1}, 0xffff0000, {vY0}",
                      f"v_mul_f32 {vX0}, {sScale}, {vX0}", f"v_mul_f32 {vX1}, {sScale}, {vX1}",
                      f"v_cvt_pk_bf16_f32 v{SPK+i}, {vX0}, {vX1}",
                      f"v_lshlrev_b32 {vX0}, 16, v{SPK+i}", f"v_and_b32 {vX1}, 0xffff0000, v{SPK+i}",
                      (f"v_max_f32 {vML}, {vX0}, {vX1}" if i == 0 else f"v_max3_f32 {vML}, {vML}, {vX0}, {vX1}")])
    task(-1, [], xlane("max", vML, vb) + [f"v_mul_f32 {vML}, {sL2E}, {vML}"])
    task(-1, [], [f"v_mov_b32 v{PV_+k}, 0" for k in range(16)])
    for i in range(0, NI, 2):
        ins = []
        tmp = [(vX0, vX1), (vY0, vY1)]
        for k in range(2):
            a, b = tmp[k]; ins += [f"v_lshlrev_b32 {a}, 16, v{SPK+i+k}", f"v_and_b32 {b}, 0xffff0000, v{SPK+i+k}"]
        for k in range(2):
            a, b = tmp[k]; ins += [f"v_fma_f32 {a}, {a}, {sL2E}, -{vML}", f"v_fma_f32 {b}, {b}, {sL2E}, -{vML}"]
        for k in range(2):
            a, b = tmp[k]; ins += [f"v_exp_f32 {a}, {a}", f"v_exp_f32 {b}, {b}"]
        ins += [f"v_add_f32 {va}, {vX0}, {vX1}", f"v_cvt_pk_bf16_f32 v{SPK+i}, {vX0}, {vX1}", f"v_add_f32 {vb}, {vY0}, {vY1}", f"v_cvt_pk_bf16_f32 v{SPK+i+1}, {vY0}, {vY1}"]
        ins += [f"v_add_f32 {vL}, {va}, {vb}"] if i == 0 else [f"v_add_f32 {va}, {va}, {vb}", f"v_add_f32 {vL}, {vL}, {va}"]
        task(-1, [], ins)
    task(-1, [], xlane("add", vL, vb) + [f"ds_write_b64 {vMSa}, v[{M+6}:{M+7}]", f"v_mov_b32 {va}, {L_FLAG+4}", f"v_mov_b32 {vb}, 1",
                                         "s_mov_b64 exec, 1", f"ds_add_u32 {va}, {vb}", "s_mov_b64 exec, -1"])
    order = [0, 4, 1, 5, 2, 6, 3, 7]
    for i in range(NI):
        L0 = NL + 8 * i
        def perm(ee, k):
            rho = ee & 3; t = k >> 1
            n0 = 4 * t + ((rho + 2 * (k & 1)) & 3); n1 = 4 * t + ((rho + 2 * (k & 1) + 1) & 3)
            return f"v_perm_b32 v{T+4*ee+k}, v{slot(L0+n1)+(ee>>1)}, v{slot(L0+n0)+(ee>>1)}, {sSelHi if ee & 1 else sSelLo}"
        def mf(ee):
            ac = vr(ACC + 4 * (ee >> 2))
            return f"v_mfma_f32_16x16x32_bf16 {ac}, {vr(T+4*ee)}, {vr(PV_+4*(ee&3))}, {ac if (i or (ee & 3)) else 0}"
        ins = [f"v_mov_b32_dpp {vY0}, v{SPK+i} row_ror:12 {DPPF}",
               f"v_perm_b32 {vX0}, {vY0}, v{SPK+i}, {sSelLo}", f"v_perm_b32 {vX1}, {vY0}, v{SPK+i}, {sSelHi}"]
        for rho in range(4):
            bm = f"row_mask:0xf bank_mask:{1 << rho:#x}"
            ins += [f"v_mov_b32_dpp v{PV_+4*rho+0}, {vX0} quad_perm:[0,1,2,3] {bm}", f"v_mov_b32_dpp v{PV_+4*rho+1}, {vX0} row_ror:8 {bm}",
                    f"v_mov_b32_dpp v{PV_+4*rho+2}, {vX1} quad_perm:[0,1,2,3] {bm}", f"v_mov_b32_dpp v{PV_+4*rho+3}, {vX1} row_ror:8 {bm}"]
        task(-1, [], ins[:11]); task(-1, [], ins[11:])
        task(L0+3, [], [perm(ee, k) for ee in range(4) for k in range(2)])
        task(L0+3, [L0, L0+1, L0+2, L0+3], [perm(ee, k) for ee in range(4, 8) for k in range(2)])
        ins = []
        for idx, ee in enumerate(order):
            ins += [perm(ee, 2), perm(ee, 3)]
            if idx >= 1: ins.append(mf(order[idx - 1]))
        ins.append(mf(order[7]))
        task(L0+7, [], ins[:11]); task(L0+7, [L0+4, L0+5, L0+6, L0+7], ins[11:])

    def setup_misc():
        common(); common2()
        e(f"v_and_b32 {vVs}, 0xfffff000, {vKo}"); e(f"v_add_u32 {vVs}, {vVs}, {vVo}"); e(f"v_add_u32 {vVo2}, 0x10000, {vVs}")
        e(f"s_mov_b32 s38, {KV_BYTES}"); e("s_mov_b32 s39, 0x20000")
        for q in range(4): e(f"s_xor_b32 {sXq[q]}, {sW}, {q}"); e(f"s_lshl_b32 {sXq[q]}, {sXq[q]}, 10")
        e(f"s_mov_b32 {sScale}, 0x3db504f3")
        e(f"s_mov_b32 {sL2E}, 0x3fb8aa3b")
        e(f"v_and_b32 {vMSa}, 3, {vLane}"); e(f"v_lshlrev_b32 {vMSa}, 3, {vMSa}")
        e(f"s_lshl_b32 {sT[0]}, {sW}, 5"); e(f"s_add_u32 {sT[0]}, {sT[0]}, {L_MS}"); e(f"v_add_u32 {vMSa}, {sT[0]}, {vMSa}")
        e(f"v_and_b32 {va}, 3, {vLane}"); e(f"v_lshlrev_b32 {va}, 8, {va}")
        e(f"v_lshrrev_b32 {vb}, 4, {vLane}"); e(f"v_lshlrev_b32 {vb}, 6, {vb}")
        e(f"s_mov_b32 {sT[0]}, {L_Q}")
        e(f"v_add3_u32 {va}, {va}, {vb}, {sT[0]}")
        e(f"v_bfe_u32 {vb}, {vLane}, 2, 2")
        for m in range(4):
            e(f"v_subrev_u32 {vc}, {m}, {vb}"); e(f"v_and_b32 {vc}, 3, {vc}")
            e(f"v_lshl_add_u32 v{T+m}, {vc}, 4, {va}")
        e(f"s_lshl_b32 {sT[0]}, {sW}, 11"); e(f"s_add_u32 {sT[0]}, {sT[0]}, {L_ACC}")
        e(f"v_add_u32 v92, {sT[0]}, {vVo}")
        e(f"s_mov_b32 {sFF}, {FF[0]}")
        for r in (1, 2, 3): e(f"s_cmp_eq_u32 {sRole}, {r}"); e(f"s_cselect_b32 {sFF}, {FF[r]}, {sFF}")
        e(f"s_cmp_ge_u32 {sC}, {32 - 8 * opts.get('np', 2)}"); e(f"s_cselect_b32 {sT[0]}, {opts.get('ffq', 0x48)}, 0"); e(f"s_or_b32 {sFF}, {sFF}, {sT[0]}")
        e("s_waitcnt lgkmcnt(0)")
        e(f"s_mov_b32 s36, s{sV}"); e(f"s_mov_b32 s37, s{sV+1}")
        e(f"v_mov_b32 v94, {L_FLAG}"); e(f"v_cmp_eq_u32 vcc, 0, {vLane}"); e("v_cndmask_b32 v95, 0, 1, vcc"); e(f"v_mov_b32 {vS0}, 0"); e(f"v_mov_b32 {vS1}, 0")
    def emit_task(t):
        for x in t["ins"]:
            if opts.get("nocomp") and (x.startswith("v_perm") or x.startswith("v_mfma") or "_dpp" in x): continue
            e(x)
        return len(t["ins"])
    ti = 0; freed = set()
    IW = opts.get("iw", 0); iwk = [0]
    for s in range(2 * NL):
        if s == W0:
            setup_misc()
            e("s_barrier")
        if s == RING:
            stamp(1)
            lds_wait("L_qw", 0, 1, va, vb)
            for m in range(4): e(f"ds_read_b128 {vr(BQ+4*m)}, v{T+m}")
            stamp(2)
            e("s_waitcnt lgkmcnt(0)")
        if s >= RING:
            while (s - RING) not in freed:
                assert tasks[ti]["need"] <= s - 1 - W
                emit_task(tasks[ti]); freed.update(tasks[ti]["frees"]); ti += 1
        if s >= ENDS: e(f"s_waitcnt vmcnt({WHI-1})")
        elif s >= 8:
            e(f"s_waitcnt vmcnt({WHI-1})")
            e(f"s_cmp_eq_u32 {sLev}, 2"); e(f"s_cbranch_scc1 L_go{s}")
            A.opt(f"s_waitcnt vmcnt({W0-1})")
            A.opt(f"s_cmp_eq_u32 {sLev}, 1"); A.opt(f"s_cbranch_scc1 L_go{s}")
            A.opt(f"s_waitcnt vmcnt({WLO-1})")
            A.label(f"L_go{s}")
        elif s >= W0: e(f"s_waitcnt vmcnt({W0-1})")
        if debug and s == 4: e("s_memrealtime s[70:71]")
        if debug and s == W0: e("s_memrealtime s[72:73]")
        issue(s)
        if s == opts.get("qstart", 24): e("ds_add_u32 v94, v95 offset:36")
        SG = opts.get("sg", 180); CA, GA = opts.get("cka", (88, 120))
        if s in [SG, CA, GA, opts.get("spub", 152)] + [x for cg in opts.get("lck", LCK) for x in cg]: e("ds_add_u32 v94, v95 offset:20")
        CP = opts.get("cper", 4)
        if (s % 8 == 7 or (s >= GA and s % CP == CP - 1)) and s + 1 < ENDS:
            dyn = s >= GA
            if dyn:
                e("s_waitcnt lgkmcnt(0)")
                e(f"v_readfirstlane_b32 {sHi}, {vS0}"); e(f"v_readfirstlane_b32 {sLo}, {vS1}")
                if IW and s >= IW + CP: e(f"v_readfirstlane_b32 {sT[6]}, {vf}")
                e(f"ds_read_b64 v[{M+4}:{M+5}], v94 offset:24")
                if IW and s >= IW: e(f"ds_add_rtn_u32 {vf}, v94, v95 offset:44"); iwk[0] += 1
            e(f"s_bitcmp1_b32 {sFF}, {(s+1)//8}"); e(f"s_cselect_b32 {sLev}, 2, 1")
            if dyn:
                e(f"s_cmpk_gt_i32 {sHi}, {s+CP//2}"); e(f"s_cselect_b32 {sLev}, 2, {sLev}")
                e(f"s_cmpk_gt_i32 {sLo}, {s+CP//2}"); e(f"s_cselect_b32 {sLev}, 0, {sLev}")
                if IW and s >= IW + CP:
                    e(f"s_cmpk_ge_u32 {sT[6]}, {4*(iwk[0]-2) + 3}"); e(f"s_addc_u32 {sLev}, {sLev}, 0"); e(f"s_min_u32 {sLev}, {sLev}, 2")
                    if opts.get("iwdown"):
                        e(f"s_cmpk_le_u32 {sT[6]}, {4*(iwk[0]-2)}"); e(f"s_subb_u32 {sLev}, {sLev}, 0"); e(f"s_max_i32 {sLev}, {sLev}, 0")
        if s >= RING:
            spent = 0
            while ti < len(tasks) and tasks[ti]["need"] <= s - W and (spent == 0 or spent + len(tasks[ti]["ins"]) <= BUDGET):
                spent += emit_task(tasks[ti]); freed.update(tasks[ti]["frees"]); ti += 1
        if debug and s == NL: e("s_memrealtime s[74:75]")
        if debug and s == 192: e("s_memrealtime s[98:99]")
        if debug and s == 64: e("s_memrealtime s[90:91]")
    landed = 2 * NL - 1 - W
    while ti < len(tasks):
        if tasks[ti]["need"] > landed:
            landed = tasks[ti]["need"]; e(f"s_waitcnt vmcnt({2*NL-1-landed})")
        emit_task(tasks[ti]); ti += 1
    stamp(3)
    e(f"ds_write_b128 v92, {vr(ACC)}"); e(f"ds_write_b128 v92, {vr(ACC+4)} offset:1024")
    e("s_waitcnt lgkmcnt(0)")
    e("s_barrier")
    stamp(4)
    e(f"s_cmp_eq_u32 {sRole}, 2"); e("s_cbranch_scc1 L_st2")
    e("s_branch L_fin")

    def poll(lbl, loads, regs, sleep=0):
        A.label(lbl)
        timeout()
        if sleep: e(f"s_sleep {sleep}")
        for l in loads: e(l)
        regs = list(regs)
        n = len(loads)
        for li in range(n):
            e(f"s_waitcnt vmcnt({n-1-li})")
            r = regs[4*li:4*li+4]
            for k in range(4): e(f"v_xor_b32 v{r[k]}, {sTB[k]}, v{r[k]}")
            if li == 0: e(f"v_or_b32 {va}, v{r[0]}, v{r[1]}"); e(f"v_or_b32 {vb}, v{r[2]}, v{r[3]}")
            else: e(f"v_or3_b32 {va}, {va}, v{r[0]}, v{r[1]}"); e(f"v_or3_b32 {vb}, {vb}, v{r[2]}, v{r[3]}")
        e(f"v_bitop3_b32 {va}, {va}, {vb}, {vMask} bitop3:0x54")
        e(f"v_cmp_ne_u32 vcc, 0, {va}")
        e(f"s_cbranch_vccnz {lbl}")
    MK = 8
    def mpoll_init(n):
        for k in range(n): e(f"s_mov_b64 s[{MK+2*k}:{MK+2*k+1}], -1")
    def mpoll(lbl, loads, regs):
        n = len(loads); regs = list(regs)
        A.label(lbl)
        timeout()
        for k in range(n):
            e(f"s_mov_b64 exec, s[{MK+2*k}:{MK+2*k+1}]"); e(f"s_cbranch_execz {lbl}_0k{k}")
            e(loads[k])
            A.label(f"{lbl}_0k{k}")
        A.label(lbl + "_w")
        e("s_mov_b64 s[6:7], 0")
        e("s_waitcnt vmcnt(0)")
        for k in range(n):
            e(f"s_mov_b64 exec, s[{MK+2*k}:{MK+2*k+1}]"); e(f"s_cbranch_execz {lbl}_1k{k}")
            r = regs[4*k:4*k+4]
            for j in range(4): e(f"v_xor_b32 v{r[j]}, {sTB[j]}, v{r[j]}")
            e(f"v_or3_b32 {va}, v{r[0]}, v{r[1]}, v{r[2]}"); e(f"v_bitop3_b32 {va}, {va}, v{r[3]}, {vMask} bitop3:0x54")
            e(f"v_cmp_ne_u32 s[{MK+2*k}:{MK+2*k+1}], 0, {va}")
            e(f"s_or_b64 s[6:7], s[6:7], s[{MK+2*k}:{MK+2*k+1}]")
            A.label(f"{lbl}_1k{k}")
        e("s_cmp_eq_u64 s[6:7], 0"); e(f"s_cbranch_scc0 {lbl}")
        e("s_mov_b64 exec, -1")
        A.fence()
    def ppoll(lbl, addr, n, sets):
        NS = len(sets)
        def iss(b):
            for it in range(n): e(f"global_load_dwordx4 {vr(b+4*it)}, v{addr+it}, {sp(sWS)} sc1")
        def chk(b):
            for it in range(n):
                e(f"s_waitcnt vmcnt({n*NS - 1 - it})")
                r = b + 4 * it; d = 12 if it == 0 else r
                for k in range(4): e(f"v_xor_b32 v{d+k}, {sTB[k]}, v{r+k}")
                if it == 0: e(f"v_or_b32 {va}, v12, v13"); e(f"v_or_b32 {vb}, v14, v15")
                else:
                    e(f"v_or3_b32 {va}, {va}, v{r}, v{r+1}"); e(f"v_or3_b32 {vb}, {vb}, v{r+2}, v{r+3}")
                    if it == n - 1: e(f"v_bitop3_b32 {va}, {va}, {vb}, {vMask} bitop3:0x54"); e(f"v_cmp_ne_u32 vcc, 0, {va}")
                    e(f"v_pk_add_f32 v[12:13], v[12:13], v[{r}:{r+1}]"); e(f"v_pk_add_f32 v[14:15], v[14:15], v[{r+2}:{r+3}]")
            e(f"s_cbranch_vccz {lbl}_got")
        A.label(lbl)
        for b_ in sets[:-1]: iss(b_)
        A.label(lbl + "_l")
        timeout()
        for k in range(NS):
            iss(sets[(k - 1) % NS]); chk(sets[k])
        e(f"s_branch {lbl}_l")
        A.label(lbl + "_got")
    def tag4(b):
        for k in range(4): e(f"v_and_or_b32 v{b+k}, v{b+k}, {vMask}, {sTB[k]}")
    def get_tag():
        e(f"v_mov_b32 {va}, {L_FLAG+16}"); e(f"ds_read_b32 {va}, {va}"); e(f"v_mov_b32 {vMask}, 0xffffff00")
        e("s_waitcnt lgkmcnt(0)")
        e(f"v_readfirstlane_b32 {sTag}, {va}")
        for k in range(4): e(f"s_bfe_u32 {sTB[k]}, {sTag}, {(8 << 16) | (8 * k):#x}")
    def wfrag(dst, raw, nload, ldsoff):
        e(f"s_mul_i32 {sT[0]}, {sW}, {WPW}"); e(f"v_add_u32 {va}, {sT[0]}, {vVo}")
        for n in range(nload): e(f"ds_read_b128 {vr(raw+4*n)}, {va} offset:{ldsoff + 1024*n}")
        e("s_waitcnt lgkmcnt(0)")
        wperm(dst, raw, nload)
    def wperm(dst, raw, nload):
        h = nload // 2
        for ee in range(8):
            for k in range(h):
                e(f"v_perm_b32 v{dst+h*ee+k}, v{raw+4*(2*k+1)+(ee>>1)}, v{raw+4*(2*k)+(ee>>1)}, {sSelHi if ee & 1 else sSelLo}")
    def pk(a, b): e(f"v_pk_add_f32 v[{a}:{a+1}], v[{a}:{a+1}], v[{b}:{b+1}]")
    def add4(a, b): pk(a, b); pk(a + 2, b + 2)
    F1 = 128; RAW = 192; G = 12; DD = 160; F2 = 224
    def svc_join(lbl):
        e(f"s_cmp_lt_u32 {sW}, 4"); e(f"s_cbranch_scc1 {lbl}")
        e("s_call_b64 s[66:67], L_publish")
        A.label(lbl)

    def gu_fold():
        for k in range(4):
            e(f"v_add_f32_dpp v{12+k}, v{DD+4*k+1}, v{DD+4*k} row_ror:8 row_mask:0xf bank_mask:0x3")
        for k in range(4):
            e(f"v_add_f32_dpp v{12+k}, v{DD+4*(k+4)}, v{DD+4*(k+4)+1} row_ror:8 row_mask:0xf bank_mask:0xc")
    def rowsum(b):
        e(f"v_permlane32_swap_b32 v{b}, v{b+2}"); e(f"v_permlane32_swap_b32 v{b+1}, v{b+3}")
        pk(b, b + 2)
        e(f"v_permlane16_swap_b32 v{b}, v{b+1}"); e(f"v_add_f32 v{b}, v{b}, v{b+1}")
    def afrag(src, extra=()):
        e(f"v_mov_b32_dpp v53, {src} row_ror:14 {DPPF}")
        e(f"v_cvt_pk_bf16_f32 v52, {src}, v53")
        for x in extra: e(x)
        for k in (1, 2, 3): e(f"v_mov_b32_dpp v{52+k}, v52 row_ror:{16-4*k} {DPPF}")
    A.label("L_st1")
    e(f"s_and_b32 {sT[4]}, {sIdx}, 7"); e(f"s_lshr_b32 {sT[5]}, {sIdx}, 3"); e(f"s_and_b32 {sT[3]}, {sW}, 3")
    e(f"v_lshrrev_b32 {vc}, 4, {vLane}"); e(f"v_lshlrev_b32 {vc}, 11, {vc}")
    e(f"v_and_b32 {vd}, 15, {vLane}"); e(f"v_lshl_add_u32 {vc}, {vd}, 4, {vc}")
    e(f"s_lshl_b32 {sT[0]}, {sG}, 16"); e(f"s_add_u32 {sT[0]}, {sT[0]}, {WS_PART}")
    e(f"s_lshl_b32 {sT[1]}, {sT[3]}, 8"); e(f"s_add_u32 {sT[0]}, {sT[0]}, {sT[1]}")
    e(f"s_lshl_b32 {sT[1]}, {sT[5]}, 10"); e(f"s_add_u32 {sT[0]}, {sT[0]}, {sT[1]}")
    e(f"s_lshl_b32 {sT[1]}, {sT[4]}, 13"); e(f"s_add_u32 {sT[0]}, {sT[0]}, {sT[1]}")
    e(f"v_add_u32 v44, {sT[0]}, {vc}")
    for it in range(1, 8): e(f"v_xor_b32 v{44+it}, {4*PREC*it}, v44")
    ld1 = [f"global_load_dwordx4 {vr(G+4*it)}, v{44+it}, {sp(sWS)} sc1" for it in range(8)]
    get_tag()
    e(f"v_bfe_u32 {va}, {vLane}, 3, 1"); e(f"v_lshlrev_b32 {va}, 13, {va}"); e(f"v_lshrrev_b32 {vb}, 4, {vLane}"); e(f"v_lshl_add_u32 {va}, {vb}, 9, {va}")
    e(f"v_and_b32 {vb}, 7, {vLane}"); e(f"v_lshl_add_u32 {va}, {vb}, 4, {va}")
    e(f"s_lshl_b32 {sT[0]}, {sT[3]}, 11"); e(f"v_add_u32 {va}, {sT[0]}, {va}")
    for n in range(8): e(f"ds_read_b128 {vr(RAW+4*n)}, {va} offset:{(128*(n&1) + (n>>1))*128}")
    e("s_waitcnt lgkmcnt(0)")
    wperm(F1, RAW, 8)
    e(f"s_lshl_b32 {sT[0]}, {sT[3]}, 8"); e(f"s_add_u32 {sT[0]}, {sT[0]}, {L_RED}")
    e(f"v_and_b32 {vY0}, 7, {vLane}"); e(f"v_lshlrev_b32 {vY0}, 5, {vY0}"); e(f"v_and_b32 {vd}, 8, {vLane}"); e(f"v_lshl_add_u32 {vY0}, {vd}, 1, {vY0}"); e(f"v_add_u32 {vY0}, {sT[0]}, {vY0}")
    e(f"v_add_u32 {vY1}, {L_RED}, {vVo}")
    e(f"s_lshl_b32 {sT[0]}, {sG}, 12"); e(f"s_lshl_b32 {sT[1]}, {sIdx}, 8"); e(f"s_add_u32 {sT[0]}, {sT[0]}, {sT[1]}"); e(f"s_add_u32 {sT[0]}, {sT[0]}, {WS_A1}")
    e(f"v_add_u32 {vS0}, {sT[0]}, {vVo}")
    mpoll_init(8)
    e("s_call_b64 s[66:67], L_publish")
    mpoll("L_poll1", ld1, range(12, 44))
    stamp(6)
    add4(12, 16); add4(20, 24); add4(28, 32); add4(36, 40); add4(12, 20); add4(28, 36); add4(12, 28)
    rowsum(12)
    afrag("v12")
    for ee in range(8): e(f"v_mfma_f32_16x16x32_bf16 {vr(DD+4*ee)}, v[52:55], {vr(F1+4*ee)}, 0")
    gu_fold()
    e("s_mov_b64 exec, 0xffff")
    e(f"ds_write_b128 {vY0}, v[12:15]")
    e("s_waitcnt lgkmcnt(0)")
    e("s_barrier")
    e(f"s_cmp_eq_u32 {sW}, 4"); e("s_cbranch_scc0 L_fin")
    for w in range(4): e(f"ds_read_b128 {vr(12+4*w)}, {vY1} offset:{256*w}")
    e("s_waitcnt lgkmcnt(2)"); add4(12, 16)
    e("s_waitcnt lgkmcnt(0)"); add4(20, 24); add4(12, 20)
    tag4(12)
    e(f"global_store_dwordx4 {vS0}, v[12:15], {sp(sWS)} sc1")
    stamp(7)
    e("s_branch L_fin")

    LATE = opts.get("latedown", True)
    def down_addr():
        e(f"v_lshrrev_b32 v8, 4, {vLane}"); e("v_lshlrev_b32 v8, 10, v8")
        e(f"v_and_b32 v7, 15, {vLane}"); e("v_lshl_add_u32 v8, v7, 4, v8")
        e(f"s_lshl_b32 {sT[2]}, {sIdx}, 15"); e(f"s_and_b32 {sT[3]}, {sW}, 3"); e(f"s_lshl_b32 {sT[3]}, {sT[3]}, 8"); e(f"s_add_u32 {sT[2]}, {sT[2]}, {sT[3]}")
        e(f"s_add_u32 {sT[2]}, {sT[2]}, 4096"); e(f"v_add_u32 v8, {sT[2]}, v8")
        for k in range(1, 4): e(f"v_add_u32 v{8+k}, {8192*k}, v8")
    def down_loads():
        for ep in range(8):
            e(f"global_load_dwordx4 {vr(RAW+4*ep)}, v{8+(ep>>1)}, {sp(sWD)} offset:{4096*(ep&1) - 4096} {opts.get('lpol', 'nt')}")
    def gu_addr(sw):
        e(f"v_lshrrev_b32 v5, 4, {vLane}"); e(f"v_bfe_u32 v6, {vLane}, 3, 1"); e("v_lshl_add_u32 v5, v6, 2, v5")
        e(f"s_lshl_b32 {sT[2]}, {sw}, 6"); e(f"v_add_u32 v5, {sT[2]}, v5")
        e("v_mul_u32_u24 v5, 3584, v5")
        e(f"v_and_b32 v6, 3, {vLane}"); e("v_lshlrev_b32 v6, 4, v6")
        e(f"s_lshl_b32 {sT[2]}, {sIdx}, 6"); e(f"v_add3_u32 v5, v5, v6, {sT[2]}")
        e(f"v_and_b32 v6, 4, {vLane}"); e("v_cmp_eq_u32 vcc, 0, v6")
        e(f"v_mov_b32 v6, s{sWU}"); e(f"v_mov_b32 v4, s{sWG}"); e("v_cndmask_b32 v6, v6, v4, vcc")
        e(f"v_mov_b32 v7, s{sWU+1}"); e(f"v_mov_b32 v4, s{sWG+1}"); e("v_cndmask_b32 v7, v7, v4, vcc")
        e("v_add_co_u32 v6, vcc, v6, v5"); e("v_addc_co_u32 v7, vcc, 0, v7, vcc")
    NLATE = opts.get("nlate", 5)
    A.label("L_st2")
    def gu_loads():
        for ep in range(8):
            e(f"global_load_dwordx4 {vr(96+4*ep)}, v[6:7], off {opts.get('lpol', 'nt')}")
            if ep < 7: e(f"v_add_co_u32 v6, vcc, {3584*8}, v6"); e("v_addc_co_u32 v7, vcc, 0, v7, vcc")
    e(f"s_cmp_lt_u32 {sW}, 4"); e("s_cbranch_scc0 L_s2a")
    if NLATE > 4: gu_addr(sW)
    e("s_barrier")
    if NLATE > 4:
        e(f"s_cmp_lt_u32 {sW}, {8 - NLATE}"); e("s_cbranch_scc1 L_s2a")
        gu_loads()
    A.label("L_s2a")
    get_tag()
    e(f"v_and_b32 {vc}, 15, {vLane}")
    e(f"s_lshl_b32 {sT[0]}, {sW}, 4"); e(f"v_add_u32 {vc}, {sT[0]}, {vc}")
    e(f"v_lshrrev_b32 {vf}, 4, {vLane}"); e(f"v_lshl_add_u32 {vd}, {vc}, 2, {vf}"); e(f"v_lshlrev_b32 {vd}, 1, {vd}")
    e(f"global_load_ushort v28, {vd}, {sp(sX)}")
    wfrag(F1, RAW, 8, 0)
    e(f"v_lshlrev_b32 {vd}, 11, {vf}")
    e(f"v_lshl_add_u32 v36, {vc}, 4, {vd}"); e(f"v_add_u32 v36, {WS_A1}, v36")
    for it in range(1, 4): e(f"v_add_u32 v{36+it}, {8192*it}, v36")
    e(f"s_lshl_b32 {sT[0]}, {sW}, 3"); e(f"s_add_u32 {sT[0]}, {sT[0]}, {L_STAT}"); e(f"v_mov_b32 v40, {sT[0]}")
    e(f"v_bfe_u32 v41, {vLane}, 1, 3"); e("v_lshlrev_b32 v41, 3, v41"); e(f"v_add_u32 v41, {L_STAT}, v41")
    e(f"v_mov_b32 v30, {L_STAT}")
    e(f"s_lshl_b32 {sT[0]}, {sW}, 8"); e(f"s_add_u32 {sT[0]}, {sT[0]}, {L_RED}")
    e(f"v_and_b32 v42, 7, {vLane}"); e("v_lshlrev_b32 v42, 5, v42"); e(f"v_and_b32 {vd}, 8, {vLane}"); e(f"v_lshl_add_u32 v42, {vd}, 1, v42"); e(f"v_add_u32 v42, {sT[0]}, v42")
    e(f"v_add_u32 v43, {L_RED}, {vVo}")
    e(f"s_lshl_b32 {sT[0]}, {sIdx}, 11"); e(f"s_and_b32 {sT[1]}, {sW}, 3"); e(f"s_lshl_b32 {sT[1]}, {sT[1]}, 9"); e(f"s_add_u32 {sT[0]}, {sT[0]}, {sT[1]}"); e(f"s_add_u32 {sT[0]}, {sT[0]}, {WS_D2}")
    e(f"v_and_b32 {vS0}, 15, {vLane}"); e(f"v_lshlrev_b32 {vS0}, 4, {vS0}"); e(f"v_lshrrev_b32 {vd}, 5, {vLane}"); e(f"v_lshlrev_b32 {vd}, 8, {vd}"); e(f"v_add3_u32 {vS0}, {vS0}, {vd}, {sT[0]}")
    e("s_waitcnt vmcnt(0)")
    e("v_lshlrev_b32 v32, 16, v28")
    if NLATE > 4:
        e(f"s_cmp_lt_u32 {sW}, {8 - NLATE}"); e("s_cbranch_scc1 L_j2")
        e(f"s_cmp_lt_u32 {sW}, 4"); e("s_cbranch_scc1 L_j2b")
    else:
        e(f"s_cmp_lt_u32 {sW}, 4"); e("s_cbranch_scc1 L_j2")
    down_addr()
    gu_addr(sW)
    e("s_call_b64 s[66:67], L_publish")
    if NLATE:
        e(f"s_cmp_lt_u32 {sW}, {8 - NLATE}"); e("s_cbranch_scc1 L_j2a")
        gu_loads()
        down_loads()
        e("s_waitcnt vmcnt(8)")
        A.label("L_j2b")
        wperm(F1, 96, 8)
        e("s_branch L_j2")
        A.label("L_j2a")
    down_loads()
    A.label("L_j2")
    for k in range(4): e(f"v_mov_b32 v{52+k}, 0x3f803f80")
    for ee in range(8): e(f"v_mfma_f32_16x16x32_bf16 {vr(DD+4*ee)}, v[52:55], {vr(F1+4*ee)}, 0")
    gu_fold()
    e("s_mov_b64 exec, 0xffff"); e("ds_write_b128 v42, v[12:15] offset:2048"); e("s_mov_b64 exec, -1")
    e("s_waitcnt lgkmcnt(0)")
    e("s_barrier")
    CS = 64
    if opts.get("m2"): mpoll_init(4)
    e(f"s_cmp_lt_u32 {sW}, 4"); e("s_cbranch_scc1 L_poll2")
    e(f"ds_read_b128 {vr(CS)}, v43 offset:2048"); e(f"ds_read_b128 {vr(CS+4)}, v43 offset:{2048+1024}")
    e("s_waitcnt lgkmcnt(0)")
    add4(CS, CS + 4); rowsum(CS)
    e("s_waitcnt vmcnt(0)")
    wperm(F2, RAW, 8)
    stamp(2)
    ppoll("L_poll2", 36, 4, [96, 112][:opts.get("p2sets", 1)])
    e("s_nop 0")
    stamp(6)
    rowsum(12)
    def rnd4(b, t):
        e(f"v_cvt_pk_bf16_f32 v{t}, v{b}, v{b+1}"); e(f"v_cvt_pk_bf16_f32 v{t+1}, v{b+2}, v{b+3}")
        e(f"v_lshlrev_b32 v{b}, 16, v{t}"); e(f"v_and_b32 v{b+1}, 0xffff0000, v{t}")
        e(f"v_lshlrev_b32 v{b+2}, 16, v{t+1}"); e(f"v_and_b32 v{b+3}, 0xffff0000, v{t+1}")
    e("v_cvt_pk_bf16_f32 v12, v12, v12"); e("v_lshlrev_b32 v12, 16, v12"); e("v_add_f32 v12, v32, v12")
    afrag("v12", ["v_lshlrev_b32 v20, 16, v52"])
    e(f"v_readfirstlane_b32 {sT[2]}, v20")
    st = [f"v_subrev_f32 v20, {sT[2]}, v20", "v_mul_f32 v21, v20, v20",
          "v_permlane32_swap_b32 v20, v21", "v_add_f32 v20, v20, v21", "v_mov_b32 v21, v20",
          "v_permlane16_swap_b32 v21, v20", "v_add_f32 v20, v20, v21"]
    st += [f"v_add_f32_dpp v20, v20, v20 row_ror:{k} {DPPF}" for k in (8, 4, 2, 1)]
    st += [f"v_readlane_b32 {sT[3]}, v20, 32", "v_mul_f32 v21, 0x3c800000, v20", f"v_add_f32 v22, {sT[2]}, v21", f"v_fma_f32 v23, -v21, v20, {sT[3]}"]
    cuts = [0, 2, 5, 7, 8, 9, 10, 11, len(st)]
    for ee in range(8):
        e(f"v_mfma_f32_16x16x32_bf16 {vr(DD+4*ee)}, v[52:55], {vr(F1+4*ee)}, 0")
        for x in st[cuts[ee]:cuts[ee+1]]: e(x)
    gu_fold()
    e("s_mov_b64 exec, 0xffff")
    e("ds_write_b64 v40, v[22:23]")
    e("ds_write_b128 v42, v[12:15]")
    e("s_mov_b64 exec, -1")
    e("s_waitcnt lgkmcnt(0)")
    e("s_barrier")
    e(f"s_cmp_lt_u32 {sW}, 4"); e("s_cbranch_scc1 L_fin")
    e("ds_read_b64 v[20:21], v41"); e("ds_read_b32 v22, v30")
    e("ds_read_b128 v[12:15], v43"); e("ds_read_b128 v[16:19], v43 offset:1024")
    e("s_waitcnt lgkmcnt(2)")
    e("v_sub_f32 v20, v20, v22"); e("v_mul_f32 v23, 0x42800000, v20"); e("v_fmac_f32 v21, v23, v20")
    e(f"v_add_f32_dpp v20, v20, v20 row_ror:8 {DPPF}")
    e("s_waitcnt lgkmcnt(0)")
    e(f"v_add_f32_dpp v21, v21, v21 row_ror:8 {DPPF}")
    pk(12, 16)
    e(f"v_add_f32_dpp v20, v20, v20 row_ror:4 {DPPF}")
    pk(14, 18)
    e(f"v_add_f32_dpp v21, v21, v21 row_ror:4 {DPPF}")
    e(f"v_add_f32_dpp v20, v20, v20 row_ror:2 {DPPF}")
    e("v_permlane32_swap_b32 v12, v14")
    e(f"v_add_f32_dpp v21, v21, v21 row_ror:2 {DPPF}")
    e("v_permlane32_swap_b32 v13, v15")
    e("v_mul_f32 v23, 0x41000000, v20"); e("v_fma_f32 v21, -v23, v20, v21"); e("v_fmac_f32 v22, 0x3e000000, v20"); e("v_mul_f32 v21, 0x3b000000, v21")
    e("v_cvt_pk_bf16_f32 v23, v22, v21"); e("v_and_b32 v21, 0xffff0000, v23"); e("v_add_f32 v21, 0x3727c5ac, v21")
    e("v_cvt_pk_bf16_f32 v24, v21, v21"); e("v_lshlrev_b32 v21, 16, v24"); e("v_sqrt_f32 v21, v21")
    pk(12, 14)
    e("v_cvt_pk_bf16_f32 v24, v21, v21"); e("v_lshlrev_b32 v21, 16, v24"); e("v_rcp_f32 v21, v21")
    e("v_permlane16_swap_b32 v12, v13"); e("v_lshlrev_b32 v22, 16, v23"); e("v_add_f32 v12, v12, v13")
    e(f"v_fma_f32 v12, -v22, v{CS}, v12"); e("v_mul_f32 v12, v21, v12")
    e("v_cvt_pk_bf16_f32 v12, v12, v12"); e("v_lshlrev_b32 v12, 16, v12")
    e(f"v_mul_f32_dpp v12, v12, v12 row_ror:8 {DPPF}")
    e(f"v_mov_b32_dpp v53, v12 row_ror:15 {DPPF}")
    e("v_cvt_pk_bf16_f32 v52, v12, v53")
    for k in (1, 2, 3): e(f"v_mov_b32_dpp v{52+k}, v52 row_ror:{16-2*k} {DPPF}")
    for ee in range(8): e(f"v_mfma_f32_16x16x32_bf16 {vr(DD+4*ee)}, v[52:55], {vr(F2+4*ee)}, 0")
    for k in range(4): e(f"v_and_or_b32 v{12+k}, v{DD+4*k}, {vMask}, {sTB[k]}")
    e("s_mov_b32 exec_lo, 0"); e("s_mov_b32 exec_hi, 0xffff")
    for k in range(4): e(f"v_and_or_b32 v{12+k}, v{DD+4*(k+4)}, {vMask}, {sTB[k]}")
    e("s_mov_b32 exec_lo, 0xffff")
    e(f"global_store_dwordx4 {vS0}, v[12:15], {sp(sWS)} sc1")
    e("s_mov_b64 exec, -1")
    stamp(7)
    e("s_branch L_fin")
    def ln_finish(vm, vv, t):
        e(f"v_cvt_pk_bf16_f32 {t}, {vm}, {vv}")
        e(f"v_lshlrev_b32 {vm}, 16, {t}"); e(f"v_and_b32 {vv}, 0xffff0000, {t}")
        e(f"v_add_f32 {vv}, 0x3727c5ac, {vv}")
        e(f"v_cvt_pk_bf16_f32 {t}, {vv}, {vv}"); e(f"v_lshlrev_b32 {vv}, 16, {t}")
        e(f"v_sqrt_f32 {vv}, {vv}")
        e(f"v_cvt_pk_bf16_f32 {t}, {vv}, {vv}"); e(f"v_lshlrev_b32 {vv}, 16, {t}")
        e(f"v_rcp_f32 {vv}, {vv}")

    A.label("L_st3")
    get_tag()
    e(f"s_lshr_b32 {sT[1]}, {sIdx}, 2"); e(f"s_lshl_b32 {sT[1]}, {sT[1]}, 7"); e(f"s_and_b32 {sT[0]}, {sIdx}, 1"); e(f"s_lshl_b32 {sT[0]}, {sT[0]}, 6"); e(f"s_add_u32 {sT[1]}, {sT[1]}, {sT[0]}")
    e(f"s_and_b32 {sT[0]}, {sIdx}, 2"); e(f"s_lshl_b32 {sT[0]}, {sT[0]}, 1"); e(f"s_add_u32 {sT[1]}, {sT[1]}, {sT[0]}")
    e(f"v_and_b32 {vc}, 7, {vLane}"); e(f"v_lshlrev_b32 v45, 3, {vc}"); e(f"v_add_u32 v45, {sT[1]}, v45")
    e(f"v_lshrrev_b32 {vf}, 4, {vLane}"); e(f"v_add_lshl_u32 {vS0}, v45, {vf}, 1")
    e(f"global_load_ushort v60, {vS0}, {sp(sX)}")
    e(f"v_lshrrev_b32 {vd}, 3, {vLane}"); e(f"v_lshlrev_b32 {vd}, 11, {vd}")
    e(f"v_lshl_add_u32 v44, v45, 2, {vd}"); e(f"v_add_u32 v44, {WS_A1}, v44")
    e(f"v_lshl_add_u32 {vd}, {vc}, 4, {vd}")
    e(f"s_lshl_b32 {sT[0]}, {sIdx}, 7"); e(f"v_add_u32 {vd}, {sT[0]}, {vd}")
    for it in range(7): e(f"v_add_u32 v{46+it}, {WS_D2 + 16384*it}, {vd}")
    e("s_barrier")
    e("s_barrier")
    e(f"v_mov_b32 v61, {sTag}"); e("v_mov_b32 v62, 0")
    def red4(b):
        e(f"v_permlane32_swap_b32 v{b}, v{b+2}"); e(f"v_permlane32_swap_b32 v{b+1}, v{b+3}")
        e(f"v_add_f32 v{b}, v{b}, v{b+2}"); e(f"v_add_f32 v{b+1}, v{b+1}, v{b+3}")
        e(f"v_permlane16_swap_b32 v{b}, v{b+1}"); e(f"v_add_f32 v{b}, v{b}, v{b+1}")
        e(f"v_add_f32_dpp v{b}, v{b}, v{b} row_ror:8 {DPPF}")
    e("v_add_u32 v45, 16384, v44")
    if opts.get("pre3", True):
        for it in range(7): e(f"global_load_dwordx4 {vr(96+4*it)}, v{46+it}, {sp(sWS)} sc1")
    poll("L_poll3a", [f"global_load_dwordx4 {vr(12+4*it)}, v{44+it}, {sp(sWS)} sc1" for it in range(2)], range(12, 20))
    add4(12, 16)
    red4(12)
    e("v_cvt_pk_bf16_f32 v12, v12, v12"); e("v_lshlrev_b32 v12, 16, v12"); e("v_lshlrev_b32 v60, 16, v60")
    e("v_add_f32 v60, v60, v12"); e("v_cvt_pk_bf16_f32 v60, v60, v60"); e("v_lshlrev_b32 v60, 16, v60")
    stamp(6)
    e(f"s_cmp_eq_u32 {sIdx}, 0"); e("s_cbranch_scc0 L_noep")
    e("s_mov_b64 exec, 1")
    e(f"global_store_dword v62, v61, {sp(sWS)}")
    e("s_mov_b64 exec, -1")
    A.label("L_noep")
    ppoll("L_poll3b", 46, 7, [96, 128, 160][:opts.get("p3sets", 2)])
    e("s_nop 0")
    red4(12)
    e("v_cvt_pk_bf16_f32 v12, v12, v12"); e("v_lshlrev_b32 v12, 16, v12")
    e("v_add_f32 v12, v60, v12")
    if opts.get("probe"):
        lo, hi = opts["probe"]
        e("s_memrealtime s[82:83]"); e("s_waitcnt lgkmcnt(0)"); e("s_sub_u32 s82, s82, s80")
        e(f"s_sub_u32 s83, s82, {lo}"); e(f"s_cmp_lt_u32 s83, {hi - lo}"); e("s_cbranch_scc1 L_pok")
        for _ in range(16): e("s_sleep 127")
        A.label("L_pok")
    e("v_cvt_pk_bf16_f32 v12, v12, v12")
    e("s_mov_b32 exec_lo, 0x00ff00ff"); e("s_mov_b32 exec_hi, 0x00ff00ff")
    e(f"global_store_short {vS0}, v12, {sp(sOUT)} {opts.get('opol', '')}")
    e("s_mov_b64 exec, -1")
    stamp(7)

    A.label("L_fin")
    if debug:
        e("s_mov_b64 exec, -1")
        e("s_waitcnt vmcnt(0) lgkmcnt(0)")
        e("s_memrealtime s[96:97]"); e("s_memtime s[6:7]")
        e("s_waitcnt lgkmcnt(0)")
        e("s_sub_u32 s6, s6, s100"); e("v_mov_b32 v18, s6")
        e(f"s_lshl_b32 {sT[0]}, {sId}, 3"); e(f"s_add_u32 {sT[0]}, {sT[0]}, {sW}"); e(f"s_lshl_b32 {sT[0]}, {sT[0]}, 6"); e(f"s_add_u32 {sT[0]}, {sT[0]}, {WS_STAMP}")
        e(f"v_mov_b32 v20, {sT[0]}")
        for i in range(9): e(f"v_mov_b32 v{4+i}, s{80+2*i}")
        e("s_getreg_b32 s52, hwreg(HW_REG_XCC_ID)"); e("v_mov_b32 v13, s52"); e("v_mov_b32 v14, s70"); e("v_mov_b32 v15, s72"); e("v_mov_b32 v16, s74"); e("v_mov_b32 v17, s98"); e("v_mov_b32 v19, s73")
        e("s_mov_b64 exec, 1")
        for i in range(4): e(f"global_store_dwordx4 v20, v[{4+4*i}:{7+4*i}], {sp(sWS)} offset:{16*i}")
    A.label("L_end")
    e("s_endpgm")

    A.label("L_publish")
    e(f"v_and_b32 {va}, 3, {vLane}"); e(f"v_lshlrev_b32 {va}, 3, {va}"); e(f"v_add_u32 {va}, {L_MS}, {va}")
    for w in range(4): e(f"ds_read_b32 v{56+2*w}, {va} offset:{32*w}")
    e(f"ds_read_b64 v[64:65], {va} offset:{L_GS - L_MS}")
    e(f"v_mov_b32 {vb}, {L_FLAG+40}"); e(f"ds_read_b32 {vb}, {vb}")
    e(f"s_and_b32 {sT[0]}, {sW}, 1"); e(f"s_lshl_b32 {sT[0]}, {sT[0]}, 10")
    e(f"s_lshl_b32 {sT[1]}, {sId}, 11"); e(f"s_add_u32 {sT[1]}, {sT[1]}, {WS_PART}"); e(f"s_add_u32 {sT[1]}, {sT[1]}, {sT[0]}")
    e(f"s_add_u32 {sT[0]}, {sT[0]}, {L_ACC}")
    e("s_waitcnt lgkmcnt(0)")
    e(f"v_readfirstlane_b32 {sT[2]}, {vb}")
    for w in range(4): e(f"v_sub_f32 v{56+2*w}, v{56+2*w}, v64")
    for w in range(4): e(f"v_exp_f32 v{56+2*w}, v{56+2*w}")
    for w in range(4): e(f"v_mul_f32 v{56+2*w}, v{56+2*w}, v65")
    for w in range(4): e(f"v_mov_b32 v{57+2*w}, v{56+2*w}")
    e(f"v_add_u32 {va}, {sT[0]}, {vVo}"); e(f"v_add_u32 {vb}, {sT[1]}, {vVo}")
    if opts.get("prerd", 0):
        e(f"s_cmp_gt_u32 {sW}, 5"); e("s_cbranch_scc1 L_nopre")
        e(f"s_cmp_eq_u32 {sT[2]}, 0"); e("s_cbranch_scc0 L_nopre")
        lds_wait("L_pw", 20, 17, "v12", "v13", sleep=4)
        e(f"global_load_dwordx4 v[12:15], {vb}, {sp(sWS)} {opts.get('prepol', 'nt')}")
        e("s_waitcnt vmcnt(0)")
        A.label("L_nopre")
    e("s_barrier")
    stamp(4)
    e(f"s_cmp_gt_u32 {sW}, 5"); e("s_cbranch_scc1 L_pubret")
    for w in range(4): e(f"ds_read_b128 {vr(12+4*w)}, {va} offset:{2048*w}")
    for w in range(4):
        e(f"s_waitcnt lgkmcnt({3-w})")
        for r in (0, 2):
            if w == 0: e(f"v_pk_mul_f32 v[{12+r}:{13+r}], v[{12+r}:{13+r}], v[56:57]")
            else: e(f"v_pk_fma_f32 v[{12+r}:{13+r}], v[{12+4*w+r}:{13+4*w+r}], v[{56+2*w}:{57+2*w}], v[{12+r}:{13+r}]")
    tag4(12)
    e(f"s_cmp_eq_u32 {sT[2]}, 0"); e("s_cbranch_scc1 L_publ")
    e(f"global_store_dwordx4 {vb}, v[12:15], {sp(sWS)} sc1"); e("s_branch L_pubd")
    A.label("L_publ")
    e(f"global_store_dwordx4 {vb}, v[12:15], {sp(sWS)}")
    A.label("L_pubd")
    stamp(5)
    A.label("L_pubret")
    e("s_barrier")
    e("s_setpc_b64 s[66:67]")
    A.fence()

    def tag_from(v):
        e(f"v_readfirstlane_b32 {sTag}, {v}")
        e(f"s_add_u32 {sTag}, {sTag}, 0x01010101")
        for k in range(4): e(f"s_bfe_u32 {sTB[k]}, {sTag}, {(8 << 16) | (8 * k):#x}")
    NP = opts.get("np", 2); C0 = 32 - 8 * NP
    DW = opts.get("dmawin", 1)
    def thr(): e(f"s_waitcnt vmcnt({DW-1})")
    A.label("L_sv4")
    if opts.get("pre0"):
        e(f"s_cmp_lt_u32 {sW}, 6"); e("s_cbranch_scc1 L_nopre0")
        e(f"s_lshl_b32 {sT[0]}, {sId}, 1"); e(f"s_add_u32 {sT[0]}, {sT[0]}, {sW}"); e(f"s_lshl_b32 {sT[0]}, {sT[0]}, 10"); e(f"s_add_u32 {sT[0]}, {sT[0]}, {WS_PART - 6144}")
        e(f"v_add_u32 v5, {sT[0]}, {vVo}")
        e(f"global_load_dwordx4 v[56:59], v5, {sp(sWS)}")
        A.label("L_nopre0")
    if opts.get("touch", False):
        e(f"s_cmp_eq_u32 {sW}, 7"); e("s_cbranch_scc0 L_notouch")
        e(f"v_lshlrev_b32 v5, 16, {vLane}"); e(f"s_lshl_b32 {sT[0]}, s2, 19"); e(f"v_add_u32 v5, {sT[0]}, v5")
        e("s_mov_b64 exec, 0xff")
        e(f"global_load_dword v6, v5, {sp(sV)} nt")
        e("s_mov_b64 exec, 1")
        e(f"global_load_dword v7, v9, {sp(sOUT)} nt")
        e("s_mov_b64 exec, -1")
        e("s_waitcnt vmcnt(0)")
        A.label("L_notouch")
    if opts.get("dmaq", False): lds_wait("L_dq", 0, 1, va, vb, sleep=8)
    A.label("L_down")
    A.label("L_nodown")
    ND = opts.get("ndma", 3)
    if ND < 4: e(f"s_cmp_eq_u32 {sW}, 4"); e("s_cbranch_scc1 L_stats")
    if ND == 2: e(f"s_cmp_eq_u32 {sW}, 5"); e("s_cbranch_scc1 L_wdone")
    e(f"s_sub_u32 {sWW}, {sW}, {8 - ND}")
    if opts.get("nodma"): e("s_branch L_wdone")
    e(f"s_cmp_eq_u32 {sRole}, 1"); e("s_cbranch_scc0 L_now1")
    e(f"s_mov_b32 s40, s{sWO}"); e(f"s_mov_b32 s41, s{sWO+1}"); e(f"s_mov_b32 s42, {4096*1024}"); e("s_mov_b32 s43, 0x20000")
    e(f"v_lshrrev_b32 v5, 5, {vLane}"); e("v_lshlrev_b32 v5, 13, v5"); e(f"v_bfe_u32 v6, {vLane}, 3, 2"); e("v_lshl_add_u32 v5, v6, 10, v5")
    e(f"v_and_b32 v7, 7, {vLane}"); e("v_lshl_add_u32 v5, v7, 4, v5")
    e(f"s_lshl_b32 {sT[2]}, {sG}, 19"); e(f"s_and_b32 {sT[3]}, {sIdx}, 7"); e(f"s_lshl_b32 {sT[3]}, {sT[3]}, 7"); e(f"s_add_u32 {sT[2]}, {sT[2]}, {sT[3]}")
    e(f"s_and_b32 {sT[3]}, {sIdx}, 8"); e(f"s_lshl_b32 {sT[3]}, {sT[3]}, 9"); e(f"s_add_u32 {sT[2]}, {sT[2]}, {sT[3]}")
    e(f"s_lshl_b32 {sT[3]}, {sWW}, 14"); e(f"s_add_u32 {sT[2]}, {sT[2]}, {sT[3]}"); e(f"s_lshl_b32 {sT[1]}, {sWW}, 10")
    A.label("L_dma1")
    e(f"s_mov_b32 m0, {sT[1]}")
    e(f"s_waitcnt vmcnt({opts.get('wowin', 4) - 1})")
    if not opts.get("nowo"): e(f"buffer_load_dwordx4 v5, {srdW}, {sT[2]} offen nt lds")
    e(f"s_add_u32 {sT[2]}, {sT[2]}, {ND*16384}"); e(f"s_add_u32 {sT[1]}, {sT[1]}, {ND*1024}")
    e(f"s_cmp_lt_u32 {sT[1]}, 32768"); e("s_cbranch_scc1 L_dma1")
    e("s_branch L_wdone")
    A.label("L_now1")
    e(f"s_cmp_eq_u32 {sRole}, 2"); e("s_cbranch_scc0 L_wdone")
    e(f"s_cmp_lt_u32 {sWW}, {8 - NLATE}"); e("s_cbranch_scc0 L_wdone")
    gu_addr(sWW)
    A.label("L_dma2")
    e(f"s_mul_i32 {sT[1]}, {sWW}, {WPW}")
    for ep in range(8):
        e(f"s_add_u32 m0, {sT[1]}, {ep*1024}")
        thr()
        e(f"global_load_lds_dwordx4 v[6:7], off {opts.get('gupol', 'nt')}")
        e(f"v_add_co_u32 v6, vcc, {3584*8 if ep < 7 else 3584*(64*ND-56)}, v6"); e("v_addc_co_u32 v7, vcc, 0, v7, vcc")
    e(f"s_add_u32 {sWW}, {sWW}, {ND}"); e(f"s_cmp_lt_u32 {sWW}, {8 - NLATE}"); e("s_cbranch_scc1 L_dma2")
    A.label("L_wdone")
    e("s_waitcnt vmcnt(0)")
    e(f"v_mov_b32 {va}, {L_FLAG+12}"); e(f"v_mov_b32 {vb}, 1")
    e("s_mov_b64 exec, 1"); e(f"ds_add_u32 {va}, {vb}"); e("s_mov_b64 exec, -1")
    stamp(1)
    if ND == 4: e(f"s_cmp_eq_u32 {sW}, 4"); e("s_cbranch_scc1 L_stats")
    A.label("L_svc2")
    lds_wait("L_dw", 12, max(3, ND), va, vb, sleep=16)
    lds_wait("L_sq", 8, 1, va, vb, sleep=16)
    e(f"s_cmp_eq_u32 {sRole}, 1"); e("s_cbranch_scc1 L_st1")
    e(f"s_cmp_eq_u32 {sRole}, 2"); e("s_cbranch_scc1 L_st2")
    e(f"s_cmp_eq_u32 {sRole}, 3"); e("s_cbranch_scc0 L_svc3")
    e(f"s_cmp_ge_u32 {sW}, 6"); e("s_cbranch_scc1 L_st3")
    A.label("L_svc3")
    PF = opts.get("pf", 0)
    if PF: e(f"s_cmp_ge_u32 {sW}, 6"); e("s_cbranch_scc1 L_help")
    get_tag()
    e("s_call_b64 s[66:67], L_publish")
    e("s_branch L_fin")
    if PF:
        A.label("L_help")
        e(f"s_sub_u32 {sT[4]}, {sC}, 16")
        e(f"v_lshrrev_b32 v5, 3, {vLane}"); e(f"s_lshl_b32 {sT[0]}, {sT[4]}, 5"); e(f"v_add_u32 v5, {sT[0]}, v5"); e("v_mul_u32_u24 v5, 3584, v5")
        e(f"v_and_b32 v6, 7, {vLane}"); e("v_lshl_add_u32 v5, v6, 6, v5")
        e(f"s_mul_i32 {sT[0]}, {sG}, 448"); e(f"s_and_b32 {sT[0]}, {sT[0]}, 0xffffff80"); e(f"v_add_u32 v5, {sT[0]}, v5")
        for k in range(1, 4): e(f"v_add_u32 v{5+k}, {8*3584*k}, v5")
        e(f"s_cmp_eq_u32 {sW}, 6"); e(f"s_cselect_b32 s6, s{sWG}, s{sWU}"); e(f"s_cselect_b32 s7, s{sWG+1}, s{sWU+1}")
        e(f"s_mul_i32 {sT[0]}, {sG}, {224*1024}"); e(f"s_mul_i32 {sT[1]}, {sT[4]}, 14336"); e(f"s_add_u32 {sT[0]}, {sT[0]}, {sT[1]}")
        e(f"s_and_b32 {sT[1]}, {sW}, 1"); e(f"s_mul_i32 {sT[1]}, {sT[1]}, 7168"); e(f"s_add_u32 {sT[0]}, {sT[0]}, {sT[1]}")
        e(f"v_lshlrev_b32 v9, 6, {vLane}"); e(f"v_add_u32 v9, {sT[0]}, v9")
        if PF == 2: lds_wait("L_hw", 20, 17, va, vb, sleep=4)
        else: e("s_barrier"); e("s_barrier")
        PP = opts.get("pfpol", "nt")
        for k in range(4): e(f"global_load_dword v{12+k}, v{5+k}, s[6:7] {PP}")
        e(f"global_load_dword v16, v9, {sp(sWD)} {PP}"); e(f"global_load_dword v17, v9, {sp(sWD)} offset:3072 {PP}")
        e("s_branch L_fin")

    A.label("L_stats")
    SG = opts.get("sg", 180); CA, GA = opts.get("cka", (88, 120)); SP = opts.get("spub", 152)
    GH = float(opts.get('gh', 0.32)); GL = float(opts.get('gl', 0.25))
    e(f"v_mov_b32 v24, {L_FLAG}")
    def control(base, lag, sub=None, GH=GH, GL=GL):
        e(f"v_mov_b32 v28, {float(base)}")
        if sub: e(f"v_sub_f32 v28, v28, {sub}")
        e(f"v_fmac_f32 v28, {GH}, {lag}")
        e(f"v_mov_b32 v29, {float(base)}"); e(f"v_fmac_f32 v29, {-GL}, {lag}")
        e(f"v_cmp_lt_f32 vcc, 0, {lag}"); e("v_cndmask_b32 v28, 0, v28, vcc"); e("v_cndmask_b32 v29, v29, 0, vcc")
        e("v_cvt_i32_f32 v26, v28"); e("v_cvt_i32_f32 v27, v29")
        if not opts.get("noctl"): e("ds_write_b64 v24, v[26:27] offset:24")
    e("s_getreg_b32 s71, hwreg(HW_REG_XCC_ID, 0, 4)")
    def ck_pub(k):
        e("s_memrealtime s[68:69]")
        e(f"s_lshl_b32 {sT[0]}, {sId}, 3"); e(f"s_add_u32 {sT[0]}, {sT[0]}, {WS_CK + 2048*k}"); e(f"v_mov_b32 v5, {sT[0]}"); e(f"v_mov_b32 v33, {sTag}")
        e("s_waitcnt lgkmcnt(0)"); e("s_lshl_b32 s68, s68, 4"); e("s_or_b32 s68, s68, s71"); e("v_mov_b32 v32, s68")
        e("s_mov_b64 exec, 1"); e(f"global_store_dwordx2 v5, v[32:33], {sp(sWS)} sc1"); e("s_mov_b64 exec, -1")
    def ck_load(k):
        e(f"v_lshlrev_b32 v6, 5, {vLane}"); e(f"v_add_u32 v6, {WS_CK + 2048*k}, v6")
        e(f"global_load_dwordx4 v[32:35], v6, {sp(sWS)} sc1"); e(f"global_load_dwordx4 v[36:39], v6, {sp(sWS)} offset:16 sc1")
    def ck_lag(bias):
        e(f"v_mov_b32 v40, {opts.get('miss', -400) * 16}")
        for k in range(4):
            e(f"v_sub_u32 v{32+2*k}, s68, v{32+2*k}"); e(f"v_cmp_eq_u32 vcc, {sTag}, v{33+2*k}"); e(f"v_cndmask_b32 v{32+2*k}, v40, v{32+2*k}, vcc")
        e("v_add3_u32 v32, v32, v34, v36"); e("v_add_u32 v32, v32, v38"); e("v_cvt_f32_i32 v32, v32")
        e(f"v_add_f32_dpp v32, v32, v32 quad_perm:[1,0,3,2] {DPPF}"); e(f"v_add_f32_dpp v32, v32, v32 quad_perm:[2,3,0,1] {DPPF}")
        for x in xlane("add", "v32", "v33"): e(x)
        e(f"v_mov_b32 v19, {float(bias)}"); e("v_fmac_f32 v19, 0x39800000, v32")
    lds_wait("L_ca", 20, 4, va, vb, sleep=4)
    ck_pub(0)
    lds_wait("L_ga", 20, 5, va, vb, sleep=8)
    ck_load(0)
    e("s_waitcnt vmcnt(0)")
    e("v_or3_b32 v41, v32, v34, v36"); e("v_or_b32 v41, v41, v38"); e("v_and_b32 v42, v32, v34"); e("v_and_b32 v43, v36, v38"); e("v_and_b32 v42, v42, v43")
    e("v_xor_b32 v41, s71, v41"); e("v_bitop3_b32 v41, v41, v42, s71 bitop3:0xf6"); e("v_and_b32 v41, 15, v41")
    for k in range(4): e(f"v_bitop3_b32 v41, v41, v{33+2*k}, {sTag} bitop3:0xf6")
    e("v_cmp_ne_u32 vcc, 0, v41")
    e(f"s_lshl_b32 {sT[0]}, {sG}, 3"); e(f"s_lshr_b64 vcc, vcc, {sT[0]}"); e("s_and_b32 s70, vcc_lo, 0xff")
    if opts.get("nolocal"): e("s_mov_b32 s70, 1")
    e("v_mov_b32 v41, s70"); e("ds_write_b32 v24, v41 offset:40")
    ck_lag(opts.get('abias', 0.0))
    if opts.get("r2a"):
        e(f"s_cmp_eq_u32 {sRole}, 2"); e(f"s_cselect_b32 {sT[0]}, {opts['r2a']}, 0"); e(f"v_cvt_f32_i32 v25, {sT[0]}"); e("v_add_f32 v19, v19, v25")
    control(GA + 10, "v19")
    e(f"v_subrev_f32 v30, {float(SP)}, v28"); e(f"v_mov_b32 v31, {float(SG + 10 - SP)}"); e("v_med3_f32 v30, v30, 0, v31")
    lds_wait("L_sw", 4, 4, va, vb, sleep=4)
    e(f"v_and_b32 {vc}, 3, {vLane}"); e(f"v_lshlrev_b32 {va}, 3, {vc}"); e(f"v_add_u32 {va}, {L_MS}, {va}")
    for w in range(4): e(f"ds_read_b64 v[{12+2*w}:{13+2*w}], {va} offset:{32*w}")
    e("s_waitcnt lgkmcnt(0)")
    e("v_max3_f32 v20, v12, v14, v16"); e("v_max_f32 v20, v20, v18")
    for w in range(4): e(f"v_sub_f32 v{12+2*w}, v{12+2*w}, v20")
    for w in range(4): e(f"v_exp_f32 v{12+2*w}, v{12+2*w}")
    e("v_mul_f32 v22, v12, v13")
    for w in range(1, 4): e(f"v_fmac_f32 v22, v{12+2*w}, v{13+2*w}")
    e(f"v_mov_b32 v21, {sTag}"); e(f"v_mov_b32 v23, {sTag}")
    e(f"s_lshl_b32 {sT[0]}, {sId}, 6"); e(f"s_add_u32 {sT[0]}, {sT[0]}, {WS_ST}"); e(f"v_add_u32 v5, {sT[0]}, {vVo}")
    e("s_mov_b64 exec, 0xf")
    e("s_cmp_eq_u32 s70, 0"); e("s_cbranch_scc1 L_stl")
    e(f"global_store_dwordx4 v5, v[20:23], {sp(sWS)} sc1"); e("s_branch L_std")
    A.label("L_stl")
    e(f"global_store_dwordx4 v5, v[20:23], {sp(sWS)}")
    A.label("L_std")
    e("s_mov_b64 exec, -1")
    lds_wait("L_cb", 20, 12, va, vb, sleep=4)
    ck_pub(1)
    e(f"s_lshl_b32 {sT[0]}, {sG}, 11"); e(f"s_add_u32 {sT[0]}, {sT[0]}, {WS_ST}"); e(f"v_add_u32 v5, {sT[0]}, {vVo}")
    lds_wait("L_sg", 20, 13, va, vb, sleep=8)
    ck_load(1)
    LC = opts.get("lck", LCK)
    if LC:
        e(f"v_and_b32 v44, 31, {vLane}"); e("v_lshlrev_b32 v44, 3, v44"); e(f"s_lshl_b32 {sT[0]}, {sG}, 8"); e(f"s_add_u32 {sT[0]}, {sT[0]}, {WS_LCK}"); e(f"v_add_u32 v44, {sT[0]}, v44")
        for j in range(len(LC)): e(f"global_load_dwordx2 v[46:47], v44, {sp(sWS)} offset:{2048*j} sc1")
    e("s_waitcnt vmcnt(0)")
    ck_lag(opts.get('lbias', 20))
    if opts.get("r2bias", 110):
        e(f"s_cmp_eq_u32 {sRole}, 2"); e(f"s_cselect_b32 {sT[0]}, {opts.get('r2bias', 110)}, 0"); e(f"s_cmp_eq_u32 {sRole}, 1"); e(f"s_cselect_b32 {sT[0]}, {opts.get('r1bias', 0)}, {sT[0]}"); e(f"v_cvt_f32_i32 v25, {sT[0]}"); e("v_add_f32 v19, v19, v25")
    control(SG + 10, "v19", "v30", float(opts.get("gh2", GH)), float(opts.get("gl2", GL)))
    if debug: e("v_cvt_i32_f32 v19, v19"); e("v_readfirstlane_b32 s73, v19")
    A.label("L_spoll")
    timeout()
    e(f"global_load_dwordx4 v[12:15], v5, {sp(sWS)} sc1"); e(f"global_load_dwordx4 v[16:19], v5, {sp(sWS)} offset:1024 sc1")
    e("s_waitcnt vmcnt(0)")
    e(f"v_xor_b32 v13, {sTag}, v13")
    for r in (15, 17, 19): e(f"v_bitop3_b32 v13, v13, v{r}, {sTag} bitop3:0xf6")
    e("v_cmp_ne_u32 vcc, 0, v13")
    e("s_cbranch_vccz L_sgot")
    e(f"s_sleep {opts.get('ssleep', 32)}"); e("s_branch L_spoll")
    A.label("L_sgot")
    e("v_max_f32 v20, v12, v16")
    for x in xlane("max", "v20", "v21"): e(x)
    e("v_sub_f32 v12, v12, v20"); e("v_sub_f32 v16, v16, v20"); e("v_exp_f32 v12, v12"); e("v_exp_f32 v16, v16")
    e("v_mul_f32 v21, v12, v14"); e("v_fmac_f32 v21, v16, v18")
    for x in xlane("add", "v21", "v22"): e(x)
    e("v_rcp_f32 v21, v21")
    e(f"v_lshlrev_b32 {va}, 3, {vc}"); e(f"v_add_u32 {va}, {L_GS}, {va}")
    e(f"ds_write_b64 {va}, v[20:21]")
    e(f"v_mov_b32 {va}, {L_FLAG+8}"); e(f"v_mov_b32 {vb}, 1")
    e(f"ds_write_b32 {va}, {vb}")
    if debug: e("s_memrealtime s[98:99]")
    if LC:
        e("s_cmp_eq_u32 s70, 0"); e("s_cbranch_scc0 L_svc2")
        e(f"s_lshl_b32 {sT[0]}, {sId}, 3"); e(f"s_add_u32 {sT[0]}, {sT[0]}, {WS_LCK}"); e(f"v_mov_b32 v45, {sT[0]}")
        for j, (C_, G_) in enumerate(LC):
            lds_wait(f"L_lc{j}", 20, 16 + 8*j + 4, va, vb, sleep=2)
            e("s_memrealtime s[68:69]"); e(f"v_mov_b32 v33, {sTag}")
            e(f"v_subrev_f32 v30, {float(C_)}, v28"); e(f"v_mov_b32 v31, {float(G_ + 6 - C_)}"); e("v_med3_f32 v30, v30, 0, v31")
            e("s_waitcnt lgkmcnt(0)"); e("v_mov_b32 v32, s68")
            e("s_mov_b64 exec, 1"); e(f"global_store_dwordx2 v45, v[32:33], {sp(sWS)} offset:{2048*j}"); e("s_mov_b64 exec, -1")
            lds_wait(f"L_lg{j}", 20, 16 + 8*j + 5, va, vb, sleep=2)
            e(f"global_load_dwordx2 v[32:33], v44, {sp(sWS)} offset:{2048*j} sc1")
            e(f"v_mov_b32 v40, {-int((G_ - C_) * 13.5 + opts.get('lmiss', 30))}")
            e("s_waitcnt vmcnt(0)")
            e("v_sub_u32 v32, s68, v32"); e(f"v_cmp_eq_u32 vcc, {sTag}, v33"); e("v_cndmask_b32 v32, v40, v32, vcc"); e("v_cvt_f32_i32 v32, v32")
            e(f"v_add_f32_dpp v32, v32, v32 quad_perm:[1,0,3,2] {DPPF}"); e(f"v_add_f32_dpp v32, v32, v32 quad_perm:[2,3,0,1] {DPPF}")
            for x in xlane("add", "v32", "v33"): e(x)
            e(f"v_add_f32 v19, {float(opts.get('cbias', 0))}, v25"); e("v_fmac_f32 v19, 0x3c800000, v32")
            control(G_ + 6, "v19", "v30", float(opts.get("gh3", 0.26)), float(opts.get("gl3", 0.3)))
    e("s_branch L_svc2")

    main_lines = A.lines; A.lines = []; A.fence()
    A.label("L_service")
    e("s_cmpk_ge_u32 s2, 256"); e("s_cbranch_scc1 L_end")
    common()
    e("v_mov_b32 v8, 0"); e("v_mov_b32 v9, 0"); e("v_mov_b32 v10, 0"); e("v_mov_b32 v11, 0")
    e(f"v_mov_b32 v64, {L_FLAG}")
    e(f"s_cmp_eq_u32 {sW}, 4"); e("s_cbranch_scc0 L_sv1")
    e("ds_write_b128 v64, v[8:11]"); e("ds_write_b128 v64, v[8:11] offset:16"); e("ds_write_b128 v64, v[8:11] offset:32")
    A.label("L_sv1")
    if opts.get("cpre", True):
        e("s_getpc_b64 s[6:7]")
        e(f"v_lshl_add_u32 v6, v5, 11, {vVo}")
        e("v_add_u32 v6, 0xffffe000, v6")
        e("global_load_dwordx4 v[56:59], v6, s[6:7]"); e("global_load_dwordx4 v[60:63], v6, s[6:7] offset:1024")
    e(f"s_cmp_ge_u32 {sC}, {C0}"); e("s_cbranch_scc1 L_qprod")
    common2()
    e("s_waitcnt lgkmcnt(0)")
    e("s_barrier")
    e(f"s_cmp_eq_u32 {sW}, 4"); e("s_cbranch_scc0 L_sv4")
    e(f"global_load_dword v10, v9, {sp(sWS)} sc1")
    e("s_waitcnt vmcnt(0)")
    tag_from("v10")
    e("s_branch L_qget")
    A.label("L_qprod")
    e("s_setprio 3")
    WQ = 128; XR = 12; XF = 20; QA = 36; XA = 66
    RW = 512 // NP // 4; NPR = RW // 16
    e(f"s_and_b32 {sT[5]}, {sC}, 7"); e(f"s_lshl_b32 {sQP}, {sG}, 3"); e(f"s_add_u32 {sQP}, {sQP}, {sT[5]}")
    e(f"s_sub_u32 {sT[4]}, {sC}, {C0}"); e(f"s_lshr_b32 {sT[4]}, {sT[4]}, 3")
    e(f"s_lshl_b32 {sT[3]}, {sT[4]}, 2"); e(f"s_add_u32 {sT[3]}, {sT[3]}, {sW}"); e(f"s_sub_u32 {sT[3]}, {sT[3]}, 4"); e(f"s_mul_i32 {sT[3]}, {sT[3]}, {RW}")
    e(f"v_lshrrev_b32 v5, 3, {vLane}"); e("v_lshlrev_b32 v6, 2, v5")
    e(f"s_lshl_b32 {sT[0]}, {sT[3]}, 1"); e(f"v_add_u32 v6, {sT[0]}, v6")
    e("v_lshlrev_b32 v7, 14, v5"); e(f"v_and_b32 v4, 7, {vLane}"); e("v_lshl_add_u32 v7, v4, 4, v7")
    e(f"s_lshl_b32 {sT[0]}, {sT[3]}, 13"); e(f"s_lshl_b32 {sT[1]}, {sQP}, 7"); e(f"s_add_u32 {sT[0]}, {sT[0]}, {sT[1]}"); e(f"v_add_u32 v7, {sT[0]}, v7")
    e("s_waitcnt lgkmcnt(0)")
    e(f"global_load_dwordx4 {vr(XA)}, {vVo}, {sp(sX)}")
    for k in range(NPR): e(f"global_load_dword v{XR+k}, v6, {sp(sX)} offset:{32*k}")
    e(f"global_load_dword v10, v9, {sp(sWS)} sc1")
    for i in range(2 * NPR):
        e(f"global_load_dwordx4 {vr(WQ+4*i)}, v7, {sp(sWQ)} {opts.get('wqpol', 'nt')}")
        if i < 2 * NPR - 1: e(f"v_add_u32 v7, {0x2000 if i % 2 == 0 else 0x1e000}, v7")
    e("s_barrier")
    common2()
    e(f"s_waitcnt vmcnt({3*NPR + 1})")
    for k in range(4):
        e(f"v_lshlrev_b32 v{44+2*k}, 16, v{XA+k}"); e(f"v_and_b32 v{45+2*k}, 0xffff0000, v{XA+k}")
    def wsum(r, tmp):
        for s in (8, 4, 2, 1): e(f"v_add_f32_dpp {r}, {r}, {r} row_ror:{s} {DPPF}")
        e(f"v_mov_b32 {tmp}, {r}"); e(f"v_permlane16_swap_b32 {tmp}, {r}"); e(f"v_add_f32 {r}, {tmp}, {r}")
        e(f"v_mov_b32 {tmp}, {r}"); e(f"v_permlane32_swap_b32 {tmp}, {r}"); e(f"v_add_f32 {r}, {tmp}, {r}")
    e("v_pk_add_f32 v[52:53], v[44:45], v[46:47]"); e("v_pk_add_f32 v[54:55], v[48:49], v[50:51]"); pk(52, 54)
    e(f"v_add_f32 {va}, v52, v53")
    wsum(va, vb)
    e(f"v_mul_f32 {va}, 0x3b000000, {va}")
    for k in range(8): e(f"v_sub_f32 v{44+k}, v{44+k}, {va}")
    e(f"v_mul_f32 {vc}, v44, v44"); e(f"v_mul_f32 {vd}, v45, v45")
    for k in range(2, 8): e(f"v_fmac_f32 {(vc, vd)[k&1]}, v{44+k}, v{44+k}")
    e(f"v_add_f32 {vc}, {vc}, {vd}")
    wsum(vc, vb)
    e(f"v_mul_f32 {vc}, 0x3b000000, {vc}")
    ln_finish(va, vc, vb)
    e(f"s_waitcnt vmcnt({2*NPR + 1})")
    for k in range(NPR):
        e(f"v_lshlrev_b32 v{XF+2*k}, 16, v{XR+k}"); e(f"v_and_b32 v{XF+2*k+1}, 0xffff0000, v{XR+k}")
    for k in range(2*NPR): e(f"v_sub_f32 v{XF+k}, v{XF+k}, {va}")
    for k in range(NPR): e(f"v_cvt_pk_bf16_f32 v{XR+k}, v{XF+2*k}, v{XF+2*k+1}")
    for k in range(NPR):
        e(f"v_lshlrev_b32 v{XF+2*k}, 16, v{XR+k}"); e(f"v_and_b32 v{XF+2*k+1}, 0xffff0000, v{XR+k}")
    for k in range(2*NPR): e(f"v_mul_f32 v{XF+k}, {vc}, v{XF+k}")
    for k in range(NPR): e(f"v_cvt_pk_bf16_f32 v{XR+k}, v{XF+2*k}, v{XF+2*k+1}")
    for k in range(8): e(f"v_mov_b32 v{QA+k}, 0")
    e(f"v_lshrrev_b32 v5, 4, {vLane}"); e("v_lshlrev_b32 v5, 3, v5"); e("v_lshl_add_u32 v5, v4, 5, v5")
    e(f"s_lshl_b32 {sT[0]}, {sW}, 8"); e(f"s_add_u32 {sT[0]}, {sT[0]}, {L_QP - 1024}"); e(f"v_add_u32 v5, {sT[0]}, v5")
    for p in range(NPR):
        e(f"s_waitcnt vmcnt({2*NPR - 2 - 2*p})")
        for ee in range(8):
            e(f"v_perm_b32 v{44+ee}, v{WQ+4*(2*p+1)+(ee>>1)}, v{WQ+4*(2*p)+(ee>>1)}, {sSelHi if ee & 1 else sSelLo}")
        for ee in range(8): e(f"v_dot2c_f32_bf16 v{QA+ee}, v{44+ee}, v{XR+p}")
    if debug: e("s_memrealtime s[70:71]")
    for o in (0, 1):
        e(f"v_permlane32_swap_b32 v{QA+o}, v{QA+4+o}"); e(f"v_permlane32_swap_b32 v{QA+2+o}, v{QA+6+o}")
    for o in (0, 1):
        e(f"v_add_f32 v{QA+o}, v{QA+o}, v{QA+4+o}"); e(f"v_add_f32 v{QA+2+o}, v{QA+2+o}, v{QA+6+o}")
    for o in (0, 1): e(f"v_permlane16_swap_b32 v{QA+o}, v{QA+2+o}")
    for o in (0, 1): e(f"v_add_f32 v{QA+o}, v{QA+o}, v{QA+2+o}")
    for o in (0, 1): e(f"v_add_f32_dpp v{QA+o}, v{QA+o}, v{QA+o} row_ror:8 {DPPF}")
    e(f"ds_write_b64 v5, v[{QA}:{QA+1}]")
    e("v_mov_b32 v44, 1")
    e("s_mov_b64 exec, 1"); e("ds_add_u32 v64, v44 offset:32"); e("s_mov_b64 exec, -1")
    e(f"s_cmp_eq_u32 {sW}, 4"); e("s_cbranch_scc1 L_qp4")
    e("s_setprio 0")
    e("s_branch L_sv4")
    A.label("L_qp4")
    tag_from("v10")
    if NP == 1:
        e(f"s_lshl_b32 {sT[1]}, {sQP}, 8"); e(f"s_add_u32 {sT[1]}, {sT[1]}, {WS_Q}"); e(f"v_add_u32 v6, {sT[1]}, {vVo}")
        e(f"v_add_u32 v5, {L_QP}, {vVo}")
        lds_wait("L_qpw", 32, 4, va, vb, sleep=0)
        e("s_mov_b64 exec, 0xffff")
        for v in range(4): e(f"ds_read_b128 {vr(44+4*v)}, v5 offset:{256*v}")
        e("s_waitcnt lgkmcnt(0)")
        add4(44, 48); add4(52, 56); add4(44, 52)
        e("v_cvt_pk_bf16_f32 v44, v44, v45"); e("v_cvt_pk_bf16_f32 v46, v46, v47")
    else:
        e(f"s_mul_i32 {sT[1]}, {sG}, {NP}"); e(f"s_add_u32 {sT[1]}, {sT[1]}, {sT[4]}"); e(f"s_lshl_b32 {sT[1]}, {sT[1]}, 3"); e(f"s_add_u32 {sT[1]}, {sT[1]}, {sT[5]}")
        e(f"s_lshl_b32 {sT[1]}, {sT[1]}, 9"); e(f"s_add_u32 {sT[1]}, {sT[1]}, {WS_Q}"); e(f"v_add_u32 v6, {sT[1]}, {vVo}")
        e(f"v_lshlrev_b32 v5, 3, {vLane}"); e(f"v_add_u32 v5, {L_QP}, v5")
        lds_wait("L_qpw", 32, 4, va, vb, sleep=0)
        e("s_mov_b32 exec_hi, 0")
        for v in range(4): e(f"ds_read_b64 v[{48+2*v}:{49+2*v}], v5 offset:{256*v}")
        e("s_waitcnt lgkmcnt(0)")
        pk(48, 50); pk(52, 54)
        e("v_add_f32 v44, v48, v52"); e("v_add_f32 v46, v49, v53")
    e(f"v_mov_b32 v45, {sTag}"); e(f"v_mov_b32 v47, {sTag}")
    e(f"global_store_dwordx4 v6, v[44:47], {sp(sWS)} sc1")
    e("s_mov_b64 exec, -1")
    e("s_setprio 0")
    A.label("L_qget")
    NLD = 2 if NP == 1 else 4 * NP
    e(f"s_mul_i32 {sT[0]}, {sG}, {NLD*1024}"); e(f"s_add_u32 {sT[0]}, {sT[0]}, {WS_Q + 4096}")
    e(f"v_add_u32 v5, {sT[0]}, {vVo}"); e("v_add_u32 v7, 0x2000, v5")
    e(f"v_lshlrev_b32 v6, {3 if NP == 1 else 2}, {vLane}"); e(f"v_add_u32 v6, {L_Q}, v6")
    e(f"v_mov_b32 v52, {sTag}"); e("ds_write_b32 v64, v52 offset:16")
    if opts.get("qstart", 24): lds_wait("L_qs", 36, 1, va, vb, sleep=4)
    e(f"s_mov_b32 {sT[5]}, 0")
    A.label("L_qpoll")
    timeout()
    for k in range(NLD):
        e(f"s_bitcmp1_b32 {sT[5]}, {k}"); e(f"s_cbranch_scc1 L_qk{k}")
        e(f"global_load_dwordx4 {vr(128+4*k)}, {'v5' if k < 8 else 'v7'}, {sp(sWS)} offset:{1024*(k&7) - 4096} sc1")
        A.label(f"L_qk{k}")
    e("s_waitcnt vmcnt(0)")
    e(f"s_mov_b32 {sT[5]}, 0")
    for k in range(NLD):
        e(f"v_xor_b32 {va}, {sTag}, v{129+4*k}"); e(f"v_bitop3_b32 {va}, {va}, v{131+4*k}, {sTag} bitop3:0xf6")
        e(f"v_cmp_ne_u32 vcc, 0, {va}"); e("s_cmp_eq_u64 vcc, 0"); e(f"s_cselect_b32 {sT[0]}, {1 << k}, 0"); e(f"s_or_b32 {sT[5]}, {sT[5]}, {sT[0]}")
    e(f"s_cmp_eq_u32 {sT[5]}, {(1 << NLD) - 1}"); e("s_cbranch_scc1 L_qgot")
    e(f"s_sleep {opts.get('qsleep', 8)}"); e("s_branch L_qpoll")
    A.label("L_qgot")
    if NP == 1:
        for h in range(2):
            e(f"v_mov_b32 v{129+4*h}, v{130+4*h}"); e(f"ds_write_b64 v6, v[{128+4*h}:{129+4*h}] offset:{512*h}")
    else:
        for m in range(4):
            for o in (0, 2):
                r = 128 + 4*m + o
                e(f"v_add_f32 v{r}, v{r}, v{r+16}")
                if NP == 4: e(f"v_add_f32 v{r+32}, v{r+32}, v{r+48}"); e(f"v_add_f32 v{r}, v{r}, v{r+32}")
            e(f"v_cvt_pk_bf16_f32 v{128+4*m}, v{128+4*m}, v{130+4*m}")
            e(f"ds_write_b32 v6, v{128+4*m} offset:{256*m}")
    e("v_mov_b32 v48, 1"); e("ds_write_b32 v64, v48")
    if debug: e("s_memrealtime s[72:73]")
    e("s_branch L_down")

    head = A.lines; A.lines = main_lines
    k = A.lines.index("@@SERVICE_HEAD@@"); A.lines[k:k+1] = head
    A.raw('.section .rodata,"a"'); A.raw(".p2align 6"); A.raw(f".amdhsa_kernel {NAME}")
    for l in ["next_free_vgpr 256", "next_free_sgpr 102", "accum_offset 256", "group_segment_fixed_size 0", "kernarg_size 96",
              "user_sgpr_count 2", "user_sgpr_kernarg_segment_ptr 1", "system_sgpr_workgroup_id_x 1", "float_denorm_mode_32 3"]:
        A.raw("  .amdhsa_" + l)
    A.raw(".end_amdhsa_kernel")
    return A.text()

if __name__ == "__main__":
    dbg = "--debug" in sys.argv
    sys.stdout.write(gen(debug=dbg))
```
